```python
import torch

def _softmax(x, axis=-1):
    return torch.softmax(x, dim=axis)
def _gelu(x):
    return torch.nn.functional.gelu(x, approximate="tanh")
def _silu(x):
    return torch.nn.functional.silu(x)
def _sigmoid(x):
    return torch.sigmoid(x)
def _layernorm(x, axis=-1, eps=1e-5):
    m = x.mean(dim=axis, keepdim=True)
    v = x.var(dim=axis, keepdim=True, unbiased=False)
    return (x - m) / torch.sqrt(v + eps)
def _scatter_add(tgt, idx, src, axis=0):
    return tgt.clone().index_add_(axis, idx, src)
def _segment_sum(src, seg, n):
    out = torch.zeros((n,) + src.shape[1:], dtype=src.dtype)
    return out.index_add_(0, seg, src)
def _pad(x, pw):
    flat = tuple(v for pair in reversed(pw) for v in pair)
    return torch.nn.functional.pad(x, flat)

kernel_name = 'standalone__glu_gated_geglu__prompt'

def setup_inputs():

    _w = (lambda a: (lambda t: t.to(torch.bfloat16) if t.is_floating_point() else t)(torch.as_tensor(a)))
    B, S, Dm, Df = 1, 2048, 576, 4608
    return {
        "x": _w((lambda *s: torch.randn(*s, dtype=torch.bfloat16) * 0.05)(B, S, Dm)),
        "w_gate": _w((lambda *s: torch.randn(*s, dtype=torch.bfloat16) * 0.05)(Dm, Df) * (Dm ** -0.5)),
        "w_up": _w((lambda *s: torch.randn(*s, dtype=torch.bfloat16) * 0.05)(Dm, Df) * (Dm ** -0.5)),
        "w_down": _w((lambda *s: torch.randn(*s, dtype=torch.bfloat16) * 0.05)(Df, Dm) * (Df ** -0.5)),
    }

def reference(x, w_gate, w_up, w_down):
    g = torch.einsum("bsd,df->bsf", x, w_gate)
    u = torch.einsum("bsd,df->bsf", x, w_up)
    h = _gelu(g) * u
    return torch.einsum("bsf,fd->bsd", h, w_down)
```

```python
import sys, struct

KNAME = "standalone__glu_gated_geglu__prompt_kernel"

DM, DF, NTOK = 576, 4608, 2048
XROW = DM * 2
WROW = DF * 2
LDS_BYTES = 163840
W1_KS = 8192
XST = 98304
WD_SLOT = 18432
SCRATCH = 147456
H_KS = 4096
WS_P = 32 << 20
WS_SIZE = 64 << 20
OOB = 0x40000000
GA = -2.0 * 0.7978845608028654 * 1.4426950408889634
GB = GA * 0.044715
SPIN_MAX = 400000

def f2u(x): return struct.unpack('<I', struct.pack('<f', x))[0]

S = {}
SRD_X, SRD_G, SRD_U, SRD_D, SRD_W, SRD_O, SRD_F, SRD_Q = 8, 12, 16, 20, 24, 28, 32, 36
def srd(b): return f"s[{b}:{b+3}]"
_n = 40
for nm in ["wave", "mb", "sk", "jj", "cu", "th", "kh", "xoff", "w1col", "wqcol", "hst", "hstq", "hldA", "hldB", "hlqA", "hlqB",
           "wd0", "wdq", "flagh", "t0", "t1", "t2", "t3", "t4", "t5", "m0w", "m0x", "m0q", "m0d", "m0d5", "kb", "pst", "pld",
           "outb", "spin", "phi0", "so", "so2", "pf", "tA", "tB"]:
    S[nm] = _n; _n += 1
assert _n <= 100
def s(n): return f"s{S[n]}"

V_LANE = 1
V_W1 = 2
V_WQ = 3
V_A = 4
V_AQ = 10
V_L16 = 11
V_L8 = 12
V_KA = 13
V_PUB = 14
V_ONE = 15
V_FL = 16
V_T0 = 17; V_T1 = 18; V_T2 = 19; V_T3 = 20
V_X = 21
V_XR = 25
V_WD = 27
V_HS = 32
V_GT = 40
N_GSET = 5
V_A2 = 60
V_Z = 63
V_XO = 64
V_AR = 96
V_BUF = [128, 192]
V_FO = 21; V_OUT = 22; V_RED = 23; V_RED2 = 24

def xreg(ks, tt):
    i = ks * 4 + tt
    if i < 64: return f"a[{4*i}:{4*i+3}]"
    b = V_XO + 4 * (i - 64)
    return f"v[{b}:{b+3}]"
def hreg(t, tt):
    b = 16 * (t % 7) + 4 * tt
    return b
def acc2(dt, tt):
    b = 112 + 16 * dt + 4 * tt
    return b

def expected_count(tag):
    if tag.startswith("POLL") or tag.startswith("PUB"): return 1
    if tag == "WQ": return 9
    if tag == "PS": return 18
    if tag.startswith("PL"): return 1
    if tag.startswith("HS"): return 4
    if tag[0] == "X": return 4
    if tag[0] == "W": return 6
    if tag[0] == "D": return 5
    if tag[0] == "H": return 4 if int(tag[1:]) < 16 else 8
    raise KeyError(tag)

class Emit:
    def __init__(self):
        self.L = []
        self.vm = []
        self.vm_done = 0
        self.ds_out = 0
        self.slow = []
        self.nlab = 0
    def raw(self, t):
        for x in t.split("\n"):
            self.L.append(x)
    def vmem(self, text, tag):
        self.L.append(text)
        self.vm.append(tag)
    def ds(self, text):
        if self.ds_out >= 15:
            self.L.append("s_waitcnt lgkmcnt(10)")
            self.ds_out = 10
        self.L.append(text)
        self.ds_out += 1
    def _vmN(self, tags):
        idx = -1
        for tg in tags:
            exp = expected_count(tg)
            got = self.vm.count(tg)
            assert got == exp, f"wait on {tg}: {got} ops issued, expected {exp}"
        for i, t in enumerate(self.vm):
            if t in tags: idx = i
        assert idx >= 0, f"no vmem op with tags {tags}"
        if idx < self.vm_done: return None
        return min(len(self.vm) - 1 - idx, 63)
    def wait(self, vm=None, ds=None, barrier=False):
        parts = []
        if vm is not None:
            if isinstance(vm, str): vm = [vm]
            n = self._vmN(set(vm))
            if n is not None:
                parts.append(f"vmcnt({n})")
                self.vm_done = max(self.vm_done, len(self.vm) - n)
        if ds is not None and self.ds_out > ds:
            parts.append(f"lgkmcnt({ds})")
            self.ds_out = ds
        if parts:
            self.L.append("s_waitcnt " + " ".join(parts))
        if barrier:
            self.L.append("s_barrier")
    def wait_all(self):
        self.L.append("s_waitcnt vmcnt(0) lgkmcnt(0)")
        self.vm_done = len(self.vm); self.ds_out = 0
    def assert_done(self, tag):
        found = False
        for i, t in enumerate(self.vm):
            if t == tag:
                found = True
                assert i < self.vm_done, f"tag {tag} not complete"
        assert found, f"tag {tag} never issued"
    def issued(self, tag):
        return tag in self.vm
    def label(self, base):
        self.nlab += 1
        return f"L_{base}_{self.nlab}"

class Item:
    def __init__(self, text, cost, deps=()):
        self.text = text; self.cost = cost; self.deps = list(deps); self.placed = None

class Stream:
    def __init__(self):
        self.items = []; self.head = 0; self.gap = 0
    def add(self, text, cost, deps=()):
        it = Item(text, cost, deps); self.items.append(it); return it
    def pending(self):
        return sum(1 for it in self.items[self.head:] if it.placed is None)
    def pending_cost(self):
        return sum(it.cost for it in self.items[self.head:] if it.placed is None)
    def tick(self):
        self.gap += 1
    def fill(self, E, cap, window=48):
        used = 0
        while used < cap:
            while self.head < len(self.items) and self.items[self.head].placed is not None:
                self.head += 1
            pick = None
            for it in self.items[self.head:self.head + window]:
                if it.placed is not None or it.cost > cap - used: continue
                if all(d.placed is not None and self.gap >= d.placed + delta for d, delta in it.deps):
                    pick = it; break
            if pick is None: break
            pick.placed = self.gap
            if callable(pick.text): pick.text(E)
            else: E.raw(pick.text)
            used += pick.cost
        return used
    def flush(self, E):
        n = 0
        while self.pending():
            self.tick()
            E.raw("s_nop 0")
            self.fill(E, 2)
            n += 1
        return n

class Gelu:
    def __init__(self, st):
        self.st = st
        self.pairno = 0
        self.set_last = [None] * N_GSET
        self.stg = 0
        self.stg_last = [None, None]
    def pair(self, g0, u0, g1, u1, dst):
        st = self.st
        k = self.pairno % N_GSET; self.pairno += 1
        T0, T1, G0, G1 = [V_GT + 4 * k + i for i in range(4)]
        prev = [(self.set_last[k], 0)] if self.set_last[k] is not None else []
        sprev = dst[1]
        a0 = st.add(f"v_mul_f32 v{T0}, v{g0}, v{g0}", 1, prev)
        a1 = st.add(f"v_mul_f32 v{T1}, v{g1}, v{g1}", 1, prev)
        b0 = st.add(f"v_fma_f32 v{T0}, v{T0}, {s('kb')}, v{V_KA}", 1, [(a0, 0)])
        b1 = st.add(f"v_fma_f32 v{T1}, v{T1}, {s('kb')}, v{V_KA}", 1, [(a1, 0)])
        c0 = st.add(f"v_mul_f32 v{T0}, v{T0}, v{g0}", 1, [(b0, 0)])
        c1 = st.add(f"v_mul_f32 v{T1}, v{T1}, v{g1}", 1, [(b1, 0)])
        e0 = st.add(f"v_exp_f32 v{T0}, v{T0}", 2, [(c0, 0)])
        e1 = st.add(f"v_exp_f32 v{T1}, v{T1}", 2, [(c1, 0)])
        m0 = st.add(f"v_mul_f32 v{G0}, v{g0}, v{u0}", 1, prev)
        m1 = st.add(f"v_mul_f32 v{G1}, v{g1}, v{u1}", 1, prev)
        d0 = st.add(f"v_add_f32 v{T0}, 1.0, v{T0}", 1, [(e0, 1)])
        d1 = st.add(f"v_add_f32 v{T1}, 1.0, v{T1}", 1, [(e1, 1)])
        r0 = st.add(f"v_rcp_f32 v{T0}, v{T0}", 2, [(d0, 0)])
        r1 = st.add(f"v_rcp_f32 v{T1}, v{T1}", 2, [(d1, 0)])
        h0 = st.add(f"v_mul_f32 v{G0}, v{G0}, v{T0}", 1, [(r0, 1), (m0, 0)])
        h1 = st.add(f"v_mul_f32 v{G1}, v{G1}, v{T1}", 1, [(r1, 1), (m1, 0)])
        pk = st.add(f"v_cvt_pk_bf16_f32 v{dst[0]}, v{G0}, v{G1}", 1, [(h0, 0), (h1, 0)] + ([(sprev, 2)] if sprev is not None else []))
        self.set_last[k] = pk
        return pk
    def full_pass(self, buf, store_fn):
        last = None
        for tt in range(4):
            sg = self.stg % 2; self.stg += 1
            base = V_HS + 4 * sg
            pks = []
            for grp in range(2):
                for hp in range(2):
                    g = buf + (grp * 2 + 0) * 16 + tt * 4 + 2 * hp
                    u = buf + (grp * 2 + 1) * 16 + tt * 4 + 2 * hp
                    pks.append(self.pair(g, u, g + 1, u + 1, (base + grp * 2 + hp, self.stg_last[sg])))
            stt = self.st.add((lambda E, tt=tt, base=base: store_fn(E, tt, base)), 2, [(p, 1) for p in pks])
            self.stg_last[sg] = stt
            last = stt
        return last
    def quarter(self, buf, store_fn):
        last = None
        for tt in range(4):
            sg = self.stg % 2; self.stg += 1
            base = V_HS + 4 * sg
            pks = []
            for hp in range(2):
                g = buf + tt * 4 + 2 * hp
                u = buf + 16 + tt * 4 + 2 * hp
                pks.append(self.pair(g, u, g + 1, u + 1, (base + hp, self.stg_last[sg])))
            stt = self.st.add((lambda E, tt=tt, base=base: store_fn(E, tt, base)), 2, [(p, 1) for p in pks])
            self.stg_last[sg] = stt
            last = stt
        return last

def mfma(d, a, b, first, dpre="v"):
    c = "0" if first else f"{dpre}[{d}:{d+3}]"
    return f"v_mfma_f32_16x16x32_bf16 {dpre}[{d}:{d+3}], {a}, {b}, {c}"

def vr(b, n=4): return f"v[{b}:{b+n-1}]"
def ar(b, n=4): return f"a[{b}:{b+n-1}]"

def prologue(E, opt):
    R = E.raw
    L = V_LANE
    T0, T1, T2, T3 = V_T0, V_T1, V_T2, V_T3
    R("s_cmp_ge_u32 s2, 256")
    R("s_cbranch_scc1 L_end")
    R("s_load_dwordx4 s[4:7], s[0:1], 0")
    R("s_load_dwordx4 s[16:19], s[0:1], 16")
    R("s_load_dwordx4 s[28:31], s[0:1], 32")
    R("s_load_dwordx2 s[24:25], s[0:1], 48")
    R(f"v_and_b32 v{L}, 63, v0")
    R(f"v_lshrrev_b32 v{T0}, 6, v0")
    R(f"s_and_b32 {s('sk')}, s2, 3")
    R(f"v_readfirstlane_b32 {s('wave')}, v{T0}")
    R(f"s_lshr_b32 {s('t0')}, s2, 2\ns_and_b32 {s('t0')}, {s('t0')}, 1")
    R(f"s_lshr_b32 {s('t1')}, s2, 3")
    R(f"s_and_b32 {s('jj')}, {s('t1')}, 7")
    R(f"s_lshr_b32 {s('t1')}, {s('t1')}, 3")
    R(f"s_lshl_b32 {s('mb')}, {s('t0')}, 2\ns_add_u32 {s('mb')}, {s('mb')}, {s('t1')}")
    R(f"s_lshl_b32 {s('cu')}, {s('mb')}, 5\ns_lshl_b32 {s('t0')}, {s('sk')}, 3\ns_add_u32 {s('cu')}, {s('cu')}, {s('t0')}\ns_add_u32 {s('cu')}, {s('cu')}, {s('jj')}")
    R(f"s_and_b32 {s('th')}, {s('wave')}, 1\ns_lshr_b32 {s('kh')}, {s('wave')}, 1")
    R(f"s_lshl_b32 {s('t0')}, {s('mb')}, 2\ns_add_u32 {s('t0')}, {s('t0')}, {s('wave')}\ns_mul_i32 {s('xoff')}, {s('t0')}, {64*XROW}")
    R(f"s_mul_i32 {s('t0')}, {s('sk')}, 2304")
    R(f"s_lshl_b32 {s('t1')}, {s('jj')}, 8\ns_add_u32 {s('w1col')}, {s('t0')}, {s('t1')}")
    R(f"s_lshl_b32 {s('t1')}, {s('jj')}, 5\ns_add_u32 {s('wqcol')}, {s('t0')}, {s('t1')}\ns_add_u32 {s('wqcol')}, {s('wqcol')}, 2048")
    R(f"s_mul_i32 {s('t1')}, {s('kh')}, {32*WROW}\ns_add_u32 {s('wqcol')}, {s('wqcol')}, {s('t1')}")
    R(f"s_lshl_b32 {s('m0w')}, {s('wave')}, 11")
    R(f"s_lshl_b32 {s('m0q')}, {s('wave')}, 10")
    R(f"s_lshl_b32 {s('m0x')}, {s('wave')}, 14\ns_add_u32 {s('m0x')}, {s('m0x')}, {XST}")
    R(f"v_lshrrev_b32 v{T0}, 3, v{L}")
    R(f"v_and_b32 v{T1}, 7, v{L}")
    R(f"v_lshrrev_b32 v{T2}, 1, v{T0}")
    R(f"v_xor_b32 v{T2}, v{T2}, v{T1}")
    R(f"v_mul_u32_u24 v{T3}, {XROW}, v{T0}")
    R(f"v_lshl_add_u32 v{V_X}, v{T2}, 4, v{T3}")
    R(f"v_xor_b32 v{V_X+1}, 64, v{V_X}")
    R(f"v_add_u32 v{V_X+2}, {2*(8*XROW-1024)}, v{V_X}")
    R(f"v_add_u32 v{V_X+3}, {3*(8*XROW-1024)}, v{V_X+1}")
    R(f"v_add_u32 v{V_X+1}, {1*(8*XROW-1024)}, v{V_X+1}")
    R(f"v_and_b32 v{T2}, 2, v{T0}")
    R(f"v_xor_b32 v{T2}, v{T2}, v{T1}")
    R(f"s_lshl_b32 {s('t0')}, {s('th')}, 2")
    R(f"v_xor_b32 v{T2}, {s('t0')}, v{T2}")
    R(f"v_mul_u32_u24 v{T3}, {WROW}, v{T0}")
    R(f"v_lshl_add_u32 v{V_W1}, v{T2}, 4, v{T3}")
    R(f"s_mul_i32 {s('t0')}, {s('wave')}, {8*WROW}")
    R(f"v_add_u32 v{V_W1}, {s('t0')}, v{V_W1}")
    R("s_waitcnt lgkmcnt(0)")
    R(f"s_mov_b32 s8, s4\ns_mov_b32 s9, s5\ns_mov_b32 s10, {NTOK*XROW}\ns_mov_b32 s11, 0x20000")
    R(f"s_mov_b32 s12, s6\ns_mov_b32 s13, s7\ns_mov_b32 s14, {DM*WROW}\ns_mov_b32 s15, 0x20000")
    R(f"s_mov_b32 s20, s18\ns_mov_b32 s21, s19\ns_mov_b32 s22, {DF*XROW}\ns_mov_b32 s23, 0x20000")
    R(f"s_cmp_eq_u32 {s('th')}, 0")
    R(f"s_cselect_b32 s36, s6, s16\ns_cselect_b32 s37, s7, s17\ns_mov_b32 s38, {DM*WROW}\ns_mov_b32 s39, 0x20000")
    R(f"s_sub_u32 s16, s16, 1024\ns_subb_u32 s17, s17, 0\ns_mov_b32 s18, {DM*WROW+1024}\ns_mov_b32 s19, 0x20000")
    R(f"s_mov_b32 s32, s30\ns_mov_b32 s33, s31\ns_mov_b32 s34, 256\ns_mov_b32 s35, 0x20000")
    R(f"s_mov_b32 s30, {NTOK*XROW}\ns_mov_b32 s31, 0x20000")
    R(f"s_mov_b32 s26, {WS_SIZE}\ns_mov_b32 s27, 0x20000")

def issue_x(E, piece):
    c, hf = piece >> 1, piece & 1
    E.raw(f"s_add_u32 m0, {s('m0x')}, {(piece % 4) * 4096}")
    E.raw(f"s_add_u32 {s('so2')}, {s('xoff')}, {hf * 32 * XROW + c * 128}")
    for u in range(4):
        E.vmem(f"buffer_load_dwordx4 v{V_X+u}, {srd(SRD_X)}, {s('so2')} offen offset:{u*1024} lds", f"X{piece}")

def w1_ops(line, ks):
    def setup(E):
        E.raw(f"s_add_u32 m0, {s('m0w')}, {ks * W1_KS}")
        E.raw(f"s_add_u32 {s('so')}, {s('w1col')}, {ks * 32 * WROW + line * 128}")
    def g(E): E.vmem(f"buffer_load_dwordx4 v{V_W1}, {srd(SRD_G)}, {s('so')} offen lds", f"W{line}_{ks//3}")
    def u(E): E.vmem(f"buffer_load_dwordx4 v{V_W1}, {srd(SRD_U)}, {s('so')} offen offset:1024 lds", f"W{line}_{ks//3}")
    return setup, g, u

def issue_w1_slot(E, line, slot):
    for ks in range(3 * slot, 3 * slot + 3):
        a, b, c = w1_ops(line, ks)
        a(E); b(E); c(E)

def read_x(E, chunk):
    out = []
    for hf in range(2):
        piece = 2 * chunk + hf
        for h in range(2):
            for tp in range(2):
                ks = 2 * chunk + h
                tt = 2 * hf + tp
                out.append(f"ds_read_b128 {xreg(ks, tt)}, v{V_XR + h} offset:{(piece % 4) * 4096 + tp * 2048}")
    return out

def areads_w1(ph, ks):
    out = []
    reg, kk = divmod(ks, 6)
    for f in range(4):
        grp, mat = f >> 1, f & 1
        d = V_AR + 16 * (ks & 1) + 4 * f
        base = V_A + 2 * reg + grp
        for sec in range(2):
            out.append(f"ds_read_b64_tr_b16 v[{d+2*sec}:{d+2*sec+1}], v{base} offset:{kk*W1_KS + mat*1024 + sec*512}")
    return out

def areads_q(ks, par):
    out = []
    for mat in range(2):
        d = V_AR + 16 * par + 4 * mat
        for sec in range(2):
            out.append(f"ds_read_b64_tr_b16 v[{d+2*sec}:{d+2*sec+1}], v{V_AQ} offset:{ks*2048 + mat*1024 + sec*256}")
    return out

def areads_g2(t, sub, par):
    slot = (t + 2) % 8
    reg, sl = divmod(slot, 3)
    out = []
    for k in range(3):
        dt = 3 * sub + k
        d = V_AR + 12 * par + 4 * k
        for sec in range(2):
            out.append(f"ds_read_b64_tr_b16 v[{d+2*sec}:{d+2*sec+1}], v{V_A2+reg} offset:{sl*WD_SLOT + dt*32 + sec*4608}")
    return out

def kap(t):
    return 4 * (t & 3) + (t >> 2)

def wd_ops(t):
    slot = (t + 2) % 8
    def setup(E):
        E.raw(f"s_add_u32 m0, {s('m0d')}, {slot * WD_SLOT}")
        if t < 16: E.raw(f"s_add_u32 {s('so')}, {s('wd0')}, {32 * kap(t) * XROW}")
        else: E.raw(f"s_add_u32 {s('so')}, {s('wdq')}, {32 * (t - 16) * XROW}")
    def mk(i):
        def f(E): E.vmem(f"buffer_load_dwordx4 v{V_WD+i}, {srd(SRD_D)}, {s('so')} offen offset:{i*1024} lds", f"D{t}")
        return f
    def setup5(E):
        E.raw(f"s_and_b32 {s('tA')}, {s('t5')}, {slot * WD_SLOT}")
        E.raw(f"s_add_u32 m0, {s('m0d5')}, {s('tA')}")
    def d4(E): E.vmem(f"buffer_load_dwordx4 v{V_WD+4}, {srd(SRD_D)}, {s('so')} offen lds", f"D{t}")
    return [(setup, 's'), (mk(0), 'v'), (mk(1), 'v'), (mk(2), 'v'), (mk(3), 'v'), (setup5, 's'), (d4, 'v')]

def h_ops(t):
    ops = []
    if t < 16:
        def setup(E):
            E.raw(f"s_add_u32 {s('tA')}, {s('hldA')}, {kap(t) * H_KS}")
            E.raw(f"s_add_u32 {s('tB')}, {s('hldB')}, {kap(t) * H_KS}")
        ops.append((setup, 's'))
        for tt in range(4):
            def f(E, tt=tt):
                so = s('tA') if tt < 2 else s('tB')
                E.vmem(f"buffer_load_dwordx4 {ar(hreg(t, tt))}, v{V_L16}, {srd(SRD_W)}, {so} offen offset:{(tt & 1) * 1024} sc1", f"H{t}")
            ops.append((f, 'v'))
    else:
        def setup(E):
            E.raw(f"s_add_u32 {s('tA')}, {s('hlqA')}, {(t - 16) * H_KS}")
            E.raw(f"s_add_u32 {s('tB')}, {s('hlqB')}, {(t - 16) * H_KS}")
        ops.append((setup, 's'))
        for tt in range(4):
            for hf in range(2):
                def f(E, tt=tt, hf=hf):
                    so = s('tA') if tt < 2 else s('tB')
                    b = hreg(t, tt) + 2 * hf
                    E.vmem(f"buffer_load_dwordx2 {ar(b, 2)}, v{V_L8}, {srd(SRD_W)}, {so} offen offset:{(tt & 1) * 1024 + hf * 512} sc1", f"H{t}")
                ops.append((f, 'v'))
    return ops

def publish_op(level):
    def f(E):
        E.vmem(f"buffer_atomic_add v{V_ONE}, v{V_PUB}, {srd(SRD_F)}, {s('pf')} offen", f"PUB{level}")
    return f

def poll_issue(name):
    def f(E):
        E.vmem(f"buffer_load_dword v{V_FL}, v{V_Z}, {srd(SRD_F)}, {s('flagh')} offen sc1", f"POLL{name}")
    return f

def poll_check(E, name, level):
    add = (0x80 - level) * 0x01010101
    ok = E.label("pok"); slow = E.label("pslow"); chk = E.label("pchk")
    E.wait(vm=f"POLL{name}")
    E.raw(f"v_readfirstlane_b32 {s('t0')}, v{V_FL}")
    E.raw(f"s_add_u32 {s('t0')}, {s('t0')}, 0x{add:08x}")
    E.raw(f"s_and_b32 {s('t0')}, {s('t0')}, 0x80808080")
    E.raw(f"s_cmp_lg_u32 {s('t0')}, 0x80808080")
    E.raw(f"s_cbranch_scc1 {slow}")
    E.raw(f"{ok}:")
    E.slow += [f"{slow}:",
               f"s_mov_b32 {s('spin')}, 0",
               f"{chk}:",
               f"buffer_load_dword v{V_FL}, v{V_Z}, {srd(SRD_F)}, {s('flagh')} offen sc1",
               "s_waitcnt vmcnt(0)",
               f"v_readfirstlane_b32 {s('t0')}, v{V_FL}",
               f"s_add_u32 {s('spin')}, {s('spin')}, 1",
               f"s_cmp_gt_u32 {s('spin')}, {SPIN_MAX}",
               f"s_cbranch_scc1 {ok}",
               f"s_add_u32 {s('t0')}, {s('t0')}, 0x{add:08x}",
               f"s_and_b32 {s('t0')}, {s('t0')}, 0x80808080",
               f"s_cmp_lg_u32 {s('t0')}, 0x80808080",
               f"s_cbranch_scc1 {chk}",
               f"s_branch {ok}"]

def setup2(E):
    R = E.raw
    L = V_LANE
    T0, T1, T2, T3 = V_T0, V_T1, V_T2, V_T3
    R(f"v_lshrrev_b32 v{T0}, 4, v{L}")
    R(f"v_and_b32 v{T1}, 15, v{L}")
    R(f"v_lshrrev_b32 v{T2}, 1, v{T1}")
    R(f"v_xor_b32 v{T2}, v{T2}, v{T0}")
    R(f"v_lshlrev_b32 v{T3}, 7, v{T1}")
    R(f"v_lshl_add_u32 v{V_XR}, v{T2}, 4, v{T3}")
    R(f"v_add_u32 v{V_XR}, {s('m0x')}, v{V_XR}")
    R(f"v_xor_b32 v{V_XR+1}, 64, v{V_XR}")
    R(f"v_lshrrev_b32 v{T2}, 2, v{T1}")
    R(f"v_lshlrev_b32 v{T3}, 11, v{T0}")
    R(f"v_lshl_add_u32 v{T3}, v{T2}, 7, v{T3}")
    R(f"v_and_b32 v{T2}, 3, v{T1}")
    R(f"v_lshl_add_u32 v{T3}, v{T2}, 3, v{T3}")
    R(f"v_and_b32 v{T2}, 1, v{T0}")
    R(f"v_lshlrev_b32 v{T2}, 6, v{T2}")
    R(f"v_add_u32 v{T3}, v{T3}, v{T2}")
    R(f"v_bfe_u32 v{T2}, v{T1}, 3, 1")
    R(f"v_lshl_add_u32 v{V_A}, v{T2}, 5, v{T3}")
    R(f"v_xor_b32 v{V_A+1}, 32, v{V_A}")
    for r in range(1, 3):
        R(f"v_add_u32 v{V_A+2*r}, {r*49152}, v{V_A}")
        R(f"v_add_u32 v{V_A+2*r+1}, {r*49152}, v{V_A+1}")
    R(f"v_lshrrev_b32 v{T2}, 1, v{T0}")
    R(f"v_lshlrev_b32 v{T3}, 9, v{T2}")
    R(f"v_and_b32 v{T2}, 1, v{T0}")
    R(f"v_lshl_add_u32 v{T3}, v{T2}, 7, v{T3}")
    R(f"v_lshrrev_b32 v{T2}, 2, v{T1}")
    R(f"v_lshl_add_u32 v{T3}, v{T2}, 5, v{T3}")
    R(f"v_and_b32 v{T2}, 3, v{T1}")
    R(f"v_lshl_add_u32 v{V_AQ}, v{T2}, 3, v{T3}")
    R(f"v_lshrrev_b32 v{T2}, 2, v{T1}")
    R(f"v_lshl_add_u32 v{T2}, v{T0}, 2, v{T2}")
    R(f"v_mul_u32_u24 v{T2}, 288, v{T2}")
    R(f"v_and_b32 v{T3}, 3, v{T1}")
    R(f"v_lshl_add_u32 v{T2}, v{T3}, 3, v{T2}")
    R(f"s_mul_i32 {s('t0')}, {s('kh')}, 9216")
    R(f"v_add_u32 v{V_A2}, {s('t0')}, v{T2}")
    R(f"v_add_u32 v{V_A2+1}, {3*WD_SLOT}, v{V_A2}")
    R(f"v_add_u32 v{V_A2+2}, {6*WD_SLOT}, v{V_A2}")
    R(f"v_lshrrev_b32 v{T0}, 1, v{L}")
    R(f"v_and_b32 v{T1}, 0x13, v{T0}")
    R(f"v_and_b32 v{T2}, 4, v{T0}")
    R(f"v_lshl_or_b32 v{T1}, v{T2}, 1, v{T1}")
    R(f"v_and_b32 v{T2}, 8, v{T0}")
    R(f"v_lshrrev_b32 v{T2}, 1, v{T2}")
    R(f"v_or_b32 v{T1}, v{T1}, v{T2}")
    R(f"v_mul_u32_u24 v{T1}, {WROW}, v{T1}")
    R(f"v_and_b32 v{T2}, 1, v{L}")
    R(f"v_lshl_add_u32 v{V_WQ}, v{T2}, 4, v{T1}")
    R(f"s_lshl_b32 {s('t0')}, {s('th')}, 8")
    for ip in range(5):
        if ip < 4:
            R(f"v_add_u32 v{T0}, {s('t0')}, v{L}")
            if ip: R(f"v_add_u32 v{T0}, {64*ip}, v{T0}")
        else:
            R(f"v_add_u32 v{T0}, 512, v{L}")
        R(f"v_mul_u32_u24 v{T1}, 3641, v{T0}")
        R(f"v_lshrrev_b32 v{T1}, 16, v{T1}")
        R(f"v_mul_u32_u24 v{T2}, 18, v{T1}")
        R(f"v_sub_u32 v{T2}, v{T0}, v{T2}")
        R(f"v_mul_u32_u24 v{T1}, {XROW}, v{T1}")
        R(f"v_lshl_add_u32 v{V_WD+ip}, v{T2}, 4, v{T1}")
        if 0 < ip < 4: R(f"v_subrev_u32 v{V_WD+ip}, {ip*1024}, v{V_WD+ip}")
    R(f"s_cmp_eq_u32 {s('th')}, 0")
    R(f"s_cselect_b32 {s('t5')}, -1, 0")
    R(f"s_cselect_b32 {s('t0')}, 0, {OOB}")
    R(f"v_add_u32 v{V_WD+4}, {s('t0')}, v{V_WD+4}")
    R(f"s_mul_i32 {s('t1')}, {s('kh')}, 9216")
    R(f"s_add_u32 {s('t2')}, {s('t1')}, 8192")
    R(f"s_cmp_eq_u32 {s('th')}, 0")
    R(f"s_cselect_b32 {s('m0d5')}, {s('t2')}, {SCRATCH}")
    R(f"s_lshl_b32 {s('t2')}, {s('th')}, 12\ns_add_u32 {s('m0d')}, {s('t1')}, {s('t2')}")
    R(f"v_lshlrev_b32 v{V_L16}, 4, v{L}")
    R(f"v_lshlrev_b32 v{V_L8}, 3, v{L}")
    R(f"v_mov_b32 v{V_KA}, 0x{f2u(GA):08x}")
    R(f"s_mov_b32 {s('kb')}, 0x{f2u(GB):08x}")
    R(f"v_mov_b32 v{V_Z}, 0")
    R(f"v_mov_b32 v{T0}, 0x1000")
    R(f"v_cmp_eq_u32 vcc, 0, v0")
    R(f"s_and_b32 {s('t0')}, {s('cu')}, 3\ns_lshl_b32 {s('t0')}, {s('t0')}, 3\ns_lshl_b32 {s('t0')}, 1, {s('t0')}")
    R(f"v_cndmask_b32 v{V_PUB}, v{T0}, v{V_Z}, vcc")
    R(f"v_mov_b32 v{V_ONE}, {s('t0')}")
    R(f"s_and_b32 {s('pf')}, {s('cu')}, 0xfc")
    R(f"s_and_b32 {s('flagh')}, {s('cu')}, 0xf8\ns_lshl_b32 {s('t0')}, {s('kh')}, 2\ns_add_u32 {s('flagh')}, {s('flagh')}, {s('t0')}")
    R(f"s_lshl_b32 {s('t0')}, {s('mb')}, 2\ns_add_u32 {s('t0')}, {s('t0')}, {s('sk')}\ns_lshl_b32 {s('t0')}, {s('t0')}, 2")
    R(f"s_add_u32 {s('t1')}, {s('t0')}, {s('wave')}\ns_mul_i32 {s('t1')}, {s('t1')}, {36*H_KS}")
    R(f"s_lshl_b32 {s('t2')}, {s('jj')}, 14\ns_add_u32 {s('hst')}, {s('t1')}, {s('t2')}")
    R(f"s_lshr_b32 {s('t2')}, {s('jj')}, 1\ns_add_u32 {s('t2')}, {s('t2')}, 32\ns_lshl_b32 {s('t2')}, {s('t2')}, 12\ns_add_u32 {s('hstq')}, {s('t1')}, {s('t2')}")
    R(f"s_and_b32 {s('t2')}, {s('jj')}, 1\ns_lshl_b32 {s('t3')}, {s('t2')}, 9\ns_add_u32 {s('hstq')}, {s('hstq')}, {s('t3')}")
    R(f"s_lshl_b32 {s('t2')}, {s('t2')}, 1\ns_add_u32 {s('t2')}, {s('t2')}, {s('th')}")
    R(f"s_add_u32 {s('t1')}, {s('t0')}, {s('t2')}\ns_mul_i32 {s('t1')}, {s('t1')}, {36*H_KS}")
    R(f"s_lshl_b32 {s('t2')}, {s('kh')}, 11")
    R(f"s_sub_u32 {s('t3')}, 2048, {s('t2')}")
    R(f"s_lshl_b32 {s('t4')}, {s('kh')}, 16\ns_add_u32 {s('t4')}, {s('t4')}, {s('t1')}")
    R(f"s_add_u32 {s('hldA')}, {s('t4')}, {s('t2')}\ns_add_u32 {s('hldB')}, {s('t4')}, {s('t3')}")
    R(f"s_lshl_b32 {s('t4')}, {s('kh')}, 13\ns_add_u32 {s('t4')}, {s('t4')}, {32*H_KS}\ns_add_u32 {s('t4')}, {s('t4')}, {s('t1')}")
    R(f"s_add_u32 {s('hlqA')}, {s('t4')}, {s('t2')}\ns_add_u32 {s('hlqB')}, {s('t4')}, {s('t3')}")
    R(f"s_lshr_b32 {s('t0')}, {s('jj')}, 1\ns_mul_i32 {s('t0')}, {s('t0')}, 288")
    R(f"s_mul_i32 {s('t1')}, {s('sk')}, {1152*XROW}\ns_add_u32 {s('t0')}, {s('t0')}, {s('t1')}")
    R(f"s_mul_i32 {s('t1')}, {s('kh')}, {512*XROW}\ns_add_u32 {s('wd0')}, {s('t0')}, {s('t1')}")
    R(f"s_mul_i32 {s('t1')}, {s('kh')}, {64*XROW}\ns_add_u32 {s('wdq')}, {s('t0')}, {s('t1')}\ns_add_u32 {s('wdq')}, {s('wdq')}, {1024*XROW}")

class Side:
    def __init__(self): self.q = []
    def add(self, ops): self.q.extend(ops)
    def empty(self): return not self.q
    def take_gap(self, E):
        if not self.q: return 0
        f, kind = self.q[0]
        if kind == 'v':
            self.q.pop(0); f(E); return 2
        if kind == 'x':
            self.q.pop(0); f(E); return 2
        return 0
    def take_scalar(self, E):
        if self.q and self.q[0][1] == 's':
            f, _ = self.q.pop(0); f(E); return 1
        return 0

def kstep(E, st, side, mf, reads, xreads=(), side_gaps=(), pre=None):
    reads = list(reads); xreads = list(xreads)
    n = len(mf)
    for i, m in enumerate(mf):
        E.raw(m)
        st.tick()
        cap = 2
        if reads:
            E.ds(reads.pop(0)); cap -= 1
        elif xreads:
            E.ds(xreads.pop(0)); cap -= 1
        elif i in side_gaps:
            u = side.take_gap(E)
            cap -= u
        if cap > 0:
            if (i + 1) in side_gaps or (i + 1 == n):
                cap -= side.take_scalar(E)
        if cap > 0:
            st.fill(E, cap)

def gemm1_mf(buf, ks, first):
    mf = []
    for f in range(4):
        grp, mat = f >> 1, f & 1
        a = vr(V_AR + 16 * (ks & 1) + 4 * f)
        for tt in range(4):
            mf.append(mfma(buf + (grp * 2 + mat) * 16 + tt * 4, a, xreg(ks, tt), first))
    return mf

def toggle_bases(E):
    for i in range(6):
        E.raw(f"v_xor_b32 v{V_A+i}, 64, v{V_A+i}")

def hstore_fn(p):
    def f(E, tt, base):
        E.vmem(f"buffer_store_dwordx4 {vr(base)}, v{V_L16}, {srd(SRD_W)}, {s('so2')} offen offset:{tt*1024} sc1", f"HS{p}")
    return f
def hstoreq_fn(E, tt, base):
    E.vmem(f"buffer_store_dwordx2 {vr(base, 2)}, v{V_L8}, {srd(SRD_W)}, {s('hstq')} offen offset:{tt*1024} sc1", "HS4")

def wq_ops():
    ops = []
    for i in range(9):
        def setup(E, i=i):
            E.raw(f"s_add_u32 m0, {s('m0q')}, {i * 4096}")
            E.raw(f"s_add_u32 {s('so')}, {s('wqcol')}, {i * 64 * WROW}")
        def d(E): E.vmem(f"buffer_load_dwordx4 v{V_WQ}, {srd(SRD_Q)}, {s('so')} offen lds", "WQ")
        ops += [(setup, 's'), (d, 'v')]
    return ops

def build(opt):
    E = Emit()
    st = Stream()
    G = Gelu(st)
    side = Side()
    prologue(E, opt)
    issue_x(E, 0); issue_x(E, 1)
    issue_w1_slot(E, 0, 0)
    issue_x(E, 2); issue_x(E, 3)
    issue_w1_slot(E, 0, 1)
    setup2(E)
    issue_w1_slot(E, 0, 2)
    issue_w1_slot(E, 0, 3)
    E.wait(vm=["X0", "X1"])
    for r in read_x(E, 0): E.ds(r)
    E.wait(ds=0)
    issue_x(E, 4); issue_x(E, 5)
    E.wait(vm="W0_0", barrier=True)
    for r in areads_w1(0, 0): E.ds(r)
    SG = (9, 11, 13)
    for ks in range(18):
        bar = (ks % 3 == 2 and ks < 17)
        E.wait(vm=(f"W0_{ks//3+1}" if bar else None), ds=0, barrier=bar)
        if 1 <= ks <= 6:
            issue_x(E, 2 * (ks + 2)); issue_x(E, 2 * (ks + 2) + 1)
        if ks == 8:
            for sl in (4, 5):
                for kk in range(3 * sl, 3 * sl + 3):
                    a, b, c = w1_ops(0, kk)
                    side.add([(a, 's'), (b, 'v'), (c, 'v')])
        if ks == 17: toggle_bases(E)
        reads = areads_w1(0, ks + 1) if ks < 17 else areads_w1(1, 0)
        mf = gemm1_mf(V_BUF[0], ks, ks == 0)
        if ks <= 7:
            xr = read_x(E, ks + 1)
            for i, m in enumerate(mf):
                E.raw(m)
                if i < 8: E.ds(reads[i])
                else:
                    if i == 8: E.wait(vm=[f"X{2*(ks+1)}", f"X{2*(ks+1)+1}"])
                    E.ds(xr[i - 8])
        else:
            kstep(E, st, side, mf, reads, side_gaps=(8, 9, 10, 11, 12, 13, 14, 15) if ks in (8, 9) else SG)
    assert side.empty()
    for p in (1, 2, 3):
        line, ph = p >> 1, p & 1
        buf = V_BUF[p & 1]
        E.raw(f"s_add_u32 {s('so2')}, {s('hst')}, {(p - 1) * H_KS}")
        G.full_pass(V_BUF[(p - 1) & 1], hstore_fn(p - 1))
        for ks in range(18):
            bar = (ks % 3 == 2)
            tags = []
            if bar:
                if p == 1 and ks == 17: tags.append("W1_0")
                if p == 2 and ks < 17: tags.append(f"W1_{ks//3+1}")
                if p == 3 and ks == 17: tags.append("WQ")
                if p >= 2 and ks == 2: tags.append(f"HS{p-2}")
                if p == 2 and ks == 17: bar = False
            E.wait(vm=(tags if tags else None), ds=0, barrier=bar)
            if bar:
                c = ks // 3
                if p >= 2 and ks == 2:
                    side.add([(publish_op(p - 1), 'v')])
                if p == 1:
                    for kk in range(3 * c, 3 * c + 3):
                        a, b, d = w1_ops(1, kk)
                        side.add([(a, 's'), (b, 'v'), (d, 'v')])
                if p == 3:
                    if ks == 5: side.add(wq_ops())
                    if ks == 8: side.add(wd_ops(0)); side.add(wd_ops(1))
                    if ks == 11: side.add(wd_ops(2))
                    if ks == 14: side.add(wd_ops(3))
                    if ks == 17: side.add(wd_ops(4)); side.add(wd_ops(5))
            if ks == 17 and p < 3: toggle_bases(E)
            if ks < 17: reads = areads_w1(ph, ks + 1)
            elif p < 3: reads = areads_w1(1 - ph, 0)
            else: reads = areads_q(0, 0)
            sg = SG
            if p == 3 and ks >= 5: sg = (8, 9, 11, 13, 15)
            kstep(E, st, side, gemm1_mf(buf, ks, ks == 0), reads, side_gaps=sg)
        n = st.flush(E)
        if n: print(f"; note: pass {p}: GELU flush {n} gaps", file=sys.stderr)
        if p != 3 and p != 1: assert side.empty(), f"side not empty after pass {p}"
    E.raw(f"s_add_u32 {s('so2')}, {s('hst')}, {3 * H_KS}")
    G.full_pass(V_BUF[1], hstore_fn(3))
    bufq = V_BUF[0]
    side.add([(poll_issue("a"), 'v')])
    for ks in range(18):
        bar = ks in (3, 17)
        tags = []
        if ks == 3: tags.append("HS2")
        if ks == 17: tags.append("D0")
        E.wait(vm=(tags if tags else None), ds=0, barrier=bar)
        if ks == 3: side.add([(publish_op(3), 'v')])
        if ks == 2:
            assert E.issued("POLLa"), "poll a not issued"
            poll_check(E, "a", 2)
        if 3 <= ks <= 9: side.add(h_ops(ks - 3))
        if ks == 17: side.add(wd_ops(6)); side.add(wd_ops(7))
        mf = []
        for mat in range(2):
            a = vr(V_AR + 16 * (ks & 1) + 4 * mat)
            for tt in range(4):
                mf.append(mfma(bufq + mat * 16 + tt * 4, a, xreg(ks, tt), ks == 0))
        reads = areads_q(ks + 1, (ks + 1) & 1) if ks < 17 else areads_g2(0, 0, 0)
        kstep(E, st, side, mf, reads, side_gaps=(4, 5, 6, 7) if ks < 17 else (6, 7))
    if opt.get("stop") == "g1":
        st.flush(E)
        G.quarter(bufq, hstoreq_fn)
        st.flush(E)
        while not side.empty():
            if not side.take_scalar(E): side.take_gap(E)
            E.raw("s_nop 0")
        E.wait_all()
        return finish(E)
    hsched = {0: [], 1: [7], 2: [8], 3: [9], 4: [10], 5: [11], 9: [12, 13], 10: [14], 11: [15], 15: [16], 16: [17]}
    qadded = False
    sub_par = 0
    for t in range(18):
        for sub in range(3):
            tags = []
            bar = (sub == 2)
            if sub == 0: tags.append(f"H{t}")
            if bar and t < 17: tags.append(f"D{t+1}")
            pub = None
            if bar and t == opt.get("pub4", 7): tags.append("HS3"); pub = 4
            if bar and t == opt.get("pub5", 13): tags.append("HS4"); pub = 5
            E.wait(vm=(tags if tags else None), ds=0, barrier=bar)
            if pub: side.add([(publish_op(pub), 'v')])
            if sub == 0:
                if not qadded and st.pending() == 0:
                    G.quarter(bufq, hstoreq_fn); qadded = True
                if t == 1: side.add([(poll_issue("b"), 'v')])
                if t == 2: poll_check(E, "b", 3)
                if t == 8: side.add([(poll_issue("c"), 'v')])
                if t == 9: poll_check(E, "c", 4)
                if t == 14: side.add([(poll_issue("d"), 'v')])
                if t == 15: poll_check(E, "d", 5)
                for tl in hsched.get(t, []): side.add(h_ops(tl))
                if 1 <= t and t + 7 <= 17: side.add(wd_ops(t + 7))
            mf = []
            for k in range(3):
                dt = 3 * sub + k
                a = vr(V_AR + 12 * sub_par + 4 * k)
                for tt in range(4):
                    mf.append(mfma(acc2(dt, tt), a, ar(hreg(t, tt)), t == 0, "a"))
            if sub < 2: reads = areads_g2(t, sub + 1, 1 - sub_par)
            elif t < 17: reads = areads_g2(t + 1, 0, 1 - sub_par)
            else: reads = []
            kstep(E, st, side, mf, reads, side_gaps=(6, 7, 8, 9, 10, 11))
            sub_par = 1 - sub_par
        if t == opt.get("pub4", 7) - 1:
            if E.vm.count("HS3") < 4: print(f"; note: flushing GELU(P3) at t={t}: {st.pending_cost()} slots", file=sys.stderr);
            while E.vm.count("HS3") < 4:
                st.tick(); E.raw("s_nop 0"); st.fill(E, 2)
        if t == opt.get("pub5", 13) - 1:
            if not qadded:
                st.flush(E); G.quarter(bufq, hstoreq_fn); qadded = True
            if st.pending(): print(f"; note: flushing GELU(PQ) at t={t}: {st.pending_cost()} slots", file=sys.stderr)
            st.flush(E)
    assert side.empty(), "side ops left"
    final(E, opt)
    return finish(E)

FIRST = [0, 5, 10, 14]
def final(E, opt):
    R = E.raw
    L = V_LANE
    T0, T1, T2, T3 = V_T0, V_T1, V_T2, V_T3
    R(f"s_mul_i32 {s('t0')}, {s('wave')}, 18432")
    R(f"v_add_u32 v{V_RED}, {s('t0')}, v{V_L16}")
    R(f"s_xor_b32 {s('t1')}, {s('wave')}, 2\ns_mul_i32 {s('t1')}, {s('t1')}, 18432")
    R(f"v_add_u32 v{V_RED2}, {s('t1')}, v{V_L16}")
    R(f"s_lshl_b32 {s('t0')}, {s('mb')}, 3\ns_add_u32 {s('t0')}, {s('t0')}, {s('jj')}\ns_lshl_b32 {s('t0')}, {s('t0')}, 2\ns_add_u32 {s('t0')}, {s('t0')}, {s('wave')}")
    R(f"s_mul_i32 {s('t0')}, {s('t0')}, {16*5120}\ns_add_u32 {s('t0')}, {s('t0')}, {WS_P}")
    R(f"s_mul_i32 {s('t1')}, {s('sk')}, 5120\ns_add_u32 {s('pst')}, {s('t0')}, {s('t1')}")
    R(f"s_mul_i32 {s('t1')}, {s('sk')}, {4*5120}\ns_add_u32 {s('pld')}, {s('t0')}, {s('t1')}")
    R(f"s_mul_i32 {s('phi0')}, {s('sk')}, 5\ns_cmp_eq_u32 {s('sk')}, 3\ns_cselect_b32 {s('t0')}, 1, 0\ns_sub_u32 {s('phi0')}, {s('phi0')}, {s('t0')}")
    R(f"s_lshl_b32 {s('t0')}, {s('mb')}, 8\ns_and_b32 {s('t1')}, {s('jj')}, 1\ns_lshl_b32 {s('t1')}, {s('t1')}, 7\ns_add_u32 {s('t0')}, {s('t0')}, {s('t1')}")
    R(f"s_lshl_b32 {s('t1')}, {s('th')}, 6\ns_add_u32 {s('t0')}, {s('t0')}, {s('t1')}\ns_lshl_b32 {s('t1')}, {s('kh')}, 5\ns_add_u32 {s('t0')}, {s('t0')}, {s('t1')}")
    R(f"s_mul_i32 {s('t0')}, {s('t0')}, {XROW}\ns_lshr_b32 {s('t1')}, {s('jj')}, 1\ns_mul_i32 {s('t1')}, {s('t1')}, 288\ns_add_u32 {s('outb')}, {s('t0')}, {s('t1')}")
    R(f"v_and_b32 v{T0}, 15, v{L}\nv_mul_u32_u24 v{T0}, {XROW}, v{T0}\nv_lshrrev_b32 v{T1}, 4, v{L}\nv_lshl_add_u32 v{V_OUT}, v{T1}, 3, v{T0}")
    R(f"v_min_u32 v{T0}, 3, v{L}\ns_lshl_b32 {s('t0')}, {s('mb')}, 5\ns_and_b32 {s('t1')}, {s('jj')}, 4\ns_add_u32 {s('t0')}, {s('t0')}, {s('t1')}")
    R(f"v_lshlrev_b32 v{T0}, 3, v{T0}\nv_add_u32 v{V_FO}, {s('t0')}, v{T0}")
    R(f"s_and_b32 {s('t2')}, {s('jj')}, 3\ns_lshl_b32 {s('t2')}, {s('t2')}, 3")
    E.wait(ds=0, barrier=True)
    R("s_nop 7")
    for dt in range(9):
        for j in range(2):
            E.ds(f"ds_write_b128 v{V_RED}, {ar(acc2(dt, 2 + j))} offset:{(2*dt+j)*1024}")
    KEEP = 128; RCV = 40
    for dt in range(9):
        for j in range(2):
            for r in range(4):
                R(f"v_accvgpr_read_b32 v{KEEP + (2*dt+j)*4 + r}, a{acc2(dt, j) + r}")
    E.wait(ds=0, barrier=True)
    for ph in range(18):
        E.ds(f"ds_read_b128 {vr(RCV + 4*ph)}, v{V_RED2} offset:{ph*1024}")
        if ph == 9: pass
    for ph in range(18):
        if ph == 0: E.wait(ds=8)
        if ph == 9: E.wait(ds=0)
        for r in range(4):
            R(f"v_add_f32 v{KEEP + 4*ph + r}, v{KEEP + 4*ph + r}, v{RCV + 4*ph + r}")
        dest = max(d for d in range(4) if FIRST[d] <= ph)
        sig = ph - FIRST[dest]
        R(f"s_add_u32 {s('so')}, {s('pst')}, {dest*4*5120 + sig*1024}")
        E.vmem(f"buffer_store_dwordx4 {vr(KEEP + 4*ph)}, v{V_L16}, {srd(SRD_W)}, {s('so')} offen sc1", "PS")
    E.wait(vm="PS", barrier=True)
    publish_op(6)(E)
    chk = E.label("fchk"); ok = E.label("fok")
    R(f"s_mov_b32 {s('spin')}, 0")
    R(f"{chk}:")
    R(f"buffer_load_dword v{V_FL}, v{V_FO}, {srd(SRD_F)}, 0 offen sc1")
    R("s_waitcnt vmcnt(0)")
    R(f"v_lshrrev_b32 v{V_FL}, {s('t2')}, v{V_FL}")
    R(f"v_and_b32 v{V_FL}, 0xff, v{V_FL}")
    R(f"v_cmp_gt_u32 vcc, 6, v{V_FL}")
    R(f"s_add_u32 {s('spin')}, {s('spin')}, 1")
    R(f"s_cmp_gt_u32 {s('spin')}, {SPIN_MAX}")
    R(f"s_cbranch_scc1 {ok}")
    R(f"s_cbranch_vccnz {chk}")
    R(f"{ok}:")
    E.vm_done = len(E.vm)
    LD = 40
    for src in range(4):
        for sig in range(5):
            R(f"s_add_u32 {s('so')}, {s('pld')}, {src*5120 + sig*1024}")
            E.vmem(f"buffer_load_dwordx4 {vr(LD + (src*5+sig)*4)}, v{V_L16}, {srd(SRD_W)}, {s('so')} offen sc1", f"PL{sig}" if src == 3 else "PLx")
    for sig in range(5):
        R(f"s_add_u32 {s('t0')}, {s('phi0')}, {sig}")
        R(f"s_lshr_b32 {s('t1')}, {s('t0')}, 1\ns_lshl_b32 {s('t1')}, {s('t1')}, 5")
        R(f"s_and_b32 {s('t3')}, {s('t0')}, 1\ns_mul_i32 {s('t3')}, {s('t3')}, {16*XROW}")
        R(f"s_add_u32 {s('so')}, {s('outb')}, {s('t1')}\ns_add_u32 {s('so')}, {s('so')}, {s('t3')}")
        if sig == 4:
            R(f"s_cmp_ge_u32 {s('sk')}, 2\ns_cselect_b32 {s('so')}, {OOB}, {s('so')}")
        E.wait(vm=f"PL{sig}")
        for r in range(4):
            a = [LD + (src*5+sig)*4 + r for src in range(4)]
            R(f"v_add_f32 v{a[0]}, v{a[0]}, v{a[1]}")
            R(f"v_add_f32 v{a[2]}, v{a[2]}, v{a[3]}")
            R(f"v_add_f32 v{a[0]}, v{a[0]}, v{a[2]}")
        b = LD + sig * 4
        R(f"v_cvt_pk_bf16_f32 v{b}, v{b}, v{b+1}")
        R(f"v_cvt_pk_bf16_f32 v{b+1}, v{b+2}, v{b+3}")
        E.vmem(f"buffer_store_dwordx2 {vr(b, 2)}, v{V_OUT}, {srd(SRD_O)}, {s('so')} offen", "OUT")

def finish(E):
    E.raw("L_end:")
    E.raw("s_endpgm")
    for x in E.slow: E.raw(x)
    E.raw("s_endpgm")
    return E

def emit_file(opt):
    E = build(opt)
    hdr = open("standalone__glu_gated_geglu__prompt.s.ref").read().split("\n") if opt.get("hdr", True) else []
    out = []
    for l in hdr:
        if l.startswith("; @launch") or l.startswith("; Override") or l.startswith("; grid=") : continue
        if l.startswith(";"): out.append(l)
        else: break
    out.append(f"; @launch grid=(256,1,1) block=(256,1,1) lds={LDS_BYTES}")
    out.append('.amdgcn_target "amdgcn-amd-amdhsa--gfx950"')
    out.append(".text")
    out.append(f".globl {KNAME}")
    out.append(".p2align 8")
    out.append(f".type {KNAME},@function")
    out.append(f"{KNAME}:")
    out += E.L
    out.append(".fill 64, 4, 0xbf800000")
    out.append('.section .rodata,"a"')
    out.append(".p2align 6")
    out.append(f".amdhsa_kernel {KNAME}")
    out += ["  .amdhsa_next_free_vgpr 512", "  .amdhsa_next_free_sgpr 102", "  .amdhsa_accum_offset 256",
            "  .amdhsa_group_segment_fixed_size 0", "  .amdhsa_kernarg_size 56", "  .amdhsa_user_sgpr_count 2",
            "  .amdhsa_user_sgpr_kernarg_segment_ptr 1", "  .amdhsa_system_sgpr_workgroup_id_x 1",
            "  .amdhsa_float_denorm_mode_32 3",
            ".end_amdhsa_kernel"]
    return "\n".join(out) + "\n"

if __name__ == "__main__":
    opt = {}
    path = sys.argv[1] if len(sys.argv) > 1 else "k.s"
    for a in sys.argv[2:]:
        k, v = a.split("=")
        opt[k] = int(v) if v.lstrip("-").isdigit() else v
    open(path, "w").write(emit_file(opt))
```

```python
import sys, struct

KNAME = "standalone__glu_gated_geglu__prompt_kernel"
HSC = " sc1"
OPT = {}

DM, DF, NTOK = 576, 4608, 2048
XROW = DM * 2
WROW = DF * 2
LDS_BYTES = 163840
W1_KS = 8192
XST = 98304
WD_SLOT = 18432
SCRATCH = 147456
H_KS = 4096
WS_P = 32 << 20
WS_F = 56 << 20
WS_SIZE = 64 << 20
OOB = 0x40000000
GA = -2.0 * 0.7978845608028654 * 1.4426950408889634
GB = GA * 0.044715
SPIN_MAX = 400000

def f2u(x): return struct.unpack('<I', struct.pack('<f', x))[0]

S = {}
SRD_X, SRD_G, SRD_U, SRD_D, SRD_W, SRD_O, SRD_F, SRD_Q = 8, 12, 16, 20, 24, 28, 32, 36
def srd(b): return f"s[{b}:{b+3}]"
_n = 40
for nm in ["wave", "mb", "sk", "jj", "cu", "th", "kh", "xoff", "w1col", "wqcol", "hst", "hstq", "hldA", "hldB", "hlqA", "hlqB",
           "wd0", "wdq", "flagh", "t0", "t1", "t2", "t3", "t4", "t5", "m0w", "m0x", "m0q", "m0d", "m0d5", "kb", "pst", "pld",
           "outb", "spin", "phi0", "so", "so2", "pf", "tA", "tB", "pf2", "nonce"]:
    S[nm] = _n; _n += 1
assert _n <= 100
def s(n): return f"s{S[n]}"

V_LANE = 1
V_W1 = 2
V_WQ = 3
V_A = 4
V_AQ = 10
V_L16 = 11
V_L8 = 12
V_KA = 13
V_PUB = 14
V_ONE = 15
V_FL = 16
V_T0 = 17; V_T1 = 18; V_T2 = 19; V_T3 = 20
V_X = 21
V_XR = 25
V_WD = 27
V_HS = 32
V_GT = 40
N_GSET = 4
V_T128 = 56; V_T128H = 57; V_T128B = 58
V_TROW = 40; V_TROWB = 41; V_TROWQ = 42
V_PUBD = 43; V_NA = 44; V_NB = 45
V_FH = 59
V_A2 = 60
V_Z = 63
V_XO = 64
V_AR = 96
V_BUF = [128, 192]
V_FO = 21; V_OUT = 22; V_RED = 23; V_RED2 = 24

def xreg(ks, tt):
    i = ks * 4 + tt
    if i < 64: return f"a[{4*i}:{4*i+3}]"
    b = V_XO + 4 * (i - 64)
    return f"v[{b}:{b+3}]"
def hreg(t, tt):
    b = 16 * (t % 7) + 4 * tt
    return b
def acc2(dt, tt):
    b = 112 + 16 * dt + 4 * tt
    return b

def expected_count(tag):
    if tag.startswith("POLL") or tag.startswith("PUB"): return 1
    if tag == "WQ": return 9
    if tag == "NONCE": return 1
    if tag == "TCH": return -1
    if tag == "PS": return 18
    if tag in ("PSx", "PLx", "OUT"): return -1
    if tag.startswith("PL"): return 1
    if tag.startswith("HS"): return 4
    if tag[0] == "X": return 4
    if tag[0] == "W": return 6
    if tag[0] == "D": return 5
    if tag[0] == "H": return 4 if int(tag[1:]) < 16 else 8
    raise KeyError(tag)

class Emit:
    def __init__(self):
        self.L = []
        self.vm = []
        self.vm_done = 0
        self.ds_out = 0
        self.slow = []
        self.nlab = 0
        self.do_stamp = False
        self.stamps = []
        self.stamp_sel = None
    def raw(self, t):
        for x in t.split("\n"):
            self.L.append(x)
    def vmem(self, text, tag):
        self.L.append(text)
        self.vm.append(tag)
    def ds(self, text):
        if self.ds_out >= 15:
            self.L.append("s_waitcnt lgkmcnt(10)")
            self.ds_out = 10
        self.L.append(text)
        self.ds_out += 1
    def _vmN(self, tags):
        idx = -1
        for tg in tags:
            exp = expected_count(tg)
            got = self.vm.count(tg)
            if exp < 0: continue
            assert got == exp, f"wait on {tg}: {got} ops issued, expected {exp}"
        for i, t in enumerate(self.vm):
            if t in tags: idx = i
        assert idx >= 0, f"no vmem op with tags {tags}"
        if idx < self.vm_done: return None
        return min(len(self.vm) - 1 - idx, 63)
    def wait(self, vm=None, ds=None, barrier=False):
        parts = []
        if vm is not None:
            if isinstance(vm, str): vm = [vm]
            n = self._vmN(set(vm))
            if n is not None:
                parts.append(f"vmcnt({n})")
                self.vm_done = max(self.vm_done, len(self.vm) - n)
        if ds is not None and self.ds_out > ds:
            parts.append(f"lgkmcnt({ds})")
            self.ds_out = ds
        if parts:
            self.L.append("s_waitcnt " + " ".join(parts))
        if barrier:
            self.L.append("s_barrier")
    def wait_all(self):
        self.L.append("s_waitcnt vmcnt(0) lgkmcnt(0)")
        self.vm_done = len(self.vm); self.ds_out = 0
    def assert_done(self, tag):
        found = False
        for i, t in enumerate(self.vm):
            if t == tag:
                found = True
                assert i < self.vm_done, f"tag {tag} not complete"
        assert found, f"tag {tag} never issued"
    def issued(self, tag):
        return tag in self.vm
    def stamp(self, name):
        if not self.do_stamp: return
        if self.stamp_sel is not None and name not in self.stamp_sel and name not in ("start", "end"): return
        if name in self.stamps: idx = self.stamps.index(name)
        else:
            idx = len(self.stamps)
            assert idx < 16
            self.stamps.append(name)
        self.L.append("s_memrealtime s[84:85]")
        self.L.append("s_waitcnt lgkmcnt(0)")
        self.ds_out = 0
        self.L.append(f"s_mov_b32 s{86+idx}, s84")
    def label(self, base):
        self.nlab += 1
        return f"L_{base}_{self.nlab}"

class Item:
    def __init__(self, text, cost, deps=()):
        self.text = text; self.cost = cost; self.deps = list(deps); self.placed = None

class Stream:
    def __init__(self):
        self.items = []; self.head = 0; self.gap = 0
    def add(self, text, cost, deps=()):
        it = Item(text, cost, deps); self.items.append(it); return it
    def pending(self):
        return sum(1 for it in self.items[self.head:] if it.placed is None)
    def pending_cost(self):
        return sum(it.cost for it in self.items[self.head:] if it.placed is None)
    def tick(self):
        self.gap += 1
    def fill(self, E, cap, window=48):
        used = 0
        while used < cap:
            while self.head < len(self.items) and self.items[self.head].placed is not None:
                self.head += 1
            pick = None
            for it in self.items[self.head:self.head + window]:
                if it.placed is not None or it.cost > cap - used: continue
                if all(d.placed is not None and self.gap >= d.placed + delta for d, delta in it.deps):
                    pick = it; break
            if pick is None: break
            pick.placed = self.gap
            if callable(pick.text): pick.text(E)
            else: E.raw(pick.text)
            used += pick.cost
        return used
    def flush(self, E):
        n = 0
        while self.pending():
            self.tick()
            E.raw("s_nop 0")
            self.fill(E, 2)
            n += 1
        return n

class Gelu:
    def __init__(self, st):
        self.st = st
        self.pairno = 0
        self.set_last = [None] * N_GSET
        self.stg = 0
        self.stg_last = [None, None]
    def pair(self, g0, u0, g1, u1, dst):
        st = self.st
        k = self.pairno % N_GSET; self.pairno += 1
        T0, T1, G0, G1 = [V_GT + 4 * k + i for i in range(4)]
        prev = [(self.set_last[k], 0)] if self.set_last[k] is not None else []
        sprev = dst[1]
        a0 = st.add(f"v_mul_f32 v{T0}, v{g0}, v{g0}", 1, prev)
        a1 = st.add(f"v_mul_f32 v{T1}, v{g1}, v{g1}", 1, prev)
        b0 = st.add(f"v_fma_f32 v{T0}, v{T0}, {s('kb')}, v{V_KA}", 1, [(a0, 0)])
        b1 = st.add(f"v_fma_f32 v{T1}, v{T1}, {s('kb')}, v{V_KA}", 1, [(a1, 0)])
        c0 = st.add(f"v_mul_f32 v{T0}, v{T0}, v{g0}", 1, [(b0, 0)])
        c1 = st.add(f"v_mul_f32 v{T1}, v{T1}, v{g1}", 1, [(b1, 0)])
        e0 = st.add(f"v_exp_f32 v{T0}, v{T0}", 2, [(c0, 0)])
        e1 = st.add(f"v_exp_f32 v{T1}, v{T1}", 2, [(c1, 0)])
        m0 = st.add(f"v_mul_f32 v{G0}, v{g0}, v{u0}", 1, prev)
        m1 = st.add(f"v_mul_f32 v{G1}, v{g1}, v{u1}", 1, prev)
        d0 = st.add(f"v_add_f32 v{T0}, 1.0, v{T0}", 1, [(e0, 1)])
        d1 = st.add(f"v_add_f32 v{T1}, 1.0, v{T1}", 1, [(e1, 1)])
        r0 = st.add(f"v_rcp_f32 v{T0}, v{T0}", 2, [(d0, 0)])
        r1 = st.add(f"v_rcp_f32 v{T1}, v{T1}", 2, [(d1, 0)])
        h0 = st.add(f"v_mul_f32 v{G0}, v{G0}, v{T0}", 1, [(r0, 1), (m0, 0)])
        h1 = st.add(f"v_mul_f32 v{G1}, v{G1}, v{T1}", 1, [(r1, 1), (m1, 0)])
        pk = st.add(f"v_cvt_pk_bf16_f32 v{dst[0]}, v{G0}, v{G1}", 1, [(h0, 0), (h1, 0)] + ([(sprev, 2)] if sprev is not None else []))
        self.set_last[k] = pk
        return pk
    def full_pass(self, buf, store_fn):
        last = None
        for tt in range(4):
            sg = self.stg % 2; self.stg += 1
            base = V_HS + 4 * sg
            pks = []
            for grp in range(2):
                for hp in range(2):
                    g = buf + (grp * 2 + 0) * 16 + tt * 4 + 2 * hp
                    u = buf + (grp * 2 + 1) * 16 + tt * 4 + 2 * hp
                    pks.append(self.pair(g, u, g + 1, u + 1, (base + grp * 2 + hp, self.stg_last[sg])))
            stt = self.st.add((lambda E, tt=tt, base=base: store_fn(E, tt, base)), 2, [(p, 1) for p in pks])
            self.stg_last[sg] = stt
            last = stt
        return last
    def quarter(self, buf, store_fn):
        last = None
        for tt in range(4):
            sg = self.stg % 2; self.stg += 1
            base = V_HS + 4 * sg
            pks = []
            for hp in range(2):
                g = buf + tt * 4 + 2 * hp
                u = buf + 16 + tt * 4 + 2 * hp
                pks.append(self.pair(g, u, g + 1, u + 1, (base + hp, self.stg_last[sg])))
            stt = self.st.add((lambda E, tt=tt, base=base: store_fn(E, tt, base)), 2, [(p, 1) for p in pks])
            self.stg_last[sg] = stt
            last = stt
        return last

def mfma(d, a, b, first, dpre="v"):
    c = "0" if first else f"{dpre}[{d}:{d+3}]"
    return f"v_mfma_f32_16x16x32_bf16 {dpre}[{d}:{d+3}], {a}, {b}, {c}"

def vr(b, n=4): return f"v[{b}:{b+n-1}]"
def ar(b, n=4): return f"a[{b}:{b+n-1}]"

def prologue(E, opt):
    R = E.raw
    L = V_LANE
    T0, T1, T2, T3 = V_T0, V_T1, V_T2, V_T3
    R("s_cmp_ge_u32 s2, 256")
    R("s_cbranch_scc1 L_end")
    R("s_load_dwordx4 s[4:7], s[0:1], 0")
    R("s_load_dwordx4 s[16:19], s[0:1], 16")
    R("s_load_dwordx4 s[28:31], s[0:1], 32")
    R("s_load_dwordx2 s[24:25], s[0:1], 48")
    R(f"v_and_b32 v{L}, 63, v0")
    R(f"v_lshrrev_b32 v{T0}, 6, v0")
    R(f"s_and_b32 {s('sk')}, s2, 3")
    R(f"v_readfirstlane_b32 {s('wave')}, v{T0}")
    R(f"s_lshr_b32 {s('t0')}, s2, 2\ns_and_b32 {s('t0')}, {s('t0')}, 1")
    R(f"s_lshr_b32 {s('t1')}, s2, 3")
    R(f"s_and_b32 {s('jj')}, {s('t1')}, 7")
    R(f"s_lshr_b32 {s('t1')}, {s('t1')}, 3")
    R(f"s_lshl_b32 {s('mb')}, {s('t0')}, 2\ns_add_u32 {s('mb')}, {s('mb')}, {s('t1')}")
    R(f"s_lshl_b32 {s('cu')}, {s('mb')}, 5\ns_lshl_b32 {s('t0')}, {s('sk')}, 3\ns_add_u32 {s('cu')}, {s('cu')}, {s('t0')}\ns_add_u32 {s('cu')}, {s('cu')}, {s('jj')}")
    R(f"s_and_b32 {s('th')}, {s('wave')}, 1\ns_lshr_b32 {s('kh')}, {s('wave')}, 1")
    R(f"s_lshl_b32 {s('t0')}, {s('mb')}, 2\ns_add_u32 {s('t0')}, {s('t0')}, {s('wave')}\ns_mul_i32 {s('xoff')}, {s('t0')}, {64*XROW}")
    R(f"s_mul_i32 {s('t0')}, {s('sk')}, 2304")
    R(f"s_lshl_b32 {s('t1')}, {s('jj')}, 8\ns_add_u32 {s('w1col')}, {s('t0')}, {s('t1')}")
    R(f"s_lshl_b32 {s('t1')}, {s('jj')}, 5\ns_add_u32 {s('wqcol')}, {s('t0')}, {s('t1')}\ns_add_u32 {s('wqcol')}, {s('wqcol')}, 2048")
    R(f"s_mul_i32 {s('t1')}, {s('kh')}, {32*WROW}\ns_add_u32 {s('wqcol')}, {s('wqcol')}, {s('t1')}")
    R(f"s_lshl_b32 {s('m0w')}, {s('wave')}, 11")
    R(f"s_lshl_b32 {s('m0q')}, {s('wave')}, 10")
    R(f"s_lshl_b32 {s('m0x')}, {s('wave')}, 14\ns_add_u32 {s('m0x')}, {s('m0x')}, {XST}")
    R(f"v_lshrrev_b32 v{T0}, 3, v{L}")
    R(f"v_and_b32 v{T1}, 7, v{L}")
    R(f"v_lshrrev_b32 v{T2}, 1, v{T0}")
    R(f"v_xor_b32 v{T2}, v{T2}, v{T1}")
    R(f"v_mul_u32_u24 v{T3}, {XROW}, v{T0}")
    R(f"v_lshl_add_u32 v{V_X}, v{T2}, 4, v{T3}")
    R(f"v_xor_b32 v{V_X+1}, 64, v{V_X}")
    R(f"v_add_u32 v{V_X+2}, {2*(8*XROW-1024)}, v{V_X}")
    R(f"v_add_u32 v{V_X+3}, {3*(8*XROW-1024)}, v{V_X+1}")
    R(f"v_add_u32 v{V_X+1}, {1*(8*XROW-1024)}, v{V_X+1}")
    R(f"v_and_b32 v{T2}, 2, v{T0}")
    R(f"v_xor_b32 v{T2}, v{T2}, v{T1}")
    R(f"s_lshl_b32 {s('t0')}, {s('th')}, 2")
    R(f"v_xor_b32 v{T2}, {s('t0')}, v{T2}")
    R(f"v_mul_u32_u24 v{T3}, {WROW}, v{T0}")
    R(f"v_lshl_add_u32 v{V_W1}, v{T2}, 4, v{T3}")
    R(f"s_mul_i32 {s('t0')}, {s('wave')}, {8*WROW}")
    R(f"v_add_u32 v{V_W1}, {s('t0')}, v{V_W1}")
    R("s_waitcnt lgkmcnt(0)")
    E.stamp("karg")
    R(f"s_mov_b32 s8, s4\ns_mov_b32 s9, s5\ns_mov_b32 s10, {NTOK*XROW}\ns_mov_b32 s11, 0x20000")
    R(f"s_mov_b32 s12, s6\ns_mov_b32 s13, s7\ns_mov_b32 s14, {DM*WROW}\ns_mov_b32 s15, 0x20000")
    R(f"s_mov_b32 s20, s18\ns_mov_b32 s21, s19\ns_mov_b32 s22, {DF*XROW}\ns_mov_b32 s23, 0x20000")
    R(f"s_cmp_eq_u32 {s('th')}, 0")
    R(f"s_cselect_b32 s36, s6, s16\ns_cselect_b32 s37, s7, s17\ns_mov_b32 s38, {DM*WROW}\ns_mov_b32 s39, 0x20000")
    R(f"s_sub_u32 s16, s16, 1024\ns_subb_u32 s17, s17, 0\ns_mov_b32 s18, {DM*WROW+1024}\ns_mov_b32 s19, 0x20000")
    R(f"s_mov_b32 s32, s30\ns_mov_b32 s33, s31\ns_mov_b32 s34, 256\ns_mov_b32 s35, 0x20000")
    R(f"s_mov_b32 s30, {NTOK*XROW}\ns_mov_b32 s31, 0x20000")
    R(f"s_mov_b32 s26, {WS_SIZE}\ns_mov_b32 s27, 0x20000")

def issue_x(E, piece):
    c, hf = piece >> 1, piece & 1
    E.raw(f"s_add_u32 m0, {s('m0x')}, {(piece % 4) * 4096}")
    E.raw(f"s_add_u32 {s('so2')}, {s('xoff')}, {hf * 32 * XROW + c * 128}")
    for u in range(4):
        E.vmem(f"buffer_load_dwordx4 v{V_X+u}, {srd(SRD_X)}, {s('so2')} offen offset:{u*1024} lds", f"X{piece}")

def w1_ops(line, ks):
    def setup(E):
        E.raw(f"s_add_u32 m0, {s('m0w')}, {ks * W1_KS}")
        E.raw(f"s_add_u32 {s('so')}, {s('w1col')}, {ks * 32 * WROW + line * 128}")
    def g(E): E.vmem(f"buffer_load_dwordx4 v{V_W1}, {srd(SRD_G)}, {s('so')} offen lds", f"W{line}_{ks//3}")
    def u(E): E.vmem(f"buffer_load_dwordx4 v{V_W1}, {srd(SRD_U)}, {s('so')} offen offset:1024 lds", f"W{line}_{ks//3}")
    return setup, g, u

def issue_w1_slot(E, line, slot):
    for ks in range(3 * slot, 3 * slot + 3):
        a, b, c = w1_ops(line, ks)
        a(E); b(E); c(E)

def read_x(E, chunk):
    out = []
    for hf in range(2):
        piece = 2 * chunk + hf
        for h in range(2):
            for tp in range(2):
                ks = 2 * chunk + h
                tt = 2 * hf + tp
                out.append(f"ds_read_b128 {xreg(ks, tt)}, v{V_XR + h} offset:{(piece % 4) * 4096 + tp * 2048}")
    return out

def areads_w1(ph, ks):
    out = []
    reg, kk = divmod(ks, 6)
    for f in range(4):
        grp, mat = f >> 1, f & 1
        d = V_AR + 16 * (ks & 1) + 4 * f
        base = V_A + 2 * reg + grp
        for sec in range(2):
            out.append(f"ds_read_b64_tr_b16 v[{d+2*sec}:{d+2*sec+1}], v{base} offset:{kk*W1_KS + mat*1024 + sec*512}")
    return out

def areads_q(ks, par):
    out = []
    for mat in range(2):
        d = V_AR + 16 * par + 4 * mat
        for sec in range(2):
            out.append(f"ds_read_b64_tr_b16 v[{d+2*sec}:{d+2*sec+1}], v{V_AQ} offset:{ks*2048 + mat*1024 + sec*256}")
    return out

def areads_g2(t, sub, par):
    slot = (t + 2) % 8
    reg, sl = divmod(slot, 3)
    out = []
    for k in range(3):
        dt = 3 * sub + k
        d = V_AR + 12 * par + 4 * k
        for sec in range(2):
            out.append(f"ds_read_b64_tr_b16 v[{d+2*sec}:{d+2*sec+1}], v{V_A2+reg} offset:{sl*WD_SLOT + dt*32 + sec*4608}")
    return out

def kap(t):
    return 4 * (t & 3) + (t >> 2)

def wd_ops(t):
    slot = (t + 2) % 8
    def setup(E):
        E.raw(f"s_add_u32 m0, {s('m0d')}, {slot * WD_SLOT}")
        if OPT.get("nowd"):
            E.raw(f"s_mov_b32 {s('so')}, {OOB}"); return
        if t < 16: E.raw(f"s_add_u32 {s('so')}, {s('wd0')}, {32 * kap(t) * XROW}")
        else: E.raw(f"s_add_u32 {s('so')}, {s('wdq')}, {32 * (t - 16) * XROW}")
    def mk(i):
        def f(E): E.vmem(f"buffer_load_dwordx4 v{V_WD+i}, {srd(SRD_D)}, {s('so')} offen offset:{i*1024} lds", f"D{t}")
        return f
    def setup5(E):
        E.raw(f"s_and_b32 {s('tA')}, {s('t5')}, {slot * WD_SLOT}")
        E.raw(f"s_add_u32 m0, {s('m0d5')}, {s('tA')}")
    def d4(E): E.vmem(f"buffer_load_dwordx4 v{V_WD+4}, {srd(SRD_D)}, {s('so')} offen lds", f"D{t}")
    return [(setup, 's'), (mk(0), 'v'), (mk(1), 'v'), (mk(2), 'v'), (mk(3), 'v'), (setup5, 's'), (d4, 'v')]

def h_ops(t):
    ops = []
    if t < 16:
        def setup(E):
            if OPT.get("noh"):
                E.raw(f"s_mov_b32 {s('tA')}, {OOB}"); E.raw(f"s_mov_b32 {s('tB')}, {OOB}"); return
            E.raw(f"s_add_u32 {s('tA')}, {s('hldA')}, {kap(t) * H_KS}")
            E.raw(f"s_add_u32 {s('tB')}, {s('hldB')}, {kap(t) * H_KS}")
        ops.append((setup, 's'))
        for tt in range(4):
            def f(E, tt=tt):
                so = s('tA') if tt < 2 else s('tB')
                E.vmem(f"buffer_load_dwordx4 {ar(hreg(t, tt))}, v{V_L16}, {srd(SRD_W)}, {so} offen offset:{(tt & 1) * 1024}{HSC}", f"H{t}")
            ops.append((f, 'v'))
    else:
        def setup(E):
            E.raw(f"s_add_u32 {s('tA')}, {s('hlqA')}, {(t - 16) * H_KS}")
            E.raw(f"s_add_u32 {s('tB')}, {s('hlqB')}, {(t - 16) * H_KS}")
        ops.append((setup, 's'))
        for tt in range(4):
            for hf in range(2):
                def f(E, tt=tt, hf=hf):
                    so = s('tA') if tt < 2 else s('tB')
                    b = hreg(t, tt) + 2 * hf
                    E.vmem(f"buffer_load_dwordx2 {ar(b, 2)}, v{V_L8}, {srd(SRD_W)}, {so} offen offset:{(tt & 1) * 1024 + hf * 512}{HSC}", f"H{t}")
                ops.append((f, 'v'))
    return ops

def publish_op(level, vpub=None, spf="pf"):
    def f(E):
        E.raw(f"s_add_u32 {s('t0')}, {s('nonce')}, {level}")
        E.raw(f"v_mov_b32 v{V_ONE}, {s('t0')}")
        E.vmem(f"buffer_store_dword v{V_ONE}, v{V_PUB if vpub is None else vpub}, {srd(SRD_W)}, {s(spf)} offen sc1", f"PUB{level}")
    return f

def nonce_ops():
    def a(E):
        E.raw(f"s_memrealtime s[84:85]")
        E.raw(f"s_waitcnt lgkmcnt(0)")
        E.ds_out = 0
        E.raw(f"s_or_b32 {s('nonce')}, s84, 1")
        E.raw(f"v_mov_b32 v{V_T1}, {s('nonce')}")
        E.raw(f"v_mov_b32 v{V_T2}, 0")
        E.vmem(f"buffer_atomic_cmpswap v[{V_T1}:{V_T2}], v{V_PUBD}, {srd(SRD_F)}, 0 offen sc0", "NONCE")
    def b(E):
        E.raw(f"v_mov_b32 v{V_T0}, {s('nonce')}")
        E.raw(f"v_cmp_eq_u32 vcc, 0, v{V_T1}")
        E.raw(f"s_nop 1")
        E.raw(f"v_cndmask_b32 v{V_T0}, v{V_T1}, v{V_T0}, vcc")
        E.raw(f"v_min_u32 v{V_T2}, 64, v{V_PUB}")
        E.raw(f"v_add_u32 v{V_T2}, {SCRATCH}, v{V_T2}")
        E.ds(f"ds_write_b32 v{V_T2}, v{V_T0}")
    def c(E):
        E.raw(f"v_mov_b32 v{V_T2}, {SCRATCH}")
        E.ds(f"ds_read_b32 v{V_T0}, v{V_T2}")
    def d(E):
        E.raw(f"v_readfirstlane_b32 {s('nonce')}, v{V_T0}")
    return a, b, c, d

V_DUM = V_T3
def touch(E, vreg, srdb, so, tag="TCH"):
    E.vmem(f"buffer_load_dword v{V_DUM}, v{vreg}, {srd(srdb)}, {so} offen", tag)

def touch_ops_wd():
    def setup(E):
        E.raw(f"s_and_b32 {s('t0')}, {s('mb')}, 3\ns_lshl_b32 {s('t0')}, {s('t0')}, 3\ns_add_u32 {s('t0')}, {s('t0')}, {s('jj')}")
        E.raw(f"s_lshl_b32 {s('t0')}, {s('t0')}, 2\ns_add_u32 {s('t0')}, {s('t0')}, {s('wave')}\ns_mul_i32 {s('t0')}, {s('t0')}, {81*128}")
        E.raw(f"s_mul_i32 {s('t1')}, {s('sk')}, {1152*XROW}\ns_add_u32 {s('so')}, {s('t0')}, {s('t1')}")
    return [(setup, 's'), (lambda E: touch(E, V_T128, SRD_D, s('so')), 'v'), (lambda E: touch(E, V_T128B, SRD_D, s('so')), 'v')]

def touch_ops_w1(line):
    def setup(E):
        E.raw(f"s_and_b32 {s('t0')}, {s('mb')}, 3\ns_lshl_b32 {s('t0')}, {s('t0')}, 1\ns_add_u32 {s('t0')}, {s('t0')}, {s('kh')}")
        E.raw(f"s_mul_i32 {s('t0')}, {s('t0')}, {72*WROW}\ns_add_u32 {s('so')}, {s('t0')}, {s('w1col')}")
        if line: E.raw(f"s_add_u32 {s('so')}, {s('so')}, {line*128}")
    return [(setup, 's'), (lambda E: touch(E, V_TROW, SRD_Q, s('so')), 'v'), (lambda E: touch(E, V_TROWB, SRD_Q, s('so')), 'v')]

def touch_ops_wq():
    def setup(E):
        E.raw(f"s_and_b32 {s('t0')}, {s('jj')}, 3\ns_lshl_b32 {s('t0')}, {s('t0')}, 2\ns_and_b32 {s('t1')}, {s('mb')}, 3\ns_add_u32 {s('t0')}, {s('t0')}, {s('t1')}")
        E.raw(f"s_lshl_b32 {s('t0')}, {s('t0')}, 1\ns_add_u32 {s('t0')}, {s('t0')}, {s('kh')}\ns_mul_i32 {s('t0')}, {s('t0')}, {18*WROW}")
        E.raw(f"s_mul_i32 {s('t1')}, {s('sk')}, 2304\ns_add_u32 {s('t0')}, {s('t0')}, {s('t1')}\ns_lshl_b32 {s('t1')}, {s('jj')}, 5\ns_add_u32 {s('t0')}, {s('t0')}, {s('t1')}\ns_add_u32 {s('so')}, {s('t0')}, 2048")
    return [(setup, 's'), (lambda E: touch(E, V_TROWQ, SRD_Q, s('so')), 'v')]

def touch_ops_x():
    def setup(E):
        E.raw(f"s_lshl_b32 {s('t0')}, {s('jj')}, 2\ns_add_u32 {s('t0')}, {s('t0')}, {s('wave')}\ns_lshl_b32 {s('t0')}, {s('t0')}, 3")
        E.raw(f"s_lshl_b32 {s('t1')}, {s('mb')}, 8\ns_add_u32 {s('t0')}, {s('t0')}, {s('t1')}\ns_mul_i32 {s('so')}, {s('t0')}, {XROW}")
    return [(setup, 's'), (lambda E: touch(E, V_T128, SRD_X, s('so')), 'v'), (lambda E: touch(E, V_T128B, SRD_X, s('so')), 'v')]

def touch_ops_h(p0, np_):
    def setup(E):
        E.raw(f"s_lshr_b32 {s('t0')}, {s('jj')}, 1\ns_lshl_b32 {s('t0')}, {s('t0')}, 14\ns_add_u32 {s('t0')}, {s('t0')}, {s('hldA')}")
        E.raw(f"s_lshl_b32 {s('t1')}, {s('kh')}, 11\ns_sub_u32 {s('so')}, {s('t0')}, {s('t1')}")
        if p0: E.raw(f"s_add_u32 {s('so')}, {s('so')}, {p0*H_KS}")
    v = V_T128 if np_ == 2 else V_T128H
    return [(setup, 's'), (lambda E: touch(E, v, SRD_W, s('so')), 'v')]

def selftouch_op(p):
    def f(E):
        E.raw(f"s_add_u32 {s('t4')}, {s('hst')}, {p * H_KS}")
        E.vmem(f"buffer_load_dword v{V_DUM}, v{V_T128H}, {srd(SRD_W)}, {s('t4')} offen sc1", "TCH")
    return f

def touch_regs(E):
    R = E.raw; L = V_LANE
    R(f"v_lshlrev_b32 v{V_T128}, 7, v{L}")
    R(f"v_mov_b32 v{V_T128H}, {OOB}")
    R(f"v_cmp_gt_u32 vcc, 17, v{L}")
    R(f"v_add_u32 v{V_T128B}, {64*128}, v{V_T128}")
    R(f"v_mul_u32_u24 v{V_TROW}, {WROW}, v{L}")
    R(f"v_cndmask_b32 v{V_T128B}, v{V_T128H}, v{V_T128B}, vcc")
    R(f"v_cmp_gt_u32 vcc, 8, v{L}")
    R(f"v_add_u32 v{V_TROWB}, {64*WROW}, v{V_TROW}")
    R(f"s_nop 0")
    R(f"v_cndmask_b32 v{V_TROWB}, v{V_T128H}, v{V_TROWB}, vcc")
    R(f"v_cmp_gt_u32 vcc, 18, v{L}")
    R(f"s_nop 1")
    R(f"v_cndmask_b32 v{V_TROWQ}, v{V_T128H}, v{V_TROW}, vcc")
    R(f"v_cmp_gt_u32 vcc, 32, v{L}")
    R(f"s_nop 1")
    R(f"v_cndmask_b32 v{V_T128H}, v{V_T128H}, v{V_T128}, vcc")

def emit_ops(E, ops):
    for f, k in ops:
        f(E)

def poll_issue(name):
    def f(E):
        E.vmem(f"buffer_load_dword v{V_FL}, v{V_FH}, {srd(SRD_W)}, 0 offen sc1", f"POLL{name}")
    return f

def poll_check(E, name, level, voff=None, issued=True):
    voff = V_FH if voff is None else voff
    ok = E.label("pok"); slow = E.label("pslow"); chk = E.label("pchk")
    if OPT.get("nopoll"):
        if issued: E.wait(vm=f"POLL{name}")
        return
    test = [f"s_add_u32 {s('t0')}, {s('nonce')}, {level}",
            f"v_subrev_u32 v{V_FL}, {s('t0')}, v{V_FL}",
            f"v_cmp_lt_u32 vcc, {6 - level}, v{V_FL}"]
    if issued:
        E.wait(vm=f"POLL{name}")
        for x in test: E.raw(x)
        E.raw(f"s_cbranch_vccnz {slow}")
    else:
        E.raw(f"s_branch {slow}")
    E.raw(f"{ok}:")
    E.slow += [f"{slow}:",
               f"s_mov_b32 {s('spin')}, 0",
               f"{chk}:",
               f"buffer_load_dword v{V_FL}, v{voff}, {srd(SRD_W)}, 0 offen sc1",
               "s_waitcnt vmcnt(0)"] + test + [
               f"s_add_u32 {s('spin')}, {s('spin')}, 1",
               f"s_cmp_gt_u32 {s('spin')}, {SPIN_MAX}",
               f"s_cbranch_scc1 {ok}",
               f"s_cbranch_vccnz {chk}",
               f"s_branch {ok}"]

def setup2(E):
    R = E.raw
    L = V_LANE
    T0, T1, T2, T3 = V_T0, V_T1, V_T2, V_T3
    R(f"v_lshrrev_b32 v{T0}, 4, v{L}")
    R(f"v_and_b32 v{T1}, 15, v{L}")
    R(f"v_lshrrev_b32 v{T2}, 1, v{T1}")
    R(f"v_xor_b32 v{T2}, v{T2}, v{T0}")
    R(f"v_lshlrev_b32 v{T3}, 7, v{T1}")
    R(f"v_lshl_add_u32 v{V_XR}, v{T2}, 4, v{T3}")
    R(f"v_add_u32 v{V_XR}, {s('m0x')}, v{V_XR}")
    R(f"v_xor_b32 v{V_XR+1}, 64, v{V_XR}")
    R(f"v_lshrrev_b32 v{T2}, 2, v{T1}")
    R(f"v_lshlrev_b32 v{T3}, 11, v{T0}")
    R(f"v_lshl_add_u32 v{T3}, v{T2}, 7, v{T3}")
    R(f"v_and_b32 v{T2}, 3, v{T1}")
    R(f"v_lshl_add_u32 v{T3}, v{T2}, 3, v{T3}")
    R(f"v_and_b32 v{T2}, 1, v{T0}")
    R(f"v_lshlrev_b32 v{T2}, 6, v{T2}")
    R(f"v_add_u32 v{T3}, v{T3}, v{T2}")
    R(f"v_bfe_u32 v{T2}, v{T1}, 3, 1")
    R(f"v_lshl_add_u32 v{V_A}, v{T2}, 5, v{T3}")
    R(f"v_xor_b32 v{V_A+1}, 32, v{V_A}")
    for r in range(1, 3):
        R(f"v_add_u32 v{V_A+2*r}, {r*49152}, v{V_A}")
        R(f"v_add_u32 v{V_A+2*r+1}, {r*49152}, v{V_A+1}")
    R(f"v_lshrrev_b32 v{T2}, 1, v{T0}")
    R(f"v_lshlrev_b32 v{T3}, 9, v{T2}")
    R(f"v_and_b32 v{T2}, 1, v{T0}")
    R(f"v_lshl_add_u32 v{T3}, v{T2}, 7, v{T3}")
    R(f"v_lshrrev_b32 v{T2}, 2, v{T1}")
    R(f"v_lshl_add_u32 v{T3}, v{T2}, 5, v{T3}")
    R(f"v_and_b32 v{T2}, 3, v{T1}")
    R(f"v_lshl_add_u32 v{V_AQ}, v{T2}, 3, v{T3}")
    R(f"v_lshrrev_b32 v{T2}, 2, v{T1}")
    R(f"v_lshl_add_u32 v{T2}, v{T0}, 2, v{T2}")
    R(f"v_mul_u32_u24 v{T2}, 288, v{T2}")
    R(f"v_and_b32 v{T3}, 3, v{T1}")
    R(f"v_lshl_add_u32 v{T2}, v{T3}, 3, v{T2}")
    R(f"s_mul_i32 {s('t0')}, {s('kh')}, 9216")
    R(f"v_add_u32 v{V_A2}, {s('t0')}, v{T2}")
    R(f"v_add_u32 v{V_A2+1}, {3*WD_SLOT}, v{V_A2}")
    R(f"v_add_u32 v{V_A2+2}, {6*WD_SLOT}, v{V_A2}")
    R(f"v_lshrrev_b32 v{T0}, 1, v{L}")
    R(f"v_and_b32 v{T1}, 0x13, v{T0}")
    R(f"v_and_b32 v{T2}, 4, v{T0}")
    R(f"v_lshl_or_b32 v{T1}, v{T2}, 1, v{T1}")
    R(f"v_and_b32 v{T2}, 8, v{T0}")
    R(f"v_lshrrev_b32 v{T2}, 1, v{T2}")
    R(f"v_or_b32 v{T1}, v{T1}, v{T2}")
    R(f"v_mul_u32_u24 v{T1}, {WROW}, v{T1}")
    R(f"v_and_b32 v{T2}, 1, v{L}")
    R(f"v_lshl_add_u32 v{V_WQ}, v{T2}, 4, v{T1}")
    R(f"s_lshl_b32 {s('t0')}, {s('th')}, 8")
    for ip in range(5):
        if ip < 4:
            R(f"v_add_u32 v{T0}, {s('t0')}, v{L}")
            if ip: R(f"v_add_u32 v{T0}, {64*ip}, v{T0}")
        else:
            R(f"v_add_u32 v{T0}, 512, v{L}")
        R(f"v_mul_u32_u24 v{T1}, 3641, v{T0}")
        R(f"v_lshrrev_b32 v{T1}, 16, v{T1}")
        R(f"v_mul_u32_u24 v{T2}, 18, v{T1}")
        R(f"v_sub_u32 v{T2}, v{T0}, v{T2}")
        R(f"v_mul_u32_u24 v{T1}, {XROW}, v{T1}")
        R(f"v_lshl_add_u32 v{V_WD+ip}, v{T2}, 4, v{T1}")
        if 0 < ip < 4: R(f"v_subrev_u32 v{V_WD+ip}, {ip*1024}, v{V_WD+ip}")
    R(f"s_cmp_eq_u32 {s('th')}, 0")
    R(f"s_cselect_b32 {s('t5')}, -1, 0")
    R(f"s_cselect_b32 {s('t0')}, 0, {OOB}")
    R(f"v_add_u32 v{V_WD+4}, {s('t0')}, v{V_WD+4}")
    R(f"s_mul_i32 {s('t1')}, {s('kh')}, 9216")
    R(f"s_add_u32 {s('t2')}, {s('t1')}, 8192")
    R(f"s_cmp_eq_u32 {s('th')}, 0")
    R(f"s_cselect_b32 {s('m0d5')}, {s('t2')}, {SCRATCH}")
    R(f"s_lshl_b32 {s('t2')}, {s('th')}, 12\ns_add_u32 {s('m0d')}, {s('t1')}, {s('t2')}")
    R(f"v_lshlrev_b32 v{V_L16}, 4, v{L}")
    R(f"v_lshlrev_b32 v{V_L8}, 3, v{L}")
    R(f"v_mov_b32 v{V_KA}, 0x{f2u(GA):08x}")
    R(f"s_mov_b32 {s('kb')}, 0x{f2u(GB):08x}")
    R(f"v_mov_b32 v{V_Z}, 0")
    R(f"v_mov_b32 v{T0}, {OOB}")
    R(f"v_cmp_eq_u32 vcc, 0, v0")
    R(f"s_lshl_b32 {s('pf')}, {s('cu')}, 7\ns_add_u32 {s('pf')}, {s('pf')}, {WS_F}")
    R(f"v_mov_b32 v{T1}, {SCRATCH + 64}")
    R(f"v_cndmask_b32 v{V_PUB}, v{T0}, v{V_Z}, vcc")
    R(f"v_mov_b32 v{T2}, {SCRATCH}")
    R(f"v_mov_b32 v{V_PUBD}, v{V_PUB}")
    R(f"v_cndmask_b32 v{V_NA}, v{T1}, v{T2}, vcc")
    R(f"v_mov_b32 v{V_NB}, {SCRATCH}")
    R(f"s_and_b32 {s('flagh')}, {s('cu')}, 0xf8\ns_lshl_b32 {s('t0')}, {s('kh')}, 2\ns_add_u32 {s('flagh')}, {s('flagh')}, {s('t0')}")
    R(f"s_lshl_b32 {s('flagh')}, {s('flagh')}, 7\ns_add_u32 {s('flagh')}, {s('flagh')}, {WS_F}")
    R(f"v_min_u32 v{T0}, 3, v{L}")
    R(f"v_lshlrev_b32 v{T0}, 7, v{T0}")
    R(f"v_add_u32 v{V_FH}, {s('flagh')}, v{T0}")
    R(f"s_lshl_b32 {s('t0')}, {s('mb')}, 2\ns_add_u32 {s('t0')}, {s('t0')}, {s('sk')}\ns_lshl_b32 {s('t0')}, {s('t0')}, 2")
    R(f"s_add_u32 {s('t1')}, {s('t0')}, {s('wave')}\ns_mul_i32 {s('t1')}, {s('t1')}, {36*H_KS}")
    R(f"s_lshl_b32 {s('t2')}, {s('jj')}, 14\ns_add_u32 {s('hst')}, {s('t1')}, {s('t2')}")
    R(f"s_lshr_b32 {s('t2')}, {s('jj')}, 1\ns_add_u32 {s('t2')}, {s('t2')}, 32\ns_lshl_b32 {s('t2')}, {s('t2')}, 12\ns_add_u32 {s('hstq')}, {s('t1')}, {s('t2')}")
    R(f"s_and_b32 {s('t2')}, {s('jj')}, 1\ns_lshl_b32 {s('t3')}, {s('t2')}, 9\ns_add_u32 {s('hstq')}, {s('hstq')}, {s('t3')}")
    R(f"s_lshl_b32 {s('t2')}, {s('t2')}, 1\ns_add_u32 {s('t2')}, {s('t2')}, {s('th')}")
    R(f"s_add_u32 {s('t1')}, {s('t0')}, {s('t2')}\ns_mul_i32 {s('t1')}, {s('t1')}, {36*H_KS}")
    R(f"s_lshl_b32 {s('t2')}, {s('kh')}, 11")
    R(f"s_sub_u32 {s('t3')}, 2048, {s('t2')}")
    R(f"s_lshl_b32 {s('t4')}, {s('kh')}, 16\ns_add_u32 {s('t4')}, {s('t4')}, {s('t1')}")
    R(f"s_add_u32 {s('hldA')}, {s('t4')}, {s('t2')}\ns_add_u32 {s('hldB')}, {s('t4')}, {s('t3')}")
    R(f"s_lshl_b32 {s('t4')}, {s('kh')}, 13\ns_add_u32 {s('t4')}, {s('t4')}, {32*H_KS}\ns_add_u32 {s('t4')}, {s('t4')}, {s('t1')}")
    R(f"s_add_u32 {s('hlqA')}, {s('t4')}, {s('t2')}\ns_add_u32 {s('hlqB')}, {s('t4')}, {s('t3')}")
    R(f"s_lshr_b32 {s('t0')}, {s('jj')}, 1\ns_mul_i32 {s('t0')}, {s('t0')}, 288")
    R(f"s_mul_i32 {s('t1')}, {s('sk')}, {1152*XROW}\ns_add_u32 {s('t0')}, {s('t0')}, {s('t1')}")
    R(f"s_mul_i32 {s('t1')}, {s('kh')}, {512*XROW}\ns_add_u32 {s('wd0')}, {s('t0')}, {s('t1')}")
    R(f"s_mul_i32 {s('t1')}, {s('kh')}, {64*XROW}\ns_add_u32 {s('wdq')}, {s('t0')}, {s('t1')}\ns_add_u32 {s('wdq')}, {s('wdq')}, {1024*XROW}")

class Side:
    def __init__(self):
        self.q = []; self.m = 0; self.clock = 0.0; self.hi = []
    def add(self, ops):
        for o in ops: self.q.append((o[0], o[1], o[2] if len(o) > 2 else -1))
    def add_rated(self, ops, cost, earliest=None):
        st = max(self.clock, self.m if earliest is None else earliest)
        nv = sum(1 for o in ops if o[1] == 'v')
        k = 0
        for o in ops:
            nb = int(st + k * cost / nv)
            self.q.append((o[0], o[1], nb))
            if o[1] == 'v': k += 1
        self.clock = st + cost
    def add_hi(self, f): self.hi.append(f)
    def empty(self): return not self.q and not self.hi
    def take_gap(self, E):
        if self.hi:
            self.hi.pop(0)(E); return 2
        if not self.q: return 0
        f, kind, nb = self.q[0]
        if kind == 'v' and nb <= self.m:
            self.q.pop(0); f(E); return 2
        return 0
    def take_scalar(self, E):
        if self.q and self.q[0][1] == 's' and self.q[0][2] <= self.m + 2:
            f, _, _ = self.q.pop(0); f(E); return 1
        return 0
    def drain(self, E):
        while self.hi: self.hi.pop(0)(E)
        while self.q:
            f, kind, nb = self.q.pop(0)
            f(E)
            if kind == 's': E.raw("s_nop 0")

def kstep(E, st, side, mf, reads, side_gaps=(), cap_extra=0):
    reads = list(reads)
    n = len(mf)
    for i, m in enumerate(mf):
        E.raw(m)
        st.tick()
        side.m += 1
        cap = 2 + cap_extra
        if reads:
            E.ds(reads.pop(0)); cap -= 1
        elif i in side_gaps:
            u = side.take_gap(E)
            cap -= u
            if u: cap = min(cap, 0)
        if cap > 0:
            if (i + 1) in side_gaps or (i + 1 == n):
                cap -= side.take_scalar(E)
        if cap > 0:
            st.fill(E, cap)

def gemm1_mf(buf, ks, first):
    mf = []
    for f in range(4):
        grp, mat = f >> 1, f & 1
        a = vr(V_AR + 16 * (ks & 1) + 4 * f)
        for tt in range(4):
            mf.append(mfma(buf + (grp * 2 + mat) * 16 + tt * 4, a, xreg(ks, tt), first))
    return mf

def toggle_bases(E):
    for i in range(6):
        E.raw(f"v_xor_b32 v{V_A+i}, 64, v{V_A+i}")

def hstore_fn(p):
    def f(E, tt, base):
        E.vmem(f"buffer_store_dwordx4 {vr(base)}, v{V_L16}, {srd(SRD_W)}, {s('so2')} offen offset:{tt*1024} sc1", f"HS{p}")
    return f
def hstoreq_fn(E, tt, base):
    E.vmem(f"buffer_store_dwordx2 {vr(base, 2)}, v{V_L8}, {srd(SRD_W)}, {s('hstq')} offen offset:{tt*1024} sc1", "HS4")

def wq_ops():
    ops = []
    for i in range(9):
        def setup(E, i=i):
            E.raw(f"s_add_u32 m0, {s('m0q')}, {i * 4096}")
            E.raw(f"s_add_u32 {s('so')}, {s('wqcol')}, {i * 64 * WROW}")
        def d(E): E.vmem(f"buffer_load_dwordx4 v{V_WQ}, {srd(SRD_Q)}, {s('so')} offen lds", "WQ")
        ops += [(setup, 's'), (d, 'v')]
    return ops

def build(opt):
    global OPT
    OPT = opt
    E = Emit()
    E.do_stamp = bool(opt.get("stamp"))
    if isinstance(opt.get("stamp"), str): E.stamp_sel = set(opt["stamp"].split("+"))
    global HSC
    HSC = "" if opt.get("hplain") else " sc1"
    st = Stream()
    G = Gelu(st)
    side = Side()
    E.stamp("start")
    prologue(E, opt)
    if opt.get("touch", 1):
        touch_regs(E)
        if opt.get("touch0", 1):
            emit_ops(E, touch_ops_x()); emit_ops(E, touch_ops_w1(0))
    issue_x(E, 0); issue_x(E, 1)
    E.stamp("i1")
    issue_w1_slot(E, 0, 0)
    issue_x(E, 2); issue_x(E, 3)
    issue_w1_slot(E, 0, 1)
    E.stamp("i2")
    setup2(E)
    E.stamp("s2")
    issue_w1_slot(E, 0, 2)
    issue_w1_slot(E, 0, 3)
    E.stamp("issued")
    E.wait(vm=["X0", "X1"])
    E.stamp("x01")
    for r in read_x(E, 0): E.ds(r)
    E.wait(ds=0)
    issue_x(E, 4); issue_x(E, 5)
    E.wait(vm="W0_0", barrier=True)
    for r in areads_w1(0, 0): E.ds(r)
    E.stamp("P0go")
    SG = (9, 11, 13)
    NA, NB, NC, ND = nonce_ops()
    for ks in range(18):
        bar = (ks % 3 == 2 and ks < 17)
        E.wait(vm=(f"W0_{ks//3+1}" if (bar and ks < 17) else None), ds=0, barrier=bar)
        if ks == 16: NA(E)
        if 1 <= ks <= 6:
            issue_x(E, 2 * (ks + 2)); issue_x(E, 2 * (ks + 2) + 1)
        if ks == 8:
            for sl in (4, 5):
                for kk in range(3 * sl, 3 * sl + 3):
                    a, b, c = w1_ops(0, kk)
                    side.add([(a, 's'), (b, 'v'), (c, 'v')])
        if ks == 10 and opt.get("touch", 1):
            side.add(touch_ops_w1(1)); side.add(touch_ops_wq())
        if ks == 17: toggle_bases(E)
        E.stamp(f"P0k{ks}")
        reads = areads_w1(0, ks + 1) if ks < 17 else areads_w1(1, 0)
        mf = gemm1_mf(V_BUF[0], ks, ks == 0)
        if ks <= 7:
            xr = read_x(E, ks + 1)
            for i, m in enumerate(mf):
                E.raw(m)
                if i < 8: E.ds(reads[i])
                else:
                    if i == 8: E.wait(vm=[f"X{2*(ks+1)}", f"X{2*(ks+1)+1}"])
                    E.ds(xr[i - 8])
        else:
            kstep(E, st, side, mf, reads, side_gaps=(8, 9, 10, 11, 12, 13, 14, 15) if ks in (8, 9) else SG)
    assert side.empty()
    E.stamp("P0end")
    RATE = float(opt.get("rate", 4.4))
    PB, PC, PD = opt.get("PB", 2), opt.get("PC", 9), opt.get("PD", 14)
    PUB4, PUB5 = opt.get("pub4", 6), opt.get("pub5", 11)
    def plan_tail():
        G2 = 432
        items = []
        items.append(("WQ", wq_ops(), 36 * RATE, 80, 272 - 30))
        de = {0: 128, 1: 128, 2: 176, 3: 224, 4: 272, 5: 272, 6: 424, 7: 424}
        for u in range(18):
            e = de[u] if u < 8 else G2 + 36 * (u - 7)
            dl = 424 if u == 0 else G2 + 36 * (u - 1) + 24
            items.append((f"D{u}", wd_ops(u), 6.15 * RATE, e, dl))
        for u in range(18):
            if u <= 6: e = 288 + 8 * (u + 1) + 2
            else: e = G2 + 36 * (u - 6)
            if 8 <= u <= 11: e = max(e, G2 + 36 * PB)
            if 12 <= u <= 15: e = max(e, G2 + 36 * PC)
            if u >= 16: e = max(e, G2 + 36 * PD)
            items.append((f"H{u}", h_ops(u), 4 * RATE, e, G2 + 36 * u))
        clock = 80
        order = []
        rem = list(items)
        while rem:
            legal = [it for it in rem if it[3] <= clock]
            if not legal:
                clock = min(it[3] for it in rem); continue
            it = min(legal, key=lambda x: x[4])
            rem.remove(it)
            order.append((it, clock))
            if clock + it[2] > it[4]: print(f"; plan: {it[0]} start {clock:.0f} end {clock+it[2]:.0f} deadline {it[4]} LATE", file=sys.stderr)
            clock += it[2]
        side.clock = 0
        for it, c in order:
            side.add_rated(it[1], it[2], earliest=c)
    for p in (1, 2, 3):
        line, ph = p >> 1, p & 1
        buf = V_BUF[p & 1]
        E.raw(f"s_add_u32 {s('so2')}, {s('hst')}, {(p - 1) * H_KS}")
        G.full_pass(V_BUF[(p - 1) & 1], hstore_fn(p - 1))
        if p == 3:
            assert side.empty()
            side.m = 0
            plan_tail()
        for ks in range(18):
            bar = (ks % 3 == 2)
            tags = []
            if bar:
                if p == 1 and ks == 17: tags.append("W1_0")
                if p == 2 and ks < 17: tags.append(f"W1_{ks//3+1}")
                if p == 3 and ks == 17: tags.append("WQ")
                if p >= 2 and ks == 2: tags.append(f"HS{p-2}")
                if p == 2 and ks == 17: bar = False
            if p == 1 and ks == 14:
                E.wait(vm="NONCE"); NB(E)
            E.wait(vm=(tags if tags else None), ds=0, barrier=bar)
            if p == 1 and ks == 14: NC(E)
            if p == 1 and ks == 15: ND(E)
            if bar:
                c = ks // 3
                if p >= 2 and ks == 2:
                    side.add_hi(publish_op(p - 1))
                    if opt.get("touch", 1): side.add_hi(selftouch_op(p - 2))
                if p == 1:
                    for kk in range(3 * c, 3 * c + 3):
                        a, b, d = w1_ops(1, kk)
                        side.add([(a, 's'), (b, 'v'), (d, 'v')])
            if p == 2 and ks == 6 and opt.get("touch", 1): side.add(touch_ops_wd())
            if p == 3 and ks == 15: side.add_hi(poll_issue("a"))
            if ks == 17 and p < 3: toggle_bases(E)
            if ks < 17: reads = areads_w1(ph, ks + 1)
            elif p < 3: reads = areads_w1(1 - ph, 0)
            else: reads = areads_q(0, 0)
            sg = SG
            if p == 3 and ks >= 5: sg = (8, 9, 11, 13, 15)
            kstep(E, st, side, gemm1_mf(buf, ks, ks == 0), reads, side_gaps=sg)
        n = st.flush(E)
        if n: print(f"; note: pass {p}: GELU flush {n} gaps", file=sys.stderr)
        if p == 2: assert side.empty(), f"side not empty after pass {p}"
        E.stamp(f"P{p}end")
    E.raw(f"s_add_u32 {s('so2')}, {s('hst')}, {3 * H_KS}")
    G.full_pass(V_BUF[1], hstore_fn(3))
    bufq = V_BUF[0]
    for ks in range(18):
        bar = ks in (3, 17)
        tags = []
        if ks == 3: tags.append("HS2")
        if ks == 17: tags.append("D0")
        E.wait(vm=(tags if tags else None), ds=0, barrier=bar)
        if ks == 3:
            side.add_hi(publish_op(3))
            if opt.get("touch", 1): side.add_hi(selftouch_op(2))
        if ks == 1:
            poll_check(E, "a", 2)
        mf = []
        for mat in range(2):
            a = vr(V_AR + 16 * (ks & 1) + 4 * mat)
            for tt in range(4):
                mf.append(mfma(bufq + mat * 16 + tt * 4, a, xreg(ks, tt), ks == 0))
        reads = areads_q(ks + 1, (ks + 1) & 1) if ks < 17 else areads_g2(0, 0, 0)
        kstep(E, st, side, mf, reads, side_gaps=(4, 5, 6, 7) if ks < 17 else (6, 7))
    if opt.get("stop") == "g1":
        st.flush(E)
        G.quarter(bufq, hstoreq_fn)
        st.flush(E)
        side.q = []; side.hi = []
        E.wait_all()
        return finish(E)
    E.stamp("PQend")
    qadded = False
    sub_par = 0
    for t in range(18):
        for sub in range(3):
            tags = []
            bar = (sub == 2)
            if sub == 0: tags.append(f"H{t}")
            if bar and t < 17: tags.append(f"D{t+1}")
            pub = None
            if bar and t == PUB4: tags.append("HS3"); pub = 4
            if bar and t == PUB5: tags.append("HS4"); pub = 5
            E.wait(vm=(tags if tags else None), ds=0, barrier=bar)
            if pub:
                side.add_hi(publish_op(pub))
                if pub == 4 and opt.get("touch", 1): side.add_hi(selftouch_op(3))
            if sub == 0:
                if not qadded and st.pending() == 0:
                    G.quarter(bufq, hstoreq_fn); qadded = True
                if t == PB - 1: side.add_hi(poll_issue("b"))
                if t == PB: poll_check(E, "b", 3)
                if t == PC - 1: side.add_hi(poll_issue("c"))
                if t == PC: poll_check(E, "c", 4)
                if t == PD - 1: side.add_hi(poll_issue("d"))
                if t == PD: poll_check(E, "d", 5)
            mf = []
            for k in range(3):
                dt = 3 * sub + k
                a = vr(V_AR + 12 * sub_par + 4 * k)
                for tt in range(4):
                    mf.append(mfma(acc2(dt, tt), a, ar(hreg(t, tt)), t == 0, "a"))
            if sub < 2: reads = areads_g2(t, sub + 1, 1 - sub_par)
            elif t < 17: reads = areads_g2(t + 1, 0, 1 - sub_par)
            else: reads = []
            if t == 12 and sub == 0:
                prev = None
                for grp in final_setup(E):
                    prev = st.add(grp, 2, [(prev, 1)] if prev else [])
            if t == 17 and sub >= 1:
                for dt in range(3 * (sub - 1), 3 * sub):
                    for j in range(2):
                        st.add((lambda E, dt=dt, j=j: E.ds(f"ds_write_b128 v{V_RED}, {ar(acc2(dt, 2 + j))} offset:{(2*dt+j)*1024}")), 2, [])
                    for x in keep_reads(dt): st.add(x, 1, [])
                st.tick(); st.tick()
                E.raw("s_nop 3")
            kstep(E, st, side, mf, reads, side_gaps=(6, 7, 8, 9, 10, 11))
            if t == 17 and sub == 2: st.flush(E)
            sub_par = 1 - sub_par
        if E.stamp_sel is not None or t in (2, 5, 8, 11, 14, 17): E.stamp(f"G2t{t}")
        if t == PUB4 - 1:
            if E.vm.count("HS3") < 4: print(f"; note: flushing GELU(P3) at t={t}: {st.pending_cost()} slots", file=sys.stderr);
            while E.vm.count("HS3") < 4:
                st.tick(); E.raw("s_nop 0"); st.fill(E, 2)
        if t == PUB5 - 1:
            if not qadded:
                st.flush(E); G.quarter(bufq, hstoreq_fn); qadded = True
            if st.pending(): print(f"; note: flushing GELU(PQ) at t={t}: {st.pending_cost()} slots", file=sys.stderr)
            st.flush(E)
    assert side.empty(), "side ops left"
    final(E, opt)
    return finish(E)

FIRST = [0, 5, 10, 14]
CNT = [5, 5, 4, 4]
RED = 73728
V_PUB2 = 2
KEEP = 128
RCV = 40

def final_setup(E):
    T0, T1 = V_T0, V_T1
    L = V_LANE
    G = []
    G.append(f"s_mul_i32 {s('t0')}, {s('wave')}, 18432\ns_add_u32 {s('t0')}, {s('t0')}, {RED}\nv_add_u32 v{V_RED}, {s('t0')}, v{V_L16}")
    G.append(f"s_xor_b32 {s('t1')}, {s('wave')}, 2\ns_mul_i32 {s('t1')}, {s('t1')}, 18432\ns_add_u32 {s('t1')}, {s('t1')}, {RED}\nv_add_u32 v{V_RED2}, {s('t1')}, v{V_L16}")
    G.append(f"s_lshl_b32 {s('t0')}, {s('mb')}, 3\ns_add_u32 {s('t0')}, {s('t0')}, {s('jj')}\ns_lshl_b32 {s('t0')}, {s('t0')}, 2\ns_add_u32 {s('t0')}, {s('t0')}, {s('wave')}\n"
             f"s_mul_i32 {s('t0')}, {s('t0')}, {16*5120}\ns_add_u32 {s('t0')}, {s('t0')}, {WS_P}\n"
             f"s_mul_i32 {s('t1')}, {s('sk')}, 5120\ns_add_u32 {s('pst')}, {s('t0')}, {s('t1')}\n"
             f"s_mul_i32 {s('t1')}, {s('sk')}, {4*5120}\ns_add_u32 {s('pld')}, {s('t0')}, {s('t1')}")
    G.append(f"s_lshl_b32 {s('t0')}, {s('mb')}, 8\ns_and_b32 {s('t1')}, {s('jj')}, 1\ns_lshl_b32 {s('t1')}, {s('t1')}, 7\ns_add_u32 {s('t0')}, {s('t0')}, {s('t1')}\n"
             f"s_lshl_b32 {s('t1')}, {s('th')}, 6\ns_add_u32 {s('t0')}, {s('t0')}, {s('t1')}\ns_lshl_b32 {s('t1')}, {s('kh')}, 5\ns_add_u32 {s('t0')}, {s('t0')}, {s('t1')}\n"
             f"s_mul_i32 {s('t0')}, {s('t0')}, {XROW}\ns_lshr_b32 {s('t1')}, {s('jj')}, 1\ns_mul_i32 {s('t1')}, {s('t1')}, 288\ns_add_u32 {s('outb')}, {s('t0')}, {s('t1')}")
    G.append(f"v_and_b32 v{T0}, 15, v{L}\nv_mul_u32_u24 v{T0}, {XROW}, v{T0}")
    G.append(f"v_lshrrev_b32 v{T1}, 4, v{L}\nv_lshl_add_u32 v{V_OUT}, v{T1}, 3, v{T0}")
    G.append(f"s_lshl_b32 {s('t0')}, {s('mb')}, 5\ns_add_u32 {s('t0')}, {s('t0')}, {s('jj')}\ns_lshl_b32 {s('t0')}, {s('t0')}, 2\ns_add_u32 {s('t0')}, {s('t0')}, {s('wave')}\n"
             f"s_lshl_b32 {s('t0')}, {s('t0')}, 7\ns_add_u32 {s('t0')}, {s('t0')}, {WS_F + 32768}\n"
             f"s_lshl_b32 {s('t1')}, {s('sk')}, 12\ns_add_u32 {s('pf2')}, {s('t0')}, {s('t1')}\n"
             f"v_min_u32 v{T0}, 3, v{L}\n"
             f"v_lshlrev_b32 v{T0}, 12, v{T0}\nv_add_u32 v{V_FO}, {s('t0')}, v{T0}")
    G.append(f"v_cmp_eq_u32 vcc, 0, v{L}\nv_mov_b32 v{T0}, {OOB}\nv_mov_b32 v{T1}, 0\ns_nop 0\nv_cndmask_b32 v{V_PUB2}, v{T0}, v{T1}, vcc")
    return G

def red_write(E, dt):
    for j in range(2):
        E.ds(f"ds_write_b128 v{V_RED}, {ar(acc2(dt, 2 + j))} offset:{(2*dt+j)*1024}")
def keep_reads(dt):
    return [f"v_accvgpr_read_b32 v{KEEP + (2*dt+j)*4 + r}, a{acc2(dt, j) + r}" for j in range(2) for r in range(4)]

def final(E, opt):
    R = E.raw
    R("s_nop 7")
    for dt in (6, 7, 8):
        red_write(E, dt)
        for x in keep_reads(dt): R(x)
    E.wait(ds=0, barrier=True)
    for ph in range(18):
        E.ds(f"ds_read_b128 {vr(RCV + 4*ph)}, v{V_RED2} offset:{ph*1024}")
    base_vm = list(E.vm); base_done = E.vm_done; base_ds = E.ds_out
    labs = [E.label(f"fin{k}") for k in range(4)]
    end = E.label("finend")
    R(f"s_cmp_eq_u32 {s('sk')}, 1\ns_cbranch_scc1 {labs[1]}\ns_cmp_eq_u32 {s('sk')}, 2\ns_cbranch_scc1 {labs[2]}\ns_cmp_eq_u32 {s('sk')}, 3\ns_cbranch_scc1 {labs[3]}")
    for sv in range(4):
        E.vm = list(base_vm); E.vm_done = base_done; E.ds_out = base_ds
        R(f"{labs[sv]}:")
        own = list(range(FIRST[sv], FIRST[sv] + CNT[sv]))
        order = [ph for ph in range(18) if ph not in own] + own
        done_ds = -1
        for n, ph in enumerate(order):
            need = ph
            if need > done_ds:
                left = 17 - need
                E.wait(ds=min(left, E.ds_out))
                done_ds = need
            for r in range(4):
                R(f"v_add_f32 v{KEEP + 4*ph + r}, v{KEEP + 4*ph + r}, v{RCV + 4*ph + r}")
            if ph not in own:
                dest = max(d for d in range(4) if FIRST[d] <= ph)
                sig = ph - FIRST[dest]
                R(f"s_add_u32 {s('so')}, {s('pst')}, {dest*4*5120 + sig*1024}")
                E.vmem(f"buffer_store_dwordx4 {vr(KEEP + 4*ph)}, v{V_L16}, {srd(SRD_W)}, {s('so')} offen sc1", "PSx")
        E.stamp("F_red")
        R("s_waitcnt vmcnt(0)")
        E.vm_done = len(E.vm)
        E.stamp("F_ps")
        publish_op(6, V_PUB2, "pf2")(E)
        poll_check(E, "f", 6, voff=V_FO, issued=False)
        E.vm_done = len(E.vm)
        E.stamp("F_poll")
        srcs = [k for k in range(4) if k != sv]
        LD = RCV
        for sig in range(CNT[sv]):
            for n, src in enumerate(srcs):
                R(f"s_add_u32 {s('so')}, {s('pld')}, {src*5120 + sig*1024}")
                E.vmem(f"buffer_load_dwordx4 {vr(LD + (sig*3+n)*4)}, v{V_L16}, {srd(SRD_W)}, {s('so')} offen sc1", f"PL{sig}" if n == 2 else "PLx")
        for sig in range(CNT[sv]):
            ph = FIRST[sv] + sig
            dt, j = ph >> 1, ph & 1
            R(f"s_add_u32 {s('so')}, {s('outb')}, {dt*32 + j*16*XROW}")
            E.wait(vm=f"PL{sig}")
            b = KEEP + 4 * ph
            for r in range(4):
                a = [LD + (sig*3+n)*4 + r for n in range(3)]
                R(f"v_add_f32 v{a[0]}, v{a[0]}, v{a[1]}")
                R(f"v_add_f32 v{b+r}, v{b+r}, v{a[2]}")
                R(f"v_add_f32 v{b+r}, v{b+r}, v{a[0]}")
            R(f"v_cvt_pk_bf16_f32 v{b}, v{b}, v{b+1}")
            R(f"v_cvt_pk_bf16_f32 v{b+1}, v{b+2}, v{b+3}")
            E.vmem(f"buffer_store_dwordx2 {vr(b, 2)}, v{V_OUT}, {srd(SRD_O)}, {s('so')} offen", "OUT")
        if sv < 3: R(f"s_branch {end}")
    R(f"{end}:")

def finish(E):
    if E.do_stamp:
        E.raw("s_waitcnt vmcnt(0)")
        E.stamp("end")
        E.raw(f"s_lshl_b32 {s('t0')}, s2, 2\ns_add_u32 {s('t0')}, {s('t0')}, {s('wave')}\ns_lshl_b32 {s('t0')}, {s('t0')}, 7\ns_add_u32 {s('t0')}, {s('t0')}, {60 << 20}")
        E.raw(f"v_mov_b32 v{V_T1}, 0")
        for i in range(len(E.stamps)):
            E.raw(f"v_mov_b32 v{V_T0}, s{86+i}")
            E.raw(f"buffer_store_dword v{V_T0}, v{V_T1}, {srd(SRD_W)}, {s('t0')} offen offset:{4*i}")
        E.raw("s_waitcnt vmcnt(0)")
        print("STAMPS=" + ",".join(E.stamps), file=sys.stderr)
    E.raw("L_end:")
    E.raw("s_endpgm")
    for x in E.slow: E.raw(x)
    E.raw("s_endpgm")
    return E

def emit_file(opt):
    E = build(opt)
    hdr = open("standalone__glu_gated_geglu__prompt.s.ref").read().split("\n") if opt.get("hdr", True) else []
    out = []
    for l in hdr:
        if l.startswith("; @launch") or l.startswith("; Override") or l.startswith("; grid=") : continue
        if l.startswith(";"): out.append(l)
        else: break
    out.append(f"; @launch grid=(256,1,1) block=(256,1,1) lds={LDS_BYTES}")
    out.append('.amdgcn_target "amdgcn-amd-amdhsa--gfx950"')
    out.append(".text")
    out.append(f".globl {KNAME}")
    out.append(".p2align 8")
    out.append(f".type {KNAME},@function")
    out.append(f"{KNAME}:")
    out += E.L
    out.append(".fill 64, 4, 0xbf800000")
    out.append('.section .rodata,"a"')
    out.append(".p2align 6")
    out.append(f".amdhsa_kernel {KNAME}")
    out += ["  .amdhsa_next_free_vgpr 512", "  .amdhsa_next_free_sgpr 102", "  .amdhsa_accum_offset 256",
            "  .amdhsa_group_segment_fixed_size 0", "  .amdhsa_kernarg_size 56", "  .amdhsa_user_sgpr_count 2",
            "  .amdhsa_user_sgpr_kernarg_segment_ptr 1", "  .amdhsa_system_sgpr_workgroup_id_x 1",
            "  .amdhsa_float_denorm_mode_32 3",
            ".end_amdhsa_kernel"]
    return "\n".join(out) + "\n"

if __name__ == "__main__":
    opt = {}
    path = sys.argv[1] if len(sys.argv) > 1 else "k.s"
    for a in sys.argv[2:]:
        k, v = a.split("=")
        opt[k] = int(v) if v.lstrip("-").isdigit() else v
    open(path, "w").write(emit_file(opt))
```

```python
import sys, struct, re

KNAME = "standalone__glu_gated_geglu__prompt_kernel"
HSC = " sc1"
OPT = {}

DM, DF, NTOK = 576, 4608, 2048
XROW = DM * 2
WROW = DF * 2
LDS_BYTES = 163840
W1_KS = 8192
XST = 98304
WD_SLOT = 18432
SCRATCH = 147456
H_KS = 4096
WS_P = 32 << 20
WS_F = 56 << 20
WS_SIZE = 64 << 20
OOB = 0x40000000
GA = -2.0 * 0.7978845608028654 * 1.4426950408889634
GB = GA * 0.044715
SPIN_MAX = 400000

def f2u(x): return struct.unpack('<I', struct.pack('<f', x))[0]

S = {}
SRD_X, SRD_G, SRD_U, SRD_D, SRD_W, SRD_O, SRD_F, SRD_Q = 8, 12, 16, 20, 24, 28, 32, 36
def srd(b): return f"s[{b}:{b+3}]"
_n = 40
for nm in ["wave", "mb", "sk", "jj", "cu", "th", "kh", "xoff", "w1col", "wqcol", "hst", "hstq", "hldA", "hldB", "hlqA", "hlqB",
           "wd0", "wdq", "flagh", "t0", "t1", "t2", "t3", "t4", "t5", "m0w", "m0x", "m0q", "m0d", "m0d5", "kb", "pst", "pld",
           "outb", "spin", "phi0", "so", "so2", "pf", "tA", "tB", "pf2", "nonce"]:
    S[nm] = _n; _n += 1
assert _n <= 100
def s(n): return f"s{S[n]}"

V_LANE = 1
V_W1 = 2
V_WQ = 3
V_A = 4
V_AQ = 10
V_L16 = 11
V_L8 = 12
V_KA = 13
V_PUB = 14
V_ONE = 15
V_FL = 16
V_T0 = 17; V_T1 = 18; V_T2 = 19; V_T3 = 20
V_X = 21
V_XR = 25
V_WD = 27
V_HS = 32
V_GT = 40
N_GSET = 4
V_T128 = 56; V_T128H = 57; V_T128B = 58
V_TROW = 40; V_TROWB = 41; V_TROWQ = 42
V_PUBD = 43; V_NA = 44; V_NB = 45
V_FH = 59
V_A2 = 60
V_Z = 63
V_XO = 64
V_AR = 96
V_BUF = [128, 192]
V_FO = 21; V_OUT = 22; V_RED = 23; V_RED2 = 24

def xreg(ks, tt):
    i = ks * 4 + tt
    if i < 64: return f"a[{4*i}:{4*i+3}]"
    b = V_XO + 4 * (i - 64)
    return f"v[{b}:{b+3}]"
def hreg(t, tt):
    b = 16 * (t % 7) + 4 * tt
    return b
def acc2(dt, tt):
    b = 112 + 16 * dt + 4 * tt
    return b

def expected_count(tag):
    if tag.startswith("POLL") or tag.startswith("PUB"): return 1
    if tag == "WQ": return 9
    if tag == "NONCE": return 1
    if tag == "TCH": return -1
    if tag == "PS": return 18
    if tag in ("PSx", "PLx", "OUT"): return -1
    if tag.startswith("PL"): return 1
    if tag.startswith("HS"): return 4
    if tag[0] == "X": return 4
    if tag[0] == "W": return 6
    if tag[0] == "D": return 5
    if tag[0] == "H": return 4 if int(tag[1:]) < 16 else 8
    raise KeyError(tag)

class Emit:
    def __init__(self):
        self.L = []
        self.vm = []
        self.vm_done = 0
        self.ds_out = 0
        self.slow = []
        self.nlab = 0
        self.do_stamp = False
        self.skew_on = False
        self.stamps = []
        self.stamp_sel = None
    def raw(self, t):
        for x in t.split("\n"):
            self.L.append(x)
    def vmem(self, text, tag):
        self.L.append(text)
        self.vm.append(tag)
    def ds(self, text):
        if self.ds_out >= 15:
            self.L.append("s_waitcnt lgkmcnt(10)")
            self.ds_out = 10
        self.L.append(text)
        self.ds_out += 1
    def _vmN(self, tags):
        idx = -1
        for tg in tags:
            exp = expected_count(tg)
            got = self.vm.count(tg)
            if exp < 0: continue
            assert got == exp, f"wait on {tg}: {got} ops issued, expected {exp}"
        for i, t in enumerate(self.vm):
            if t in tags: idx = i
        assert idx >= 0, f"no vmem op with tags {tags}"
        if idx < self.vm_done: return None
        return min(len(self.vm) - 1 - idx, 63)
    def wait(self, vm=None, ds=None, barrier=False):
        parts = []
        if vm is not None:
            if isinstance(vm, str): vm = [vm]
            n = self._vmN(set(vm))
            if n is not None:
                parts.append(f"vmcnt({n})")
                self.vm_done = max(self.vm_done, len(self.vm) - n)
        if ds is not None and self.ds_out > ds:
            parts.append(f"lgkmcnt({ds})")
            self.ds_out = ds
        if parts:
            self.L.append("s_waitcnt " + " ".join(parts))
        if barrier:
            self.L.append("s_barrier")
            if OPT.get("skew") and self.skew_on:
                for k in range(1, 4):
                    lab = self.label("sk")
                    self.L.append(f"s_cmp_ge_u32 {s('wave')}, {k}")
                    self.L.append(f"s_cbranch_scc0 {lab}")
                    self.L.append(f"s_nop {OPT['skew']}")
                    self.L.append(f"{lab}:")
    def wait_all(self):
        self.L.append("s_waitcnt vmcnt(0) lgkmcnt(0)")
        self.vm_done = len(self.vm); self.ds_out = 0
    def assert_done(self, tag):
        found = False
        for i, t in enumerate(self.vm):
            if t == tag:
                found = True
                assert i < self.vm_done, f"tag {tag} not complete"
        assert found, f"tag {tag} never issued"
    def issued(self, tag):
        return tag in self.vm
    def stamp(self, name):
        if not self.do_stamp: return
        if self.stamp_sel is not None and name not in self.stamp_sel and name not in ("start", "end"): return
        if name in self.stamps: idx = self.stamps.index(name)
        else:
            idx = len(self.stamps)
            assert idx < 16
            self.stamps.append(name)
        self.L.append("s_memtime s[84:85]" if OPT.get("cyc") else "s_memrealtime s[84:85]")
        self.L.append("s_waitcnt lgkmcnt(0)")
        self.ds_out = 0
        self.L.append(f"s_mov_b32 s{86+idx}, s84")
    def label(self, base):
        self.nlab += 1
        return f"L_{base}_{self.nlab}"

class Item:
    def __init__(self, text, cost, deps=()):
        self.text = text; self.cost = cost; self.deps = list(deps); self.placed = None

class Stream:
    def __init__(self):
        self.items = []; self.head = 0; self.gap = 0
    def add(self, text, cost, deps=()):
        it = Item(text, cost, deps); self.items.append(it); return it
    def pending(self):
        return sum(1 for it in self.items[self.head:] if it.placed is None)
    def pending_cost(self):
        return sum(it.cost for it in self.items[self.head:] if it.placed is None)
    def tick(self):
        self.gap += 1
    def fill(self, E, cap, window=48):
        used = 0
        while used < cap:
            while self.head < len(self.items) and self.items[self.head].placed is not None:
                self.head += 1
            pick = None
            for it in self.items[self.head:self.head + window]:
                if it.placed is not None or it.cost > cap - used: continue
                if all(d.placed is not None and self.gap >= d.placed + delta for d, delta in it.deps):
                    pick = it; break
            if pick is None: break
            pick.placed = self.gap
            if callable(pick.text): pick.text(E)
            else: E.raw(pick.text)
            used += pick.cost
        return used
    def flush(self, E):
        n = 0
        while self.pending():
            self.tick()
            E.raw("s_nop 0")
            self.fill(E, 4)
            n += 1
        return n

class Gelu:
    def __init__(self, st):
        self.st = st
        self.pairno = 0
        self.set_last = [None] * N_GSET
        self.stg = 0
        self.stg_last = [None, None]
    def pair(self, g0, u0, g1, u1, dst):
        st = self.st
        k = self.pairno % N_GSET; self.pairno += 1
        T0, T1, G0, G1 = [V_GT + 4 * k + i for i in range(4)]
        prev = [(self.set_last[k], 0)] if self.set_last[k] is not None else []
        sprev = dst[1]
        a0 = st.add(f"v_mul_f32 v{T0}, v{g0}, v{g0}", 1, prev)
        a1 = st.add(f"v_mul_f32 v{T1}, v{g1}, v{g1}", 1, prev)
        b0 = st.add(f"v_fma_f32 v{T0}, v{T0}, {s('kb')}, v{V_KA}", 1, [(a0, 0)])
        b1 = st.add(f"v_fma_f32 v{T1}, v{T1}, {s('kb')}, v{V_KA}", 1, [(a1, 0)])
        c0 = st.add(f"v_mul_f32 v{T0}, v{T0}, v{g0}", 1, [(b0, 0)])
        c1 = st.add(f"v_mul_f32 v{T1}, v{T1}, v{g1}", 1, [(b1, 0)])
        e0 = st.add(f"v_exp_f32 v{T0}, v{T0}", 2, [(c0, 0)])
        e1 = st.add(f"v_exp_f32 v{T1}, v{T1}", 2, [(c1, 0)])
        m0 = st.add(f"v_mul_f32 v{G0}, v{g0}, v{u0}", 1, prev)
        m1 = st.add(f"v_mul_f32 v{G1}, v{g1}, v{u1}", 1, prev)
        d0 = st.add(f"v_add_f32 v{T0}, 1.0, v{T0}", 1, [(e0, 1)])
        d1 = st.add(f"v_add_f32 v{T1}, 1.0, v{T1}", 1, [(e1, 1)])
        r0 = st.add(f"v_rcp_f32 v{T0}, v{T0}", 2, [(d0, 0)])
        r1 = st.add(f"v_rcp_f32 v{T1}, v{T1}", 2, [(d1, 0)])
        h0 = st.add(f"v_mul_f32 v{G0}, v{G0}, v{T0}", 1, [(r0, 1), (m0, 0)])
        h1 = st.add(f"v_mul_f32 v{G1}, v{G1}, v{T1}", 1, [(r1, 1), (m1, 0)])
        pk = st.add(f"v_cvt_pk_bf16_f32 v{dst[0]}, v{G0}, v{G1}", 1, [(h0, 0), (h1, 0)] + ([(sprev, 2)] if sprev is not None else []))
        self.set_last[k] = pk
        return pk
    def full_pass(self, buf, store_fn):
        last = None
        for tt in range(4):
            sg = self.stg % 2; self.stg += 1
            base = V_HS + 4 * sg
            pks = []
            for grp in range(2):
                for hp in range(2):
                    g = buf + (grp * 2 + 0) * 16 + tt * 4 + 2 * hp
                    u = buf + (grp * 2 + 1) * 16 + tt * 4 + 2 * hp
                    pks.append(self.pair(g, u, g + 1, u + 1, (base + grp * 2 + hp, self.stg_last[sg])))
            stt = self.st.add((lambda E, tt=tt, base=base: store_fn(E, tt, base)), 2, [(p, 1) for p in pks])
            self.stg_last[sg] = stt
            last = stt
        return last
    def quarter(self, buf, store_fn):
        last = None
        for tt in range(4):
            sg = self.stg % 2; self.stg += 1
            base = V_HS + 4 * sg
            pks = []
            for hp in range(2):
                g = buf + tt * 4 + 2 * hp
                u = buf + 16 + tt * 4 + 2 * hp
                pks.append(self.pair(g, u, g + 1, u + 1, (base + hp, self.stg_last[sg])))
            stt = self.st.add((lambda E, tt=tt, base=base: store_fn(E, tt, base)), 2, [(p, 1) for p in pks])
            self.stg_last[sg] = stt
            last = stt
        return last

def mfma(d, a, b, first, dpre="v"):
    c = "0" if first else f"{dpre}[{d}:{d+3}]"
    return f"v_mfma_f32_16x16x32_bf16 {dpre}[{d}:{d+3}], {a}, {b}, {c}"

def vr(b, n=4): return f"v[{b}:{b+n-1}]"
def ar(b, n=4): return f"a[{b}:{b+n-1}]"

def prologue(E, opt):
    R = E.raw
    L = V_LANE
    T0, T1, T2, T3 = V_T0, V_T1, V_T2, V_T3
    R("s_cmp_ge_u32 s2, 256")
    R("s_cbranch_scc1 L_end")
    R("s_load_dwordx4 s[4:7], s[0:1], 0")
    R("s_load_dwordx4 s[16:19], s[0:1], 16")
    R("s_load_dwordx4 s[28:31], s[0:1], 32")
    R("s_load_dwordx2 s[24:25], s[0:1], 48")
    R(f"v_and_b32 v{L}, 63, v0")
    R(f"v_lshrrev_b32 v{T0}, 6, v0")
    R(f"v_cmp_eq_u32 vcc, 0, v0")
    R(f"v_readfirstlane_b32 {s('wave')}, v{T0}")
    R(f"v_mov_b32 v{T0}, {OOB}")
    R(f"v_mov_b32 v{T1}, 0")
    R(f"v_lshlrev_b32 v{V_T128}, 7, v{L}")
    R(f"v_cndmask_b32 v{V_PUB}, v{T0}, v{T1}, vcc")
    if opt.get("tcode", 1):
        R(f"s_getpc_b64 s[36:37]")
        R(f"L_pc:")
        R(f"s_sub_u32 s36, s36, L_pc-{KNAME}\ns_subb_u32 s37, s37, 0")
        R(f"s_mov_b32 s38, L_codeend-{KNAME}\ns_mov_b32 s39, 0x20000")
        R(f"s_lshr_b32 {s('t0')}, s2, 1\ns_and_b32 {s('t0')}, {s('t0')}, 4\ns_add_u32 {s('t0')}, {s('t0')}, {s('wave')}\ns_lshl_b32 {s('t0')}, {s('t0')}, 13")
        E.vmem(f"buffer_load_dword v{V_DUM}, v{V_T128}, s[36:39], {s('t0')} offen", "TCH")
    R(f"s_and_b32 {s('sk')}, s2, 3")
    R(f"s_lshr_b32 {s('t0')}, s2, 2\ns_and_b32 {s('t0')}, {s('t0')}, 1")
    R(f"s_lshr_b32 {s('t1')}, s2, 3")
    R(f"s_and_b32 {s('jj')}, {s('t1')}, 7")
    R(f"s_lshr_b32 {s('t1')}, {s('t1')}, 3")
    R(f"s_lshl_b32 {s('mb')}, {s('t0')}, 2\ns_add_u32 {s('mb')}, {s('mb')}, {s('t1')}")
    R(f"s_lshl_b32 {s('t0')}, {s('mb')}, 2\ns_add_u32 {s('t0')}, {s('t0')}, {s('wave')}\ns_mul_i32 {s('xoff')}, {s('t0')}, {64*XROW}")
    R(f"s_lshl_b32 {s('m0x')}, {s('wave')}, 14\ns_add_u32 {s('m0x')}, {s('m0x')}, {XST}")
    R(f"v_lshrrev_b32 v{T0}, 3, v{L}")
    R(f"v_and_b32 v{T1}, 7, v{L}")
    R(f"v_lshrrev_b32 v{T2}, 1, v{T0}")
    R(f"v_xor_b32 v{T2}, v{T2}, v{T1}")
    R(f"v_mul_u32_u24 v{T3}, {XROW}, v{T0}")
    R(f"v_lshl_add_u32 v{V_X}, v{T2}, 4, v{T3}")
    R(f"v_xor_b32 v{V_X+1}, 64, v{V_X}")
    R(f"v_add_u32 v{V_X+2}, {2*(8*XROW-1024)}, v{V_X}")
    R(f"v_add_u32 v{V_X+3}, {3*(8*XROW-1024)}, v{V_X+1}")
    R(f"v_add_u32 v{V_X+1}, {1*(8*XROW-1024)}, v{V_X+1}")
    R(f"s_and_b32 {s('th')}, {s('wave')}, 1\ns_lshr_b32 {s('kh')}, {s('wave')}, 1")
    R(f"v_and_b32 v{T2}, 2, v{T0}")
    R(f"v_xor_b32 v{T2}, v{T2}, v{T1}")
    R(f"s_lshl_b32 {s('t0')}, {s('th')}, 2")
    R(f"v_xor_b32 v{T2}, {s('t0')}, v{T2}")
    R(f"v_mul_u32_u24 v{T3}, {WROW}, v{T0}")
    R(f"v_lshl_add_u32 v{V_W1}, v{T2}, 4, v{T3}")
    R(f"s_mul_i32 {s('t0')}, {s('wave')}, {8*WROW}")
    R(f"v_add_u32 v{V_W1}, {s('t0')}, v{V_W1}")
    R(f"s_mul_i32 {s('t0')}, {s('sk')}, 2304")
    R(f"s_lshl_b32 {s('t1')}, {s('jj')}, 8\ns_add_u32 {s('w1col')}, {s('t0')}, {s('t1')}")
    R(f"s_lshl_b32 {s('m0w')}, {s('wave')}, 11")
    R("s_waitcnt lgkmcnt(0)")
    E.stamp("karg")
    R(f"s_mov_b32 s8, s4\ns_mov_b32 s9, s5\ns_mov_b32 s10, {NTOK*XROW}\ns_mov_b32 s11, 0x20000")

V_TCH = 51
def coop_setup(E):
    R = E.raw; L = V_LANE
    lx = E.label("cx"); le = E.label("ce")
    R(f"s_lshr_b32 {s('t0')}, s2, 3\ns_lshl_b32 {s('t0')}, {s('t0')}, 2\ns_add_u32 {s('t0')}, {s('t0')}, {s('wave')}")
    R(f"s_mov_b32 s36, s4\ns_mov_b32 s37, s5\ns_mov_b32 s38, {NTOK*XROW}\ns_mov_b32 s39, 0x20000")
    R(f"v_mul_u32_u24 v{V_T0}, {XROW}, v{L}")
    R(f"s_cmp_lt_u32 {s('t0')}, 64")
    R(f"s_cbranch_scc1 {lx}")
    R(f"s_sub_u32 {s('t0')}, {s('t0')}, 64\ns_cmp_lt_u32 {s('t0')}, 32")
    R(f"s_cselect_b32 s36, s6, s16\ns_cselect_b32 s37, s7, s17\ns_mov_b32 s38, {DM*WROW}")
    R(f"s_and_b32 {s('t1')}, {s('t0')}, 3\ns_mul_i32 {s('t1')}, {s('t1')}, {48*WROW}")
    R(f"s_lshr_b32 {s('t2')}, {s('t0')}, 2\ns_and_b32 {s('t2')}, {s('t2')}, 7\ns_lshl_b32 {s('t2')}, {s('t2')}, 8\ns_add_u32 {s('t1')}, {s('t1')}, {s('t2')}")
    R(f"s_mul_i32 {s('t2')}, {s('sk')}, 2304\ns_add_u32 {s('tA')}, {s('t1')}, {s('t2')}\ns_mov_b32 {s('tB')}, {192*WROW}")
    R(f"v_mul_u32_u24 v{V_TCH}, {WROW}, v{L}")
    R(f"s_branch {le}")
    R(f"{lx}:")
    R(f"s_lshr_b32 {s('t1')}, {s('t0')}, 4\ns_and_b32 {s('t2')}, {s('mb')}, 4\ns_add_u32 {s('t1')}, {s('t1')}, {s('t2')}\ns_lshl_b32 {s('t1')}, {s('t1')}, 8")
    R(f"s_and_b32 {s('t2')}, {s('t0')}, 15\ns_lshl_b32 {s('t2')}, {s('t2')}, 4\ns_add_u32 {s('t1')}, {s('t1')}, {s('t2')}\ns_mul_i32 {s('tA')}, {s('t1')}, {XROW}\ns_mov_b32 {s('tB')}, 384")
    R(f"v_mul_u32_u24 v{V_T0}, 21846, v{L}\nv_lshrrev_b32 v{V_T0}, 16, v{V_T0}")
    R(f"v_mul_u32_u24 v{V_T1}, 3, v{V_T0}\nv_sub_u32 v{V_T1}, v{L}, v{V_T1}")
    R(f"v_mul_u32_u24 v{V_T0}, {XROW}, v{V_T0}\nv_lshl_add_u32 v{V_TCH}, v{V_T1}, 7, v{V_T0}")
    R(f"{le}:")
    R(f"v_mov_b32 v{V_T0}, {OOB}\nv_cmp_gt_u32 vcc, 48, v{L}\ns_nop 1\nv_cndmask_b32 v{V_TCH}, v{V_T0}, v{V_TCH}, vcc")

def coop_touch(E, g):
    E.vmem(f"buffer_load_dword v{V_DUM}, v{V_TCH}, s[36:39], {s('tA')} offen", "TCH")
    if g < 2: E.raw(f"s_add_u32 {s('tA')}, {s('tA')}, {s('tB')}")

def prologue_w(E):
    R = E.raw
    R(f"s_mov_b32 s12, s6\ns_mov_b32 s13, s7\ns_mov_b32 s14, {DM*WROW}\ns_mov_b32 s15, 0x20000")
    R(f"s_mov_b32 s20, s18\ns_mov_b32 s21, s19\ns_mov_b32 s22, {DF*XROW}\ns_mov_b32 s23, 0x20000")
    R(f"s_sub_u32 s16, s16, 1024\ns_subb_u32 s17, s17, 0\ns_mov_b32 s18, {DM*WROW+1024}\ns_mov_b32 s19, 0x20000")
    R(f"s_mov_b32 s32, s30\ns_mov_b32 s33, s31\ns_mov_b32 s34, 256\ns_mov_b32 s35, 0x20000")
    R(f"s_mov_b32 s30, {NTOK*XROW}\ns_mov_b32 s31, 0x20000")
    R(f"s_mov_b32 s26, {WS_SIZE}\ns_mov_b32 s27, 0x20000")

def issue_x(E, piece):
    c, hf = piece >> 1, piece & 1
    E.raw(f"s_add_u32 m0, {s('m0x')}, {(piece % 4) * 4096}")
    E.raw(f"s_add_u32 {s('so2')}, {s('xoff')}, {hf * 32 * XROW + c * 128}")
    for u in range(4):
        E.vmem(f"buffer_load_dwordx4 v{V_X+u}, {srd(SRD_X)}, {s('so2')} offen offset:{u*1024} lds", f"X{piece}")

def w1_ops(line, ks):
    def setup(E):
        E.raw(f"s_add_u32 m0, {s('m0w')}, {ks * W1_KS}")
        E.raw(f"s_add_u32 {s('so')}, {s('w1col')}, {ks * 32 * WROW + line * 128}")
    def g(E): E.vmem(f"buffer_load_dwordx4 v{V_W1}, {srd(SRD_G)}, {s('so')} offen lds", f"W{line}_{ks//3}")
    def u(E): E.vmem(f"buffer_load_dwordx4 v{V_W1}, {srd(SRD_U)}, {s('so')} offen offset:1024 lds", f"W{line}_{ks//3}")
    return setup, g, u

def issue_w1_slot(E, line, slot):
    for ks in range(3 * slot, 3 * slot + 3):
        a, b, c = w1_ops(line, ks)
        a(E); b(E); c(E)

def read_x(E, chunk):
    out = []
    for hf in range(2):
        piece = 2 * chunk + hf
        for h in range(2):
            for tp in range(2):
                ks = 2 * chunk + h
                tt = 2 * hf + tp
                out.append(f"ds_read_b128 {xreg(ks, tt)}, v{V_XR + h} offset:{(piece % 4) * 4096 + tp * 2048}")
    return out

def areads_w1(ph, ks, par=None, alt=False):
    out = []
    reg, kk = divmod(ks, 6)
    if par is None: par = ks & 1
    for f in range(4):
        grp, mat = f >> 1, f & 1
        d = V_AR + 16 * par + 4 * f
        base = (V_AB if alt else V_A) + 2 * reg + grp
        for sec in range(2):
            out.append(f"ds_read_b64_tr_b16 v[{d+2*sec}:{d+2*sec+1}], v{base} offset:{kk*W1_KS + mat*1024 + sec*512}")
    return out

def areads_q(ks, par):
    out = []
    for mat in range(2):
        d = V_AR + 16 * par + 4 * mat
        for sec in range(2):
            out.append(f"ds_read_b64_tr_b16 v[{d+2*sec}:{d+2*sec+1}], v{V_AQ} offset:{ks*2048 + mat*1024 + sec*256}")
    return out

def areads_g2(t, sub, par):
    slot = (t + 2) % 8
    reg, sl = divmod(slot, 3)
    out = []
    for k in range(3):
        dt = 3 * sub + k
        d = V_AR + 12 * par + 4 * k
        for sec in range(2):
            out.append(f"ds_read_b64_tr_b16 v[{d+2*sec}:{d+2*sec+1}], v{V_A2+reg} offset:{sl*WD_SLOT + dt*32 + sec*4608}")
    return out

def kap(t):
    return 4 * (t & 3) + (t >> 2)

def wd_ops(t):
    slot = (t + 2) % 8
    def setup(E):
        E.raw(f"s_add_u32 m0, {s('m0d')}, {slot * WD_SLOT}")
        if OPT.get("nowd"):
            E.raw(f"s_mov_b32 {s('so')}, {OOB}"); return
        if t < 16: E.raw(f"s_add_u32 {s('so')}, {s('wd0')}, {32 * kap(t) * XROW}")
        else: E.raw(f"s_add_u32 {s('so')}, {s('wdq')}, {32 * (t - 16) * XROW}")
    def mk(i):
        def f(E): E.vmem(f"buffer_load_dwordx4 v{V_WD+i}, {srd(SRD_D)}, {s('so')} offen offset:{i*1024} lds", f"D{t}")
        return f
    def setup5(E):
        E.raw(f"s_and_b32 {s('tA')}, {s('t5')}, {slot * WD_SLOT}")
        E.raw(f"s_add_u32 m0, {s('m0d5')}, {s('tA')}")
    def d4(E): E.vmem(f"buffer_load_dwordx4 v{V_WD+4}, {srd(SRD_D)}, {s('so')} offen lds", f"D{t}")
    return [(setup, 's'), (mk(0), 'v'), (mk(1), 'v'), (mk(2), 'v'), (mk(3), 'v'), (setup5, 's'), (d4, 'v')]

def h_ops(t):
    ops = []
    if t < 16:
        def setup(E):
            if OPT.get("noh"):
                E.raw(f"s_mov_b32 {s('tA')}, {OOB}"); E.raw(f"s_mov_b32 {s('tB')}, {OOB}"); return
            E.raw(f"s_add_u32 {s('tA')}, {s('hldA')}, {kap(t) * H_KS}")
            E.raw(f"s_add_u32 {s('tB')}, {s('hldB')}, {kap(t) * H_KS}")
        ops.append((setup, 's'))
        for tt in range(4):
            def f(E, tt=tt):
                so = s('tA') if tt < 2 else s('tB')
                E.vmem(f"buffer_load_dwordx4 {ar(hreg(t, tt))}, v{V_L16}, {srd(SRD_W)}, {so} offen offset:{(tt & 1) * 1024}{HSC}", f"H{t}")
            ops.append((f, 'v'))
    else:
        def setup(E):
            E.raw(f"s_add_u32 {s('tA')}, {s('hlqA')}, {(t - 16) * H_KS}")
            E.raw(f"s_add_u32 {s('tB')}, {s('hlqB')}, {(t - 16) * H_KS}")
        ops.append((setup, 's'))
        for tt in range(4):
            for hf in range(2):
                def f(E, tt=tt, hf=hf):
                    so = s('tA') if tt < 2 else s('tB')
                    b = hreg(t, tt) + 2 * hf
                    E.vmem(f"buffer_load_dwordx2 {ar(b, 2)}, v{V_L8}, {srd(SRD_W)}, {so} offen offset:{(tt & 1) * 1024 + hf * 512}{HSC}", f"H{t}")
                ops.append((f, 'v'))
    return ops

def publish_op(level, vpub=None, spf="pf"):
    def f(E):
        E.raw(f"s_add_u32 {s('t0')}, {s('nonce')}, {level}")
        E.raw(f"v_mov_b32 v{V_ONE}, {s('t0')}")
        E.vmem(f"buffer_store_dword v{V_ONE}, v{V_PUB if vpub is None else vpub}, {srd(SRD_W)}, {s(spf)} offen sc1", f"PUB{level}")
    return f

def nonce_ops():
    def a(E):
        E.raw(f"s_memrealtime s[84:85]")
        E.raw(f"s_waitcnt lgkmcnt(0)")
        E.ds_out = 0
        E.raw(f"s_or_b32 {s('nonce')}, s84, 1")
        E.raw(f"v_mov_b32 v{V_T1}, {s('nonce')}")
        E.raw(f"v_mov_b32 v{V_T2}, 0")
        E.vmem(f"buffer_atomic_cmpswap v[{V_T1}:{V_T2}], v{V_PUBD}, {srd(SRD_F)}, 0 offen sc0", "NONCE")
    def b(E):
        E.raw(f"v_mov_b32 v{V_T0}, {s('nonce')}")
        E.raw(f"v_cmp_eq_u32 vcc, 0, v{V_T1}")
        E.raw(f"s_nop 1")
        E.raw(f"v_cndmask_b32 v{V_T0}, v{V_T1}, v{V_T0}, vcc")
        E.raw(f"v_min_u32 v{V_T2}, 64, v{V_PUB}")
        E.raw(f"v_add_u32 v{V_T2}, {SCRATCH}, v{V_T2}")
        E.ds(f"ds_write_b32 v{V_T2}, v{V_T0}")
    def c(E):
        E.raw(f"v_mov_b32 v{V_T2}, {SCRATCH}")
        E.ds(f"ds_read_b32 v{V_T0}, v{V_T2}")
    def d(E):
        E.raw(f"v_readfirstlane_b32 {s('nonce')}, v{V_T0}")
    return a, b, c, d

V_DUM = 0
def touch(E, vreg, srdb, so, tag="TCH"):
    E.vmem(f"buffer_load_dword v{V_DUM}, v{vreg}, {srd(srdb)}, {so} offen", tag)

def touch_ops_wd():
    def setup(E):
        E.raw(f"s_and_b32 {s('t0')}, {s('mb')}, 3\ns_lshl_b32 {s('t0')}, {s('t0')}, 3\ns_add_u32 {s('t0')}, {s('t0')}, {s('jj')}")
        E.raw(f"s_lshl_b32 {s('t0')}, {s('t0')}, 2\ns_add_u32 {s('t0')}, {s('t0')}, {s('wave')}\ns_mul_i32 {s('t0')}, {s('t0')}, {81*128}")
        E.raw(f"s_mul_i32 {s('t1')}, {s('sk')}, {1152*XROW}\ns_add_u32 {s('so')}, {s('t0')}, {s('t1')}")
    return [(setup, 's'), (lambda E: touch(E, V_T128, SRD_D, s('so')), 'v'), (lambda E: touch(E, V_T128B, SRD_D, s('so')), 'v')]

def touch_ops_w1(line):
    def setup(E):
        E.raw(f"s_and_b32 {s('t0')}, {s('mb')}, 3\ns_lshl_b32 {s('t0')}, {s('t0')}, 1\ns_add_u32 {s('t0')}, {s('t0')}, {s('kh')}")
        E.raw(f"s_mul_i32 {s('t0')}, {s('t0')}, {72*WROW}\ns_add_u32 {s('so')}, {s('t0')}, {s('w1col')}")
        if line: E.raw(f"s_add_u32 {s('so')}, {s('so')}, {line*128}")
    return [(setup, 's'), (lambda E: touch(E, V_TROW, SRD_Q, s('so')), 'v'), (lambda E: touch(E, V_TROWB, SRD_Q, s('so')), 'v')]

def touch_ops_wq():
    def setup(E):
        E.raw(f"s_and_b32 {s('t0')}, {s('jj')}, 3\ns_lshl_b32 {s('t0')}, {s('t0')}, 2\ns_and_b32 {s('t1')}, {s('mb')}, 3\ns_add_u32 {s('t0')}, {s('t0')}, {s('t1')}")
        E.raw(f"s_lshl_b32 {s('t0')}, {s('t0')}, 1\ns_add_u32 {s('t0')}, {s('t0')}, {s('kh')}\ns_mul_i32 {s('t0')}, {s('t0')}, {18*WROW}")
        E.raw(f"s_mul_i32 {s('t1')}, {s('sk')}, 2304\ns_add_u32 {s('t0')}, {s('t0')}, {s('t1')}\ns_lshl_b32 {s('t1')}, {s('jj')}, 5\ns_add_u32 {s('t0')}, {s('t0')}, {s('t1')}\ns_add_u32 {s('so')}, {s('t0')}, 2048")
    return [(setup, 's'), (lambda E: touch(E, V_TROWQ, SRD_Q, s('so')), 'v')]

def touch_ops_x():
    def setup(E):
        E.raw(f"s_lshl_b32 {s('t0')}, {s('jj')}, 2\ns_add_u32 {s('t0')}, {s('t0')}, {s('wave')}\ns_lshl_b32 {s('t0')}, {s('t0')}, 3")
        E.raw(f"s_lshl_b32 {s('t1')}, {s('mb')}, 8\ns_add_u32 {s('t0')}, {s('t0')}, {s('t1')}\ns_mul_i32 {s('so')}, {s('t0')}, {XROW}")
    return [(setup, 's'), (lambda E: touch(E, V_T128, SRD_X, s('so')), 'v'), (lambda E: touch(E, V_T128B, SRD_X, s('so')), 'v')]

def touch_ops_h(p0, np_):
    def setup(E):
        E.raw(f"s_lshr_b32 {s('t0')}, {s('jj')}, 1\ns_lshl_b32 {s('t0')}, {s('t0')}, 14\ns_add_u32 {s('t0')}, {s('t0')}, {s('hldA')}")
        E.raw(f"s_lshl_b32 {s('t1')}, {s('kh')}, 11\ns_sub_u32 {s('so')}, {s('t0')}, {s('t1')}")
        if p0: E.raw(f"s_add_u32 {s('so')}, {s('so')}, {p0*H_KS}")
    v = V_T128 if np_ == 2 else V_T128H
    return [(setup, 's'), (lambda E: touch(E, v, SRD_W, s('so')), 'v')]

def selftouch_op(p):
    def f(E):
        if OPT.get("noself"): return
        E.raw(f"s_add_u32 {s('t4')}, {s('hst')}, {p * H_KS}")
        E.vmem(f"buffer_load_dword v{V_DUM}, v{V_T128H}, {srd(SRD_W)}, {s('t4')} offen sc1", "TCH")
    return f

def touch_code(E):
    R = E.raw
    R(f"s_getpc_b64 s[4:5]")
    R(f"L_pc:")
    R(f"s_sub_u32 s4, s4, L_pc-{KNAME}")
    R(f"s_subb_u32 s5, s5, 0")
    R(f"s_mov_b32 s6, L_codeend-{KNAME}")
    R(f"s_mov_b32 s7, 0x20000")
    R(f"s_lshr_b32 {s('t0')}, s2, 3\ns_lshl_b32 {s('t0')}, {s('t0')}, 2\ns_add_u32 {s('t0')}, {s('t0')}, {s('wave')}\ns_and_b32 {s('t0')}, {s('t0')}, 7\ns_lshl_b32 {s('t0')}, {s('t0')}, 13")
    E.vmem(f"buffer_load_dword v{V_DUM}, v{V_T128}, s[4:7], {s('t0')} offen", "TCH")

def touch_mall_w(E):
    R = E.raw
    R(f"s_lshl_b32 {s('t0')}, s2, 2\ns_add_u32 {s('t0')}, {s('t0')}, {s('wave')}\ns_and_b32 {s('t0')}, {s('t0')}, 511\ns_mul_i32 {s('t0')}, {s('t0')}, {81*128}")
    R(f"s_cmp_lt_u32 s2, 128")
    R(f"s_cselect_b32 s4, s12, s16\ns_cselect_b32 s5, s13, s17\ns_cselect_b32 {s('t1')}, 0, 1024")
    R(f"s_mov_b32 s6, {DM*WROW+1024}\ns_mov_b32 s7, 0x20000\ns_add_u32 {s('t0')}, {s('t0')}, {s('t1')}")
    E.vmem(f"buffer_load_dword v{V_DUM}, v{V_T128}, s[4:7], {s('t0')} offen", "TCH")
    E.vmem(f"buffer_load_dword v{V_DUM}, v{V_T128B}, s[4:7], {s('t0')} offen", "TCH")

def touch_regs(E):
    R = E.raw; L = V_LANE
    R(f"v_lshlrev_b32 v{V_T128}, 7, v{L}")
    R(f"v_mov_b32 v{V_T128H}, {OOB}")
    R(f"v_cmp_gt_u32 vcc, 17, v{L}")
    R(f"v_add_u32 v{V_T128B}, {64*128}, v{V_T128}")
    R(f"v_mul_u32_u24 v{V_TROW}, {WROW}, v{L}")
    R(f"v_cndmask_b32 v{V_T128B}, v{V_T128H}, v{V_T128B}, vcc")
    R(f"v_cmp_gt_u32 vcc, 8, v{L}")
    R(f"v_add_u32 v{V_TROWB}, {64*WROW}, v{V_TROW}")
    R(f"s_nop 0")
    R(f"v_cndmask_b32 v{V_TROWB}, v{V_T128H}, v{V_TROWB}, vcc")
    R(f"v_cmp_gt_u32 vcc, 18, v{L}")
    R(f"s_nop 1")
    R(f"v_cndmask_b32 v{V_TROWQ}, v{V_T128H}, v{V_TROW}, vcc")
    R(f"v_cmp_gt_u32 vcc, 32, v{L}")
    R(f"s_nop 1")
    R(f"v_cndmask_b32 v{V_T128H}, v{V_T128H}, v{V_T128}, vcc")

def emit_ops(E, ops):
    for f, k in ops:
        f(E)

def poll_issue(name):
    def f(E):
        E.vmem(f"buffer_load_dword v{V_FL}, v{V_FH}, {srd(SRD_W)}, 0 offen sc1", f"POLL{name}")
    return f

def poll_check(E, name, level, voff=None, issued=True):
    voff = V_FH if voff is None else voff
    ok = E.label("pok"); slow = E.label("pslow"); chk = E.label("pchk")
    if OPT.get("nopoll"):
        if issued: E.wait(vm=f"POLL{name}")
        return
    test = [f"s_add_u32 {s('t0')}, {s('nonce')}, {level}",
            f"v_subrev_u32 v{V_FL}, {s('t0')}, v{V_FL}",
            f"v_cmp_lt_u32 vcc, {6 - level}, v{V_FL}"]
    if issued:
        E.wait(vm=f"POLL{name}")
        for x in test: E.raw(x)
        E.raw(f"s_cbranch_vccnz {slow}")
    else:
        E.raw(f"s_branch {slow}")
    E.raw(f"{ok}:")
    E.slow += [f"{slow}:",
               f"s_mov_b32 {s('spin')}, 0",
               f"{chk}:",
               f"buffer_load_dword v{V_FL}, v{voff}, {srd(SRD_W)}, 0 offen sc1",
               "s_waitcnt vmcnt(0)"] + test + [
               f"s_add_u32 {s('spin')}, {s('spin')}, 1",
               f"s_cmp_gt_u32 {s('spin')}, {SPIN_MAX}",
               f"s_cbranch_scc1 {ok}",
               f"s_cbranch_vccnz {chk}",
               f"s_branch {ok}"]

V_AB = 44
def setupA(E):
    R = E.raw
    L = V_LANE
    T0, T1, T2, T3 = V_T0, V_T1, V_T2, V_T3
    R(f"v_lshrrev_b32 v{T0}, 4, v{L}")
    R(f"v_and_b32 v{T1}, 15, v{L}")
    R(f"v_lshrrev_b32 v{T2}, 1, v{T1}")
    R(f"v_xor_b32 v{T2}, v{T2}, v{T0}")
    R(f"v_lshlrev_b32 v{T3}, 7, v{T1}")
    R(f"v_lshl_add_u32 v{V_XR}, v{T2}, 4, v{T3}")
    R(f"v_add_u32 v{V_XR}, {s('m0x')}, v{V_XR}")
    R(f"v_xor_b32 v{V_XR+1}, 64, v{V_XR}")
    R(f"v_lshrrev_b32 v{T2}, 2, v{T1}")
    R(f"v_lshlrev_b32 v{T3}, 11, v{T0}")
    R(f"v_lshl_add_u32 v{T3}, v{T2}, 7, v{T3}")
    R(f"v_and_b32 v{T2}, 3, v{T1}")
    R(f"v_lshl_add_u32 v{T3}, v{T2}, 3, v{T3}")
    R(f"v_and_b32 v{T2}, 1, v{T0}")
    R(f"v_lshlrev_b32 v{T2}, 6, v{T2}")
    R(f"v_add_u32 v{T3}, v{T3}, v{T2}")
    R(f"v_bfe_u32 v{T2}, v{T1}, 3, 1")
    R(f"v_lshl_add_u32 v{V_A}, v{T2}, 5, v{T3}")
    R(f"v_xor_b32 v{V_A+1}, 32, v{V_A}")
    for r in range(1, 3):
        R(f"v_add_u32 v{V_A+2*r}, {r*49152}, v{V_A}")
        R(f"v_add_u32 v{V_A+2*r+1}, {r*49152}, v{V_A+1}")
    for i in range(6):
        R(f"v_xor_b32 v{V_AB+i}, 64, v{V_A+i}")

def setupB():
    G = []
    R = G.append
    L = V_LANE
    T0, T1, T2, T3 = 52, 53, 54, 55
    u0, u1, u2, u3, u4 = s('pst'), s('pld'), s('outb'), s('phi0'), s('spin')
    R(f"s_add_u32 {u0}, s16, 1024\ns_addc_u32 {u1}, s17, 0\ns_cmp_eq_u32 {s('th')}, 0\ns_cselect_b32 s36, s12, {u0}\ns_cselect_b32 s37, s13, {u1}\ns_mov_b32 s38, {DM*WROW}\ns_mov_b32 s39, 0x20000")
    R(f"s_lshl_b32 {s('cu')}, {s('mb')}, 5\ns_lshl_b32 {u0}, {s('sk')}, 3\ns_add_u32 {s('cu')}, {s('cu')}, {u0}\ns_add_u32 {s('cu')}, {s('cu')}, {s('jj')}")
    R(f"s_mul_i32 {u0}, {s('sk')}, 2304\ns_lshl_b32 {u1}, {s('jj')}, 5\ns_add_u32 {s('wqcol')}, {u0}, {u1}\ns_add_u32 {s('wqcol')}, {s('wqcol')}, 2048")
    R(f"s_mul_i32 {u1}, {s('kh')}, {32*WROW}\ns_add_u32 {s('wqcol')}, {s('wqcol')}, {u1}\ns_lshl_b32 {s('m0q')}, {s('wave')}, 10")
    R(f"v_mov_b32 v{V_T128H}, {OOB}\nv_cmp_gt_u32 vcc, 17, v{L}\nv_add_u32 v{V_T128B}, {64*128}, v{V_T128}\nv_mul_u32_u24 v{V_TROW}, {WROW}, v{L}\nv_cndmask_b32 v{V_T128B}, v{V_T128H}, v{V_T128B}, vcc")
    R(f"v_cmp_gt_u32 vcc, 8, v{L}\nv_add_u32 v{V_TROWB}, {64*WROW}, v{V_TROW}\ns_nop 0\nv_cndmask_b32 v{V_TROWB}, v{V_T128H}, v{V_TROWB}, vcc")
    R(f"v_cmp_gt_u32 vcc, 18, v{L}\ns_nop 1\nv_cndmask_b32 v{V_TROWQ}, v{V_T128H}, v{V_TROW}, vcc")
    R(f"v_cmp_gt_u32 vcc, 32, v{L}\ns_nop 1\nv_cndmask_b32 v{V_T128H}, v{V_T128H}, v{V_T128}, vcc")
    R(f"v_lshrrev_b32 v{T0}, 4, v{L}\nv_and_b32 v{T1}, 15, v{L}")
    R(f"v_lshrrev_b32 v{T2}, 1, v{T0}\nv_lshlrev_b32 v{T3}, 9, v{T2}")
    R(f"v_and_b32 v{T2}, 1, v{T0}\nv_lshl_add_u32 v{T3}, v{T2}, 7, v{T3}")
    R(f"v_lshrrev_b32 v{T2}, 2, v{T1}\nv_lshl_add_u32 v{T3}, v{T2}, 5, v{T3}")
    R(f"v_and_b32 v{T2}, 3, v{T1}\nv_lshl_add_u32 v{V_AQ}, v{T2}, 3, v{T3}")
    R(f"v_lshrrev_b32 v{T2}, 2, v{T1}\nv_lshl_add_u32 v{T2}, v{T0}, 2, v{T2}")
    R(f"v_mul_u32_u24 v{T2}, 288, v{T2}\nv_and_b32 v{T3}, 3, v{T1}")
    R(f"v_lshl_add_u32 v{T2}, v{T3}, 3, v{T2}\ns_mul_i32 {u0}, {s('kh')}, 9216\nv_add_u32 v{V_A2}, {u0}, v{T2}")
    R(f"v_add_u32 v{V_A2+1}, {3*WD_SLOT}, v{V_A2}\nv_add_u32 v{V_A2+2}, {6*WD_SLOT}, v{V_A2}")
    R(f"v_lshrrev_b32 v{T0}, 1, v{L}\nv_and_b32 v{T1}, 0x13, v{T0}")
    R(f"v_and_b32 v{T2}, 4, v{T0}\nv_lshl_or_b32 v{T1}, v{T2}, 1, v{T1}")
    R(f"v_and_b32 v{T2}, 8, v{T0}\nv_lshrrev_b32 v{T2}, 1, v{T2}")
    R(f"v_or_b32 v{T1}, v{T1}, v{T2}\nv_mul_u32_u24 v{T1}, {WROW}, v{T1}")
    R(f"v_and_b32 v{T2}, 1, v{L}\nv_lshl_add_u32 v{V_WQ}, v{T2}, 4, v{T1}")
    for ip in range(5):
        if ip < 4:
            R(f"s_lshl_b32 {u0}, {s('th')}, 8\nv_add_u32 v{T0}, {u0}, v{L}" + (f"\nv_add_u32 v{T0}, {64*ip}, v{T0}" if ip else ""))
        else:
            R(f"v_add_u32 v{T0}, 512, v{L}")
        R(f"v_mul_u32_u24 v{T1}, 3641, v{T0}\nv_lshrrev_b32 v{T1}, 16, v{T1}")
        R(f"v_mul_u32_u24 v{T2}, 18, v{T1}\nv_sub_u32 v{T2}, v{T0}, v{T2}")
        R(f"v_mul_u32_u24 v{T1}, {XROW}, v{T1}\nv_lshl_add_u32 v{V_WD+ip}, v{T2}, 4, v{T1}" + (f"\nv_subrev_u32 v{V_WD+ip}, {ip*1024}, v{V_WD+ip}" if 0 < ip < 4 else ""))
    R(f"s_cmp_eq_u32 {s('th')}, 0\ns_cselect_b32 {s('t5')}, -1, 0\ns_cselect_b32 {u0}, 0, {OOB}\nv_add_u32 v{V_WD+4}, {u0}, v{V_WD+4}")
    R(f"s_mul_i32 {u1}, {s('kh')}, 9216\ns_add_u32 {u2}, {u1}, 8192\ns_cmp_eq_u32 {s('th')}, 0\ns_cselect_b32 {s('m0d5')}, {u2}, {SCRATCH}\n"
      f"s_lshl_b32 {u2}, {s('th')}, 12\ns_add_u32 {s('m0d')}, {u1}, {u2}")
    R(f"v_lshlrev_b32 v{V_L16}, 4, v{L}\nv_lshlrev_b32 v{V_L8}, 3, v{L}")
    R(f"v_mov_b32 v{V_KA}, 0x{f2u(GA):08x}\ns_mov_b32 {s('kb')}, 0x{f2u(GB):08x}\nv_mov_b32 v{V_Z}, 0")
    R(f"s_lshl_b32 {s('pf')}, {s('cu')}, 7\ns_add_u32 {s('pf')}, {s('pf')}, {WS_F}\nv_mov_b32 v{V_PUBD}, v{V_PUB}")
    R(f"s_and_b32 {s('flagh')}, {s('cu')}, 0xf8\ns_lshl_b32 {u0}, {s('kh')}, 2\ns_add_u32 {s('flagh')}, {s('flagh')}, {u0}\n"
      f"s_lshl_b32 {s('flagh')}, {s('flagh')}, 7\ns_add_u32 {s('flagh')}, {s('flagh')}, {WS_F}\nv_min_u32 v{T0}, 3, v{L}")
    R(f"v_lshlrev_b32 v{T0}, 7, v{T0}\nv_add_u32 v{V_FH}, {s('flagh')}, v{T0}")
    R(f"s_lshl_b32 {u0}, {s('mb')}, 2\ns_add_u32 {u0}, {u0}, {s('sk')}\ns_lshl_b32 {u0}, {u0}, 2\n"
      f"s_add_u32 {u1}, {u0}, {s('wave')}\ns_mul_i32 {u1}, {u1}, {36*H_KS}\n"
      f"s_lshl_b32 {u2}, {s('jj')}, 14\ns_add_u32 {s('hst')}, {u1}, {u2}\n"
      f"s_lshr_b32 {u2}, {s('jj')}, 1\ns_add_u32 {u2}, {u2}, 32\ns_lshl_b32 {u2}, {u2}, 12\ns_add_u32 {s('hstq')}, {u1}, {u2}\n"
      f"s_and_b32 {u2}, {s('jj')}, 1\ns_lshl_b32 {u3}, {u2}, 9\ns_add_u32 {s('hstq')}, {s('hstq')}, {u3}\n"
      f"s_lshl_b32 {u2}, {u2}, 1\ns_add_u32 {u2}, {u2}, {s('th')}\n"
      f"s_add_u32 {u1}, {u0}, {u2}\ns_mul_i32 {u1}, {u1}, {36*H_KS}\n"
      f"s_lshl_b32 {u2}, {s('kh')}, 11\ns_sub_u32 {u3}, 2048, {u2}\n"
      f"s_lshl_b32 {u4}, {s('kh')}, 16\ns_add_u32 {u4}, {u4}, {u1}\n"
      f"s_add_u32 {s('hldA')}, {u4}, {u2}\ns_add_u32 {s('hldB')}, {u4}, {u3}\n"
      f"s_lshl_b32 {u4}, {s('kh')}, 13\ns_add_u32 {u4}, {u4}, {32*H_KS}\ns_add_u32 {u4}, {u4}, {u1}\n"
      f"s_add_u32 {s('hlqA')}, {u4}, {u2}\ns_add_u32 {s('hlqB')}, {u4}, {u3}")
    R(f"s_lshr_b32 {u0}, {s('jj')}, 1\ns_mul_i32 {u0}, {u0}, 288\n"
      f"s_mul_i32 {u1}, {s('sk')}, {1152*XROW}\ns_add_u32 {u0}, {u0}, {u1}\n"
      f"s_mul_i32 {u1}, {s('kh')}, {512*XROW}\ns_add_u32 {s('wd0')}, {u0}, {u1}\n"
      f"s_mul_i32 {u1}, {s('kh')}, {64*XROW}\ns_add_u32 {s('wdq')}, {u0}, {u1}\ns_add_u32 {s('wdq')}, {s('wdq')}, {1024*XROW}")
    return G

class Side:
    def __init__(self):
        self.q = []; self.m = 0; self.clock = 0.0; self.hi = []
    def add(self, ops):
        for o in ops: self.q.append((o[0], o[1], o[2] if len(o) > 2 else -1))
    def add_rated(self, ops, cost, earliest=None):
        st = max(self.clock, self.m if earliest is None else earliest)
        nv = sum(1 for o in ops if o[1] == 'v')
        k = 0
        for o in ops:
            nb = int(st + k * cost / nv)
            self.q.append((o[0], o[1], nb))
            if o[1] == 'v': k += 1
        self.clock = st + cost
    def add_hi(self, f): self.hi.append(f)
    def empty(self): return not self.q and not self.hi
    def take_gap(self, E):
        if self.hi:
            self.hi.pop(0)(E); return 2
        if not self.q: return 0
        f, kind, nb = self.q[0]
        if kind == 'v' and nb <= self.m:
            self.q.pop(0); f(E); return 2
        return 0
    def take_scalar(self, E):
        if self.q and self.q[0][1] == 's' and self.q[0][2] <= self.m + 2:
            f, _, _ = self.q.pop(0); f(E); return 1
        return 0
    def drain(self, E):
        while self.hi: self.hi.pop(0)(E)
        while self.q:
            f, kind, nb = self.q.pop(0)
            f(E)
            if kind == 's': E.raw("s_nop 0")

def kstep(E, st, side, mf, reads, side_gaps=(), cap_extra=0):
    reads = list(reads)
    n = len(mf)
    for i, m in enumerate(mf):
        E.raw(m)
        st.tick()
        side.m += 1
        cap = 2 + cap_extra
        if reads:
            E.ds(reads.pop(0)); cap -= 1
        elif i in side_gaps:
            u = side.take_gap(E)
            cap -= u
            if u: cap = min(cap, 0)
        if cap > 0:
            if (i + 1) in side_gaps or (i + 1 == n):
                cap -= side.take_scalar(E)
        if cap > 0:
            st.fill(E, cap)

def gemm1_mf(buf, ks, first, par=None):
    mf = []
    if par is None: par = ks & 1
    for f in range(4):
        grp, mat = f >> 1, f & 1
        a = vr(V_AR + 16 * par + 4 * f)
        for tt in range(4):
            mf.append(mfma(buf + (grp * 2 + mat) * 16 + tt * 4, a, xreg(ks, tt), first))
    return mf

def toggle_bases(E):
    for i in range(6):
        E.raw(f"v_xor_b32 v{V_A+i}, 64, v{V_A+i}")

def hstore_fn(p):
    def f(E, tt, base):
        E.vmem(f"buffer_store_dwordx4 {vr(base)}, v{V_L16}, {srd(SRD_W)}, {s('so2')} offen offset:{tt*1024} sc1", f"HS{p}")
    return f
def hstoreq_fn(E, tt, base):
    E.vmem(f"buffer_store_dwordx2 {vr(base, 2)}, v{V_L8}, {srd(SRD_W)}, {s('hstq')} offen offset:{tt*1024} sc1", "HS4")

def wq_ops():
    ops = []
    for i in range(9):
        def setup(E, i=i):
            E.raw(f"s_add_u32 m0, {s('m0q')}, {i * 4096}")
            E.raw(f"s_add_u32 {s('so')}, {s('wqcol')}, {i * 64 * WROW}")
        def d(E): E.vmem(f"buffer_load_dwordx4 v{V_WQ}, {srd(SRD_Q)}, {s('so')} offen lds", "WQ")
        ops += [(setup, 's'), (d, 'v')]
    return ops

def build(opt):
    global OPT
    OPT = opt
    E = Emit()
    E.do_stamp = bool(opt.get("stamp"))
    if isinstance(opt.get("stamp"), str): E.stamp_sel = set(opt["stamp"].split("+"))
    global HSC
    HSC = "" if opt.get("hplain") else " sc1"
    st = Stream()
    G = Gelu(st)
    side = Side()
    E.stamp("start")
    prologue(E, opt)
    coop = opt.get("coop", 2)
    if coop == 1:
        coop_setup(E); coop_touch(E, 0)
    issue_x(E, 0); issue_x(E, 1)
    E.stamp("i1")
    if coop >= 2:
        coop_setup(E); E.raw(f"s_add_u32 {s('tA')}, {s('tA')}, {s('tB')}")
    prologue_w(E)
    issue_w1_slot(E, 0, 0)
    if coop == 1 or coop == 3: coop_touch(E, 1)
    issue_x(E, 2); issue_x(E, 3)
    if coop == 3: coop_touch(E, 2)
    setupA(E)
    issue_w1_slot(E, 0, 1)
    if coop == 2: coop_touch(E, 1)
    if coop == 1 or coop == 2: coop_touch(E, 2)
    NCOMB = opt.get("ncomb", 8)
    E.wait(vm=["X0", "X1"])
    E.stamp("x01")
    for r in read_x(E, 0): E.ds(r)
    E.wait(ds=0)
    issue_x(E, 4); issue_x(E, 5)
    E.wait(vm="W0_0", barrier=True)
    for r in areads_w1(0, 0, par=0): E.ds(r)
    E.stamp("P0go")
    SG = (9, 11, 13)
    NA, NB, NC, ND = nonce_ops()
    prev = None
    for grp in setupB():
        prev = st.add(grp, min(2, grp.count("\n") + 1), [(prev, 0)] if prev else [])
    steps = []
    for ks in range(18):
        steps.append(("A", ks))
        if ks < NCOMB: steps.append(("B", ks))
    def last_half(ks): return ("B", ks) if ks < NCOMB else ("A", ks)
    FULL = (NCOMB == 18)
    l1_queued = 0
    for n, (kind, ks) in enumerate(steps):
        par = n & 1
        bar = False; tags = []
        for c in range(1, 6):
            if (kind, ks) == last_half(3 * c - 1): bar = True; tags.append(f"W0_{c}")
        if FULL and (kind, ks) == ("B", 17): bar = True; tags.append("W1_0")
        E.wait(vm=(tags if tags else None), ds=0, barrier=bar)
        if bar and ks == 8:
            for sl in (4, 5):
                for kk in range(3 * sl, 3 * sl + 3):
                    a, b, c = w1_ops(0, kk)
                    side.add([(a, 's'), (b, 'v'), (c, 'v')])
        if bar and ks >= 8:
            free = (ks + 1) // 3 if ks < NCOMB else min(NCOMB // 3, (ks + 1) // 3)
            free = min(free, 4 if ks < 14 else 6)
            while l1_queued < free:
                for kk in range(3 * l1_queued, 3 * l1_queued + 3):
                    a, b, c = w1_ops(1, kk)
                    side.add([(a, 's'), (b, 'v'), (c, 'v')])
                l1_queued += 1
        if kind == "A":
            if 1 <= ks <= 6:
                issue_x(E, 2 * (ks + 2)); issue_x(E, 2 * (ks + 2) + 1)
            if ks == 1: issue_w1_slot(E, 0, 2)
            if ks == 3: issue_w1_slot(E, 0, 3)
            if ks == 11: st.flush(E)
            if ks == 12 and opt.get("touch", 1):
                side.add(touch_ops_wq())
                if not FULL: side.add(touch_ops_w1(1))
            if ks == 13: NA(E)
            if ks == 17 and not FULL: toggle_bases(E)
            E.stamp(f"P0k{ks}")
        if FULL and (kind, ks) == ("B", 15):
            E.wait(vm="NONCE"); NB(E)
        if FULL and (kind, ks) == ("A", 17 + 0): pass
        if n + 1 < len(steps):
            nk, nks = steps[n + 1]
            reads = areads_w1(0, nks, par=1 - par, alt=(nk == "B"))
        elif FULL:
            reads = areads_w1(0, 0, par=1 - par)
        else:
            reads = areads_w1(1, NCOMB, par=1 - par)
        if FULL and (kind, ks) == ("B", 17): NC(E)
        mf = gemm1_mf(V_BUF[0 if kind == "A" else 1], ks, ks == 0, par=par)
        if (kind, ks) == last_half(ks) and ks <= 7:
            xr = read_x(E, ks + 1)
            for i, m in enumerate(mf):
                E.raw(m); st.tick()
                if i < 8: E.ds(reads[i])
                else:
                    if i == 8: E.wait(vm=[f"X{2*(ks+1)}", f"X{2*(ks+1)+1}"])
                    E.ds(xr[i - 8])
                st.fill(E, 1)
        else:
            kstep(E, st, side, mf, reads, side_gaps=(8, 9, 10, 11, 12, 13, 14, 15) if ks >= 8 else ())
    st.flush(E)
    p0_par = len(steps) & 1
    E.stamp("P0end")
    if opt.get("abl") == "p1": E.raw("; MARK_ABL")
    RATE = float(opt.get("rate", 4.4))
    PB, PC, PD = opt.get("PB", 2), opt.get("PC", 9), opt.get("PD", 13)
    PUB4, PUB5 = opt.get("pub4", 3), opt.get("pub5", 6)
    def plan_tail():
        G2 = 432
        items = []
        items.append(("WQ", wq_ops(), 36 * RATE, 80, 272 - 30))
        de = {0: 128, 1: 128, 2: 176, 3: 224, 4: 272, 5: 272, 6: 424, 7: 424}
        for u in range(18):
            e = de[u] if u < 8 else G2 + 36 * (u - 7)
            dl = 424 if u == 0 else G2 + 36 * (u - 1) + 24
            items.append((f"D{u}", wd_ops(u), 6.15 * RATE, e, dl))
        for u in range(18):
            if u <= 6: e = 288 + 8 * (u + 1) + 2
            else: e = G2 + 36 * (u - 6)
            if 8 <= u <= 11: e = max(e, G2 + 36 * PB)
            if 12 <= u <= 15: e = max(e, G2 + 36 * PC)
            if u >= 16: e = max(e, G2 + 36 * PD)
            items.append((f"H{u}", h_ops(u), 4 * RATE, e, G2 + 36 * u))
        clock = 80
        order = []
        rem = list(items)
        while rem:
            legal = [it for it in rem if it[3] <= clock]
            if not legal:
                clock = min(it[3] for it in rem); continue
            it = min(legal, key=lambda x: x[4])
            rem.remove(it)
            order.append((it, clock))
            if clock + it[2] > it[4]: print(f"; plan: {it[0]} start {clock:.0f} end {clock+it[2]:.0f} deadline {it[4]} LATE", file=sys.stderr)
            clock += it[2]
        side.clock = 0
        for it, c in order:
            side.add_rated(it[1], it[2], earliest=c)
    if FULL:
        E.wait(ds=0); ND(E)
        E.raw(f"s_add_u32 {s('so2')}, {s('hst')}, 0")
        G.full_pass(V_BUF[0], hstore_fn(0))
        st.flush(E)
        E.stamp("P1end")
    for p in ((2, 3) if FULL else (1, 2, 3)):
        line, ph = p >> 1, p & 1
        buf = V_BUF[p & 1]
        E.raw(f"s_add_u32 {s('so2')}, {s('hst')}, {(p - 1) * H_KS}")
        G.full_pass(V_BUF[(p - 1) & 1], hstore_fn(p - 1))
        if p == 3:
            assert side.empty()
            side.m = 0
            plan_tail()
        for ks in range(NCOMB if p == 1 else 0, 18):
            par = (ks & 1) if p > 1 else ((p0_par + ks - NCOMB) & 1)
            bar = (ks % 3 == 2)
            tags = []
            if bar:
                if p == 1 and ks == 17: tags.append("W1_0")
                if p == 2 and ks < 17: tags.append(f"W1_{ks//3+1}")
                if p == 3 and ks == 17: tags.append("WQ")
                if p >= 2 and ks == 2: tags.append(f"HS{p-2}")
                if p == 2 and ks == 17: bar = False
            if p == 1 and ks == 14:
                E.wait(vm="NONCE"); NB(E)
            E.wait(vm=(tags if tags else None), ds=0, barrier=bar)
            if p == 1 and ks == 14: NC(E)
            if p == 1 and ks == 15: ND(E)
            if bar:
                c = ks // 3
                if p >= 2 and ks == 2:
                    side.add_hi(publish_op(p - 1))
                    if opt.get("touch", 1): side.add_hi(selftouch_op(p - 2))
                if p == 1 and c >= l1_queued:
                    for kk in range(3 * c, 3 * c + 3):
                        a, b, d = w1_ops(1, kk)
                        side.add([(a, 's'), (b, 'v'), (d, 'v')])
            if p == 2 and ks == 6 and opt.get("touch", 1): side.add(touch_ops_wd())
            if p == 3 and ks == 15: side.add_hi(poll_issue("a"))
            if ks == 17 and p < 3: toggle_bases(E)
            if ks < 17: reads = areads_w1(ph, ks + 1, par=1 - par)
            elif p < 3: reads = areads_w1(1 - ph, 0, par=1 - par)
            else: reads = areads_q(0, 0)
            sg = SG
            if p == 3 and ks >= 5: sg = (8, 9, 11, 13, 15)
            kstep(E, st, side, gemm1_mf(buf, ks, ks == 0 and not (p == 1 and NCOMB > 0), par=par), reads, side_gaps=sg,
                  cap_extra=(1 if (p == 1 and NCOMB > 0 and st.pending_cost() > 19 * (17 - ks)) else 0))
        n = st.flush(E)
        if n: print(f"; note: pass {p}: GELU flush {n} gaps", file=sys.stderr)
        if p == 2: assert side.empty(), f"side not empty after pass {p}"
        E.stamp(f"P{p}end")
    E.raw(f"s_add_u32 {s('so2')}, {s('hst')}, {3 * H_KS}")
    G.full_pass(V_BUF[1], hstore_fn(3))
    bufq = V_BUF[0]
    for ks in range(18):
        bar = ks in (3, 17)
        tags = []
        if ks == 3: tags.append("HS2")
        if ks == 17: tags.append("D0")
        E.wait(vm=(tags if tags else None), ds=0, barrier=bar)
        if ks == 3:
            side.add_hi(publish_op(3))
            if opt.get("touch", 1): side.add_hi(selftouch_op(2))
        if ks == 1:
            poll_check(E, "a", 2)
        mf = []
        for mat in range(2):
            a = vr(V_AR + 16 * (ks & 1) + 4 * mat)
            for tt in range(4):
                mf.append(mfma(bufq + mat * 16 + tt * 4, a, xreg(ks, tt), ks == 0))
        reads = areads_q(ks + 1, (ks + 1) & 1) if ks < 17 else areads_g2(0, 0, 0)
        kstep(E, st, side, mf, reads, side_gaps=(4, 5, 6, 7) if ks < 17 else (6, 7), cap_extra=opt.get("capq", 1))
    if opt.get("stop") == "g1":
        st.flush(E)
        G.quarter(bufq, hstoreq_fn)
        st.flush(E)
        side.q = []; side.hi = []
        E.wait_all()
        return finish(E)
    E.stamp("PQend")
    if opt.get("abl", "g2") == "g2": E.raw("; MARK_ABL")
    E.skew_on = True
    qadded = False
    sub_par = 0
    for t in range(18):
        for sub in range(3):
            tags = []
            bar = (sub == 2)
            if sub == 0: tags.append(f"H{t}")
            if bar and t < 17: tags.append(f"D{t+1}")
            pub = None
            if bar and t == PUB4: tags.append("HS3"); pub = 4
            if bar and t == PUB5: tags.append("HS4"); pub = 5
            E.wait(vm=(tags if tags else None), ds=0, barrier=bar)
            if pub:
                side.add_hi(publish_op(pub))
                if pub == 4 and opt.get("touch", 1): side.add_hi(selftouch_op(3))
            if sub == 0:
                if not qadded and st.pending() == 0:
                    G.quarter(bufq, hstoreq_fn); qadded = True
                if t == PB - 1: side.add_hi(poll_issue("b"))
                if t == PB: poll_check(E, "b", 3)
                if t == PC - 1: side.add_hi(poll_issue("c"))
                if t == PC: poll_check(E, "c", 4)
                if t == PD - 1: side.add_hi(poll_issue("d"))
                if t == PD: poll_check(E, "d", 5)
            mf = []
            for k in range(3):
                dt = 3 * sub + k
                a = vr(V_AR + 12 * sub_par + 4 * k)
                for tt in range(4):
                    mf.append(mfma(acc2(dt, tt), a, ar(hreg(t, tt)), t == 0, "a"))
            if sub < 2: reads = areads_g2(t, sub + 1, 1 - sub_par)
            elif t < 17: reads = areads_g2(t + 1, 0, 1 - sub_par)
            else: reads = []
            if t == 12 and sub == 0:
                prev = None
                for grp in final_setup(E):
                    prev = st.add(grp, 2, [(prev, 1)] if prev else [])
            if t == 17 and sub >= 1:
                for dt in range(3 * (sub - 1), 3 * sub):
                    for j in range(2):
                        st.add((lambda E, dt=dt, j=j: E.ds(f"ds_write_b128 v{V_RED}, {ar(acc2(dt, 2 + j))} offset:{(2*dt+j)*1024}")), 2, [])
                    for x in keep_reads(dt): st.add(x, 1, [])
                st.tick(); st.tick()
                E.raw("s_nop 3")
            kstep(E, st, side, mf, reads, side_gaps=(6, 7, 8, 9, 10, 11), cap_extra=(opt.get("capg", 1) if t < PUB5 else 0))
            if t == 17 and sub == 2: st.flush(E)
            sub_par = 1 - sub_par
        if E.stamp_sel is not None or t in (2, 5, 8, 11, 14, 17): E.stamp(f"G2t{t}")
        if t == PUB4 - 1:
            if E.vm.count("HS3") < 4: print(f"; note: flushing GELU(P3) at t={t}: {st.pending_cost()} slots", file=sys.stderr);
            while E.vm.count("HS3") < 4:
                st.tick(); E.raw("s_nop 0"); st.fill(E, 2)
        if t == PUB5 - 1:
            if not qadded:
                st.flush(E); G.quarter(bufq, hstoreq_fn); qadded = True
            if st.pending(): print(f"; note: flushing GELU(PQ) at t={t}: {st.pending_cost()} slots", file=sys.stderr)
            st.flush(E)
    assert side.empty(), "side ops left"
    E.raw("; MARK_END")
    E.skew_on = False
    final(E, opt)
    return finish(E)

FIRST = [0, 5, 10, 14]
CNT = [5, 5, 4, 4]
RED = 73728
V_PUB2 = 2
KEEP = 128
RCV = 40

def final_setup(E):
    T0, T1 = V_T0, V_T1
    L = V_LANE
    G = []
    G.append(f"s_mul_i32 {s('t0')}, {s('wave')}, 18432\ns_add_u32 {s('t0')}, {s('t0')}, {RED}\nv_add_u32 v{V_RED}, {s('t0')}, v{V_L16}")
    G.append(f"s_xor_b32 {s('t1')}, {s('wave')}, 2\ns_mul_i32 {s('t1')}, {s('t1')}, 18432\ns_add_u32 {s('t1')}, {s('t1')}, {RED}\nv_add_u32 v{V_RED2}, {s('t1')}, v{V_L16}")
    G.append(f"s_lshl_b32 {s('t0')}, {s('mb')}, 3\ns_add_u32 {s('t0')}, {s('t0')}, {s('jj')}\ns_lshl_b32 {s('t0')}, {s('t0')}, 2\ns_add_u32 {s('t0')}, {s('t0')}, {s('wave')}\n"
             f"s_mul_i32 {s('t0')}, {s('t0')}, {16*5120}\ns_add_u32 {s('t0')}, {s('t0')}, {WS_P}\n"
             f"s_mul_i32 {s('t1')}, {s('sk')}, 5120\ns_add_u32 {s('pst')}, {s('t0')}, {s('t1')}\n"
             f"s_mul_i32 {s('t1')}, {s('sk')}, {4*5120}\ns_add_u32 {s('pld')}, {s('t0')}, {s('t1')}")
    G.append(f"s_lshl_b32 {s('t0')}, {s('mb')}, 8\ns_and_b32 {s('t1')}, {s('jj')}, 1\ns_lshl_b32 {s('t1')}, {s('t1')}, 7\ns_add_u32 {s('t0')}, {s('t0')}, {s('t1')}\n"
             f"s_lshl_b32 {s('t1')}, {s('th')}, 6\ns_add_u32 {s('t0')}, {s('t0')}, {s('t1')}\ns_lshl_b32 {s('t1')}, {s('kh')}, 5\ns_add_u32 {s('t0')}, {s('t0')}, {s('t1')}\n"
             f"s_mul_i32 {s('t0')}, {s('t0')}, {XROW}\ns_lshr_b32 {s('t1')}, {s('jj')}, 1\ns_mul_i32 {s('t1')}, {s('t1')}, 288\ns_add_u32 {s('outb')}, {s('t0')}, {s('t1')}")
    G.append(f"v_and_b32 v{T0}, 15, v{L}\nv_mul_u32_u24 v{T0}, {XROW}, v{T0}")
    G.append(f"v_lshrrev_b32 v{T1}, 4, v{L}\nv_lshl_add_u32 v{V_OUT}, v{T1}, 3, v{T0}")
    G.append(f"s_lshl_b32 {s('t0')}, {s('mb')}, 5\ns_add_u32 {s('t0')}, {s('t0')}, {s('jj')}\ns_lshl_b32 {s('t0')}, {s('t0')}, 2\ns_add_u32 {s('t0')}, {s('t0')}, {s('wave')}\n"
             f"s_lshl_b32 {s('t0')}, {s('t0')}, 7\ns_add_u32 {s('t0')}, {s('t0')}, {WS_F + 32768}\n"
             f"s_lshl_b32 {s('t1')}, {s('sk')}, 12\ns_add_u32 {s('pf2')}, {s('t0')}, {s('t1')}\n"
             f"v_min_u32 v{T0}, 3, v{L}\n"
             f"v_lshlrev_b32 v{T0}, 12, v{T0}\nv_add_u32 v{V_FO}, {s('t0')}, v{T0}")
    G.append(f"v_cmp_eq_u32 vcc, 0, v{L}\nv_mov_b32 v{T0}, {OOB}\nv_mov_b32 v{T1}, 0\ns_nop 0\nv_cndmask_b32 v{V_PUB2}, v{T0}, v{T1}, vcc")
    return G

def red_write(E, dt):
    for j in range(2):
        E.ds(f"ds_write_b128 v{V_RED}, {ar(acc2(dt, 2 + j))} offset:{(2*dt+j)*1024}")
def keep_reads(dt):
    return [f"v_accvgpr_read_b32 v{KEEP + (2*dt+j)*4 + r}, a{acc2(dt, j) + r}" for j in range(2) for r in range(4)]

def final(E, opt):
    R = E.raw
    R("s_nop 7")
    for dt in (6, 7, 8):
        red_write(E, dt)
        for x in keep_reads(dt): R(x)
    E.wait(ds=0, barrier=True)
    for ph in range(18):
        E.ds(f"ds_read_b128 {vr(RCV + 4*ph)}, v{V_RED2} offset:{ph*1024}")
    base_vm = list(E.vm); base_done = E.vm_done; base_ds = E.ds_out
    labs = [E.label(f"fin{k}") for k in range(4)]
    end = E.label("finend")
    R(f"s_cmp_eq_u32 {s('sk')}, 1\ns_cbranch_scc1 {labs[1]}\ns_cmp_eq_u32 {s('sk')}, 2\ns_cbranch_scc1 {labs[2]}\ns_cmp_eq_u32 {s('sk')}, 3\ns_cbranch_scc1 {labs[3]}")
    for sv in range(4):
        E.vm = list(base_vm); E.vm_done = base_done; E.ds_out = base_ds
        R(f"{labs[sv]}:")
        own = list(range(FIRST[sv], FIRST[sv] + CNT[sv]))
        order = [ph for ph in range(18) if ph not in own] + own
        done_ds = -1
        for n, ph in enumerate(order):
            need = ph
            if need > done_ds:
                left = 17 - need
                E.wait(ds=min(left, E.ds_out))
                done_ds = need
            for r in range(4):
                R(f"v_add_f32 v{KEEP + 4*ph + r}, v{KEEP + 4*ph + r}, v{RCV + 4*ph + r}")
            if ph not in own:
                dest = max(d for d in range(4) if FIRST[d] <= ph)
                sig = ph - FIRST[dest]
                R(f"s_add_u32 {s('so')}, {s('pst')}, {dest*4*5120 + sig*1024}")
                E.vmem(f"buffer_store_dwordx4 {vr(KEEP + 4*ph)}, v{V_L16}, {srd(SRD_W)}, {s('so')} offen sc1", "PSx")
        E.stamp("F_red")
        R("s_waitcnt vmcnt(0)")
        E.vm_done = len(E.vm)
        E.stamp("F_ps")
        publish_op(6, V_PUB2, "pf2")(E)
        poll_check(E, "f", 6, voff=V_FO, issued=False)
        E.vm_done = len(E.vm)
        E.stamp("F_poll")
        srcs = [k for k in range(4) if k != sv]
        LD = RCV
        for sig in range(CNT[sv]):
            for n, src in enumerate(srcs):
                R(f"s_add_u32 {s('so')}, {s('pld')}, {src*5120 + sig*1024}")
                E.vmem(f"buffer_load_dwordx4 {vr(LD + (sig*3+n)*4)}, v{V_L16}, {srd(SRD_W)}, {s('so')} offen sc1", f"PL{sig}" if n == 2 else "PLx")
        for sig in range(CNT[sv]):
            ph = FIRST[sv] + sig
            dt, j = ph >> 1, ph & 1
            R(f"s_add_u32 {s('so')}, {s('outb')}, {dt*32 + j*16*XROW}")
            E.wait(vm=f"PL{sig}")
            b = KEEP + 4 * ph
            for r in range(4):
                a = [LD + (sig*3+n)*4 + r for n in range(3)]
                R(f"v_add_f32 v{a[0]}, v{a[0]}, v{a[1]}")
                R(f"v_add_f32 v{b+r}, v{b+r}, v{a[2]}")
                R(f"v_add_f32 v{b+r}, v{b+r}, v{a[0]}")
            R(f"v_cvt_pk_bf16_f32 v{b}, v{b}, v{b+1}")
            R(f"v_cvt_pk_bf16_f32 v{b+1}, v{b+2}, v{b+3}")
            E.vmem(f"buffer_store_dwordx2 {vr(b, 2)}, v{V_OUT}, {srd(SRD_O)}, {s('so')} offen", "OUT")
        if sv < 3: R(f"s_branch {end}")
    R(f"{end}:")

def ablate(E):
    if not any(OPT.get(k) for k in ("x_nobar", "x_novm", "x_nogelu", "x_nods", "x_nowait", "x_nod", "x_noh", "x_novmw")): return
    out = []; on = False
    for l in E.L:
        if l.startswith("; MARK_ABL"): on = True
        if l.startswith("; MARK_END"): on = False
        if on:
            if OPT.get("x_nobar") and l.startswith("s_barrier"): continue
            if OPT.get("x_novm") and l.startswith("buffer_"): continue
            if OPT.get("x_novm") and l.startswith("s_waitcnt vmcnt"):
                l = re.sub(r"vmcnt\(\d+\) ?", "", l)
                if l.strip() == "s_waitcnt": continue
            if OPT.get("x_nod") and l.startswith("buffer_load_dwordx4 v") and l.endswith("lds"): continue
            if OPT.get("x_noh") and l.startswith("buffer_load_dwordx") and " a[" in l: continue
            if OPT.get("x_novmw") and l.startswith("s_waitcnt vmcnt"):
                l = re.sub(r"vmcnt\(\d+\) ?", "", l)
                if l.strip() == "s_waitcnt": continue
            if OPT.get("x_nogelu") and re.match(r"v_(mul_f32|fma_f32|exp_f32|rcp_f32|add_f32|cvt_pk)", l): continue
            if OPT.get("x_nods") and l.startswith("ds_read"): continue
        out.append(l)
    E.L = out

def finish(E):
    ablate(E)
    if E.do_stamp:
        E.raw("s_waitcnt vmcnt(0)")
        E.stamp("end")
        E.raw(f"s_lshl_b32 {s('t0')}, s2, 2\ns_add_u32 {s('t0')}, {s('t0')}, {s('wave')}\ns_lshl_b32 {s('t0')}, {s('t0')}, 7\ns_add_u32 {s('t0')}, {s('t0')}, {60 << 20}")
        E.raw(f"v_mov_b32 v{V_T1}, 0")
        for i in range(len(E.stamps)):
            E.raw(f"v_mov_b32 v{V_T0}, s{86+i}")
            E.raw(f"buffer_store_dword v{V_T0}, v{V_T1}, {srd(SRD_W)}, {s('t0')} offen offset:{4*i}")
        E.raw("s_waitcnt vmcnt(0)")
        print("STAMPS=" + ",".join(E.stamps), file=sys.stderr)
    E.raw("L_end:")
    E.raw("s_endpgm")
    for x in E.slow: E.raw(x)
    E.raw("s_endpgm")
    E.raw("L_codeend:")
    return E

def emit_file(opt):
    E = build(opt)
    hdr = open("standalone__glu_gated_geglu__prompt.s.ref").read().split("\n") if opt.get("hdr", True) else []
    out = []
    for l in hdr:
        if l.startswith("; @launch") or l.startswith("; Override") or l.startswith("; grid=") : continue
        if l.startswith(";"): out.append(l)
        else: break
    out.append(f"; @launch grid=(256,1,1) block=(256,1,1) lds={LDS_BYTES}")
    out.append('.amdgcn_target "amdgcn-amd-amdhsa--gfx950"')
    out.append(".text")
    out.append(f".globl {KNAME}")
    out.append(".p2align 8")
    out.append(f".type {KNAME},@function")
    out.append(f"{KNAME}:")
    out += E.L
    out.append(".fill 64, 4, 0xbf800000")
    out.append('.section .rodata,"a"')
    out.append(".p2align 6")
    out.append(f".amdhsa_kernel {KNAME}")
    out += ["  .amdhsa_next_free_vgpr 512", "  .amdhsa_next_free_sgpr 102", "  .amdhsa_accum_offset 256",
            "  .amdhsa_group_segment_fixed_size 0", "  .amdhsa_kernarg_size 56", "  .amdhsa_user_sgpr_count 2",
            "  .amdhsa_user_sgpr_kernarg_segment_ptr 1", "  .amdhsa_system_sgpr_workgroup_id_x 1",
            "  .amdhsa_float_denorm_mode_32 3",
            ".end_amdhsa_kernel"]
    return "\n".join(out) + "\n"

if __name__ == "__main__":
    opt = {}
    path = sys.argv[1] if len(sys.argv) > 1 else "k.s"
    for a in sys.argv[2:]:
        k, v = a.split("=")
        opt[k] = int(v) if v.lstrip("-").isdigit() else v
    open(path, "w").write(emit_file(opt))
```

```python
import sys, struct, re

KNAME = "standalone__glu_gated_geglu__prompt_kernel"
HSC = " sc1"
WQE = True
OPT = {}

DM, DF, NTOK = 576, 4608, 2048
XROW = DM * 2
WROW = DF * 2
LDS_BYTES = 163840
W1_KS = 8192
XST = 98304
WD_SLOT = 18432
SCRATCH = 147456
H_KS = 4096
WS_P = 32 << 20
WS_F = 56 << 20
WS_SIZE = 64 << 20
OOB = 0x40000000
GA = -2.0 * 0.7978845608028654 * 1.4426950408889634
GB = GA * 0.044715
SPIN_MAX = 400000

def f2u(x): return struct.unpack('<I', struct.pack('<f', x))[0]

S = {}
SRD_X, SRD_G, SRD_U, SRD_D, SRD_W, SRD_O, SRD_F, SRD_Q = 8, 12, 16, 20, 24, 28, 32, 36
def srd(b): return f"s[{b}:{b+3}]"
_n = 40
for nm in ["wave", "mb", "sk", "jj", "cu", "th", "kh", "xoff", "w1col", "wqcol", "hst", "hstq", "hldA", "hldB", "hlqA", "hlqB",
           "wd0", "wdq", "flagh", "t0", "t1", "t2", "t3", "t4", "t5", "m0w", "m0x", "m0q", "m0d", "m0d5", "kb", "pst", "pld",
           "outb", "spin", "phi0", "so", "so2", "pf", "tA", "tB", "pf2", "nonce"]:
    S[nm] = _n; _n += 1
assert _n <= 100
def s(n): return f"s{S[n]}"

V_LANE = 1
V_W1 = 2
V_WQ = 3
V_A = 4
V_AQ = 10
V_L16 = 11
V_L8 = 12
V_KA = 13
V_PUB = 14
V_ONE = 15
V_FL = 16
V_T0 = 17; V_T1 = 18; V_T2 = 19; V_T3 = 20
V_X = 21
V_XR = 25
V_WD = 27
V_HS = 32
V_GT = 40
N_GSET = 4
V_T128 = 56; V_T128H = 57; V_T128B = 58
V_TROW = 40; V_TROWB = 41; V_TROWQ = 42
V_PUBD = 43; V_NA = 44; V_NB = 45
V_FH = 59
V_A2 = 60
V_Z = 63
V_XO = 64
V_AR = 96
V_BUF = [128, 192]
V_FO = 21; V_OUT = 22; V_RED = 23; V_RED2 = 24

def xreg(ks, tt):
    i = ks * 4 + tt
    if i < 64: return f"a[{4*i}:{4*i+3}]"
    b = V_XO + 4 * (i - 64)
    return f"v[{b}:{b+3}]"
def hreg(t, tt):
    b = 16 * (t % 7) + 4 * tt
    return b
def acc2(dt, tt):
    b = 112 + 16 * dt + 4 * tt
    return b

def expected_count(tag):
    if tag.startswith("POLL") or tag.startswith("PUB"): return 1
    if tag == "WQ": return 9
    if tag == "NONCE": return 1
    if tag == "TCH": return -1
    if tag == "PS": return 18
    if tag in ("PSx", "PLx", "OUT"): return -1
    if tag.startswith("PL"): return 1
    if tag.startswith("HS"): return 4
    if tag[0] == "X": return 4
    if tag[0] == "W": return 6
    if tag[0] == "D": return 5
    if tag[0] == "H": return 4 if int(tag[1:]) < 16 else 8
    raise KeyError(tag)

class Emit:
    def __init__(self):
        self.L = []
        self.vm = []
        self.vm_done = 0
        self.dsq = []
        self.ds_done = 0
        self.slow = []
        self.nlab = 0
        self.do_stamp = False
        self.skew_on = False
        self.stamps = []
        self.stamp_sel = None
    def raw(self, t):
        for x in t.split("\n"):
            self.L.append(x)
    def vmem(self, text, tag):
        self.L.append(text)
        self.vm.append(tag)
    @property
    def ds_out(self): return len(self.dsq) - self.ds_done
    @ds_out.setter
    def ds_out(self, n):
        if n == 0: self.ds_done = len(self.dsq)
        elif n < self.ds_out: self.ds_done = len(self.dsq) - n
        else:
            self.ds_done = len(self.dsq) - n
    def ds(self, text, tag=None):
        if self.ds_out >= 15:
            self.L.append("s_waitcnt lgkmcnt(10)")
            self.ds_out = 10
        self.L.append(text)
        self.dsq.append(tag)
    def wait_dstag(self, tag):
        idx = max(i for i, t in enumerate(self.dsq) if t == tag)
        if idx < self.ds_done: return
        n = min(len(self.dsq) - 1 - idx, 15)
        self.L.append(f"s_waitcnt lgkmcnt({n})")
        self.ds_done = len(self.dsq) - n
    def _vmN(self, tags):
        idx = -1
        for tg in tags:
            exp = expected_count(tg)
            got = self.vm.count(tg)
            if exp < 0: continue
            assert got == exp, f"wait on {tg}: {got} ops issued, expected {exp}"
        for i, t in enumerate(self.vm):
            if t in tags: idx = i
        assert idx >= 0, f"no vmem op with tags {tags}"
        if idx < self.vm_done: return None
        return min(len(self.vm) - 1 - idx, 63)
    def wait(self, vm=None, ds=None, barrier=False):
        parts = []
        if vm is not None:
            if isinstance(vm, str): vm = [vm]
            n = self._vmN(set(vm))
            if n is not None:
                parts.append(f"vmcnt({n})")
                self.vm_done = max(self.vm_done, len(self.vm) - n)
        if ds is not None and self.ds_out > ds:
            parts.append(f"lgkmcnt({ds})")
            self.ds_out = ds
        if parts:
            self.L.append("s_waitcnt " + " ".join(parts))
        if barrier:
            self.L.append("s_barrier")
            if OPT.get("skew") and self.skew_on:
                for k in range(1, 4):
                    lab = self.label("sk")
                    self.L.append(f"s_cmp_ge_u32 {s('wave')}, {k}")
                    self.L.append(f"s_cbranch_scc0 {lab}")
                    self.L.append(f"s_nop {OPT['skew']}")
                    self.L.append(f"{lab}:")
    def wait_all(self):
        self.L.append("s_waitcnt vmcnt(0) lgkmcnt(0)")
        self.vm_done = len(self.vm); self.ds_out = 0
    def assert_done(self, tag):
        found = False
        for i, t in enumerate(self.vm):
            if t == tag:
                found = True
                assert i < self.vm_done, f"tag {tag} not complete"
        assert found, f"tag {tag} never issued"
    def issued(self, tag):
        return tag in self.vm
    def stamp(self, name):
        if not self.do_stamp: return
        if self.stamp_sel is not None and name not in self.stamp_sel and name not in ("start", "end"): return
        if name in self.stamps: idx = self.stamps.index(name)
        else:
            idx = len(self.stamps)
            assert idx < 16
            self.stamps.append(name)
        self.L.append("s_memtime s[84:85]" if OPT.get("cyc") else "s_memrealtime s[84:85]")
        self.L.append("s_waitcnt lgkmcnt(0)")
        self.ds_out = 0
        self.L.append(f"s_mov_b32 s{86+idx}, s84")
    def label(self, base):
        self.nlab += 1
        return f"L_{base}_{self.nlab}"

class Item:
    def __init__(self, text, cost, deps=()):
        self.text = text; self.cost = cost; self.deps = list(deps); self.placed = None

class Stream:
    def __init__(self):
        self.items = []; self.head = 0; self.gap = 0
    def add(self, text, cost, deps=()):
        it = Item(text, cost, deps); self.items.append(it); return it
    def pending(self):
        return sum(1 for it in self.items[self.head:] if it.placed is None)
    def pending_cost(self):
        return sum(it.cost for it in self.items[self.head:] if it.placed is None)
    def tick(self):
        self.gap += 1
    def fill(self, E, cap, window=48):
        used = 0
        while used < cap:
            while self.head < len(self.items) and self.items[self.head].placed is not None:
                self.head += 1
            pick = None
            for it in self.items[self.head:self.head + window]:
                if it.placed is not None or it.cost > cap - used: continue
                if all(d.placed is not None and self.gap >= d.placed + delta for d, delta in it.deps):
                    pick = it; break
            if pick is None: break
            pick.placed = self.gap
            if callable(pick.text): pick.text(E)
            else: E.raw(pick.text)
            used += pick.cost
        return used
    def flush(self, E):
        n = 0
        while self.pending():
            self.tick()
            E.raw("s_nop 0")
            self.fill(E, 4)
            n += 1
        return n

class Gelu:
    def __init__(self, st):
        self.st = st
        self.pairno = 0
        self.set_last = [None] * N_GSET
        self.nset = N_GSET
        self.stg = 0
        self.stg_last = [None, None]
    def pair(self, g0, u0, g1, u1, dst):
        st = self.st
        k = self.pairno % self.nset; self.pairno += 1
        T0, T1, G0, G1 = [V_GT + 4 * k + i for i in range(4)]
        prev = [(self.set_last[k], 0)] if self.set_last[k] is not None else []
        sprev = dst[1]
        a0 = st.add(f"v_mul_f32 v{T0}, v{g0}, v{g0}", 1, prev)
        a1 = st.add(f"v_mul_f32 v{T1}, v{g1}, v{g1}", 1, prev)
        b0 = st.add(f"v_fma_f32 v{T0}, v{T0}, {s('kb')}, v{V_KA}", 1, [(a0, 0)])
        b1 = st.add(f"v_fma_f32 v{T1}, v{T1}, {s('kb')}, v{V_KA}", 1, [(a1, 0)])
        c0 = st.add(f"v_mul_f32 v{T0}, v{T0}, v{g0}", 1, [(b0, 0)])
        c1 = st.add(f"v_mul_f32 v{T1}, v{T1}, v{g1}", 1, [(b1, 0)])
        e0 = st.add(f"v_exp_f32 v{T0}, v{T0}", 2, [(c0, 0)])
        e1 = st.add(f"v_exp_f32 v{T1}, v{T1}", 2, [(c1, 0)])
        m0 = st.add(f"v_mul_f32 v{G0}, v{g0}, v{u0}", 1, prev)
        m1 = st.add(f"v_mul_f32 v{G1}, v{g1}, v{u1}", 1, prev)
        d0 = st.add(f"v_add_f32 v{T0}, 1.0, v{T0}", 1, [(e0, 1)])
        d1 = st.add(f"v_add_f32 v{T1}, 1.0, v{T1}", 1, [(e1, 1)])
        r0 = st.add(f"v_rcp_f32 v{T0}, v{T0}", 2, [(d0, 0)])
        r1 = st.add(f"v_rcp_f32 v{T1}, v{T1}", 2, [(d1, 0)])
        h0 = st.add(f"v_mul_f32 v{G0}, v{G0}, v{T0}", 1, [(r0, 1), (m0, 0)])
        h1 = st.add(f"v_mul_f32 v{G1}, v{G1}, v{T1}", 1, [(r1, 1), (m1, 0)])
        pk = st.add(f"v_cvt_pk_bf16_f32 v{dst[0]}, v{G0}, v{G1}", 1, [(h0, 0), (h1, 0)] + ([(sprev, 2)] if sprev is not None else []))
        self.set_last[k] = pk
        return pk
    def full_pass(self, buf, store_fn):
        last = None
        for tt in range(4):
            sg = self.stg % 2; self.stg += 1
            base = V_HS + 4 * sg
            pks = []
            for grp in range(2):
                for hp in range(2):
                    g = buf + (grp * 2 + 0) * 16 + tt * 4 + 2 * hp
                    u = buf + (grp * 2 + 1) * 16 + tt * 4 + 2 * hp
                    pks.append(self.pair(g, u, g + 1, u + 1, (base + grp * 2 + hp, self.stg_last[sg])))
            stt = self.st.add((lambda E, tt=tt, base=base: store_fn(E, tt, base)), 2, [(p, 1) for p in pks])
            self.stg_last[sg] = stt
            last = stt
        return last
    def half_pass(self, buf, half, store_fn):
        for pp in range(2):
            for tq in range(2):
                sg = self.stg % 2; self.stg += 1
                base = V_HS + 4 * sg
                pks = []
                for grp in range(2):
                    g_ = 2 * pp + grp
                    for hp in range(2):
                        g = buf + ((g_ * 2 + 0) * 2 + tq) * 4 + 2 * hp
                        u = buf + ((g_ * 2 + 1) * 2 + tq) * 4 + 2 * hp
                        pks.append(self.pair(g, u, g + 1, u + 1, (base + grp * 2 + hp, self.stg_last[sg])))
                stt = self.st.add((lambda E, pp=pp, tt=2 * half + tq, base=base: store_fn(E, pp, tt, base)), 2, [(p, 1) for p in pks])
                self.stg_last[sg] = stt
    def quarter(self, buf, store_fn):
        last = None
        for tt in range(4):
            sg = self.stg % 2; self.stg += 1
            base = V_HS + 4 * sg
            pks = []
            for hp in range(2):
                g = buf + tt * 4 + 2 * hp
                u = buf + 16 + tt * 4 + 2 * hp
                pks.append(self.pair(g, u, g + 1, u + 1, (base + hp, self.stg_last[sg])))
            stt = self.st.add((lambda E, tt=tt, base=base: store_fn(E, tt, base)), 2, [(p, 1) for p in pks])
            self.stg_last[sg] = stt
            last = stt
        return last

def mfma(d, a, b, first, dpre="v"):
    c = "0" if first else f"{dpre}[{d}:{d+3}]"
    return f"v_mfma_f32_16x16x32_bf16 {dpre}[{d}:{d+3}], {a}, {b}, {c}"

def vr(b, n=4): return f"v[{b}:{b+n-1}]"
def ar(b, n=4): return f"a[{b}:{b+n-1}]"

def prologue(E, opt):
    R = E.raw
    L = V_LANE
    T0, T1, T2, T3 = V_T0, V_T1, V_T2, V_T3
    R("s_cmp_ge_u32 s2, 256")
    R("s_cbranch_scc1 L_end")
    R("s_load_dwordx4 s[4:7], s[0:1], 0")
    R("s_load_dwordx4 s[16:19], s[0:1], 16")
    R("s_load_dwordx4 s[28:31], s[0:1], 32")
    R("s_load_dwordx2 s[24:25], s[0:1], 48")
    R("s_memrealtime s[84:85]")
    R(f"v_and_b32 v{L}, 63, v0")
    R(f"v_lshrrev_b32 v{T0}, 6, v0")
    R(f"v_cmp_eq_u32 vcc, 0, v0")
    R(f"v_readfirstlane_b32 {s('wave')}, v{T0}")
    R(f"v_mov_b32 v{T0}, {OOB}")
    R(f"v_mov_b32 v{T1}, 0")
    R(f"v_lshlrev_b32 v{V_T128}, 7, v{L}")
    R(f"v_cndmask_b32 v{V_PUB}, v{T0}, v{T1}, vcc")
    if opt.get("tcode", 1):
        R(f"s_getpc_b64 s[36:37]")
        R(f"L_pc:")
        R(f"s_sub_u32 s36, s36, L_pc-{KNAME}\ns_subb_u32 s37, s37, 0")
        R(f"s_mov_b32 s38, L_codeend-{KNAME}\ns_mov_b32 s39, 0x20000")
        R(f"s_lshr_b32 {s('t0')}, s2, 1\ns_and_b32 {s('t0')}, {s('t0')}, 4\ns_add_u32 {s('t0')}, {s('t0')}, {s('wave')}\ns_lshl_b32 {s('t0')}, {s('t0')}, 13")
        E.vmem(f"buffer_load_dword v{V_DUM}, v{V_T128}, s[36:39], {s('t0')} offen", "TCH")
    R(f"s_and_b32 {s('sk')}, s2, 3")
    R(f"s_lshr_b32 {s('t0')}, s2, 2\ns_and_b32 {s('t0')}, {s('t0')}, 1")
    R(f"s_lshr_b32 {s('t1')}, s2, 3")
    R(f"s_and_b32 {s('jj')}, {s('t1')}, 7")
    R(f"s_lshr_b32 {s('t1')}, {s('t1')}, 3")
    R(f"s_lshl_b32 {s('mb')}, {s('t0')}, 2\ns_add_u32 {s('mb')}, {s('mb')}, {s('t1')}")
    R(f"s_lshl_b32 {s('t0')}, {s('mb')}, 2\ns_add_u32 {s('t0')}, {s('t0')}, {s('wave')}\ns_mul_i32 {s('xoff')}, {s('t0')}, {64*XROW}")
    R(f"s_lshl_b32 {s('m0x')}, {s('wave')}, {12 if opt.get('th2', 0) else 14}\ns_add_u32 {s('m0x')}, {s('m0x')}, {XST}")
    R(f"v_lshrrev_b32 v{T0}, 3, v{L}")
    R(f"v_and_b32 v{T1}, 7, v{L}")
    R(f"v_lshrrev_b32 v{T2}, 1, v{T0}")
    R(f"v_xor_b32 v{T2}, v{T2}, v{T1}")
    R(f"v_mul_u32_u24 v{T3}, {XROW}, v{T0}")
    R(f"v_lshl_add_u32 v{V_X}, v{T2}, 4, v{T3}")
    R(f"v_xor_b32 v{V_X+1}, 64, v{V_X}")
    R(f"v_add_u32 v{V_X+2}, {2*(8*XROW-1024)}, v{V_X}")
    R(f"v_add_u32 v{V_X+3}, {3*(8*XROW-1024)}, v{V_X+1}")
    R(f"v_add_u32 v{V_X+1}, {1*(8*XROW-1024)}, v{V_X+1}")
    R(f"s_and_b32 {s('th')}, {s('wave')}, 1\ns_lshr_b32 {s('kh')}, {s('wave')}, 1")
    R(f"v_and_b32 v{T2}, 2, v{T0}")
    R(f"v_xor_b32 v{T2}, v{T2}, v{T1}")
    R(f"s_lshl_b32 {s('t0')}, {s('th')}, 2")
    R(f"v_xor_b32 v{T2}, {s('t0')}, v{T2}")
    R(f"v_mul_u32_u24 v{T3}, {WROW}, v{T0}")
    R(f"v_lshl_add_u32 v{V_W1}, v{T2}, 4, v{T3}")
    R(f"s_mul_i32 {s('t0')}, {s('wave')}, {8*WROW}")
    R(f"v_add_u32 v{V_W1}, {s('t0')}, v{V_W1}")
    R(f"s_mul_i32 {s('t0')}, {s('sk')}, 2304")
    R(f"s_lshl_b32 {s('t1')}, {s('jj')}, 8\ns_add_u32 {s('w1col')}, {s('t0')}, {s('t1')}")
    R(f"s_lshl_b32 {s('m0w')}, {s('wave')}, 11")
    R("s_waitcnt lgkmcnt(0)")
    E.stamp("karg")
    R(f"s_mov_b32 s8, s4\ns_mov_b32 s9, s5\ns_mov_b32 s10, {NTOK*XROW}\ns_mov_b32 s11, 0x20000")

V_TCH = 48
def coop_setup(E):
    R = E.raw; L = V_LANE
    lx = E.label("cx"); le = E.label("ce")
    R(f"s_lshr_b32 {s('t0')}, s2, 3\ns_lshl_b32 {s('t0')}, {s('t0')}, 2\ns_add_u32 {s('t0')}, {s('t0')}, {s('wave')}")
    R(f"s_mov_b32 s36, s4\ns_mov_b32 s37, s5\ns_mov_b32 s38, {NTOK*XROW}\ns_mov_b32 s39, 0x20000")
    R(f"v_mul_u32_u24 v{V_T0}, {XROW}, v{L}")
    R(f"s_cmp_lt_u32 {s('t0')}, 64")
    R(f"s_cbranch_scc1 {lx}")
    R(f"s_sub_u32 {s('t0')}, {s('t0')}, 64\ns_cmp_lt_u32 {s('t0')}, 32")
    R(f"s_cselect_b32 s36, s6, s16\ns_cselect_b32 s37, s7, s17\ns_mov_b32 s38, {DM*WROW}")
    R(f"s_and_b32 {s('t1')}, {s('t0')}, 3\ns_mul_i32 {s('t1')}, {s('t1')}, {48*WROW}")
    R(f"s_lshr_b32 {s('t2')}, {s('t0')}, 2\ns_and_b32 {s('t2')}, {s('t2')}, 7\ns_lshl_b32 {s('t2')}, {s('t2')}, 8\ns_add_u32 {s('t1')}, {s('t1')}, {s('t2')}")
    R(f"s_mul_i32 {s('t2')}, {s('sk')}, 2304\ns_add_u32 {s('tA')}, {s('t1')}, {s('t2')}\ns_mov_b32 {s('tB')}, {192*WROW}")
    R(f"v_mul_u32_u24 v{V_TCH}, {WROW}, v{L}")
    R(f"s_branch {le}")
    R(f"{lx}:")
    R(f"s_lshr_b32 {s('t1')}, {s('t0')}, 4\ns_and_b32 {s('t2')}, {s('mb')}, 4\ns_add_u32 {s('t1')}, {s('t1')}, {s('t2')}\ns_lshl_b32 {s('t1')}, {s('t1')}, 8")
    R(f"s_and_b32 {s('t2')}, {s('t0')}, 15\ns_lshl_b32 {s('t2')}, {s('t2')}, 4\ns_add_u32 {s('t1')}, {s('t1')}, {s('t2')}\ns_mul_i32 {s('tA')}, {s('t1')}, {XROW}\ns_mov_b32 {s('tB')}, 384")
    R(f"v_mul_u32_u24 v{V_T0}, 21846, v{L}\nv_lshrrev_b32 v{V_T0}, 16, v{V_T0}")
    R(f"v_mul_u32_u24 v{V_T1}, 3, v{V_T0}\nv_sub_u32 v{V_T1}, v{L}, v{V_T1}")
    R(f"v_mul_u32_u24 v{V_T0}, {XROW}, v{V_T0}\nv_lshl_add_u32 v{V_TCH}, v{V_T1}, 7, v{V_T0}")
    R(f"{le}:")
    R(f"v_mov_b32 v{V_T0}, {OOB}\nv_cmp_gt_u32 vcc, 48, v{L}\ns_nop 1\nv_cndmask_b32 v{V_TCH}, v{V_T0}, v{V_TCH}, vcc")

def coop_touch(E, g):
    E.vmem(f"buffer_load_dword v{V_DUM}, v{V_TCH}, s[36:39], {s('tA')} offen", "TCH")
    if g < 2: E.raw(f"s_add_u32 {s('tA')}, {s('tA')}, {s('tB')}")

def prologue_w(E):
    R = E.raw
    R(f"s_mov_b32 s12, s6\ns_mov_b32 s13, s7\ns_mov_b32 s14, {DM*WROW}\ns_mov_b32 s15, 0x20000")
    R(f"s_mov_b32 s20, s18\ns_mov_b32 s21, s19\ns_mov_b32 s22, {DF*XROW}\ns_mov_b32 s23, 0x20000")
    R(f"s_sub_u32 s16, s16, 1024\ns_subb_u32 s17, s17, 0\ns_mov_b32 s18, {DM*WROW+1024}\ns_mov_b32 s19, 0x20000")
    R(f"s_mov_b32 s32, s30\ns_mov_b32 s33, s31\ns_mov_b32 s34, 256\ns_mov_b32 s35, 0x20000")
    R(f"s_mov_b32 s30, {NTOK*XROW}\ns_mov_b32 s31, 0x20000")
    R(f"s_mov_b32 s26, {WS_SIZE}\ns_mov_b32 s27, 0x20000")

def issue_x(E, piece):
    c, hf = piece >> 1, piece & 1
    E.raw(f"s_add_u32 m0, {s('m0x')}, {(piece % 4) * 4096}")
    E.raw(f"s_add_u32 {s('so2')}, {s('xoff')}, {hf * 32 * XROW + c * 128}")
    for u in range(4):
        E.vmem(f"buffer_load_dwordx4 v{V_X+u}, {srd(SRD_X)}, {s('so2')} offen offset:{u*1024} lds", f"X{piece}")

def w1_ops(line, ks):
    def setup(E):
        E.raw(f"s_add_u32 m0, {s('m0w')}, {ks * W1_KS}")
        E.raw(f"s_add_u32 {s('so')}, {s('w1col')}, {ks * 32 * WROW + line * 128}")
    def g(E): E.vmem(f"buffer_load_dwordx4 v{V_W1}, {srd(SRD_G)}, {s('so')} offen lds", f"W{line}_{ks//3}")
    def u(E): E.vmem(f"buffer_load_dwordx4 v{V_W1}, {srd(SRD_U)}, {s('so')} offen offset:1024 lds", f"W{line}_{ks//3}")
    return setup, g, u

def issue_w1_slot(E, line, slot):
    for ks in range(3 * slot, 3 * slot + 3):
        a, b, c = w1_ops(line, ks)
        a(E); b(E); c(E)

def read_x(E, chunk):
    out = []
    for hf in range(2):
        piece = 2 * chunk + hf
        for h in range(2):
            for tp in range(2):
                ks = 2 * chunk + h
                tt = 2 * hf + tp
                out.append(f"ds_read_b128 {xreg(ks, tt)}, v{V_XR + h} offset:{(piece % 4) * 4096 + tp * 2048}")
    return out

def areads_w1(ph, ks, par=None, alt=False):
    out = []
    reg, kk = divmod(ks, 6)
    if par is None: par = ks & 1
    for f in range(4):
        grp, mat = f >> 1, f & 1
        d = V_AR + 16 * par + 4 * f
        base = (V_AB if alt else V_A) + 2 * reg + grp
        for sec in range(2):
            out.append(f"ds_read_b64_tr_b16 v[{d+2*sec}:{d+2*sec+1}], v{base} offset:{kk*W1_KS + mat*1024 + sec*512}")
    return out

def areads_q(ks, par):
    out = []
    kk = (ks if ks < 8 else ks - 8) if WQE else ks
    for mat in range(2):
        d = V_AR + 16 * par + 4 * mat
        for sec in range(2):
            out.append(f"ds_read_b64_tr_b16 v[{d+2*sec}:{d+2*sec+1}], v{V_AQ} offset:{kk*2048 + mat*1024 + sec*256}")
    return out

def areads_g2(t, sub, par):
    slot = (t + 2) % 8
    reg, sl = divmod(slot, 3)
    out = []
    for k in range(3):
        dt = 3 * sub + k
        d = V_AR + 12 * par + 4 * k
        for sec in range(2):
            out.append(f"ds_read_b64_tr_b16 v[{d+2*sec}:{d+2*sec+1}], v{V_A2+reg} offset:{sl*WD_SLOT + dt*32 + sec*4608}")
    return out

def kap(t):
    return 4 * (t & 3) + (t >> 2)

def wd_ops(t):
    slot = (t + 2) % 8
    def setup(E):
        E.raw(f"s_add_u32 m0, {s('m0d')}, {slot * WD_SLOT}")
        if OPT.get("nowd"):
            E.raw(f"s_mov_b32 {s('so')}, {OOB}"); return
        if t < 16: E.raw(f"s_add_u32 {s('so')}, {s('wd0')}, {32 * kap(t) * XROW}")
        else: E.raw(f"s_add_u32 {s('so')}, {s('wdq')}, {32 * (t - 16) * XROW}")
    def mk(i):
        def f(E): E.vmem(f"buffer_load_dwordx4 v{V_WD+i}, {srd(SRD_D)}, {s('so')} offen offset:{i*1024} lds", f"D{t}")
        return f
    def setup5(E):
        E.raw(f"s_add_u32 m0, {s('m0d5')}, {slot * WD_SLOT}")
    def d4(E):
        E.raw("s_mov_b32 exec_hi, 0")
        E.vmem(f"buffer_load_dwordx4 v{V_WD+4}, {srd(SRD_D)}, {s('so')} offen lds", f"D{t}")
        E.raw("s_mov_b32 exec_hi, -1")
    return [(setup, 's'), (mk(0), 'v'), (mk(1), 'v'), (mk(2), 'v'), (mk(3), 'v'), (setup5, 's'), (d4, 'v')]

def h_ops(t):
    ops = []
    if t < 16:
        def setup(E):
            if OPT.get("noh"):
                E.raw(f"s_mov_b32 {s('tA')}, {OOB}"); E.raw(f"s_mov_b32 {s('tB')}, {OOB}"); return
            E.raw(f"s_add_u32 {s('tA')}, {s('hldA')}, {kap(t) * H_KS}")
            E.raw(f"s_add_u32 {s('tB')}, {s('hldB')}, {kap(t) * H_KS}")
        ops.append((setup, 's'))
        for tt in range(4):
            def f(E, tt=tt):
                so = s('tA') if tt < 2 else s('tB')
                E.vmem(f"buffer_load_dwordx4 {ar(hreg(t, tt))}, v{V_L16}, {srd(SRD_W)}, {so} offen offset:{(tt & 1) * 1024}{HSC}", f"H{t}")
            ops.append((f, 'v'))
    else:
        def setup(E):
            E.raw(f"s_add_u32 {s('tA')}, {s('hlqA')}, {(t - 16) * H_KS}")
            E.raw(f"s_add_u32 {s('tB')}, {s('hlqB')}, {(t - 16) * H_KS}")
        ops.append((setup, 's'))
        for tt in range(4):
            for hf in range(2):
                def f(E, tt=tt, hf=hf):
                    so = s('tA') if tt < 2 else s('tB')
                    b = hreg(t, tt) + 2 * hf
                    E.vmem(f"buffer_load_dwordx2 {ar(b, 2)}, v{V_L8}, {srd(SRD_W)}, {so} offen offset:{(tt & 1) * 1024 + hf * 512}{HSC}", f"H{t}")
                ops.append((f, 'v'))
    return ops

def publish_op(level, vpub=None, spf="pf"):
    def f(E):
        E.raw(f"s_add_u32 {s('t0')}, {s('nonce')}, {level}")
        E.raw(f"v_mov_b32 v{V_ONE}, {s('t0')}")
        E.vmem(f"buffer_store_dword v{V_ONE}, v{V_PUB if vpub is None else vpub}, {srd(SRD_W)}, {s(spf)} offen sc1", f"PUB{level}")
    return f

def nonce_write(E):
    E.raw(f"s_or_b32 s84, s84, 1")
    E.raw(f"s_cmp_eq_u32 s2, 0")
    E.raw(f"s_cselect_b32 {s('t0')}, 0, {OOB}")
    E.raw(f"v_mov_b32 v{V_ONE}, s84")
    E.vmem(f"buffer_store_dword v{V_ONE}, v{V_PUB}, {srd(SRD_F)}, {s('t0')} offen sc1", "TCH")

def nonce_ops():
    def a(E):
        E.vmem(f"buffer_load_dword v{V_T1}, v{V_Z}, {srd(SRD_F)}, 0 offen sc1", "NONCE")
    def b(E):
        ok = E.label("nok"); slow = E.label("nslow"); chk = E.label("nchk")
        E.wait(vm="NONCE")
        E.raw(f"v_readfirstlane_b32 {s('nonce')}, v{V_T1}")
        E.raw(f"s_cmp_eq_u32 {s('nonce')}, 0")
        E.raw(f"s_cbranch_scc1 {slow}")
        E.raw(f"{ok}:")
        E.slow += [f"{slow}:", f"s_mov_b32 {s('spin')}, 0", f"{chk}:",
                   f"buffer_load_dword v{V_T1}, v{V_Z}, {srd(SRD_F)}, 0 offen sc1", "s_waitcnt vmcnt(0)",
                   f"v_readfirstlane_b32 {s('nonce')}, v{V_T1}",
                   f"s_add_u32 {s('spin')}, {s('spin')}, 1", f"s_cmp_gt_u32 {s('spin')}, {SPIN_MAX}", f"s_cbranch_scc1 {ok}",
                   f"s_cmp_eq_u32 {s('nonce')}, 0", f"s_cbranch_scc1 {chk}", f"s_branch {ok}"]
    nop = lambda E: None
    return a, b, nop, nop

V_DUM = 0
def touch(E, vreg, srdb, so, tag="TCH"):
    E.vmem(f"buffer_load_dword v{V_DUM}, v{vreg}, {srd(srdb)}, {so} offen", tag)

def touch_ops_wd():
    def setup(E):
        E.raw(f"s_and_b32 {s('t0')}, {s('mb')}, 3\ns_lshl_b32 {s('t0')}, {s('t0')}, 3\ns_add_u32 {s('t0')}, {s('t0')}, {s('jj')}")
        E.raw(f"s_lshl_b32 {s('t0')}, {s('t0')}, 2\ns_add_u32 {s('t0')}, {s('t0')}, {s('wave')}\ns_mul_i32 {s('t0')}, {s('t0')}, {81*128}")
        E.raw(f"s_mul_i32 {s('t1')}, {s('sk')}, {1152*XROW}\ns_add_u32 {s('so')}, {s('t0')}, {s('t1')}")
    return [(setup, 's'), (lambda E: touch(E, V_T128, SRD_D, s('so')), 'v'), (lambda E: touch(E, V_T128B, SRD_D, s('so')), 'v')]

def touch_ops_w1(line):
    def setup(E):
        E.raw(f"s_and_b32 {s('t0')}, {s('mb')}, 3\ns_lshl_b32 {s('t0')}, {s('t0')}, 1\ns_add_u32 {s('t0')}, {s('t0')}, {s('kh')}")
        E.raw(f"s_mul_i32 {s('t0')}, {s('t0')}, {72*WROW}\ns_add_u32 {s('so')}, {s('t0')}, {s('w1col')}")
        if line: E.raw(f"s_add_u32 {s('so')}, {s('so')}, {line*128}")
    return [(setup, 's'), (lambda E: touch(E, V_TROW, SRD_Q, s('so')), 'v'), (lambda E: touch(E, V_TROWB, SRD_Q, s('so')), 'v')]

def touch_ops_wq():
    def setup(E):
        E.raw(f"s_and_b32 {s('t0')}, {s('jj')}, 3\ns_lshl_b32 {s('t0')}, {s('t0')}, 2\ns_and_b32 {s('t1')}, {s('mb')}, 3\ns_add_u32 {s('t0')}, {s('t0')}, {s('t1')}")
        E.raw(f"s_lshl_b32 {s('t0')}, {s('t0')}, 1\ns_add_u32 {s('t0')}, {s('t0')}, {s('kh')}\ns_mul_i32 {s('t0')}, {s('t0')}, {18*WROW}")
        E.raw(f"s_mul_i32 {s('t1')}, {s('sk')}, 2304\ns_add_u32 {s('t0')}, {s('t0')}, {s('t1')}\ns_lshl_b32 {s('t1')}, {s('jj')}, 5\ns_add_u32 {s('t0')}, {s('t0')}, {s('t1')}\ns_add_u32 {s('so')}, {s('t0')}, 2048")
    return [(setup, 's'), (lambda E: touch(E, V_TROWQ, SRD_Q, s('so')), 'v')]

def touch_ops_x():
    def setup(E):
        E.raw(f"s_lshl_b32 {s('t0')}, {s('jj')}, 2\ns_add_u32 {s('t0')}, {s('t0')}, {s('wave')}\ns_lshl_b32 {s('t0')}, {s('t0')}, 3")
        E.raw(f"s_lshl_b32 {s('t1')}, {s('mb')}, 8\ns_add_u32 {s('t0')}, {s('t0')}, {s('t1')}\ns_mul_i32 {s('so')}, {s('t0')}, {XROW}")
    return [(setup, 's'), (lambda E: touch(E, V_T128, SRD_X, s('so')), 'v'), (lambda E: touch(E, V_T128B, SRD_X, s('so')), 'v')]

def touch_ops_h(p0, np_):
    def setup(E):
        E.raw(f"s_lshr_b32 {s('t0')}, {s('jj')}, 1\ns_lshl_b32 {s('t0')}, {s('t0')}, 14\ns_add_u32 {s('t0')}, {s('t0')}, {s('hldA')}")
        E.raw(f"s_lshl_b32 {s('t1')}, {s('kh')}, 11\ns_sub_u32 {s('so')}, {s('t0')}, {s('t1')}")
        if p0: E.raw(f"s_add_u32 {s('so')}, {s('so')}, {p0*H_KS}")
    v = V_T128 if np_ == 2 else V_T128H
    return [(setup, 's'), (lambda E: touch(E, v, SRD_W, s('so')), 'v')]

def selftouch_op(p):
    def f(E):
        if OPT.get("noself"): return
        E.raw(f"s_add_u32 {s('t4')}, {s('hst')}, {p * H_KS}")
        E.vmem(f"buffer_load_dword v{V_DUM}, v{V_T128H}, {srd(SRD_W)}, {s('t4')} offen sc1", "TCH")
    return f

def touch_code(E):
    R = E.raw
    R(f"s_getpc_b64 s[4:5]")
    R(f"L_pc:")
    R(f"s_sub_u32 s4, s4, L_pc-{KNAME}")
    R(f"s_subb_u32 s5, s5, 0")
    R(f"s_mov_b32 s6, L_codeend-{KNAME}")
    R(f"s_mov_b32 s7, 0x20000")
    R(f"s_lshr_b32 {s('t0')}, s2, 3\ns_lshl_b32 {s('t0')}, {s('t0')}, 2\ns_add_u32 {s('t0')}, {s('t0')}, {s('wave')}\ns_and_b32 {s('t0')}, {s('t0')}, 7\ns_lshl_b32 {s('t0')}, {s('t0')}, 13")
    E.vmem(f"buffer_load_dword v{V_DUM}, v{V_T128}, s[4:7], {s('t0')} offen", "TCH")

def touch_mall_w(E):
    R = E.raw
    R(f"s_lshl_b32 {s('t0')}, s2, 2\ns_add_u32 {s('t0')}, {s('t0')}, {s('wave')}\ns_and_b32 {s('t0')}, {s('t0')}, 511\ns_mul_i32 {s('t0')}, {s('t0')}, {81*128}")
    R(f"s_cmp_lt_u32 s2, 128")
    R(f"s_cselect_b32 s4, s12, s16\ns_cselect_b32 s5, s13, s17\ns_cselect_b32 {s('t1')}, 0, 1024")
    R(f"s_mov_b32 s6, {DM*WROW+1024}\ns_mov_b32 s7, 0x20000\ns_add_u32 {s('t0')}, {s('t0')}, {s('t1')}")
    E.vmem(f"buffer_load_dword v{V_DUM}, v{V_T128}, s[4:7], {s('t0')} offen", "TCH")
    E.vmem(f"buffer_load_dword v{V_DUM}, v{V_T128B}, s[4:7], {s('t0')} offen", "TCH")

def selftouchq_op():
    def f(E):
        E.raw(f"v_lshrrev_b32 v{V_T0}, 2, v{V_LANE}\nv_lshlrev_b32 v{V_T0}, 10, v{V_T0}\nv_and_b32 v{V_T1}, 3, v{V_LANE}\nv_lshl_add_u32 v{V_T0}, v{V_T1}, 7, v{V_T0}")
        E.raw(f"v_mov_b32 v{V_T1}, {OOB}\nv_cmp_gt_u32 vcc, 16, v{V_LANE}\ns_nop 1\nv_cndmask_b32 v{V_T0}, v{V_T1}, v{V_T0}, vcc")
        E.vmem(f"buffer_load_dword v{V_DUM}, v{V_T0}, {srd(SRD_W)}, {s('hstq')} offen sc1", "TCH")
    return f

def tlb_ops():
    def setup(E):
        L = V_LANE
        E.raw(f"s_lshl_b32 {s('t0')}, {s('mb')}, 3\ns_add_u32 {s('t0')}, {s('t0')}, {s('jj')}\ns_lshl_b32 {s('t0')}, {s('t0')}, 2\ns_add_u32 {s('t0')}, {s('t0')}, {s('wave')}")
        E.raw(f"s_mul_i32 {s('t0')}, {s('t0')}, {16*5120}\ns_add_u32 {s('t0')}, {s('t0')}, {WS_P}")
        E.raw(f"v_mov_b32 v{V_T0}, {OOB}\nv_writelane_b32 v{V_T0}, {s('hst')}, 0\nv_writelane_b32 v{V_T0}, {s('pf')}, 1\nv_writelane_b32 v{V_T0}, {s('t0')}, 2")
        E.raw(f"s_lshl_b32 {s('so')}, {s('mb')}, 8\ns_mul_i32 {s('so')}, {s('so')}, {XROW}")
    return [(setup, 's'),
            (lambda E: E.vmem(f"buffer_load_dword v{V_DUM}, v{V_T0}, {srd(SRD_W)}, 0 offen sc1", "TCH"), 'v'),
            (lambda E: E.vmem(f"buffer_load_dword v{V_DUM}, v{V_Z}, {srd(SRD_O)}, {s('so')} offen", "TCH"), 'v'),
            (lambda E: E.vmem(f"buffer_load_dword v{V_DUM}, v{V_Z}, {srd(SRD_D)}, {s('wd0')} offen", "TCH"), 'v')]

def touch_regs(E):
    R = E.raw; L = V_LANE
    R(f"v_lshlrev_b32 v{V_T128}, 7, v{L}")
    R(f"v_mov_b32 v{V_T128H}, {OOB}")
    R(f"v_cmp_gt_u32 vcc, 17, v{L}")
    R(f"v_add_u32 v{V_T128B}, {64*128}, v{V_T128}")
    R(f"v_mul_u32_u24 v{V_TROW}, {WROW}, v{L}")
    R(f"v_cndmask_b32 v{V_T128B}, v{V_T128H}, v{V_T128B}, vcc")
    R(f"v_cmp_gt_u32 vcc, 8, v{L}")
    R(f"v_add_u32 v{V_TROWB}, {64*WROW}, v{V_TROW}")
    R(f"s_nop 0")
    R(f"v_cndmask_b32 v{V_TROWB}, v{V_T128H}, v{V_TROWB}, vcc")
    R(f"v_cmp_gt_u32 vcc, 18, v{L}")
    R(f"s_nop 1")
    R(f"v_cndmask_b32 v{V_TROWQ}, v{V_T128H}, v{V_TROW}, vcc")
    R(f"v_cmp_gt_u32 vcc, 32, v{L}")
    R(f"s_nop 1")
    R(f"v_cndmask_b32 v{V_T128H}, v{V_T128H}, v{V_T128}, vcc")

def emit_ops(E, ops):
    for f, k in ops:
        f(E)

def poll_issue(name):
    def f(E):
        E.vmem(f"buffer_load_dword v{V_FL}, v{V_FH}, {srd(SRD_W)}, 0 offen sc1", f"POLL{name}")
    return f

def poll_check(E, name, level, voff=None, issued=True):
    voff = V_FH if voff is None else voff
    ok = E.label("pok"); slow = E.label("pslow"); chk = E.label("pchk")
    if OPT.get("nopoll"):
        if issued: E.wait(vm=f"POLL{name}")
        return
    test = [f"s_add_u32 {s('t0')}, {s('nonce')}, {level}",
            f"v_subrev_u32 v{V_FL}, {s('t0')}, v{V_FL}",
            f"v_cmp_lt_u32 vcc, {6 - level}, v{V_FL}"]
    if issued:
        E.wait(vm=f"POLL{name}")
        for x in test: E.raw(x)
        E.raw(f"s_cbranch_vccnz {slow}")
    else:
        E.raw(f"s_branch {slow}")
    E.raw(f"{ok}:")
    E.slow += [f"{slow}:",
               f"s_mov_b32 {s('spin')}, 0",
               f"{chk}:",
               f"buffer_load_dword v{V_FL}, v{voff}, {srd(SRD_W)}, 0 offen sc1",
               "s_waitcnt vmcnt(0)"] + test + [
               f"s_add_u32 {s('spin')}, {s('spin')}, 1",
               f"s_cmp_gt_u32 {s('spin')}, {SPIN_MAX}",
               f"s_cbranch_scc1 {ok}",
               f"s_cbranch_vccnz {chk}",
               f"s_branch {ok}"]

V_AB = 50
def setupA(E):
    R = E.raw
    L = V_LANE
    T0, T1, T2, T3 = V_T0, V_T1, V_T2, V_T3
    R(f"v_lshrrev_b32 v{T0}, 4, v{L}")
    R(f"v_and_b32 v{T1}, 15, v{L}")
    R(f"v_lshrrev_b32 v{T2}, 1, v{T1}")
    R(f"v_xor_b32 v{T2}, v{T2}, v{T0}")
    R(f"v_lshlrev_b32 v{T3}, 7, v{T1}")
    R(f"v_lshl_add_u32 v{V_XR}, v{T2}, 4, v{T3}")
    R(f"v_add_u32 v{V_XR}, {s('m0x')}, v{V_XR}")
    R(f"v_xor_b32 v{V_XR+1}, 64, v{V_XR}")
    R(f"v_lshrrev_b32 v{T2}, 2, v{T1}")
    R(f"v_lshlrev_b32 v{T3}, 11, v{T0}")
    R(f"v_lshl_add_u32 v{T3}, v{T2}, 7, v{T3}")
    R(f"v_and_b32 v{T2}, 3, v{T1}")
    R(f"v_lshl_add_u32 v{T3}, v{T2}, 3, v{T3}")
    R(f"v_and_b32 v{T2}, 1, v{T0}")
    R(f"v_lshlrev_b32 v{T2}, 6, v{T2}")
    R(f"v_add_u32 v{T3}, v{T3}, v{T2}")
    R(f"v_bfe_u32 v{T2}, v{T1}, 3, 1")
    R(f"v_lshl_add_u32 v{V_A}, v{T2}, 5, v{T3}")
    R(f"v_xor_b32 v{V_A+1}, 32, v{V_A}")
    for r in range(1, 3):
        R(f"v_add_u32 v{V_A+2*r}, {r*49152}, v{V_A}")
        R(f"v_add_u32 v{V_A+2*r+1}, {r*49152}, v{V_A+1}")
    for i in range(6):
        R(f"v_xor_b32 v{V_AB+i}, 64, v{V_A+i}")

def setupB():
    G = []
    R = G.append
    L = V_LANE
    T0, T1, T2, T3 = 44, 45, 46, 47
    u0, u1, u2, u3, u4 = s('pst'), s('pld'), s('outb'), s('phi0'), s('spin')
    R(f"s_add_u32 {u0}, s16, 1024\ns_addc_u32 {u1}, s17, 0\ns_cmp_eq_u32 {s('th')}, 0\ns_cselect_b32 s36, s12, {u0}\ns_cselect_b32 s37, s13, {u1}\ns_mov_b32 s38, {DM*WROW}\ns_mov_b32 s39, 0x20000")
    R(f"s_lshl_b32 {s('cu')}, {s('mb')}, 5\ns_lshl_b32 {u0}, {s('sk')}, 3\ns_add_u32 {s('cu')}, {s('cu')}, {u0}\ns_add_u32 {s('cu')}, {s('cu')}, {s('jj')}")
    R(f"s_mul_i32 {u0}, {s('sk')}, 2304\ns_lshl_b32 {u1}, {s('jj')}, 5\ns_add_u32 {s('wqcol')}, {u0}, {u1}\ns_add_u32 {s('wqcol')}, {s('wqcol')}, 2048")
    R(f"s_mul_i32 {u1}, {s('kh')}, {32*WROW}\ns_add_u32 {s('wqcol')}, {s('wqcol')}, {u1}\ns_lshl_b32 {s('m0q')}, {s('wave')}, 10")
    R(f"v_mov_b32 v{V_T128H}, {OOB}\nv_cmp_gt_u32 vcc, 17, v{L}\nv_add_u32 v{V_T128B}, {64*128}, v{V_T128}\nv_mul_u32_u24 v{V_TROW}, {WROW}, v{L}\nv_cndmask_b32 v{V_T128B}, v{V_T128H}, v{V_T128B}, vcc")
    R(f"v_cmp_gt_u32 vcc, 8, v{L}\nv_add_u32 v{V_TROWB}, {64*WROW}, v{V_TROW}\ns_nop 0\nv_cndmask_b32 v{V_TROWB}, v{V_T128H}, v{V_TROWB}, vcc")
    R(f"v_cmp_gt_u32 vcc, 18, v{L}\ns_nop 1\nv_cndmask_b32 v{V_TROWQ}, v{V_T128H}, v{V_TROW}, vcc")
    R(f"v_cmp_gt_u32 vcc, 32, v{L}\ns_nop 1\nv_cndmask_b32 v{V_T128H}, v{V_T128H}, v{V_T128}, vcc")
    R(f"v_lshrrev_b32 v{T0}, 4, v{L}\nv_and_b32 v{T1}, 15, v{L}")
    R(f"v_lshrrev_b32 v{T2}, 1, v{T0}\nv_lshlrev_b32 v{T3}, 9, v{T2}")
    R(f"v_and_b32 v{T2}, 1, v{T0}\nv_lshl_add_u32 v{T3}, v{T2}, 7, v{T3}")
    R(f"v_lshrrev_b32 v{T2}, 2, v{T1}\nv_lshl_add_u32 v{T3}, v{T2}, 5, v{T3}")
    R(f"v_and_b32 v{T2}, 3, v{T1}\nv_lshl_add_u32 v{V_AQ}, v{T2}, 3, v{T3}")
    R(f"v_lshrrev_b32 v{T2}, 2, v{T1}\nv_lshl_add_u32 v{T2}, v{T0}, 2, v{T2}")
    R(f"v_mul_u32_u24 v{T2}, 288, v{T2}\nv_and_b32 v{T3}, 3, v{T1}")
    R(f"v_lshl_add_u32 v{T2}, v{T3}, 3, v{T2}\ns_mul_i32 {u0}, {s('kh')}, 9216\nv_add_u32 v{V_A2}, {u0}, v{T2}")
    R(f"v_add_u32 v{V_A2+1}, {3*WD_SLOT}, v{V_A2}\nv_add_u32 v{V_A2+2}, {6*WD_SLOT}, v{V_A2}")
    R(f"v_lshrrev_b32 v{T0}, 1, v{L}\nv_and_b32 v{T1}, 0x13, v{T0}")
    R(f"v_and_b32 v{T2}, 4, v{T0}\nv_lshl_or_b32 v{T1}, v{T2}, 1, v{T1}")
    R(f"v_and_b32 v{T2}, 8, v{T0}\nv_lshrrev_b32 v{T2}, 1, v{T2}")
    R(f"v_or_b32 v{T1}, v{T1}, v{T2}\nv_mul_u32_u24 v{T1}, {WROW}, v{T1}")
    R(f"v_and_b32 v{T2}, 1, v{L}\nv_lshl_add_u32 v{V_WQ}, v{T2}, 4, v{T1}")
    for ip in range(5):
        if ip < 4:
            R(f"s_lshl_b32 {u0}, {s('th')}, 8\nv_add_u32 v{T0}, {u0}, v{L}" + (f"\nv_add_u32 v{T0}, {64*ip}, v{T0}" if ip else ""))
        else:
            R(f"s_lshl_b32 {u0}, {s('th')}, 5\ns_add_u32 {u0}, {u0}, 512\nv_and_b32 v{T0}, 31, v{L}\nv_add_u32 v{T0}, {u0}, v{T0}")
        R(f"v_mul_u32_u24 v{T1}, 3641, v{T0}\nv_lshrrev_b32 v{T1}, 16, v{T1}")
        R(f"v_mul_u32_u24 v{T2}, 18, v{T1}\nv_sub_u32 v{T2}, v{T0}, v{T2}")
        R(f"v_mul_u32_u24 v{T1}, {XROW}, v{T1}\nv_lshl_add_u32 v{V_WD+ip}, v{T2}, 4, v{T1}" + (f"\nv_subrev_u32 v{V_WD+ip}, {ip*1024}, v{V_WD+ip}" if 0 < ip < 4 else ""))
    R(f"s_mul_i32 {u1}, {s('kh')}, 9216\ns_lshl_b32 {u2}, {s('th')}, 9\ns_add_u32 {u2}, {u2}, {u1}\ns_add_u32 {s('m0d5')}, {u2}, 8192\n"
      f"s_lshl_b32 {u2}, {s('th')}, 12\ns_add_u32 {s('m0d')}, {u1}, {u2}")
    R(f"v_lshlrev_b32 v{V_L16}, 4, v{L}\nv_lshlrev_b32 v{V_L8}, 3, v{L}")
    R(f"v_mov_b32 v{V_KA}, 0x{f2u(GA):08x}\ns_mov_b32 {s('kb')}, 0x{f2u(GB):08x}\nv_mov_b32 v{V_Z}, 0")
    R(f"s_lshl_b32 {s('pf')}, {s('cu')}, 7\ns_add_u32 {s('pf')}, {s('pf')}, {WS_F}\nv_mov_b32 v{V_PUBD}, v{V_PUB}")
    R(f"s_and_b32 {s('flagh')}, {s('cu')}, 0xf8\ns_lshl_b32 {u0}, {s('kh')}, 2\ns_add_u32 {s('flagh')}, {s('flagh')}, {u0}\n"
      f"s_lshl_b32 {s('flagh')}, {s('flagh')}, 7\ns_add_u32 {s('flagh')}, {s('flagh')}, {WS_F}\nv_min_u32 v{T0}, 3, v{L}")
    R(f"v_lshlrev_b32 v{T0}, 7, v{T0}\nv_add_u32 v{V_FH}, {s('flagh')}, v{T0}")
    R(f"s_lshl_b32 {u0}, {s('mb')}, 2\ns_add_u32 {u0}, {u0}, {s('sk')}\ns_lshl_b32 {u0}, {u0}, 2\n"
      f"s_add_u32 {u1}, {u0}, {s('wave')}\ns_mul_i32 {u1}, {u1}, {36*H_KS}\n"
      f"s_lshl_b32 {u2}, {s('jj')}, 14\ns_add_u32 {s('hst')}, {u1}, {u2}\n"
      f"s_lshr_b32 {u2}, {s('jj')}, 1\ns_add_u32 {u2}, {u2}, 32\ns_lshl_b32 {u2}, {u2}, 12\ns_add_u32 {s('hstq')}, {u1}, {u2}\n"
      f"s_and_b32 {u2}, {s('jj')}, 1\ns_lshl_b32 {u3}, {u2}, 9\ns_add_u32 {s('hstq')}, {s('hstq')}, {u3}\n"
      f"s_lshl_b32 {u2}, {u2}, 1\ns_add_u32 {u2}, {u2}, {s('th')}\n"
      f"s_add_u32 {u1}, {u0}, {u2}\ns_mul_i32 {u1}, {u1}, {36*H_KS}\n"
      f"s_lshl_b32 {u2}, {s('kh')}, 11\ns_sub_u32 {u3}, 2048, {u2}\n"
      f"s_lshl_b32 {u4}, {s('kh')}, 16\ns_add_u32 {u4}, {u4}, {u1}\n"
      f"s_add_u32 {s('hldA')}, {u4}, {u2}\ns_add_u32 {s('hldB')}, {u4}, {u3}\n"
      f"s_lshl_b32 {u4}, {s('kh')}, 13\ns_add_u32 {u4}, {u4}, {32*H_KS}\ns_add_u32 {u4}, {u4}, {u1}\n"
      f"s_add_u32 {s('hlqA')}, {u4}, {u2}\ns_add_u32 {s('hlqB')}, {u4}, {u3}")
    R(f"s_lshr_b32 {u0}, {s('jj')}, 1\ns_mul_i32 {u0}, {u0}, 288\n"
      f"s_mul_i32 {u1}, {s('sk')}, {1152*XROW}\ns_add_u32 {u0}, {u0}, {u1}\n"
      f"s_mul_i32 {u1}, {s('kh')}, {512*XROW}\ns_add_u32 {s('wd0')}, {u0}, {u1}\n"
      f"s_mul_i32 {u1}, {s('kh')}, {64*XROW}\ns_add_u32 {s('wdq')}, {u0}, {u1}\ns_add_u32 {s('wdq')}, {s('wdq')}, {1024*XROW}")
    return G

class Side:
    def __init__(self):
        self.q = []; self.m = 0; self.clock = 0.0; self.hi = []
    def add(self, ops):
        for o in ops: self.q.append((o[0], o[1], o[2] if len(o) > 2 else -1))
    def add_rated(self, ops, cost, earliest=None):
        st = max(self.clock, self.m if earliest is None else earliest)
        nv = sum(1 for o in ops if o[1] == 'v')
        k = 0
        for o in ops:
            nb = int(st + k * cost / nv)
            self.q.append((o[0], o[1], nb))
            if o[1] == 'v': k += 1
        self.clock = st + cost
    def add_hi(self, f): self.hi.append(f)
    def empty(self): return not self.q and not self.hi
    def take_gap(self, E):
        if self.hi:
            self.hi.pop(0)(E); return 2
        if not self.q: return 0
        f, kind, nb = self.q[0]
        if kind == 'v' and nb <= self.m:
            self.q.pop(0); f(E); return 2
        return 0
    def take_scalar(self, E):
        if self.q and self.q[0][1] == 's' and self.q[0][2] <= self.m + 2:
            f, _, _ = self.q.pop(0); f(E); return 1
        return 0
    def drain(self, E):
        while self.hi: self.hi.pop(0)(E)
        while self.q:
            f, kind, nb = self.q.pop(0)
            f(E)
            if kind == 's': E.raw("s_nop 0")

def kstep(E, st, side, mf, reads, side_gaps=(), cap_extra=0):
    reads = list(reads)
    n = len(mf)
    for i, m in enumerate(mf):
        E.raw(m)
        st.tick()
        side.m += 1
        cap = 2 + cap_extra
        if reads:
            E.ds(reads.pop(0)); cap -= 1
        elif i in side_gaps:
            u = side.take_gap(E)
            cap -= u
            if u: cap = min(cap, 0)
        if cap > 0:
            if (i + 1) in side_gaps or (i + 1 == n):
                cap -= side.take_scalar(E)
        if cap > 0:
            st.fill(E, cap)

def gemm1_mf(buf, ks, first, par=None):
    mf = []
    if par is None: par = ks & 1
    for f in range(4):
        grp, mat = f >> 1, f & 1
        a = vr(V_AR + 16 * par + 4 * f)
        for tt in range(4):
            mf.append(mfma(buf + (grp * 2 + mat) * 16 + tt * 4, a, xreg(ks, tt), first))
    return mf

XB = [0, 24576, 49152]
def issue_xp(E, c, hf, b):
    E.raw(f"s_add_u32 m0, {s('m0x')}, {XB[b]}")
    E.raw(f"s_add_u32 {s('so2')}, {s('xoff')}, {hf * 32 * XROW + c * 128}")
    for u in range(4):
        E.vmem(f"buffer_load_dwordx4 v{V_X+u}, {srd(SRD_X)}, {s('so2')} offen offset:{u*1024} lds", f"X{hf}_{c}")
def xp_ops(c, hf, b):
    ops = [((lambda E: (E.raw(f"s_add_u32 m0, {s('m0x')}, {XB[b]}"), E.raw(f"s_add_u32 {s('so')}, {s('xoff')}, {hf * 32 * XROW + c * 128}"))), 's')]
    for u in range(4):
        ops.append(((lambda E, u=u: E.vmem(f"buffer_load_dwordx4 v{V_X+u}, {srd(SRD_X)}, {s('so')} offen offset:{u*1024} lds", f"X{hf}_{c}")), 'v'))
    return ops
def read_xp(c, hf, b):
    return [(f"ds_read_b128 {xreg(2*c+h, 2*hf+tp)}, v{V_XR + h} offset:{XB[b] + tp * 2048}", f"xr{hf}_{c}") for h in range(2) for tp in range(2)]

def areads_half(ks, gp, par, tagn):
    out = []
    reg, kk = divmod(ks, 6)
    for f in range(4):
        grp, mat = f >> 1, f & 1
        d = V_AR + 16 * par + 4 * f
        base = (V_AB if gp else V_A) + 2 * reg + grp
        for sec in range(2):
            out.append((f"ds_read_b64_tr_b16 v[{d+2*sec}:{d+2*sec+1}], v{base} offset:{kk*W1_KS + mat*1024 + sec*512}", f"a{tagn}_{f}"))
    return out

def half_step(E, st, side, n, ks, gp, half, first, reads, xq, cap_extra=0, vm_ok=True):
    par = n & 1
    buf = V_BUF[half]
    i = 0
    for f in range(4):
        g_, mat = 2 * gp + (f >> 1), f & 1
        E.wait_dstag(f"a{n}_{f}")
        for tq in range(2):
            d = buf + ((g_ * 2 + mat) * 2 + tq) * 4
            E.raw(mfma(d, vr(V_AR + 16 * par + 4 * f), xreg(ks, 2 * half + tq), first))
            st.tick(); side.m += 1
            cap = 2 + cap_extra
            if reads:
                t_, tg = reads.pop(0); E.ds(t_, tg); cap -= 1
            if xq and i >= 2:
                t_, tg = xq.pop(0); E.ds(t_, tg); cap -= 1
            elif vm_ok and (i & 1) == 1:
                u = side.take_gap(E)
                if u: cap = 0
            if cap > 0: cap -= side.take_scalar(E)
            if cap > 0: st.fill(E, cap)
            i += 1

def l1_ops(c):
    ops = []
    for kk in range(3 * c, 3 * c + 3):
        a, b, d = w1_ops(1, kk)
        ops += [(a, 's'), (b, 'v'), (d, 'v')]
    return ops

def p0ab(E, st, side, G, opt):
    NA, NB, NC, ND = nonce_ops()
    seq = [(ks, gp) for ks in range(18) for gp in range(2)]
    xq = []
    b_issue = {8: 6, 11: 7, 14: 8, 17: 0}
    b_read = {10: 6, 13: 7, 16: 8}
    for n, (ks, gp) in enumerate(seq):
        if gp == 1 and ks % 3 == 2 and ks < 17:
            if ks == 8: E.wait_dstag("xr0_7")
            E.wait(vm=f"W0_{ks//3+1}", barrier=True)
        if gp == 0:
            if ks % 2 == 0: E.wait_dstag(f"xr0_{ks//2}")
            if 1 <= ks <= 5:
                E.wait_dstag(f"xr0_{ks}")
                issue_xp(E, ks + 3, 0, (ks + 3) % 3)
            if ks == 1: issue_w1_slot(E, 0, 2)
            if ks == 3: issue_w1_slot(E, 0, 3)
            if ks in b_issue:
                prev = {8: "xr0_8", 11: "xr1_6", 14: "xr1_7", 17: "xr1_8"}[ks]
                E.wait_dstag(prev)
                side.add(xp_ops(b_issue[ks], 1, 2))
            if ks == 11: st.flush(E)
            if ks == 12 and opt.get("touch", 1): side.add(touch_ops_wq())
            if ks == opt.get("txb", 6):
                E.raw(f"v_mov_b32 v{V_T0}, {OOB}\nv_cmp_gt_u32 vcc, 36, v{V_LANE}\ns_lshl_b32 {s('t0')}, {s('jj')}, 2\ns_add_u32 {s('t0')}, {s('t0')}, 32\ns_mul_i32 {s('t0')}, {s('t0')}, {XROW}")
                E.raw(f"v_cndmask_b32 v{V_T0}, v{V_T0}, v{V_T128}, vcc\ns_add_u32 {s('t0')}, {s('t0')}, {s('xoff')}")
                touch(E, V_T0, SRD_X, s('t0'))
            if ks == opt.get("tl1", 7):
                st.flush(E)
                if ks >= 8: side.add(touch_ops_w1(1))
                else: emit_ops(E, touch_ops_w1(1))
            if ks == 13: NA(E)
            E.stamp(f"P0k{ks}")
        if gp == 1 and ks == 8:
            for sl in (4, 5):
                for kk in range(3 * sl, 3 * sl + 3):
                    a, b, c = w1_ops(0, kk)
                    side.add([(a, 's'), (b, 'v'), (c, 'v')])
        if gp == 1 and ks <= 7:
            E.wait(vm=f"X0_{ks+1}")
            xq += read_xp(ks + 1, 0, (ks + 1) % 3)
        if gp == 1 and ks in b_read:
            E.wait(vm=f"X1_{b_read[ks]}"); xq += read_xp(b_read[ks], 1, 2)
        if n + 1 < len(seq): nks, ngp = seq[n + 1]
        else: nks, ngp = 12, 0
        reads = areads_half(nks, ngp, (n + 1) & 1, n + 1)
        half_step(E, st, side, n, ks, gp, 0, ks == 0, reads, xq, vm_ok=(ks >= 8), cap_extra=(2 if st.pending() else 0))
        assert not xq
    E.stamp("P0end")
    E.raw(f"s_add_u32 {s('t3')}, {s('hst')}, 0")
    E.raw(f"s_add_u32 {s('t2')}, {s('hst')}, {H_KS}")
    def hs_fn(tag):
        def f(E, pp, tt, base):
            E.vmem(f"buffer_store_dwordx4 {vr(base)}, v{V_L16}, {srd(SRD_W)}, {s('t3' if pp == 0 else 't2')} offen offset:{tt*1024} sc1", tag)
        return f
    G.nset = 2
    G.half_pass(V_BUF[0], 0, hs_fn("HS0"))
    G.nset = N_GSET; G.pairno = 0
    order = [(12 + p) % 18 for p in range(18)]
    seq = [(pos, gp) for pos in range(18) for gp in range(2)]
    n0 = 36
    issue = {2: [(2, 2, "xr1_0")], 3: [(1, 0, None)], 5: [(3, 2, "xr1_2")], 6: [(4, 1, None), (5, 0, "xr1_1")]}
    rd = {1: (0, 2), 4: (2, 2), 5: (1, 0), 7: (3, 2), 8: (4, 1), 9: (5, 0)}
    for m, (pos, gp) in enumerate(seq):
        n = n0 + m
        ks = order[pos]
        if gp == 0:
            if pos in (3, 6, 9, 12, 15):
                if pos == 12: E.wait_dstag("xr1_5"); E.wait_dstag("xr1_4")
                E.wait(barrier=True)
            if ks % 2 == 0: E.wait_dstag(f"xr1_{ks//2}")
            for c, b, tg in issue.get(pos, []):
                if tg: E.wait_dstag(tg)
                side.add(xp_ops(c, 1, b))
            if pos == 9: side.add(l1_ops(0))
            if pos == 12: side.add(l1_ops(1)); side.add(l1_ops(4))
            if pos == 15: side.add(l1_ops(2)); side.add(l1_ops(5))
            if pos == 14: NB(E)
        if gp == 1 and pos in rd:
            c, b = rd[pos]
            E.wait(vm=f"X1_{c}"); xq += read_xp(c, 1, b)
        if pos == 17 and gp == 1:
            E.wait(vm="W1_0", barrier=True)
            reads = [(t_, "p2a") for t_ in areads_w1(0, 0, par=(n + 1) & 1)]
        else:
            npos, ngp = seq[m + 1]
            reads = areads_half(order[npos], ngp, (n + 1) & 1, n + 1)
        half_step(E, st, side, n, ks, gp, 1, pos == 0, reads, xq, cap_extra=(1 if st.pending_cost() > 9.0 * (len(seq) - m) else 0))
        assert not xq
    nfl = st.flush(E)
    if nfl: print(f"; note: P0b GELU flush {nfl}", file=sys.stderr)
    E.stamp("P1end")
    G.half_pass(V_BUF[1], 1, hs_fn("HS1"))

def toggle_bases(E):
    for i in range(6):
        E.raw(f"v_xor_b32 v{V_A+i}, 64, v{V_A+i}")

def hstore_fn(p):
    def f(E, tt, base):
        E.vmem(f"buffer_store_dwordx4 {vr(base)}, v{V_L16}, {srd(SRD_W)}, {s('so2')} offen offset:{tt*1024} sc1", f"HS{p}")
    return f
def hstoreq_fn(E, tt, base):
    E.vmem(f"buffer_store_dwordx2 {vr(base, 2)}, v{V_L8}, {srd(SRD_W)}, {s('hstq')} offen offset:{tt*1024} sc1", "HS4")

def wq_ops(lo=0, hi=9):
    ops = []
    for i in range(lo, hi):
        def setup(E, i=i):
            dst = (SCRATCH + i * 4096) if (WQE and i < 4) else ((i - 4) * 4096 if WQE else i * 4096)
            E.raw(f"s_add_u32 m0, {s('m0q')}, {dst}")
            E.raw(f"s_add_u32 {s('so')}, {s('wqcol')}, {i * 64 * WROW}")
        def d(E): E.vmem(f"buffer_load_dwordx4 v{V_WQ}, {srd(SRD_Q)}, {s('so')} offen lds", "WQ")
        ops += [(setup, 's'), (d, 'v')]
    return ops

def build(opt):
    global OPT
    OPT = opt
    E = Emit()
    E.do_stamp = bool(opt.get("stamp"))
    if isinstance(opt.get("stamp"), str): E.stamp_sel = set(opt["stamp"].split("+"))
    global HSC, WQE
    HSC = "" if opt.get("hplain") else " sc1"
    WQE = bool(opt.get("wqe", 1))
    st = Stream()
    G = Gelu(st)
    side = Side()
    E.stamp("start")
    prologue(E, opt)
    TH2 = opt.get("th2", 0)
    coop = opt.get("coop", 0) if not TH2 else 0
    if coop == 1:
        coop_setup(E); coop_touch(E, 0)
    if TH2: issue_xp(E, 0, 0, 0)
    else:
        issue_x(E, 0); issue_x(E, 1)
    E.stamp("i1")
    if coop >= 2:
        coop_setup(E); E.raw(f"s_add_u32 {s('tA')}, {s('tA')}, {s('tB')}")
    prologue_w(E)
    issue_w1_slot(E, 0, 0)
    nonce_write(E)
    if coop == 1 or coop == 3: coop_touch(E, 1)
    if TH2:
        issue_xp(E, 1, 0, 1); issue_xp(E, 2, 0, 2)
    else:
        issue_x(E, 2); issue_x(E, 3)
    if coop == 3: coop_touch(E, 2)
    setupA(E)
    issue_w1_slot(E, 0, 1)
    if coop == 2: coop_touch(E, 1)
    if coop == 1 or coop == 2: coop_touch(E, 2)
    NCOMB = opt.get("ncomb", 8)
    if TH2:
        E.wait(vm="X0_0")
        E.stamp("x01")
        for t_, tg in read_xp(0, 0, 0): E.ds(t_, tg)
        E.wait(ds=0)
        issue_xp(E, 3, 0, 0)
        E.wait(vm="W0_0", barrier=True)
        for t_, tg in areads_half(0, 0, 0, 0): E.ds(t_, tg)
    else:
        E.wait(vm=["X0", "X1"])
        E.stamp("x01")
        for r in read_x(E, 0): E.ds(r)
        E.wait(ds=0)
        issue_x(E, 4); issue_x(E, 5)
        E.wait(vm="W0_0", barrier=True)
        for r in areads_w1(0, 0, par=0): E.ds(r)
    E.stamp("P0go")
    SG = (9, 11, 13)
    NA, NB, NC, ND = nonce_ops()
    prev = None
    setup_items = []
    for grp in setupB():
        prev = st.add(grp, min(2, grp.count("\n") + 1), [(prev, 0)] if prev else [])
        setup_items.append(prev)
    FULL = False
    l1_queued = 0
    p0_par = 0
    if TH2:
        p0ab(E, st, side, G, opt)
    else:
        steps = []
        for ks in range(18):
            steps.append(("A", ks))
            if ks < NCOMB: steps.append(("B", ks))
        def last_half(ks): return ("B", ks) if ks < NCOMB else ("A", ks)
        FULL = (NCOMB == 18)
        l1_queued = 0
        for n, (kind, ks) in enumerate(steps):
            par = n & 1
            bar = False; tags = []
            for c in range(1, 6):
                if (kind, ks) == last_half(3 * c - 1): bar = True; tags.append(f"W0_{c}")
            if FULL and (kind, ks) == ("B", 17): bar = True; tags.append("W1_0")
            E.wait(vm=(tags if tags else None), ds=0, barrier=bar)
            if bar and ks == 8:
                for sl in (4, 5):
                    for kk in range(3 * sl, 3 * sl + 3):
                        a, b, c = w1_ops(0, kk)
                        side.add([(a, 's'), (b, 'v'), (c, 'v')])
            if bar and ks >= 8:
                free = (ks + 1) // 3 if ks < NCOMB else min(NCOMB // 3, (ks + 1) // 3)
                free = min(free, 4 if ks < 14 else 6)
                while l1_queued < free:
                    for kk in range(3 * l1_queued, 3 * l1_queued + 3):
                        a, b, c = w1_ops(1, kk)
                        side.add([(a, 's'), (b, 'v'), (c, 'v')])
                    l1_queued += 1
            if kind == "A":
                if 1 <= ks <= 6:
                    issue_x(E, 2 * (ks + 2)); issue_x(E, 2 * (ks + 2) + 1)
                if ks == 1: issue_w1_slot(E, 0, 2)
                if ks == 3: issue_w1_slot(E, 0, 3)
                if ks == 11: st.flush(E)
                if ks == 12 and opt.get("tlb", 1): side.add(tlb_ops())
                if ks == 12 and opt.get("touch", 1):
                    side.add(touch_ops_wq())
                    if not FULL and not opt.get("tw1", 0): side.add(touch_ops_w1(1))
                if opt.get("tw1", 0) and ks == opt.get("tw1", 0):
                    assert setup_items[8].placed is not None, "touch registers not ready"
                    emit_ops(E, touch_ops_w1(1))
                if opt.get("tw45", 0) and ks == opt.get("tw45", 0):
                    assert setup_items[8].placed is not None, "touch registers not ready"
                    E.raw(f"v_mov_b32 v{V_T0}, {OOB}\nv_cmp_gt_u32 vcc, 24, v{V_LANE}\ns_and_b32 {s('t0')}, {s('mb')}, 3\ns_lshl_b32 {s('t0')}, {s('t0')}, 1\ns_add_u32 {s('t0')}, {s('t0')}, {s('kh')}")
                    E.raw(f"v_cndmask_b32 v{V_T0}, v{V_T0}, v{V_TROW}, vcc\ns_mul_i32 {s('t0')}, {s('t0')}, {24*WROW}\ns_add_u32 {s('t0')}, {s('t0')}, {s('w1col')}\ns_add_u32 {s('t0')}, {s('t0')}, {384*WROW}")
                    touch(E, V_T0, SRD_Q, s('t0'))
                if ks == 13: NA(E)
                if ks == 17 and not FULL: toggle_bases(E)
                E.stamp(f"P0k{ks}")
            if FULL and (kind, ks) == ("B", 15):
                NB(E)
            if FULL and (kind, ks) == ("A", 17 + 0): pass
            if n + 1 < len(steps):
                nk, nks = steps[n + 1]
                reads = areads_w1(0, nks, par=1 - par, alt=(nk == "B"))
            elif FULL:
                reads = areads_w1(0, 0, par=1 - par)
            else:
                reads = areads_w1(1, NCOMB, par=1 - par)
            if FULL and (kind, ks) == ("B", 17): NC(E)
            mf = gemm1_mf(V_BUF[0 if kind == "A" else 1], ks, ks == 0, par=par)
            if (kind, ks) == last_half(ks) and ks <= 7:
                xr = read_x(E, ks + 1)
                for i, m in enumerate(mf):
                    E.raw(m); st.tick()
                    if i < 8: E.ds(reads[i])
                    else:
                        if i == 8: E.wait(vm=[f"X{2*(ks+1)}", f"X{2*(ks+1)+1}"])
                        E.ds(xr[i - 8])
                    st.fill(E, 1)
            else:
                kstep(E, st, side, mf, reads, side_gaps=(8, 9, 10, 11, 12, 13, 14, 15) if ks >= 8 else ())
        st.flush(E)
        p0_par = len(steps) & 1
        E.stamp("P0end")
    if opt.get("abl") == "p1": E.raw("; MARK_ABL")
    RATE = float(opt.get("rate", 3.8))
    PB, PC, PD = opt.get("PB", 2), opt.get("PC", 9), opt.get("PD", 13)
    PUB4, PUB5 = opt.get("pub4", 3), opt.get("pub5", 6)
    def plan_tail():
        G2 = 432
        items = []
        if WQE: items.append(("WQ", wq_ops(4, 9), 20 * RATE, 32, 272 - 30))
        else: items.append(("WQ", wq_ops(), 36 * RATE, 80, 272 - 30))
        de = {0: 128, 1: 128, 2: 176, 3: 224, 4: 272, 5: 272, 6: 424, 7: 424}
        for u in range(18):
            e = de[u] if u < 8 else G2 + 36 * (u - 7)
            dl = 424 if u == 0 else G2 + 36 * (u - 1) + 24
            items.append((f"D{u}", wd_ops(u), 6.15 * RATE, e, dl))
        for u in range(18):
            if u <= 6: e = 288 + 8 * (u + 1) + 2
            else: e = G2 + 36 * (u - 6)
            if 8 <= u <= 11: e = max(e, G2 + 36 * PB)
            if 12 <= u <= 15: e = max(e, G2 + 36 * PC)
            if u >= 16: e = max(e, G2 + 36 * PD)
            dl = G2 + 36 * u
            if u >= 16: dl = G2 + 36 * (u - OPT.get("hlead", 2))
            items.append((f"H{u}", h_ops(u), 4 * RATE, e, dl))
        clock = 32 if WQE else 80
        order = []
        rem = list(items)
        while rem:
            legal = [it for it in rem if it[3] <= clock]
            if not legal:
                clock = min(it[3] for it in rem); continue
            it = min(legal, key=lambda x: x[4])
            rem.remove(it)
            order.append((it, clock))
            if clock + it[2] > it[4] and not it[0].startswith("H1"): print(f"; plan: {it[0]} start {clock:.0f} end {clock+it[2]:.0f} deadline {it[4]} LATE", file=sys.stderr)
            clock += it[2]
        side.clock = 0
        for it, c in order:
            side.add_rated(it[1], it[2], earliest=c)
    if FULL:
        E.wait(ds=0); ND(E)
        E.raw(f"s_add_u32 {s('so2')}, {s('hst')}, 0")
        G.full_pass(V_BUF[0], hstore_fn(0))
        st.flush(E)
        E.stamp("P1end")
    for p in ((2, 3) if (FULL or TH2) else (1, 2, 3)):
        line, ph = p >> 1, p & 1
        buf = V_BUF[p & 1]
        E.raw(f"s_add_u32 {s('so2')}, {s('hst')}, {(p - 1) * H_KS}")
        if not (TH2 and p == 2): G.full_pass(V_BUF[(p - 1) & 1], hstore_fn(p - 1))
        if p == 3:
            assert side.empty()
            side.m = 0
            plan_tail()
        for ks in range(NCOMB if p == 1 else 0, 18):
            par = (ks & 1) if p > 1 else ((p0_par + ks - NCOMB) & 1)
            bar = (ks % 3 == 2)
            tags = []
            if bar:
                if p == 1 and ks == 17: tags.append("W1_0")
                if p == 2 and ks < 17:
                    if opt.get("p2bar", 0):
                        if ks == 2: tags += ["W1_1", "W1_2"]
                        elif ks == 8: tags += ["W1_3", "W1_4", "W1_5"]
                        else: bar = False
                    else: tags.append(f"W1_{ks//3+1}")
                if p == 3 and ks == 17: tags.append("WQ")
                if p >= 2 and ks == 2: tags.append(f"HS{p-2}")
                if p == 2 and ks == 17: bar = False
            if p == 1 and ks == 14:
                NB(E)
            E.wait(vm=(tags if tags else None), ds=0, barrier=bar)
            if p == 1 and ks == 14: NC(E)
            if p == 1 and ks == 15: ND(E)
            if bar:
                c = ks // 3
                if p >= 2 and ks == 2:
                    side.add_hi(publish_op(p - 1))
                    if opt.get("touch", 1):
                        if not TH2: side.add_hi(selftouch_op(p - 2))
                        elif p == 3: side.add_hi(selftouch_op(0)); side.add_hi(selftouch_op(1))
                    if TH2 and p == 2: side.add(l1_ops(3))
                if p == 1 and c >= l1_queued:
                    for kk in range(3 * c, 3 * c + 3):
                        a, b, d = w1_ops(1, kk)
                        side.add([(a, 's'), (b, 'v'), (d, 'v')])
            if p == 2 and ks == 6 and opt.get("touch", 1): side.add(touch_ops_wd())
            if p == 2 and ks == 9 and WQE: side.add(wq_ops(0, 4))
            if p == 3 and ks == 17 and WQE: E.raw(f"v_add_u32 v{V_AQ}, {SCRATCH}, v{V_AQ}")
            if p == 3 and ks == 15: side.add_hi(poll_issue("a"))
            if ks == 17 and p < 3: toggle_bases(E)
            if ks < 17: reads = areads_w1(ph, ks + 1, par=1 - par)
            elif p < 3: reads = areads_w1(1 - ph, 0, par=1 - par)
            else: reads = areads_q(0, 0)
            sg = SG
            if p == 3 and ks >= 5: sg = (8, 9, 11, 13, 15)
            kstep(E, st, side, gemm1_mf(buf, ks, ks == 0 and not (p == 1 and NCOMB > 0), par=par), reads, side_gaps=sg,
                  cap_extra=(1 if (p == 1 and NCOMB > 0 and st.pending_cost() > 19 * (17 - ks)) else 0))
        n = st.flush(E)
        if n: print(f"; note: pass {p}: GELU flush {n} gaps", file=sys.stderr)
        if p == 2: assert side.empty(), f"side not empty after pass {p}"
        E.stamp(f"P{p}end")
    E.raw(f"s_add_u32 {s('so2')}, {s('hst')}, {3 * H_KS}")
    G.full_pass(V_BUF[1], hstore_fn(3))
    bufq = V_BUF[0]
    for ks in range(18):
        bar = ks in (3, 17)
        tags = []
        if ks == 3: tags.append("HS2")
        if ks == 17: tags.append("D0")
        E.wait(vm=(tags if tags else None), ds=0, barrier=bar)
        if ks == 3:
            side.add_hi(publish_op(3))
            if opt.get("touch", 1): side.add_hi(selftouch_op(2))
        if ks == 1:
            poll_check(E, "a", 2)
        if ks == 7 and WQE: E.raw(f"v_subrev_u32 v{V_AQ}, {SCRATCH}, v{V_AQ}")
        mf = []
        for mat in range(2):
            a = vr(V_AR + 16 * (ks & 1) + 4 * mat)
            for tt in range(4):
                mf.append(mfma(bufq + mat * 16 + tt * 4, a, xreg(ks, tt), ks == 0))
        reads = areads_q(ks + 1, (ks + 1) & 1) if ks < 17 else areads_g2(0, 0, 0)
        kstep(E, st, side, mf, reads, side_gaps=(4, 5, 6, 7) if ks < 17 else (6, 7), cap_extra=opt.get("capq", 1))
    if opt.get("stop") == "g1":
        st.flush(E)
        G.quarter(bufq, hstoreq_fn)
        st.flush(E)
        side.q = []; side.hi = []
        E.wait_all()
        return finish(E)
    E.stamp("PQend")
    if opt.get("abl", "g2") == "g2": E.raw("; MARK_ABL")
    E.skew_on = True
    qadded = False
    sub_par = 0
    for t in range(18):
        for sub in range(3):
            tags = []
            bar = (sub == 2)
            if sub == 0: tags.append(f"H{t}")
            if bar and t < 17: tags.append(f"D{t+1}")
            pub = None
            if bar and t == PUB4: tags.append("HS3"); pub = 4
            if bar and t == PUB5: tags.append("HS4"); pub = 5
            E.wait(vm=(tags if tags else None), ds=0, barrier=bar)
            if pub:
                side.add_hi(publish_op(pub))
                if pub == 4 and opt.get("touch", 1): side.add_hi(selftouch_op(3))
                if pub == 5 and opt.get("touchq", 1): side.add_hi(selftouchq_op())
            if sub == 0:
                if not qadded and st.pending() == 0:
                    G.quarter(bufq, hstoreq_fn); qadded = True
                if t == PB - 1: side.add_hi(poll_issue("b"))
                if t == PB: poll_check(E, "b", 3)
                if t == PC - 1: side.add_hi(poll_issue("c"))
                if t == PC: poll_check(E, "c", 4)
                if t == PD - 1: side.add_hi(poll_issue("d"))
                if t == PD: poll_check(E, "d", 5)
            mf = []
            for k in range(3):
                dt = 3 * sub + k
                a = vr(V_AR + 12 * sub_par + 4 * k)
                for tt in range(4):
                    mf.append(mfma(acc2(dt, tt), a, ar(hreg(t, tt)), t == 0, "a"))
            if sub < 2: reads = areads_g2(t, sub + 1, 1 - sub_par)
            elif t < 17: reads = areads_g2(t + 1, 0, 1 - sub_par)
            else: reads = []
            if t == 12 and sub == 0:
                prev = None
                for grp in final_setup(E):
                    prev = st.add(grp, 2, [(prev, 1)] if prev else [])
            if t == 17 and sub >= 1:
                for dt in range(3 * (sub - 1), 3 * sub):
                    for j in range(2):
                        st.add((lambda E, dt=dt, j=j: E.ds(f"ds_write_b128 v{V_RED}, {ar(acc2(dt, 2 + j))} offset:{(2*dt+j)*1024}")), 2, [])
                    for x in keep_reads(dt): st.add(x, 1, [])
                st.tick(); st.tick()
                E.raw("s_nop 3")
            kstep(E, st, side, mf, reads, side_gaps=(6, 7, 8, 9, 10, 11), cap_extra=(opt.get("capg", 1) if t < PUB5 else 0))
            if t == 17 and sub == 2: st.flush(E)
            sub_par = 1 - sub_par
        if E.stamp_sel is not None or t in (2, 5, 8, 11, 14, 17): E.stamp(f"G2t{t}")
        if t == PUB4 - 1:
            if E.vm.count("HS3") < 4: print(f"; note: flushing GELU(P3) at t={t}: {st.pending_cost()} slots", file=sys.stderr);
            while E.vm.count("HS3") < 4:
                st.tick(); E.raw("s_nop 0"); st.fill(E, 2)
        if t == PUB5 - 1:
            if not qadded:
                st.flush(E); G.quarter(bufq, hstoreq_fn); qadded = True
            if st.pending(): print(f"; note: flushing GELU(PQ) at t={t}: {st.pending_cost()} slots", file=sys.stderr)
            st.flush(E)
    assert side.empty(), "side ops left"
    E.raw("; MARK_END")
    E.skew_on = False
    final(E, opt)
    return finish(E)

FIRST = [0, 5, 10, 14]
CNT = [5, 5, 4, 4]
RED = 73728
V_PUB2 = 2
KEEP = 128
RCV = 40

def final_setup(E):
    T0, T1 = V_T0, V_T1
    L = V_LANE
    G = []
    G.append(f"s_mul_i32 {s('t0')}, {s('wave')}, 18432\ns_add_u32 {s('t0')}, {s('t0')}, {RED}\nv_add_u32 v{V_RED}, {s('t0')}, v{V_L16}")
    G.append(f"s_xor_b32 {s('t1')}, {s('wave')}, 2\ns_mul_i32 {s('t1')}, {s('t1')}, 18432\ns_add_u32 {s('t1')}, {s('t1')}, {RED}\nv_add_u32 v{V_RED2}, {s('t1')}, v{V_L16}")
    G.append(f"s_lshl_b32 {s('t0')}, {s('mb')}, 3\ns_add_u32 {s('t0')}, {s('t0')}, {s('jj')}\ns_lshl_b32 {s('t0')}, {s('t0')}, 2\ns_add_u32 {s('t0')}, {s('t0')}, {s('wave')}\n"
             f"s_mul_i32 {s('t0')}, {s('t0')}, {16*5120}\ns_add_u32 {s('t0')}, {s('t0')}, {WS_P}\n"
             f"s_mul_i32 {s('t1')}, {s('sk')}, 5120\ns_add_u32 {s('pst')}, {s('t0')}, {s('t1')}\n"
             f"s_mul_i32 {s('t1')}, {s('sk')}, {4*5120}\ns_add_u32 {s('pld')}, {s('t0')}, {s('t1')}")
    G.append(f"s_lshl_b32 {s('t0')}, {s('mb')}, 8\ns_and_b32 {s('t1')}, {s('jj')}, 1\ns_lshl_b32 {s('t1')}, {s('t1')}, 7\ns_add_u32 {s('t0')}, {s('t0')}, {s('t1')}\n"
             f"s_lshl_b32 {s('t1')}, {s('th')}, 6\ns_add_u32 {s('t0')}, {s('t0')}, {s('t1')}\ns_lshl_b32 {s('t1')}, {s('kh')}, 5\ns_add_u32 {s('t0')}, {s('t0')}, {s('t1')}\n"
             f"s_mul_i32 {s('t0')}, {s('t0')}, {XROW}\ns_lshr_b32 {s('t1')}, {s('jj')}, 1\ns_mul_i32 {s('t1')}, {s('t1')}, 288\ns_add_u32 {s('outb')}, {s('t0')}, {s('t1')}")
    G.append(f"v_and_b32 v{T0}, 15, v{L}\nv_mul_u32_u24 v{T0}, {XROW}, v{T0}")
    G.append(f"v_lshrrev_b32 v{T1}, 4, v{L}\nv_lshl_add_u32 v{V_OUT}, v{T1}, 3, v{T0}")
    G.append(f"s_lshl_b32 {s('t0')}, {s('mb')}, 5\ns_add_u32 {s('t0')}, {s('t0')}, {s('jj')}\ns_lshl_b32 {s('t0')}, {s('t0')}, 2\ns_add_u32 {s('t0')}, {s('t0')}, {s('wave')}\n"
             f"s_lshl_b32 {s('t0')}, {s('t0')}, 7\ns_add_u32 {s('t0')}, {s('t0')}, {WS_F + 32768}\n"
             f"s_lshl_b32 {s('t1')}, {s('sk')}, 12\ns_add_u32 {s('pf2')}, {s('t0')}, {s('t1')}\n"
             f"v_min_u32 v{T0}, 3, v{L}\n"
             f"v_lshlrev_b32 v{T0}, 12, v{T0}\nv_add_u32 v{V_FO}, {s('t0')}, v{T0}")
    G.append(f"v_cmp_eq_u32 vcc, 0, v{L}\nv_mov_b32 v{T0}, {OOB}\nv_mov_b32 v{T1}, 0\ns_nop 0\nv_cndmask_b32 v{V_PUB2}, v{T0}, v{T1}, vcc")
    return G

def red_write(E, dt):
    for j in range(2):
        E.ds(f"ds_write_b128 v{V_RED}, {ar(acc2(dt, 2 + j))} offset:{(2*dt+j)*1024}")
def keep_reads(dt):
    return [f"v_accvgpr_read_b32 v{KEEP + (2*dt+j)*4 + r}, a{acc2(dt, j) + r}" for j in range(2) for r in range(4)]

def final(E, opt):
    R = E.raw
    R("s_nop 7")
    for dt in (6, 7, 8):
        red_write(E, dt)
        for x in keep_reads(dt): R(x)
    E.wait(ds=0, barrier=True)
    for ph in range(18):
        E.ds(f"ds_read_b128 {vr(RCV + 4*ph)}, v{V_RED2} offset:{ph*1024}")
    base_vm = list(E.vm); base_done = E.vm_done; base_ds = E.ds_out
    labs = [E.label(f"fin{k}") for k in range(4)]
    end = E.label("finend")
    R(f"s_cmp_eq_u32 {s('sk')}, 1\ns_cbranch_scc1 {labs[1]}\ns_cmp_eq_u32 {s('sk')}, 2\ns_cbranch_scc1 {labs[2]}\ns_cmp_eq_u32 {s('sk')}, 3\ns_cbranch_scc1 {labs[3]}")
    for sv in range(4):
        E.vm = list(base_vm); E.vm_done = base_done; E.ds_out = base_ds
        R(f"{labs[sv]}:")
        own = list(range(FIRST[sv], FIRST[sv] + CNT[sv]))
        order = [ph for ph in range(18) if ph not in own] + own
        done_ds = -1
        for n, ph in enumerate(order):
            need = ph
            if need > done_ds:
                left = 17 - need
                E.wait(ds=min(left, E.ds_out))
                done_ds = need
            for r in range(4):
                R(f"v_add_f32 v{KEEP + 4*ph + r}, v{KEEP + 4*ph + r}, v{RCV + 4*ph + r}")
            if ph not in own:
                dest = max(d for d in range(4) if FIRST[d] <= ph)
                sig = ph - FIRST[dest]
                R(f"s_add_u32 {s('so')}, {s('pst')}, {dest*4*5120 + sig*1024}")
                E.vmem(f"buffer_store_dwordx4 {vr(KEEP + 4*ph)}, v{V_L16}, {srd(SRD_W)}, {s('so')} offen sc1", "PSx")
        E.stamp("F_red")
        R("s_waitcnt vmcnt(0)")
        E.vm_done = len(E.vm)
        E.stamp("F_ps")
        publish_op(6, V_PUB2, "pf2")(E)
        poll_check(E, "f", 6, voff=V_FO, issued=False)
        E.vm_done = len(E.vm)
        E.stamp("F_poll")
        srcs = [k for k in range(4) if k != sv]
        LD = RCV
        for sig in range(CNT[sv]):
            for n, src in enumerate(srcs):
                R(f"s_add_u32 {s('so')}, {s('pld')}, {src*5120 + sig*1024}")
                E.vmem(f"buffer_load_dwordx4 {vr(LD + (sig*3+n)*4)}, v{V_L16}, {srd(SRD_W)}, {s('so')} offen sc1", f"PL{sig}" if n == 2 else "PLx")
        for sig in range(CNT[sv]):
            ph = FIRST[sv] + sig
            dt, j = ph >> 1, ph & 1
            R(f"s_add_u32 {s('so')}, {s('outb')}, {dt*32 + j*16*XROW}")
            E.wait(vm=f"PL{sig}")
            b = KEEP + 4 * ph
            for r in range(4):
                a = [LD + (sig*3+n)*4 + r for n in range(3)]
                R(f"v_add_f32 v{a[0]}, v{a[0]}, v{a[1]}")
                R(f"v_add_f32 v{b+r}, v{b+r}, v{a[2]}")
                R(f"v_add_f32 v{b+r}, v{b+r}, v{a[0]}")
            R(f"v_cvt_pk_bf16_f32 v{b}, v{b}, v{b+1}")
            R(f"v_cvt_pk_bf16_f32 v{b+1}, v{b+2}, v{b+3}")
            E.vmem(f"buffer_store_dwordx2 {vr(b, 2)}, v{V_OUT}, {srd(SRD_O)}, {s('so')} offen{' sc1' if OPT.get('outsc1', 0) else ''}", "OUT")
        if sv < 3: R(f"s_branch {end}")
    R(f"{end}:")

def ablate(E):
    if not any(OPT.get(k) for k in ("x_nobar", "x_novm", "x_nogelu", "x_nods", "x_nowait", "x_nod", "x_noh", "x_novmw")): return
    out = []; on = False
    for l in E.L:
        if l.startswith("; MARK_ABL"): on = True
        if l.startswith("; MARK_END"): on = False
        if on:
            if OPT.get("x_nobar") and l.startswith("s_barrier"): continue
            if OPT.get("x_novm") and l.startswith("buffer_"): continue
            if OPT.get("x_novm") and l.startswith("s_waitcnt vmcnt"):
                l = re.sub(r"vmcnt\(\d+\) ?", "", l)
                if l.strip() == "s_waitcnt": continue
            if OPT.get("x_nod") and l.startswith("buffer_load_dwordx4 v") and l.endswith("lds"): continue
            if OPT.get("x_noh") and l.startswith("buffer_load_dwordx") and " a[" in l: continue
            if OPT.get("x_novmw") and l.startswith("s_waitcnt vmcnt"):
                l = re.sub(r"vmcnt\(\d+\) ?", "", l)
                if l.strip() == "s_waitcnt": continue
            if OPT.get("x_nogelu") and re.match(r"v_(mul_f32|fma_f32|exp_f32|rcp_f32|add_f32|cvt_pk)", l): continue
            if OPT.get("x_nods") and l.startswith("ds_read"): continue
        out.append(l)
    E.L = out

def finish(E):
    ablate(E)
    if E.do_stamp:
        E.raw("s_waitcnt vmcnt(0)")
        E.stamp("end")
        E.raw(f"s_lshl_b32 {s('t0')}, s2, 2\ns_add_u32 {s('t0')}, {s('t0')}, {s('wave')}\ns_lshl_b32 {s('t0')}, {s('t0')}, 7\ns_add_u32 {s('t0')}, {s('t0')}, {60 << 20}")
        E.raw(f"v_mov_b32 v{V_T1}, 0")
        for i in range(len(E.stamps)):
            E.raw(f"v_mov_b32 v{V_T0}, s{86+i}")
            E.raw(f"buffer_store_dword v{V_T0}, v{V_T1}, {srd(SRD_W)}, {s('t0')} offen offset:{4*i}")
        E.raw("s_waitcnt vmcnt(0)")
        print("STAMPS=" + ",".join(E.stamps), file=sys.stderr)
    E.raw("L_end:")
    E.raw("s_endpgm")
    for x in E.slow: E.raw(x)
    E.raw("s_endpgm")
    E.raw("L_codeend:")
    return E

def emit_file(opt):
    E = build(opt)
    hdr = open("standalone__glu_gated_geglu__prompt.s.ref").read().split("\n") if opt.get("hdr", True) else []
    out = []
    for l in hdr:
        if l.startswith("; @launch") or l.startswith("; Override") or l.startswith("; grid=") : continue
        if l.startswith(";"): out.append(l)
        else: break
    out.append(f"; @launch grid=(256,1,1) block=(256,1,1) lds={LDS_BYTES}")
    out.append('.amdgcn_target "amdgcn-amd-amdhsa--gfx950"')
    out.append(".text")
    out.append(f".globl {KNAME}")
    out.append(".p2align 8")
    out.append(f".type {KNAME},@function")
    out.append(f"{KNAME}:")
    out += E.L
    out.append(".fill 64, 4, 0xbf800000")
    out.append('.section .rodata,"a"')
    out.append(".p2align 6")
    out.append(f".amdhsa_kernel {KNAME}")
    out += ["  .amdhsa_next_free_vgpr 512", "  .amdhsa_next_free_sgpr 102", "  .amdhsa_accum_offset 256",
            "  .amdhsa_group_segment_fixed_size 0", "  .amdhsa_kernarg_size 56", "  .amdhsa_user_sgpr_count 2",
            "  .amdhsa_user_sgpr_kernarg_segment_ptr 1", "  .amdhsa_system_sgpr_workgroup_id_x 1",
            "  .amdhsa_float_denorm_mode_32 3",
            ".end_amdhsa_kernel"]
    return "\n".join(out) + "\n"

if __name__ == "__main__":
    opt = {}
    path = sys.argv[1] if len(sys.argv) > 1 else "k.s"
    for a in sys.argv[2:]:
        k, v = a.split("=")
        opt[k] = int(v) if v.lstrip("-").isdigit() else v
    open(path, "w").write(emit_file(opt))
```

```python
import sys, struct, re

KNAME = "standalone__glu_gated_geglu__prompt_kernel"
HSC = " sc1"
WQE = True
OPT = {}

DM, DF, NTOK = 576, 4608, 2048
XROW = DM * 2
WROW = DF * 2
LDS_BYTES = 163840
W1_KS = 8192
XST = 98304
WD_SLOT = 18432
SCRATCH = 147456
H_KS = 4096
WS_P = 32 << 20
WS_F = 56 << 20
WS_SIZE = 64 << 20
OOB = 0x40000000
GA = -2.0 * 0.7978845608028654 * 1.4426950408889634
GB = GA * 0.044715
SPIN_MAX = 400000

def f2u(x): return struct.unpack('<I', struct.pack('<f', x))[0]

S = {}
SRD_X, SRD_G, SRD_U, SRD_D, SRD_W, SRD_O, SRD_F, SRD_Q = 8, 12, 16, 20, 24, 28, 32, 36
def srd(b): return f"s[{b}:{b+3}]"
_n = 40
for nm in ["wave", "mb", "sk", "jj", "cu", "th", "kh", "xoff", "w1col", "wqcol", "hst", "hstq", "hldA", "hldB", "hlqA", "hlqB",
           "wd0", "wdq", "flagh", "t0", "t1", "t2", "t3", "t4", "t5", "m0w", "m0x", "m0q", "m0d", "m0d5", "kb", "pst", "pld",
           "outb", "spin", "phi0", "so", "so2", "pf", "tA", "tB", "pf2", "nonce"]:
    S[nm] = _n; _n += 1
assert _n <= 100
def s(n): return f"s{S[n]}"

V_LANE = 1
V_W1 = 2
V_WQ = 3
V_A = 4
V_AQ = 10
V_L16 = 11
V_L8 = 12
V_KA = 13
V_PUB = 14
V_ONE = 15
V_FL = 16
V_T0 = 17; V_T1 = 18; V_T2 = 19; V_T3 = 20
V_X = 21
V_XR = 25
V_WD = 27
V_HS = 32
V_GT = 40
N_GSET = 4
V_T128 = 56; V_T128H = 57; V_T128B = 58
V_TROW = 40; V_TROWB = 41; V_TROWQ = 42
V_PUBD = 43; V_NA = 44; V_NB = 45
V_FH = 59
V_A2 = 60
V_Z = 63
V_XO = 64
V_AR = 96
V_BUF = [128, 192]
V_FO = 21; V_OUT = 22; V_RED = 23; V_RED2 = 24

def xreg(ks, tt):
    i = ks * 4 + tt
    if i < 64: return f"a[{4*i}:{4*i+3}]"
    b = V_XO + 4 * (i - 64)
    return f"v[{b}:{b+3}]"
def hreg(t, tt):
    b = 16 * (t % 7) + 4 * tt
    return b
def acc2(dt, tt):
    b = 112 + 16 * dt + 4 * tt
    return b

def expected_count(tag):
    if tag.startswith("POLL") or tag.startswith("PUB"): return 1
    if tag == "WQ": return 9
    if tag == "NONCE": return 1
    if tag == "TCH": return -1
    if tag == "PS": return 18
    if tag in ("PSx", "PLx", "OUT"): return -1
    if tag.startswith("PL"): return 1
    if tag.startswith("HS"): return 4
    if tag[0] == "X": return 4
    if tag[0] == "W": return 6
    if tag[0] == "D": return 5
    if tag[0] == "H": return 4 if int(tag[1:]) < 16 else 8
    raise KeyError(tag)

class Emit:
    def __init__(self):
        self.L = []
        self.vm = []
        self.vm_done = 0
        self.dsq = []
        self.ds_done = 0
        self.slow = []
        self.nlab = 0
        self.do_stamp = False
        self.skew_on = False
        self.stamps = []
        self.stamp_sel = None
    def raw(self, t):
        for x in t.split("\n"):
            self.L.append(x)
    def vmem(self, text, tag):
        self.L.append(text)
        self.vm.append(tag)
    @property
    def ds_out(self): return len(self.dsq) - self.ds_done
    @ds_out.setter
    def ds_out(self, n):
        if n == 0: self.ds_done = len(self.dsq)
        elif n < self.ds_out: self.ds_done = len(self.dsq) - n
        else:
            self.ds_done = len(self.dsq) - n
    def ds(self, text, tag=None):
        if self.ds_out >= 15:
            self.L.append("s_waitcnt lgkmcnt(10)")
            self.ds_out = 10
        self.L.append(text)
        self.dsq.append(tag)
    def wait_dstag(self, tag):
        idx = max(i for i, t in enumerate(self.dsq) if t == tag)
        if idx < self.ds_done: return
        n = min(len(self.dsq) - 1 - idx, 15)
        self.L.append(f"s_waitcnt lgkmcnt({n})")
        self.ds_done = len(self.dsq) - n
    def _vmN(self, tags):
        idx = -1
        for tg in tags:
            exp = expected_count(tg)
            got = self.vm.count(tg)
            if exp < 0: continue
            assert got == exp, f"wait on {tg}: {got} ops issued, expected {exp}"
        for i, t in enumerate(self.vm):
            if t in tags: idx = i
        assert idx >= 0, f"no vmem op with tags {tags}"
        if idx < self.vm_done: return None
        return min(len(self.vm) - 1 - idx, 63)
    def wait(self, vm=None, ds=None, barrier=False):
        parts = []
        if vm is not None:
            if isinstance(vm, str): vm = [vm]
            n = self._vmN(set(vm))
            if n is not None:
                parts.append(f"vmcnt({n})")
                self.vm_done = max(self.vm_done, len(self.vm) - n)
        if ds is not None and self.ds_out > ds:
            parts.append(f"lgkmcnt({ds})")
            self.ds_out = ds
        if parts:
            self.L.append("s_waitcnt " + " ".join(parts))
        if barrier:
            self.L.append("s_barrier")
            if OPT.get("skew") and self.skew_on:
                for k in range(1, 4):
                    lab = self.label("sk")
                    self.L.append(f"s_cmp_ge_u32 {s('wave')}, {k}")
                    self.L.append(f"s_cbranch_scc0 {lab}")
                    self.L.append(f"s_nop {OPT['skew']}")
                    self.L.append(f"{lab}:")
    def wait_all(self):
        self.L.append("s_waitcnt vmcnt(0) lgkmcnt(0)")
        self.vm_done = len(self.vm); self.ds_out = 0
    def assert_done(self, tag):
        found = False
        for i, t in enumerate(self.vm):
            if t == tag:
                found = True
                assert i < self.vm_done, f"tag {tag} not complete"
        assert found, f"tag {tag} never issued"
    def issued(self, tag):
        return tag in self.vm
    def stamp(self, name):
        if not self.do_stamp: return
        if self.stamp_sel is not None and name not in self.stamp_sel and name not in ("start", "end"): return
        if name in self.stamps: idx = self.stamps.index(name)
        else:
            idx = len(self.stamps)
            assert idx < 16
            self.stamps.append(name)
        self.L.append("s_memtime s[84:85]" if OPT.get("cyc") else "s_memrealtime s[84:85]")
        self.L.append("s_waitcnt lgkmcnt(0)")
        self.ds_out = 0
        self.L.append(f"s_mov_b32 s{86+idx}, s84")
    def label(self, base):
        self.nlab += 1
        return f"L_{base}_{self.nlab}"

class Item:
    def __init__(self, text, cost, deps=()):
        self.text = text; self.cost = cost; self.deps = list(deps); self.placed = None

class Stream:
    def __init__(self):
        self.items = []; self.head = 0; self.gap = 0
    def add(self, text, cost, deps=()):
        it = Item(text, cost, deps); self.items.append(it); return it
    def pending(self):
        return sum(1 for it in self.items[self.head:] if it.placed is None)
    def pending_cost(self):
        return sum(it.cost for it in self.items[self.head:] if it.placed is None)
    def tick(self):
        self.gap += 1
    def fill(self, E, cap, window=48):
        used = 0
        while used < cap:
            while self.head < len(self.items) and self.items[self.head].placed is not None:
                self.head += 1
            pick = None
            for it in self.items[self.head:self.head + window]:
                if it.placed is not None or it.cost > cap - used: continue
                if all(d.placed is not None and self.gap >= d.placed + delta for d, delta in it.deps):
                    pick = it; break
            if pick is None: break
            pick.placed = self.gap
            if callable(pick.text): pick.text(E)
            else: E.raw(pick.text)
            used += pick.cost
        return used
    def flush(self, E):
        n = 0
        while self.pending():
            self.tick()
            E.raw("s_nop 0")
            self.fill(E, 4)
            n += 1
        return n

class Gelu:
    def __init__(self, st):
        self.st = st
        self.pairno = 0
        self.set_last = [None] * N_GSET
        self.nset = N_GSET
        self.stg = 0
        self.stg_last = [None, None]
    def pair(self, g0, u0, g1, u1, dst):
        st = self.st
        k = self.pairno % self.nset; self.pairno += 1
        T0, T1, G0, G1 = [V_GT + 4 * k + i for i in range(4)]
        prev = [(self.set_last[k], 0)] if self.set_last[k] is not None else []
        sprev = dst[1]
        a0 = st.add(f"v_mul_f32 v{T0}, v{g0}, v{g0}", 1, prev)
        a1 = st.add(f"v_mul_f32 v{T1}, v{g1}, v{g1}", 1, prev)
        b0 = st.add(f"v_fma_f32 v{T0}, v{T0}, {s('kb')}, v{V_KA}", 1, [(a0, 0)])
        b1 = st.add(f"v_fma_f32 v{T1}, v{T1}, {s('kb')}, v{V_KA}", 1, [(a1, 0)])
        c0 = st.add(f"v_mul_f32 v{T0}, v{T0}, v{g0}", 1, [(b0, 0)])
        c1 = st.add(f"v_mul_f32 v{T1}, v{T1}, v{g1}", 1, [(b1, 0)])
        e0 = st.add(f"v_exp_f32 v{T0}, v{T0}", 2, [(c0, 0)])
        e1 = st.add(f"v_exp_f32 v{T1}, v{T1}", 2, [(c1, 0)])
        m0 = st.add(f"v_mul_f32 v{G0}, v{g0}, v{u0}", 1, prev)
        m1 = st.add(f"v_mul_f32 v{G1}, v{g1}, v{u1}", 1, prev)
        d0 = st.add(f"v_add_f32 v{T0}, 1.0, v{T0}", 1, [(e0, 1)])
        d1 = st.add(f"v_add_f32 v{T1}, 1.0, v{T1}", 1, [(e1, 1)])
        r0 = st.add(f"v_rcp_f32 v{T0}, v{T0}", 2, [(d0, 0)])
        r1 = st.add(f"v_rcp_f32 v{T1}, v{T1}", 2, [(d1, 0)])
        h0 = st.add(f"v_mul_f32 v{G0}, v{G0}, v{T0}", 1, [(r0, 1), (m0, 0)])
        h1 = st.add(f"v_mul_f32 v{G1}, v{G1}, v{T1}", 1, [(r1, 1), (m1, 0)])
        pk = st.add(f"v_cvt_pk_bf16_f32 v{dst[0]}, v{G0}, v{G1}", 1, [(h0, 0), (h1, 0)] + ([(sprev, 2)] if sprev is not None else []))
        self.set_last[k] = pk
        return pk
    def full_pass(self, buf, store_fn):
        last = None
        for tt in range(4):
            sg = self.stg % 2; self.stg += 1
            base = V_HS + 4 * sg
            pks = []
            for grp in range(2):
                for hp in range(2):
                    g = buf + (grp * 2 + 0) * 16 + tt * 4 + 2 * hp
                    u = buf + (grp * 2 + 1) * 16 + tt * 4 + 2 * hp
                    pks.append(self.pair(g, u, g + 1, u + 1, (base + grp * 2 + hp, self.stg_last[sg])))
            stt = self.st.add((lambda E, tt=tt, base=base: store_fn(E, tt, base)), 2, [(p, 1) for p in pks])
            self.stg_last[sg] = stt
            last = stt
        return last
    def half_pass(self, buf, half, store_fn):
        for pp in range(2):
            for tq in range(2):
                sg = self.stg % 2; self.stg += 1
                base = V_HS + 4 * sg
                pks = []
                for grp in range(2):
                    g_ = 2 * pp + grp
                    for hp in range(2):
                        g = buf + ((g_ * 2 + 0) * 2 + tq) * 4 + 2 * hp
                        u = buf + ((g_ * 2 + 1) * 2 + tq) * 4 + 2 * hp
                        pks.append(self.pair(g, u, g + 1, u + 1, (base + grp * 2 + hp, self.stg_last[sg])))
                stt = self.st.add((lambda E, pp=pp, tt=2 * half + tq, base=base: store_fn(E, pp, tt, base)), 2, [(p, 1) for p in pks])
                self.stg_last[sg] = stt
    def quarter(self, buf, store_fn):
        last = None
        for tt in range(4):
            sg = self.stg % 2; self.stg += 1
            base = V_HS + 4 * sg
            pks = []
            for hp in range(2):
                g = buf + tt * 4 + 2 * hp
                u = buf + 16 + tt * 4 + 2 * hp
                pks.append(self.pair(g, u, g + 1, u + 1, (base + hp, self.stg_last[sg])))
            stt = self.st.add((lambda E, tt=tt, base=base: store_fn(E, tt, base)), 2, [(p, 1) for p in pks])
            self.stg_last[sg] = stt
            last = stt
        return last

def mfma(d, a, b, first, dpre="v"):
    c = "0" if first else f"{dpre}[{d}:{d+3}]"
    return f"v_mfma_f32_16x16x32_bf16 {dpre}[{d}:{d+3}], {a}, {b}, {c}"

def vr(b, n=4): return f"v[{b}:{b+n-1}]"
def ar(b, n=4): return f"a[{b}:{b+n-1}]"

def prologue(E, opt):
    R = E.raw
    L = V_LANE
    T0, T1, T2, T3 = V_T0, V_T1, V_T2, V_T3
    R("s_cmp_ge_u32 s2, 256")
    R("s_cbranch_scc1 L_end")
    R("s_load_dwordx4 s[4:7], s[0:1], 0")
    R("s_load_dwordx4 s[16:19], s[0:1], 16")
    R("s_load_dwordx4 s[28:31], s[0:1], 32")
    R("s_load_dwordx2 s[24:25], s[0:1], 48")
    R("s_memrealtime s[84:85]")
    R(f"v_and_b32 v{L}, 63, v0")
    R(f"v_lshrrev_b32 v{T0}, 6, v0")
    R(f"v_cmp_eq_u32 vcc, 0, v0")
    R(f"v_readfirstlane_b32 {s('wave')}, v{T0}")
    R(f"v_mov_b32 v{T0}, {OOB}")
    R(f"v_mov_b32 v{T1}, 0")
    R(f"v_lshlrev_b32 v{V_T128}, 7, v{L}")
    R(f"v_cndmask_b32 v{V_PUB}, v{T0}, v{T1}, vcc")
    if opt.get("tcode", 1):
        R(f"s_getpc_b64 s[36:37]")
        R(f"L_pc:")
        R(f"s_sub_u32 s36, s36, L_pc-{KNAME}\ns_subb_u32 s37, s37, 0")
        R(f"s_mov_b32 s38, L_codeend-{KNAME}\ns_mov_b32 s39, 0x20000")
        R(f"s_lshr_b32 {s('t0')}, s2, 1\ns_and_b32 {s('t0')}, {s('t0')}, 4\ns_add_u32 {s('t0')}, {s('t0')}, {s('wave')}\ns_lshl_b32 {s('t0')}, {s('t0')}, 13")
        E.vmem(f"buffer_load_dword v{V_DUM}, v{V_T128}, s[36:39], {s('t0')} offen", "TCH")
    R(f"s_and_b32 {s('sk')}, s2, 3")
    R(f"s_lshr_b32 {s('t0')}, s2, 2\ns_and_b32 {s('t0')}, {s('t0')}, 1")
    R(f"s_lshr_b32 {s('t1')}, s2, 3")
    R(f"s_and_b32 {s('jj')}, {s('t1')}, 7")
    R(f"s_lshr_b32 {s('t1')}, {s('t1')}, 3")
    R(f"s_lshl_b32 {s('mb')}, {s('t0')}, 2\ns_add_u32 {s('mb')}, {s('mb')}, {s('t1')}")
    R(f"s_lshl_b32 {s('t0')}, {s('mb')}, 2\ns_add_u32 {s('t0')}, {s('t0')}, {s('wave')}\ns_mul_i32 {s('xoff')}, {s('t0')}, {64*XROW}")
    R(f"s_lshl_b32 {s('m0x')}, {s('wave')}, {12 if opt.get('th2', 0) else 14}\ns_add_u32 {s('m0x')}, {s('m0x')}, {XST}")
    R(f"v_lshrrev_b32 v{T0}, 3, v{L}")
    R(f"v_and_b32 v{T1}, 7, v{L}")
    R(f"v_lshrrev_b32 v{T2}, 1, v{T0}")
    R(f"v_xor_b32 v{T2}, v{T2}, v{T1}")
    R(f"v_mul_u32_u24 v{T3}, {XROW}, v{T0}")
    R(f"v_lshl_add_u32 v{V_X}, v{T2}, 4, v{T3}")
    R(f"v_xor_b32 v{V_X+1}, 64, v{V_X}")
    R(f"v_add_u32 v{V_X+2}, {2*(8*XROW-1024)}, v{V_X}")
    R(f"v_add_u32 v{V_X+3}, {3*(8*XROW-1024)}, v{V_X+1}")
    R(f"v_add_u32 v{V_X+1}, {1*(8*XROW-1024)}, v{V_X+1}")
    R(f"s_and_b32 {s('th')}, {s('wave')}, 1\ns_lshr_b32 {s('kh')}, {s('wave')}, 1")
    R(f"v_and_b32 v{T2}, 2, v{T0}")
    R(f"v_xor_b32 v{T2}, v{T2}, v{T1}")
    R(f"s_lshl_b32 {s('t0')}, {s('th')}, 2")
    R(f"v_xor_b32 v{T2}, {s('t0')}, v{T2}")
    R(f"v_mul_u32_u24 v{T3}, {WROW}, v{T0}")
    R(f"v_lshl_add_u32 v{V_W1}, v{T2}, 4, v{T3}")
    R(f"s_mul_i32 {s('t0')}, {s('wave')}, {8*WROW}")
    R(f"v_add_u32 v{V_W1}, {s('t0')}, v{V_W1}")
    R(f"s_mul_i32 {s('t0')}, {s('sk')}, 2304")
    R(f"s_lshl_b32 {s('t1')}, {s('jj')}, 8\ns_add_u32 {s('w1col')}, {s('t0')}, {s('t1')}")
    R(f"s_lshl_b32 {s('m0w')}, {s('wave')}, 11")
    R("s_waitcnt lgkmcnt(0)")
    E.stamp("karg")
    R(f"s_mov_b32 s8, s4\ns_mov_b32 s9, s5\ns_mov_b32 s10, {NTOK*XROW}\ns_mov_b32 s11, 0x20000")

V_TCH = 48
def coop_setup(E):
    R = E.raw; L = V_LANE
    lx = E.label("cx"); le = E.label("ce")
    R(f"s_lshr_b32 {s('t0')}, s2, 3\ns_lshl_b32 {s('t0')}, {s('t0')}, 2\ns_add_u32 {s('t0')}, {s('t0')}, {s('wave')}")
    R(f"s_mov_b32 s36, s4\ns_mov_b32 s37, s5\ns_mov_b32 s38, {NTOK*XROW}\ns_mov_b32 s39, 0x20000")
    R(f"v_mul_u32_u24 v{V_T0}, {XROW}, v{L}")
    R(f"s_cmp_lt_u32 {s('t0')}, 64")
    R(f"s_cbranch_scc1 {lx}")
    R(f"s_sub_u32 {s('t0')}, {s('t0')}, 64\ns_cmp_lt_u32 {s('t0')}, 32")
    R(f"s_cselect_b32 s36, s6, s16\ns_cselect_b32 s37, s7, s17\ns_mov_b32 s38, {DM*WROW}")
    R(f"s_and_b32 {s('t1')}, {s('t0')}, 3\ns_mul_i32 {s('t1')}, {s('t1')}, {48*WROW}")
    R(f"s_lshr_b32 {s('t2')}, {s('t0')}, 2\ns_and_b32 {s('t2')}, {s('t2')}, 7\ns_lshl_b32 {s('t2')}, {s('t2')}, 8\ns_add_u32 {s('t1')}, {s('t1')}, {s('t2')}")
    R(f"s_mul_i32 {s('t2')}, {s('sk')}, 2304\ns_add_u32 {s('tA')}, {s('t1')}, {s('t2')}\ns_mov_b32 {s('tB')}, {192*WROW}")
    R(f"v_mul_u32_u24 v{V_TCH}, {WROW}, v{L}")
    R(f"s_branch {le}")
    R(f"{lx}:")
    R(f"s_lshr_b32 {s('t1')}, {s('t0')}, 4\ns_and_b32 {s('t2')}, {s('mb')}, 4\ns_add_u32 {s('t1')}, {s('t1')}, {s('t2')}\ns_lshl_b32 {s('t1')}, {s('t1')}, 8")
    R(f"s_and_b32 {s('t2')}, {s('t0')}, 15\ns_lshl_b32 {s('t2')}, {s('t2')}, 4\ns_add_u32 {s('t1')}, {s('t1')}, {s('t2')}\ns_mul_i32 {s('tA')}, {s('t1')}, {XROW}\ns_mov_b32 {s('tB')}, 384")
    R(f"v_mul_u32_u24 v{V_T0}, 21846, v{L}\nv_lshrrev_b32 v{V_T0}, 16, v{V_T0}")
    R(f"v_mul_u32_u24 v{V_T1}, 3, v{V_T0}\nv_sub_u32 v{V_T1}, v{L}, v{V_T1}")
    R(f"v_mul_u32_u24 v{V_T0}, {XROW}, v{V_T0}\nv_lshl_add_u32 v{V_TCH}, v{V_T1}, 7, v{V_T0}")
    R(f"{le}:")
    R(f"v_mov_b32 v{V_T0}, {OOB}\nv_cmp_gt_u32 vcc, 48, v{L}\ns_nop 1\nv_cndmask_b32 v{V_TCH}, v{V_T0}, v{V_TCH}, vcc")

def coop_touch(E, g):
    E.vmem(f"buffer_load_dword v{V_DUM}, v{V_TCH}, s[36:39], {s('tA')} offen", "TCH")
    if g < 2: E.raw(f"s_add_u32 {s('tA')}, {s('tA')}, {s('tB')}")

def prologue_w(E):
    R = E.raw
    R(f"s_mov_b32 s12, s6\ns_mov_b32 s13, s7\ns_mov_b32 s14, {DM*WROW}\ns_mov_b32 s15, 0x20000")
    R(f"s_mov_b32 s20, s18\ns_mov_b32 s21, s19\ns_mov_b32 s22, {DF*XROW}\ns_mov_b32 s23, 0x20000")
    R(f"s_sub_u32 s16, s16, 1024\ns_subb_u32 s17, s17, 0\ns_mov_b32 s18, {DM*WROW+1024}\ns_mov_b32 s19, 0x20000")
    R(f"s_mov_b32 s32, s30\ns_mov_b32 s33, s31\ns_mov_b32 s34, 256\ns_mov_b32 s35, 0x20000")
    R(f"s_mov_b32 s30, {NTOK*XROW}\ns_mov_b32 s31, 0x20000")
    R(f"s_mov_b32 s26, {WS_SIZE}\ns_mov_b32 s27, 0x20000")

def issue_x(E, piece):
    c, hf = piece >> 1, piece & 1
    E.raw(f"s_add_u32 m0, {s('m0x')}, {(piece % 4) * 4096}")
    E.raw(f"s_add_u32 {s('so2')}, {s('xoff')}, {hf * 32 * XROW + c * 128}")
    for u in range(4):
        E.vmem(f"buffer_load_dwordx4 v{V_X+u}, {srd(SRD_X)}, {s('so2')} offen offset:{u*1024} lds", f"X{piece}")

def w1_ops(line, ks):
    def setup(E):
        E.raw(f"s_add_u32 m0, {s('m0w')}, {ks * W1_KS}")
        E.raw(f"s_add_u32 {s('so')}, {s('w1col')}, {ks * 32 * WROW + line * 128}")
    def g(E): E.vmem(f"buffer_load_dwordx4 v{V_W1}, {srd(SRD_G)}, {s('so')} offen lds", f"W{line}_{ks//3}")
    def u(E): E.vmem(f"buffer_load_dwordx4 v{V_W1}, {srd(SRD_U)}, {s('so')} offen offset:1024 lds", f"W{line}_{ks//3}")
    return setup, g, u

def issue_w1_slot(E, line, slot):
    for ks in range(3 * slot, 3 * slot + 3):
        a, b, c = w1_ops(line, ks)
        a(E); b(E); c(E)

def read_x(E, chunk):
    out = []
    for hf in range(2):
        piece = 2 * chunk + hf
        for h in range(2):
            for tp in range(2):
                ks = 2 * chunk + h
                tt = 2 * hf + tp
                out.append(f"ds_read_b128 {xreg(ks, tt)}, v{V_XR + h} offset:{(piece % 4) * 4096 + tp * 2048}")
    return out

def areads_w1(ph, ks, par=None, alt=False):
    out = []
    reg, kk = divmod(ks, 6)
    if par is None: par = ks & 1
    for f in range(4):
        grp, mat = f >> 1, f & 1
        d = V_AR + 16 * par + 4 * f
        base = (V_AB if alt else V_A) + 2 * reg + grp
        for sec in range(2):
            out.append(f"ds_read_b64_tr_b16 v[{d+2*sec}:{d+2*sec+1}], v{base} offset:{kk*W1_KS + mat*1024 + sec*512}")
    return out

def areads_q(ks, par):
    out = []
    kk = (ks if ks < 8 else ks - 8) if WQE else ks
    for mat in range(2):
        d = V_AR + 16 * par + 4 * mat
        for sec in range(2):
            out.append(f"ds_read_b64_tr_b16 v[{d+2*sec}:{d+2*sec+1}], v{V_AQ} offset:{kk*2048 + mat*1024 + sec*256}")
    return out

def areads_g2(t, sub, par):
    slot = (t + 2) % 8
    reg, sl = divmod(slot, 3)
    out = []
    for k in range(3):
        dt = 3 * sub + k
        d = V_AR + 12 * par + 4 * k
        for sec in range(2):
            out.append(f"ds_read_b64_tr_b16 v[{d+2*sec}:{d+2*sec+1}], v{V_A2+reg} offset:{sl*WD_SLOT + dt*32 + sec*4608}")
    return out

def kap(t):
    return 4 * (t & 3) + (t >> 2)

def wd_ops(t):
    slot = (t + 2) % 8
    def setup(E):
        E.raw(f"s_add_u32 m0, {s('m0d')}, {slot * WD_SLOT}")
        if OPT.get("nowd"):
            E.raw(f"s_mov_b32 {s('so')}, {OOB}"); return
        if t < 16: E.raw(f"s_add_u32 {s('so')}, {s('wd0')}, {32 * kap(t) * XROW}")
        else: E.raw(f"s_add_u32 {s('so')}, {s('wdq')}, {32 * (t - 16) * XROW}")
    def mk(i):
        def f(E): E.vmem(f"buffer_load_dwordx4 v{V_WD+i}, {srd(SRD_D)}, {s('so')} offen offset:{i*1024} lds", f"D{t}")
        return f
    def setup5(E):
        E.raw(f"s_add_u32 m0, {s('m0d5')}, {slot * WD_SLOT}")
    def d4(E):
        E.raw("s_mov_b32 exec_hi, 0")
        E.vmem(f"buffer_load_dwordx4 v{V_WD+4}, {srd(SRD_D)}, {s('so')} offen lds", f"D{t}")
        E.raw("s_mov_b32 exec_hi, -1")
    return [(setup, 's'), (mk(0), 'v'), (mk(1), 'v'), (mk(2), 'v'), (mk(3), 'v'), (setup5, 's'), (d4, 'v')]

def h_ops(t):
    ops = []
    if t < 16:
        def setup(E):
            if OPT.get("noh"):
                E.raw(f"s_mov_b32 {s('tA')}, {OOB}"); E.raw(f"s_mov_b32 {s('tB')}, {OOB}"); return
            E.raw(f"s_add_u32 {s('tA')}, {s('hldA')}, {kap(t) * H_KS}")
            E.raw(f"s_add_u32 {s('tB')}, {s('hldB')}, {kap(t) * H_KS}")
        ops.append((setup, 's'))
        for tt in range(4):
            def f(E, tt=tt):
                so = s('tA') if tt < 2 else s('tB')
                E.vmem(f"buffer_load_dwordx4 {ar(hreg(t, tt))}, v{V_L16}, {srd(SRD_W)}, {so} offen offset:{(tt & 1) * 1024}{HSC}", f"H{t}")
            ops.append((f, 'v'))
    else:
        def setup(E):
            E.raw(f"s_add_u32 {s('tA')}, {s('hlqA')}, {(t - 16) * H_KS}")
            E.raw(f"s_add_u32 {s('tB')}, {s('hlqB')}, {(t - 16) * H_KS}")
        ops.append((setup, 's'))
        for tt in range(4):
            for hf in range(2):
                def f(E, tt=tt, hf=hf):
                    so = s('tA') if tt < 2 else s('tB')
                    b = hreg(t, tt) + 2 * hf
                    E.vmem(f"buffer_load_dwordx2 {ar(b, 2)}, v{V_L8}, {srd(SRD_W)}, {so} offen offset:{(tt & 1) * 1024 + hf * 512}{HSC}", f"H{t}")
                ops.append((f, 'v'))
    return ops

def publish_op(level, vpub=None, spf="pf"):
    def f(E):
        E.raw(f"s_add_u32 {s('t0')}, {s('nonce')}, {level}")
        E.raw(f"v_mov_b32 v{V_ONE}, {s('t0')}")
        E.vmem(f"buffer_store_dword v{V_ONE}, v{V_PUB if vpub is None else vpub}, {srd(SRD_W)}, {s(spf)} offen sc1", f"PUB{level}")
    return f

def nonce_write(E):
    E.raw(f"s_or_b32 s84, s84, 1")
    E.raw(f"s_cmp_eq_u32 s2, 0")
    E.raw(f"s_cselect_b32 {s('t0')}, 0, {OOB}")
    E.raw(f"v_mov_b32 v{V_ONE}, s84")
    E.vmem(f"buffer_store_dword v{V_ONE}, v{V_PUB}, {srd(SRD_F)}, {s('t0')} offen sc1", "TCH")

def nonce_ops():
    def a(E):
        E.vmem(f"buffer_load_dword v{V_T1}, v{V_Z}, {srd(SRD_F)}, 0 offen sc1", "NONCE")
    def b(E):
        ok = E.label("nok"); slow = E.label("nslow"); chk = E.label("nchk")
        E.wait(vm="NONCE")
        E.raw(f"v_readfirstlane_b32 {s('nonce')}, v{V_T1}")
        E.raw(f"s_cmp_eq_u32 {s('nonce')}, 0")
        E.raw(f"s_cbranch_scc1 {slow}")
        E.raw(f"{ok}:")
        E.slow += [f"{slow}:", f"s_mov_b32 {s('spin')}, 0", f"{chk}:",
                   f"buffer_load_dword v{V_T1}, v{V_Z}, {srd(SRD_F)}, 0 offen sc1", "s_waitcnt vmcnt(0)",
                   f"v_readfirstlane_b32 {s('nonce')}, v{V_T1}",
                   f"s_add_u32 {s('spin')}, {s('spin')}, 1", f"s_cmp_gt_u32 {s('spin')}, {SPIN_MAX}", f"s_cbranch_scc1 {ok}",
                   f"s_cmp_eq_u32 {s('nonce')}, 0", f"s_cbranch_scc1 {chk}", f"s_branch {ok}"]
    nop = lambda E: None
    return a, b, nop, nop

V_DUM = 0
def touch(E, vreg, srdb, so, tag="TCH"):
    E.vmem(f"buffer_load_dword v{V_DUM}, v{vreg}, {srd(srdb)}, {so} offen", tag)

def touch_ops_wd():
    def setup(E):
        E.raw(f"s_and_b32 {s('t0')}, {s('mb')}, 3\ns_lshl_b32 {s('t0')}, {s('t0')}, 3\ns_add_u32 {s('t0')}, {s('t0')}, {s('jj')}")
        E.raw(f"s_lshl_b32 {s('t0')}, {s('t0')}, 2\ns_add_u32 {s('t0')}, {s('t0')}, {s('wave')}\ns_mul_i32 {s('t0')}, {s('t0')}, {81*128}")
        E.raw(f"s_mul_i32 {s('t1')}, {s('sk')}, {1152*XROW}\ns_add_u32 {s('so')}, {s('t0')}, {s('t1')}")
    return [(setup, 's'), (lambda E: touch(E, V_T128, SRD_D, s('so')), 'v'), (lambda E: touch(E, V_T128B, SRD_D, s('so')), 'v')]

def touch_ops_w1(line):
    def setup(E):
        E.raw(f"s_and_b32 {s('t0')}, {s('mb')}, 3\ns_lshl_b32 {s('t0')}, {s('t0')}, 1\ns_add_u32 {s('t0')}, {s('t0')}, {s('kh')}")
        E.raw(f"s_mul_i32 {s('t0')}, {s('t0')}, {72*WROW}\ns_add_u32 {s('so')}, {s('t0')}, {s('w1col')}")
        if line: E.raw(f"s_add_u32 {s('so')}, {s('so')}, {line*128}")
    return [(setup, 's'), (lambda E: touch(E, V_TROW, SRD_Q, s('so')), 'v'), (lambda E: touch(E, V_TROWB, SRD_Q, s('so')), 'v')]

def touch_ops_wq():
    def setup(E):
        E.raw(f"s_and_b32 {s('t0')}, {s('jj')}, 3\ns_lshl_b32 {s('t0')}, {s('t0')}, 2\ns_and_b32 {s('t1')}, {s('mb')}, 3\ns_add_u32 {s('t0')}, {s('t0')}, {s('t1')}")
        E.raw(f"s_lshl_b32 {s('t0')}, {s('t0')}, 1\ns_add_u32 {s('t0')}, {s('t0')}, {s('kh')}\ns_mul_i32 {s('t0')}, {s('t0')}, {18*WROW}")
        E.raw(f"s_mul_i32 {s('t1')}, {s('sk')}, 2304\ns_add_u32 {s('t0')}, {s('t0')}, {s('t1')}\ns_lshl_b32 {s('t1')}, {s('jj')}, 5\ns_add_u32 {s('t0')}, {s('t0')}, {s('t1')}\ns_add_u32 {s('so')}, {s('t0')}, 2048")
    return [(setup, 's'), (lambda E: touch(E, V_TROWQ, SRD_Q, s('so')), 'v')]

def touch_ops_x():
    def setup(E):
        E.raw(f"s_lshl_b32 {s('t0')}, {s('jj')}, 2\ns_add_u32 {s('t0')}, {s('t0')}, {s('wave')}\ns_lshl_b32 {s('t0')}, {s('t0')}, 3")
        E.raw(f"s_lshl_b32 {s('t1')}, {s('mb')}, 8\ns_add_u32 {s('t0')}, {s('t0')}, {s('t1')}\ns_mul_i32 {s('so')}, {s('t0')}, {XROW}")
    return [(setup, 's'), (lambda E: touch(E, V_T128, SRD_X, s('so')), 'v'), (lambda E: touch(E, V_T128B, SRD_X, s('so')), 'v')]

def touch_ops_h(p0, np_):
    def setup(E):
        E.raw(f"s_lshr_b32 {s('t0')}, {s('jj')}, 1\ns_lshl_b32 {s('t0')}, {s('t0')}, 14\ns_add_u32 {s('t0')}, {s('t0')}, {s('hldA')}")
        E.raw(f"s_lshl_b32 {s('t1')}, {s('kh')}, 11\ns_sub_u32 {s('so')}, {s('t0')}, {s('t1')}")
        if p0: E.raw(f"s_add_u32 {s('so')}, {s('so')}, {p0*H_KS}")
    v = V_T128 if np_ == 2 else V_T128H
    return [(setup, 's'), (lambda E: touch(E, v, SRD_W, s('so')), 'v')]

def selftouch_op(p):
    def f(E):
        if OPT.get("noself"): return
        E.raw(f"s_add_u32 {s('t4')}, {s('hst')}, {p * H_KS}")
        E.vmem(f"buffer_load_dword v{V_DUM}, v{V_T128H}, {srd(SRD_W)}, {s('t4')} offen sc1", "TCH")
    return f

def touch_code(E):
    R = E.raw
    R(f"s_getpc_b64 s[4:5]")
    R(f"L_pc:")
    R(f"s_sub_u32 s4, s4, L_pc-{KNAME}")
    R(f"s_subb_u32 s5, s5, 0")
    R(f"s_mov_b32 s6, L_codeend-{KNAME}")
    R(f"s_mov_b32 s7, 0x20000")
    R(f"s_lshr_b32 {s('t0')}, s2, 3\ns_lshl_b32 {s('t0')}, {s('t0')}, 2\ns_add_u32 {s('t0')}, {s('t0')}, {s('wave')}\ns_and_b32 {s('t0')}, {s('t0')}, 7\ns_lshl_b32 {s('t0')}, {s('t0')}, 13")
    E.vmem(f"buffer_load_dword v{V_DUM}, v{V_T128}, s[4:7], {s('t0')} offen", "TCH")

def touch_mall_w(E):
    R = E.raw
    R(f"s_lshl_b32 {s('t0')}, s2, 2\ns_add_u32 {s('t0')}, {s('t0')}, {s('wave')}\ns_and_b32 {s('t0')}, {s('t0')}, 511\ns_mul_i32 {s('t0')}, {s('t0')}, {81*128}")
    R(f"s_cmp_lt_u32 s2, 128")
    R(f"s_cselect_b32 s4, s12, s16\ns_cselect_b32 s5, s13, s17\ns_cselect_b32 {s('t1')}, 0, 1024")
    R(f"s_mov_b32 s6, {DM*WROW+1024}\ns_mov_b32 s7, 0x20000\ns_add_u32 {s('t0')}, {s('t0')}, {s('t1')}")
    E.vmem(f"buffer_load_dword v{V_DUM}, v{V_T128}, s[4:7], {s('t0')} offen", "TCH")
    E.vmem(f"buffer_load_dword v{V_DUM}, v{V_T128B}, s[4:7], {s('t0')} offen", "TCH")

def selftouchq_op():
    def f(E):
        E.raw(f"v_lshrrev_b32 v{V_T0}, 2, v{V_LANE}\nv_lshlrev_b32 v{V_T0}, 10, v{V_T0}\nv_and_b32 v{V_T1}, 3, v{V_LANE}\nv_lshl_add_u32 v{V_T0}, v{V_T1}, 7, v{V_T0}")
        E.raw(f"v_mov_b32 v{V_T1}, {OOB}\nv_cmp_gt_u32 vcc, 16, v{V_LANE}\ns_nop 1\nv_cndmask_b32 v{V_T0}, v{V_T1}, v{V_T0}, vcc")
        E.vmem(f"buffer_load_dword v{V_DUM}, v{V_T0}, {srd(SRD_W)}, {s('hstq')} offen sc1", "TCH")
    return f

def tlb_ops():
    def setup(E):
        L = V_LANE
        E.raw(f"s_lshl_b32 {s('t0')}, {s('mb')}, 3\ns_add_u32 {s('t0')}, {s('t0')}, {s('jj')}\ns_lshl_b32 {s('t0')}, {s('t0')}, 2\ns_add_u32 {s('t0')}, {s('t0')}, {s('wave')}")
        E.raw(f"s_mul_i32 {s('t0')}, {s('t0')}, {16*5120}\ns_add_u32 {s('t0')}, {s('t0')}, {WS_P}")
        E.raw(f"v_mov_b32 v{V_T0}, {OOB}\nv_writelane_b32 v{V_T0}, {s('hst')}, 0\nv_writelane_b32 v{V_T0}, {s('pf')}, 1\nv_writelane_b32 v{V_T0}, {s('t0')}, 2")
        E.raw(f"s_lshl_b32 {s('so')}, {s('mb')}, 8\ns_mul_i32 {s('so')}, {s('so')}, {XROW}")
    return [(setup, 's'),
            (lambda E: E.vmem(f"buffer_load_dword v{V_DUM}, v{V_T0}, {srd(SRD_W)}, 0 offen sc1", "TCH"), 'v'),
            (lambda E: E.vmem(f"buffer_load_dword v{V_DUM}, v{V_Z}, {srd(SRD_O)}, {s('so')} offen", "TCH"), 'v'),
            (lambda E: E.vmem(f"buffer_load_dword v{V_DUM}, v{V_Z}, {srd(SRD_D)}, {s('wd0')} offen", "TCH"), 'v')]

def touch_regs(E):
    R = E.raw; L = V_LANE
    R(f"v_lshlrev_b32 v{V_T128}, 7, v{L}")
    R(f"v_mov_b32 v{V_T128H}, {OOB}")
    R(f"v_cmp_gt_u32 vcc, 17, v{L}")
    R(f"v_add_u32 v{V_T128B}, {64*128}, v{V_T128}")
    R(f"v_mul_u32_u24 v{V_TROW}, {WROW}, v{L}")
    R(f"v_cndmask_b32 v{V_T128B}, v{V_T128H}, v{V_T128B}, vcc")
    R(f"v_cmp_gt_u32 vcc, 8, v{L}")
    R(f"v_add_u32 v{V_TROWB}, {64*WROW}, v{V_TROW}")
    R(f"s_nop 0")
    R(f"v_cndmask_b32 v{V_TROWB}, v{V_T128H}, v{V_TROWB}, vcc")
    R(f"v_cmp_gt_u32 vcc, 18, v{L}")
    R(f"s_nop 1")
    R(f"v_cndmask_b32 v{V_TROWQ}, v{V_T128H}, v{V_TROW}, vcc")
    R(f"v_cmp_gt_u32 vcc, 32, v{L}")
    R(f"s_nop 1")
    R(f"v_cndmask_b32 v{V_T128H}, v{V_T128H}, v{V_T128}, vcc")

def emit_ops(E, ops):
    for f, k in ops:
        f(E)

def poll_issue(name):
    def f(E):
        E.vmem(f"buffer_load_dword v{V_FL}, v{V_FH}, {srd(SRD_W)}, 0 offen sc1", f"POLL{name}")
    return f

def poll_check(E, name, level, voff=None, issued=True):
    voff = V_FH if voff is None else voff
    ok = E.label("pok"); slow = E.label("pslow"); chk = E.label("pchk")
    if OPT.get("nopoll"):
        if issued: E.wait(vm=f"POLL{name}")
        return
    test = [f"s_add_u32 {s('t0')}, {s('nonce')}, {level}",
            f"v_subrev_u32 v{V_FL}, {s('t0')}, v{V_FL}",
            f"v_cmp_lt_u32 vcc, {6 - level}, v{V_FL}"]
    if issued:
        E.wait(vm=f"POLL{name}")
        for x in test: E.raw(x)
        E.raw(f"s_cbranch_vccnz {slow}")
    else:
        E.raw(f"s_branch {slow}")
    E.raw(f"{ok}:")
    E.slow += [f"{slow}:",
               f"s_mov_b32 {s('spin')}, 0",
               f"{chk}:",
               f"buffer_load_dword v{V_FL}, v{voff}, {srd(SRD_W)}, 0 offen sc1",
               "s_waitcnt vmcnt(0)"] + test + [
               f"s_add_u32 {s('spin')}, {s('spin')}, 1",
               f"s_cmp_gt_u32 {s('spin')}, {SPIN_MAX}",
               f"s_cbranch_scc1 {ok}",
               f"s_cbranch_vccnz {chk}",
               f"s_branch {ok}"]

V_AB = 50
def setupA(E):
    R = E.raw
    L = V_LANE
    T0, T1, T2, T3 = V_T0, V_T1, V_T2, V_T3
    R(f"v_lshrrev_b32 v{T0}, 4, v{L}")
    R(f"v_and_b32 v{T1}, 15, v{L}")
    R(f"v_lshrrev_b32 v{T2}, 1, v{T1}")
    R(f"v_xor_b32 v{T2}, v{T2}, v{T0}")
    R(f"v_lshlrev_b32 v{T3}, 7, v{T1}")
    R(f"v_lshl_add_u32 v{V_XR}, v{T2}, 4, v{T3}")
    R(f"v_add_u32 v{V_XR}, {s('m0x')}, v{V_XR}")
    R(f"v_xor_b32 v{V_XR+1}, 64, v{V_XR}")
    R(f"v_lshrrev_b32 v{T2}, 2, v{T1}")
    R(f"v_lshlrev_b32 v{T3}, 11, v{T0}")
    R(f"v_lshl_add_u32 v{T3}, v{T2}, 7, v{T3}")
    R(f"v_and_b32 v{T2}, 3, v{T1}")
    R(f"v_lshl_add_u32 v{T3}, v{T2}, 3, v{T3}")
    R(f"v_and_b32 v{T2}, 1, v{T0}")
    R(f"v_lshlrev_b32 v{T2}, 6, v{T2}")
    R(f"v_add_u32 v{T3}, v{T3}, v{T2}")
    R(f"v_bfe_u32 v{T2}, v{T1}, 3, 1")
    R(f"v_lshl_add_u32 v{V_A}, v{T2}, 5, v{T3}")
    R(f"v_xor_b32 v{V_A+1}, 32, v{V_A}")
    for r in range(1, 3):
        R(f"v_add_u32 v{V_A+2*r}, {r*49152}, v{V_A}")
        R(f"v_add_u32 v{V_A+2*r+1}, {r*49152}, v{V_A+1}")
    for i in range(6):
        R(f"v_xor_b32 v{V_AB+i}, 64, v{V_A+i}")

def setupB():
    G = []
    R = G.append
    L = V_LANE
    T0, T1, T2, T3 = 44, 45, 46, 47
    u0, u1, u2, u3, u4 = s('pst'), s('pld'), s('outb'), s('phi0'), s('spin')
    R(f"s_add_u32 {u0}, s16, 1024\ns_addc_u32 {u1}, s17, 0\ns_cmp_eq_u32 {s('th')}, 0\ns_cselect_b32 s36, s12, {u0}\ns_cselect_b32 s37, s13, {u1}\ns_mov_b32 s38, {DM*WROW}\ns_mov_b32 s39, 0x20000")
    R(f"s_lshl_b32 {s('cu')}, {s('mb')}, 5\ns_lshl_b32 {u0}, {s('sk')}, 3\ns_add_u32 {s('cu')}, {s('cu')}, {u0}\ns_add_u32 {s('cu')}, {s('cu')}, {s('jj')}")
    R(f"s_mul_i32 {u0}, {s('sk')}, 2304\ns_lshl_b32 {u1}, {s('jj')}, 5\ns_add_u32 {s('wqcol')}, {u0}, {u1}\ns_add_u32 {s('wqcol')}, {s('wqcol')}, 2048")
    R(f"s_mul_i32 {u1}, {s('kh')}, {32*WROW}\ns_add_u32 {s('wqcol')}, {s('wqcol')}, {u1}\ns_lshl_b32 {s('m0q')}, {s('wave')}, 10")
    R(f"v_mov_b32 v{V_T128H}, {OOB}\nv_cmp_gt_u32 vcc, 17, v{L}\nv_add_u32 v{V_T128B}, {64*128}, v{V_T128}\nv_mul_u32_u24 v{V_TROW}, {WROW}, v{L}\nv_cndmask_b32 v{V_T128B}, v{V_T128H}, v{V_T128B}, vcc")
    R(f"v_cmp_gt_u32 vcc, 8, v{L}\nv_add_u32 v{V_TROWB}, {64*WROW}, v{V_TROW}\ns_nop 0\nv_cndmask_b32 v{V_TROWB}, v{V_T128H}, v{V_TROWB}, vcc")
    R(f"v_cmp_gt_u32 vcc, 18, v{L}\ns_nop 1\nv_cndmask_b32 v{V_TROWQ}, v{V_T128H}, v{V_TROW}, vcc")
    R(f"v_cmp_gt_u32 vcc, 32, v{L}\ns_nop 1\nv_cndmask_b32 v{V_T128H}, v{V_T128H}, v{V_T128}, vcc")
    R(f"v_lshrrev_b32 v{T0}, 4, v{L}\nv_and_b32 v{T1}, 15, v{L}")
    R(f"v_lshrrev_b32 v{T2}, 1, v{T0}\nv_lshlrev_b32 v{T3}, 9, v{T2}")
    R(f"v_and_b32 v{T2}, 1, v{T0}\nv_lshl_add_u32 v{T3}, v{T2}, 7, v{T3}")
    R(f"v_lshrrev_b32 v{T2}, 2, v{T1}\nv_lshl_add_u32 v{T3}, v{T2}, 5, v{T3}")
    R(f"v_and_b32 v{T2}, 3, v{T1}\nv_lshl_add_u32 v{V_AQ}, v{T2}, 3, v{T3}")
    R(f"v_lshrrev_b32 v{T2}, 2, v{T1}\nv_lshl_add_u32 v{T2}, v{T0}, 2, v{T2}")
    R(f"v_mul_u32_u24 v{T2}, 288, v{T2}\nv_and_b32 v{T3}, 3, v{T1}")
    R(f"v_lshl_add_u32 v{T2}, v{T3}, 3, v{T2}\ns_mul_i32 {u0}, {s('kh')}, 9216\nv_add_u32 v{V_A2}, {u0}, v{T2}")
    R(f"v_add_u32 v{V_A2+1}, {3*WD_SLOT}, v{V_A2}\nv_add_u32 v{V_A2+2}, {6*WD_SLOT}, v{V_A2}")
    R(f"v_lshrrev_b32 v{T0}, 1, v{L}\nv_and_b32 v{T1}, 0x13, v{T0}")
    R(f"v_and_b32 v{T2}, 4, v{T0}\nv_lshl_or_b32 v{T1}, v{T2}, 1, v{T1}")
    R(f"v_and_b32 v{T2}, 8, v{T0}\nv_lshrrev_b32 v{T2}, 1, v{T2}")
    R(f"v_or_b32 v{T1}, v{T1}, v{T2}\nv_mul_u32_u24 v{T1}, {WROW}, v{T1}")
    R(f"v_and_b32 v{T2}, 1, v{L}\nv_lshl_add_u32 v{V_WQ}, v{T2}, 4, v{T1}")
    for ip in range(5):
        if ip < 4:
            R(f"s_lshl_b32 {u0}, {s('th')}, 8\nv_add_u32 v{T0}, {u0}, v{L}" + (f"\nv_add_u32 v{T0}, {64*ip}, v{T0}" if ip else ""))
        else:
            R(f"s_lshl_b32 {u0}, {s('th')}, 5\ns_add_u32 {u0}, {u0}, 512\nv_and_b32 v{T0}, 31, v{L}\nv_add_u32 v{T0}, {u0}, v{T0}")
        R(f"v_mul_u32_u24 v{T1}, 3641, v{T0}\nv_lshrrev_b32 v{T1}, 16, v{T1}")
        R(f"v_mul_u32_u24 v{T2}, 18, v{T1}\nv_sub_u32 v{T2}, v{T0}, v{T2}")
        R(f"v_mul_u32_u24 v{T1}, {XROW}, v{T1}\nv_lshl_add_u32 v{V_WD+ip}, v{T2}, 4, v{T1}" + (f"\nv_subrev_u32 v{V_WD+ip}, {ip*1024}, v{V_WD+ip}" if 0 < ip < 4 else ""))
    R(f"s_mul_i32 {u1}, {s('kh')}, 9216\ns_lshl_b32 {u2}, {s('th')}, 9\ns_add_u32 {u2}, {u2}, {u1}\ns_add_u32 {s('m0d5')}, {u2}, 8192\n"
      f"s_lshl_b32 {u2}, {s('th')}, 12\ns_add_u32 {s('m0d')}, {u1}, {u2}")
    R(f"v_lshlrev_b32 v{V_L16}, 4, v{L}\nv_lshlrev_b32 v{V_L8}, 3, v{L}")
    R(f"v_mov_b32 v{V_KA}, 0x{f2u(GA):08x}\ns_mov_b32 {s('kb')}, 0x{f2u(GB):08x}\nv_mov_b32 v{V_Z}, 0")
    R(f"s_lshl_b32 {s('pf')}, {s('cu')}, 7\ns_add_u32 {s('pf')}, {s('pf')}, {WS_F}\nv_mov_b32 v{V_PUBD}, v{V_PUB}")
    R(f"s_and_b32 {s('flagh')}, {s('cu')}, 0xf8\ns_lshl_b32 {u0}, {s('kh')}, 2\ns_add_u32 {s('flagh')}, {s('flagh')}, {u0}\n"
      f"s_lshl_b32 {s('flagh')}, {s('flagh')}, 7\ns_add_u32 {s('flagh')}, {s('flagh')}, {WS_F}\nv_min_u32 v{T0}, 3, v{L}")
    R(f"v_lshlrev_b32 v{T0}, 7, v{T0}\nv_add_u32 v{V_FH}, {s('flagh')}, v{T0}")
    R(f"s_lshl_b32 {u0}, {s('mb')}, 2\ns_add_u32 {u0}, {u0}, {s('sk')}\ns_lshl_b32 {u0}, {u0}, 2\n"
      f"s_add_u32 {u1}, {u0}, {s('wave')}\ns_mul_i32 {u1}, {u1}, {36*H_KS}\n"
      f"s_lshl_b32 {u2}, {s('jj')}, 14\ns_add_u32 {s('hst')}, {u1}, {u2}\n"
      f"s_lshr_b32 {u2}, {s('jj')}, 1\ns_add_u32 {u2}, {u2}, 32\ns_lshl_b32 {u2}, {u2}, 12\ns_add_u32 {s('hstq')}, {u1}, {u2}\n"
      f"s_and_b32 {u2}, {s('jj')}, 1\ns_lshl_b32 {u3}, {u2}, 9\ns_add_u32 {s('hstq')}, {s('hstq')}, {u3}\n"
      f"s_lshl_b32 {u2}, {u2}, 1\ns_add_u32 {u2}, {u2}, {s('th')}\n"
      f"s_add_u32 {u1}, {u0}, {u2}\ns_mul_i32 {u1}, {u1}, {36*H_KS}\n"
      f"s_lshl_b32 {u2}, {s('kh')}, 11\ns_sub_u32 {u3}, 2048, {u2}\n"
      f"s_lshl_b32 {u4}, {s('kh')}, 16\ns_add_u32 {u4}, {u4}, {u1}\n"
      f"s_add_u32 {s('hldA')}, {u4}, {u2}\ns_add_u32 {s('hldB')}, {u4}, {u3}\n"
      f"s_lshl_b32 {u4}, {s('kh')}, 13\ns_add_u32 {u4}, {u4}, {32*H_KS}\ns_add_u32 {u4}, {u4}, {u1}\n"
      f"s_add_u32 {s('hlqA')}, {u4}, {u2}\ns_add_u32 {s('hlqB')}, {u4}, {u3}")
    R(f"s_lshr_b32 {u0}, {s('jj')}, 1\ns_mul_i32 {u0}, {u0}, 288\n"
      f"s_mul_i32 {u1}, {s('sk')}, {1152*XROW}\ns_add_u32 {u0}, {u0}, {u1}\n"
      f"s_mul_i32 {u1}, {s('kh')}, {512*XROW}\ns_add_u32 {s('wd0')}, {u0}, {u1}\n"
      f"s_mul_i32 {u1}, {s('kh')}, {64*XROW}\ns_add_u32 {s('wdq')}, {u0}, {u1}\ns_add_u32 {s('wdq')}, {s('wdq')}, {1024*XROW}")
    return G

class Side:
    def __init__(self):
        self.q = []; self.m = 0; self.clock = 0.0; self.hi = []
    def add(self, ops):
        for o in ops: self.q.append((o[0], o[1], o[2] if len(o) > 2 else -1))
    def add_rated(self, ops, cost, earliest=None):
        st = max(self.clock, self.m if earliest is None else earliest)
        nv = sum(1 for o in ops if o[1] == 'v')
        k = 0
        for o in ops:
            nb = int(st + k * cost / nv)
            self.q.append((o[0], o[1], nb))
            if o[1] == 'v': k += 1
        self.clock = st + cost
    def add_hi(self, f): self.hi.append(f)
    def empty(self): return not self.q and not self.hi
    def take_gap(self, E):
        if self.hi:
            self.hi.pop(0)(E); return 2
        if not self.q: return 0
        f, kind, nb = self.q[0]
        if kind == 'v' and nb <= self.m:
            self.q.pop(0); f(E); return 2
        return 0
    def take_scalar(self, E):
        if self.q and self.q[0][1] == 's' and self.q[0][2] <= self.m + 2:
            f, _, _ = self.q.pop(0); f(E); return 1
        return 0
    def drain(self, E):
        while self.hi: self.hi.pop(0)(E)
        while self.q:
            f, kind, nb = self.q.pop(0)
            f(E)
            if kind == 's': E.raw("s_nop 0")

def kstep(E, st, side, mf, reads, side_gaps=(), cap_extra=0):
    reads = list(reads)
    n = len(mf)
    for i, m in enumerate(mf):
        E.raw(m)
        st.tick()
        side.m += 1
        cap = 2 + cap_extra
        if reads:
            E.ds(reads.pop(0)); cap -= 1
        elif i in side_gaps:
            u = side.take_gap(E)
            cap -= u
            if u: cap = min(cap, 0)
        if cap > 0:
            if (i + 1) in side_gaps or (i + 1 == n):
                cap -= side.take_scalar(E)
        if cap > 0:
            st.fill(E, cap)

def gemm1_mf(buf, ks, first, par=None):
    mf = []
    if par is None: par = ks & 1
    for f in range(4):
        grp, mat = f >> 1, f & 1
        a = vr(V_AR + 16 * par + 4 * f)
        for tt in range(4):
            mf.append(mfma(buf + (grp * 2 + mat) * 16 + tt * 4, a, xreg(ks, tt), first))
    return mf

XB = [0, 24576, 49152]
def issue_xp(E, c, hf, b):
    E.raw(f"s_add_u32 m0, {s('m0x')}, {XB[b]}")
    E.raw(f"s_add_u32 {s('so2')}, {s('xoff')}, {hf * 32 * XROW + c * 128}")
    for u in range(4):
        E.vmem(f"buffer_load_dwordx4 v{V_X+u}, {srd(SRD_X)}, {s('so2')} offen offset:{u*1024} lds", f"X{hf}_{c}")
def xp_ops(c, hf, b):
    ops = [((lambda E: (E.raw(f"s_add_u32 m0, {s('m0x')}, {XB[b]}"), E.raw(f"s_add_u32 {s('so')}, {s('xoff')}, {hf * 32 * XROW + c * 128}"))), 's')]
    for u in range(4):
        ops.append(((lambda E, u=u: E.vmem(f"buffer_load_dwordx4 v{V_X+u}, {srd(SRD_X)}, {s('so')} offen offset:{u*1024} lds", f"X{hf}_{c}")), 'v'))
    return ops
def read_xp(c, hf, b):
    return [(f"ds_read_b128 {xreg(2*c+h, 2*hf+tp)}, v{V_XR + h} offset:{XB[b] + tp * 2048}", f"xr{hf}_{c}") for h in range(2) for tp in range(2)]

def areads_half(ks, gp, par, tagn):
    out = []
    reg, kk = divmod(ks, 6)
    for f in range(4):
        grp, mat = f >> 1, f & 1
        d = V_AR + 16 * par + 4 * f
        base = (V_AB if gp else V_A) + 2 * reg + grp
        for sec in range(2):
            out.append((f"ds_read_b64_tr_b16 v[{d+2*sec}:{d+2*sec+1}], v{base} offset:{kk*W1_KS + mat*1024 + sec*512}", f"a{tagn}_{f}"))
    return out

def half_step(E, st, side, n, ks, gp, half, first, reads, xq, cap_extra=0, vm_ok=True):
    par = n & 1
    buf = V_BUF[half]
    i = 0
    for f in range(4):
        g_, mat = 2 * gp + (f >> 1), f & 1
        E.wait_dstag(f"a{n}_{f}")
        for tq in range(2):
            d = buf + ((g_ * 2 + mat) * 2 + tq) * 4
            E.raw(mfma(d, vr(V_AR + 16 * par + 4 * f), xreg(ks, 2 * half + tq), first))
            st.tick(); side.m += 1
            cap = 2 + cap_extra
            if reads:
                t_, tg = reads.pop(0); E.ds(t_, tg); cap -= 1
            if xq and i >= 2:
                t_, tg = xq.pop(0); E.ds(t_, tg); cap -= 1
            elif vm_ok and (i & 1) == 1:
                u = side.take_gap(E)
                if u: cap = 0
            if cap > 0: cap -= side.take_scalar(E)
            if cap > 0: st.fill(E, cap)
            i += 1

def l1_ops(c):
    ops = []
    for kk in range(3 * c, 3 * c + 3):
        a, b, d = w1_ops(1, kk)
        ops += [(a, 's'), (b, 'v'), (d, 'v')]
    return ops

def p0ab(E, st, side, G, opt):
    NA, NB, NC, ND = nonce_ops()
    seq = [(ks, gp) for ks in range(18) for gp in range(2)]
    xq = []
    b_issue = {8: 6, 11: 7, 14: 8, 17: 0}
    b_read = {10: 6, 13: 7, 16: 8}
    for n, (ks, gp) in enumerate(seq):
        if gp == 1 and ks % 3 == 2 and ks < 17:
            if ks == 8: E.wait_dstag("xr0_7")
            E.wait(vm=f"W0_{ks//3+1}", barrier=True)
        if gp == 0:
            if ks % 2 == 0: E.wait_dstag(f"xr0_{ks//2}")
            if 1 <= ks <= 5:
                E.wait_dstag(f"xr0_{ks}")
                issue_xp(E, ks + 3, 0, (ks + 3) % 3)
            if ks == 1: issue_w1_slot(E, 0, 2)
            if ks == 3: issue_w1_slot(E, 0, 3)
            if ks in b_issue:
                prev = {8: "xr0_8", 11: "xr1_6", 14: "xr1_7", 17: "xr1_8"}[ks]
                E.wait_dstag(prev)
                side.add(xp_ops(b_issue[ks], 1, 2))
            if ks == 11: st.flush(E)
            if ks == 12 and opt.get("touch", 1): side.add(touch_ops_wq())
            if ks == opt.get("txb", 6):
                E.raw(f"v_mov_b32 v{V_T0}, {OOB}\nv_cmp_gt_u32 vcc, 36, v{V_LANE}\ns_lshl_b32 {s('t0')}, {s('jj')}, 2\ns_add_u32 {s('t0')}, {s('t0')}, 32\ns_mul_i32 {s('t0')}, {s('t0')}, {XROW}")
                E.raw(f"v_cndmask_b32 v{V_T0}, v{V_T0}, v{V_T128}, vcc\ns_add_u32 {s('t0')}, {s('t0')}, {s('xoff')}")
                touch(E, V_T0, SRD_X, s('t0'))
            if ks == opt.get("tl1", 7):
                st.flush(E)
                if ks >= 8: side.add(touch_ops_w1(1))
                else: emit_ops(E, touch_ops_w1(1))
            if ks == 13: NA(E)
            E.stamp(f"P0k{ks}")
        if gp == 1 and ks == 8:
            for sl in (4, 5):
                for kk in range(3 * sl, 3 * sl + 3):
                    a, b, c = w1_ops(0, kk)
                    side.add([(a, 's'), (b, 'v'), (c, 'v')])
        if gp == 1 and ks <= 7:
            E.wait(vm=f"X0_{ks+1}")
            xq += read_xp(ks + 1, 0, (ks + 1) % 3)
        if gp == 1 and ks in b_read:
            E.wait(vm=f"X1_{b_read[ks]}"); xq += read_xp(b_read[ks], 1, 2)
        if n + 1 < len(seq): nks, ngp = seq[n + 1]
        else: nks, ngp = 12, 0
        reads = areads_half(nks, ngp, (n + 1) & 1, n + 1)
        half_step(E, st, side, n, ks, gp, 0, ks == 0, reads, xq, vm_ok=(ks >= 8), cap_extra=(2 if st.pending() else 0))
        assert not xq
    E.stamp("P0end")
    E.raw(f"s_add_u32 {s('t3')}, {s('hst')}, 0")
    E.raw(f"s_add_u32 {s('t2')}, {s('hst')}, {H_KS}")
    def hs_fn(tag):
        def f(E, pp, tt, base):
            E.vmem(f"buffer_store_dwordx4 {vr(base)}, v{V_L16}, {srd(SRD_W)}, {s('t3' if pp == 0 else 't2')} offen offset:{tt*1024} sc1", tag)
        return f
    G.nset = 2
    G.half_pass(V_BUF[0], 0, hs_fn("HS0"))
    G.nset = N_GSET; G.pairno = 0
    order = [(12 + p) % 18 for p in range(18)]
    seq = [(pos, gp) for pos in range(18) for gp in range(2)]
    n0 = 36
    issue = {2: [(2, 2, "xr1_0")], 3: [(1, 0, None)], 5: [(3, 2, "xr1_2")], 6: [(4, 1, None), (5, 0, "xr1_1")]}
    rd = {1: (0, 2), 4: (2, 2), 5: (1, 0), 7: (3, 2), 8: (4, 1), 9: (5, 0)}
    for m, (pos, gp) in enumerate(seq):
        n = n0 + m
        ks = order[pos]
        if gp == 0:
            if pos in (3, 6, 9, 12, 15):
                if pos == 12: E.wait_dstag("xr1_5"); E.wait_dstag("xr1_4")
                E.wait(barrier=True)
            if ks % 2 == 0: E.wait_dstag(f"xr1_{ks//2}")
            for c, b, tg in issue.get(pos, []):
                if tg: E.wait_dstag(tg)
                side.add(xp_ops(c, 1, b))
            if pos == 9: side.add(l1_ops(0))
            if pos == 12: side.add(l1_ops(1)); side.add(l1_ops(4))
            if pos == 15: side.add(l1_ops(2)); side.add(l1_ops(5))
            if pos == 14: NB(E)
        if gp == 1 and pos in rd:
            c, b = rd[pos]
            E.wait(vm=f"X1_{c}"); xq += read_xp(c, 1, b)
        if pos == 17 and gp == 1:
            E.wait(vm="W1_0", barrier=True)
            reads = [(t_, "p2a") for t_ in areads_w1(0, 0, par=(n + 1) & 1)]
        else:
            npos, ngp = seq[m + 1]
            reads = areads_half(order[npos], ngp, (n + 1) & 1, n + 1)
        half_step(E, st, side, n, ks, gp, 1, pos == 0, reads, xq, cap_extra=(1 if st.pending_cost() > 9.0 * (len(seq) - m) else 0))
        assert not xq
    nfl = st.flush(E)
    if nfl: print(f"; note: P0b GELU flush {nfl}", file=sys.stderr)
    E.stamp("P1end")
    G.half_pass(V_BUF[1], 1, hs_fn("HS1"))

def toggle_bases(E):
    for i in range(6):
        E.raw(f"v_xor_b32 v{V_A+i}, 64, v{V_A+i}")

def hstore_fn(p):
    def f(E, tt, base):
        E.vmem(f"buffer_store_dwordx4 {vr(base)}, v{V_L16}, {srd(SRD_W)}, {s('so2')} offen offset:{tt*1024} sc1", f"HS{p}")
    return f
def hstoreq_fn(E, tt, base):
    E.vmem(f"buffer_store_dwordx2 {vr(base, 2)}, v{V_L8}, {srd(SRD_W)}, {s('hstq')} offen offset:{tt*1024} sc1", "HS4")

def wq_ops(lo=0, hi=9):
    ops = []
    for i in range(lo, hi):
        def setup(E, i=i):
            dst = (SCRATCH + i * 4096) if (WQE and i < 4) else ((i - 4) * 4096 if WQE else i * 4096)
            E.raw(f"s_add_u32 m0, {s('m0q')}, {dst}")
            E.raw(f"s_add_u32 {s('so')}, {s('wqcol')}, {i * 64 * WROW}")
        def d(E): E.vmem(f"buffer_load_dwordx4 v{V_WQ}, {srd(SRD_Q)}, {s('so')} offen lds", "WQ")
        ops += [(setup, 's'), (d, 'v')]
    return ops

def build(opt):
    global OPT
    OPT = opt
    E = Emit()
    E.do_stamp = bool(opt.get("stamp"))
    if isinstance(opt.get("stamp"), str): E.stamp_sel = set(opt["stamp"].split("+"))
    global HSC, WQE
    HSC = "" if opt.get("hplain") else " sc1"
    WQE = bool(opt.get("wqe", 1))
    st = Stream()
    G = Gelu(st)
    side = Side()
    E.stamp("start")
    prologue(E, opt)
    TH2 = opt.get("th2", 0)
    coop = opt.get("coop", 0) if not TH2 else 0
    if coop == 1:
        coop_setup(E); coop_touch(E, 0)
    if TH2: issue_xp(E, 0, 0, 0)
    else:
        issue_x(E, 0); issue_x(E, 1)
    E.stamp("i1")
    if coop >= 2:
        coop_setup(E); E.raw(f"s_add_u32 {s('tA')}, {s('tA')}, {s('tB')}")
    prologue_w(E)
    issue_w1_slot(E, 0, 0)
    nonce_write(E)
    if coop == 1 or coop == 3: coop_touch(E, 1)
    if TH2:
        issue_xp(E, 1, 0, 1); issue_xp(E, 2, 0, 2)
    else:
        issue_x(E, 2); issue_x(E, 3)
    if coop == 3: coop_touch(E, 2)
    setupA(E)
    issue_w1_slot(E, 0, 1)
    if coop == 2: coop_touch(E, 1)
    if coop == 1 or coop == 2: coop_touch(E, 2)
    NCOMB = opt.get("ncomb", 8)
    if TH2:
        E.wait(vm="X0_0")
        E.stamp("x01")
        for t_, tg in read_xp(0, 0, 0): E.ds(t_, tg)
        E.wait(ds=0)
        issue_xp(E, 3, 0, 0)
        E.wait(vm="W0_0", barrier=True)
        for t_, tg in areads_half(0, 0, 0, 0): E.ds(t_, tg)
    else:
        E.wait(vm=["X0", "X1"])
        E.stamp("x01")
        for r in read_x(E, 0): E.ds(r)
        E.wait(ds=0)
        issue_x(E, 4); issue_x(E, 5)
        E.wait(vm="W0_0", barrier=True)
        for r in areads_w1(0, 0, par=0): E.ds(r)
    E.stamp("P0go")
    SG = (9, 11, 13)
    NA, NB, NC, ND = nonce_ops()
    prev = None
    setup_items = []
    for grp in setupB():
        prev = st.add(grp, min(2, grp.count("\n") + 1), [(prev, 0)] if prev else [])
        setup_items.append(prev)
    FULL = False
    l1_queued = 0
    p0_par = 0
    if TH2:
        p0ab(E, st, side, G, opt)
    else:
        steps = []
        for ks in range(18):
            steps.append(("A", ks))
            if ks < NCOMB: steps.append(("B", ks))
        def last_half(ks): return ("B", ks) if ks < NCOMB else ("A", ks)
        FULL = (NCOMB == 18)
        l1_queued = 0
        for n, (kind, ks) in enumerate(steps):
            par = n & 1
            bar = False; tags = []
            for c in range(1, 6):
                if (kind, ks) == last_half(3 * c - 1): bar = True; tags.append(f"W0_{c}")
            if FULL and (kind, ks) == ("B", 17): bar = True; tags.append("W1_0")
            E.wait(vm=(tags if tags else None), ds=0, barrier=bar)
            if bar and ks == 8:
                for sl in (4, 5):
                    for kk in range(3 * sl, 3 * sl + 3):
                        a, b, c = w1_ops(0, kk)
                        side.add([(a, 's'), (b, 'v'), (c, 'v')])
            if bar and ks >= 8:
                free = (ks + 1) // 3 if ks < NCOMB else min(NCOMB // 3, (ks + 1) // 3)
                free = min(free, 4 if ks < 14 else 6)
                while l1_queued < free:
                    for kk in range(3 * l1_queued, 3 * l1_queued + 3):
                        a, b, c = w1_ops(1, kk)
                        side.add([(a, 's'), (b, 'v'), (c, 'v')])
                    l1_queued += 1
            if kind == "A":
                if 1 <= ks <= 6:
                    issue_x(E, 2 * (ks + 2)); issue_x(E, 2 * (ks + 2) + 1)
                if ks == 1: issue_w1_slot(E, 0, 2)
                if ks == 3: issue_w1_slot(E, 0, 3)
                if ks == 11: st.flush(E)
                if ks == 12 and opt.get("tlb", 1): side.add(tlb_ops())
                if ks == 12 and opt.get("touch", 1):
                    side.add(touch_ops_wq())
                    if not FULL and not opt.get("tw1", 0): side.add(touch_ops_w1(1))
                if opt.get("tw1", 0) and ks == opt.get("tw1", 0):
                    assert setup_items[8].placed is not None, "touch registers not ready"
                    emit_ops(E, touch_ops_w1(1))
                if opt.get("tw45", 0) and ks == opt.get("tw45", 0):
                    assert setup_items[8].placed is not None, "touch registers not ready"
                    E.raw(f"v_mov_b32 v{V_T0}, {OOB}\nv_cmp_gt_u32 vcc, 24, v{V_LANE}\ns_and_b32 {s('t0')}, {s('mb')}, 3\ns_lshl_b32 {s('t0')}, {s('t0')}, 1\ns_add_u32 {s('t0')}, {s('t0')}, {s('kh')}")
                    E.raw(f"v_cndmask_b32 v{V_T0}, v{V_T0}, v{V_TROW}, vcc\ns_mul_i32 {s('t0')}, {s('t0')}, {24*WROW}\ns_add_u32 {s('t0')}, {s('t0')}, {s('w1col')}\ns_add_u32 {s('t0')}, {s('t0')}, {384*WROW}")
                    touch(E, V_T0, SRD_Q, s('t0'))
                if ks == 13: NA(E)
                if ks == 17 and not FULL: toggle_bases(E)
                E.stamp(f"P0k{ks}")
            if FULL and (kind, ks) == ("B", 15):
                NB(E)
            if FULL and (kind, ks) == ("A", 17 + 0): pass
            if n + 1 < len(steps):
                nk, nks = steps[n + 1]
                reads = areads_w1(0, nks, par=1 - par, alt=(nk == "B"))
            elif FULL:
                reads = areads_w1(0, 0, par=1 - par)
            else:
                reads = areads_w1(1, NCOMB, par=1 - par)
            if FULL and (kind, ks) == ("B", 17): NC(E)
            mf = gemm1_mf(V_BUF[0 if kind == "A" else 1], ks, ks == 0, par=par)
            if (kind, ks) == last_half(ks) and ks <= 7:
                xr = read_x(E, ks + 1)
                for i, m in enumerate(mf):
                    E.raw(m); st.tick()
                    if i < 8: E.ds(reads[i])
                    else:
                        if i == 8: E.wait(vm=[f"X{2*(ks+1)}", f"X{2*(ks+1)+1}"])
                        E.ds(xr[i - 8])
                    st.fill(E, 1)
            else:
                kstep(E, st, side, mf, reads, side_gaps=(8, 9, 10, 11, 12, 13, 14, 15) if ks >= 8 else ())
        st.flush(E)
        p0_par = len(steps) & 1
        E.stamp("P0end")
    if opt.get("abl") == "p1": E.raw("; MARK_ABL")
    RATE = float(opt.get("rate", 3.8))
    PB, PC, PD = opt.get("PB", 2), opt.get("PC", 9), opt.get("PD", 13)
    PUB4, PUB5 = opt.get("pub4", 3), opt.get("pub5", 6)
    def plan_tail():
        G2 = 432
        items = []
        if WQE: items.append(("WQ", wq_ops(4, 9), 20 * RATE, 32, 272 - 30))
        else: items.append(("WQ", wq_ops(), 36 * RATE, 80, 272 - 30))
        de = {0: 128, 1: 128, 2: 176, 3: 224, 4: 272, 5: 272, 6: 424, 7: 424}
        for u in range(18):
            e = de[u] if u < 8 else G2 + 36 * (u - 7)
            dl = 424 if u == 0 else G2 + 36 * (u - 1) + 24
            items.append((f"D{u}", wd_ops(u), 6.15 * RATE, e, dl))
        for u in range(18):
            if u <= 6: e = 288 + 8 * (u + 1) + 2
            else: e = G2 + 36 * (u - 6)
            if 8 <= u <= 11: e = max(e, G2 + 36 * PB)
            if 12 <= u <= 15: e = max(e, G2 + 36 * PC)
            if u >= 16: e = max(e, G2 + 36 * PD)
            dl = G2 + 36 * u
            if u >= 16: dl = G2 + 36 * (u - OPT.get("hlead", 2))
            items.append((f"H{u}", h_ops(u), 4 * RATE, e, dl))
        clock = 32 if WQE else 80
        order = []
        rem = list(items)
        while rem:
            legal = [it for it in rem if it[3] <= clock]
            if not legal:
                clock = min(it[3] for it in rem); continue
            it = min(legal, key=lambda x: x[4])
            rem.remove(it)
            order.append((it, clock))
            if clock + it[2] > it[4] and not it[0].startswith("H1"): print(f"; plan: {it[0]} start {clock:.0f} end {clock+it[2]:.0f} deadline {it[4]} LATE", file=sys.stderr)
            clock += it[2]
        side.clock = 0
        for it, c in order:
            side.add_rated(it[1], it[2], earliest=c)
    if FULL:
        E.wait(ds=0); ND(E)
        E.raw(f"s_add_u32 {s('so2')}, {s('hst')}, 0")
        G.full_pass(V_BUF[0], hstore_fn(0))
        st.flush(E)
        E.stamp("P1end")
    for p in ((2, 3) if (FULL or TH2) else (1, 2, 3)):
        line, ph = p >> 1, p & 1
        buf = V_BUF[p & 1]
        E.raw(f"s_add_u32 {s('so2')}, {s('hst')}, {(p - 1) * H_KS}")
        if not (TH2 and p == 2): G.full_pass(V_BUF[(p - 1) & 1], hstore_fn(p - 1))
        if p == 3:
            assert side.empty()
            side.m = 0
            plan_tail()
        for ks in range(NCOMB if p == 1 else 0, 18):
            par = (ks & 1) if p > 1 else ((p0_par + ks - NCOMB) & 1)
            bar = (ks % 3 == 2)
            tags = []
            if bar:
                if p == 1 and ks == 17: tags.append("W1_0")
                if p == 2 and ks < 17:
                    if opt.get("p2bar", 0):
                        if ks == 2: tags += ["W1_1", "W1_2"]
                        elif ks == 8: tags += ["W1_3", "W1_4", "W1_5"]
                        else: bar = False
                    else: tags.append(f"W1_{ks//3+1}")
                if p == 3 and ks == 17: tags.append("WQ")
                if p >= 2 and ks == 2: tags.append(f"HS{p-2}")
                if p == 2 and ks == 17: bar = False
            if p == 1 and ks == 14:
                NB(E)
            E.wait(vm=(tags if tags else None), ds=0, barrier=bar)
            if p == 1 and ks == 14: NC(E)
            if p == 1 and ks == 15: ND(E)
            if bar:
                c = ks // 3
                if p >= 2 and ks == 2:
                    side.add_hi(publish_op(p - 1))
                    if opt.get("touch", 1):
                        if not TH2: side.add_hi(selftouch_op(p - 2))
                        elif p == 3: side.add_hi(selftouch_op(0)); side.add_hi(selftouch_op(1))
                    if TH2 and p == 2: side.add(l1_ops(3))
                if p == 1 and c >= l1_queued:
                    for kk in range(3 * c, 3 * c + 3):
                        a, b, d = w1_ops(1, kk)
                        side.add([(a, 's'), (b, 'v'), (d, 'v')])
            if p == 2 and ks == 6 and opt.get("touch", 1): side.add(touch_ops_wd())
            if p == 2 and ks == 9 and WQE: side.add(wq_ops(0, 4))
            if p == 3 and ks == 17 and WQE: E.raw(f"v_add_u32 v{V_AQ}, {SCRATCH}, v{V_AQ}")
            if p == 3 and ks == 15: side.add_hi(poll_issue("a"))
            if ks == 17 and p < 3: toggle_bases(E)
            if ks < 17: reads = areads_w1(ph, ks + 1, par=1 - par)
            elif p < 3: reads = areads_w1(1 - ph, 0, par=1 - par)
            else: reads = areads_q(0, 0)
            sg = SG
            if p == 3 and ks >= 5: sg = (8, 9, 11, 13, 15)
            kstep(E, st, side, gemm1_mf(buf, ks, ks == 0 and not (p == 1 and NCOMB > 0), par=par), reads, side_gaps=sg,
                  cap_extra=(1 if (p == 1 and NCOMB > 0 and st.pending_cost() > 19 * (17 - ks)) else 0))
        n = st.flush(E)
        if n: print(f"; note: pass {p}: GELU flush {n} gaps", file=sys.stderr)
        if p == 2: assert side.empty(), f"side not empty after pass {p}"
        E.stamp(f"P{p}end")
    E.raw(f"s_add_u32 {s('so2')}, {s('hst')}, {3 * H_KS}")
    G.full_pass(V_BUF[1], hstore_fn(3))
    bufq = V_BUF[0]
    for ks in range(18):
        bar = ks in (3, 17)
        tags = []
        if ks == 3: tags.append("HS2")
        if ks == 17: tags.append("D0")
        E.wait(vm=(tags if tags else None), ds=0, barrier=bar)
        if ks == 3:
            side.add_hi(publish_op(3))
            if opt.get("touch", 1): side.add_hi(selftouch_op(2))
        if ks == 1:
            poll_check(E, "a", 2)
        if ks == 7 and WQE: E.raw(f"v_subrev_u32 v{V_AQ}, {SCRATCH}, v{V_AQ}")
        mf = []
        for mat in range(2):
            a = vr(V_AR + 16 * (ks & 1) + 4 * mat)
            for tt in range(4):
                mf.append(mfma(bufq + mat * 16 + tt * 4, a, xreg(ks, tt), ks == 0))
        reads = areads_q(ks + 1, (ks + 1) & 1) if ks < 17 else areads_g2(0, 0, 0)
        kstep(E, st, side, mf, reads, side_gaps=(4, 5, 6, 7) if ks < 17 else (6, 7), cap_extra=opt.get("capq", 1))
    if opt.get("stop") == "g1":
        st.flush(E)
        G.quarter(bufq, hstoreq_fn)
        st.flush(E)
        side.q = []; side.hi = []
        E.wait_all()
        return finish(E)
    E.stamp("PQend")
    if opt.get("abl", "g2") == "g2": E.raw("; MARK_ABL")
    E.skew_on = True
    qadded = False
    sub_par = 0
    for t in range(18):
        for sub in range(3):
            tags = []
            bar = (sub == 2)
            if sub == 0: tags.append(f"H{t}")
            if bar and t < 17: tags.append(f"D{t+1}")
            pub = None
            if bar and t == PUB4: tags.append("HS3"); pub = 4
            if bar and t == PUB5: tags.append("HS4"); pub = 5
            E.wait(vm=(tags if tags else None), ds=0, barrier=bar)
            if pub:
                side.add_hi(publish_op(pub))
                if pub == 4 and opt.get("touch", 1): side.add_hi(selftouch_op(3))
                if pub == 5 and opt.get("touchq", 1): side.add_hi(selftouchq_op())
            if sub == 0:
                if not qadded and st.pending() == 0:
                    G.quarter(bufq, hstoreq_fn); qadded = True
                if t == PB - 1: side.add_hi(poll_issue("b"))
                if t == PB: poll_check(E, "b", 3)
                if t == PC - 1: side.add_hi(poll_issue("c"))
                if t == PC: poll_check(E, "c", 4)
                if t == PD - 1: side.add_hi(poll_issue("d"))
                if t == PD: poll_check(E, "d", 5)
            mf = []
            for k in range(3):
                dt = 3 * sub + k
                a = vr(V_AR + 12 * sub_par + 4 * k)
                for tt in range(4):
                    mf.append(mfma(acc2(dt, tt), a, ar(hreg(t, tt)), t == 0, "a"))
            if sub < 2: reads = areads_g2(t, sub + 1, 1 - sub_par)
            elif t < 17: reads = areads_g2(t + 1, 0, 1 - sub_par)
            else: reads = []
            if t == 12 and sub == 0:
                prev = None
                for grp in final_setup(E):
                    prev = st.add(grp, 2, [(prev, 1)] if prev else [])
            if t == 17 and sub >= 1:
                for dt in range(3 * (sub - 1), 3 * sub):
                    for j in range(2):
                        st.add((lambda E, dt=dt, j=j: E.ds(f"ds_write_b128 v{V_RED}, {ar(acc2(dt, 2 + j))} offset:{(2*dt+j)*1024}")), 2, [])
                    for x in keep_reads(dt): st.add(x, 1, [])
                st.tick(); st.tick()
                E.raw("s_nop 3")
            kstep(E, st, side, mf, reads, side_gaps=(6, 7, 8, 9, 10, 11), cap_extra=(opt.get("capg", 1) if t < PUB5 else 0))
            if t == 17 and sub == 2: st.flush(E)
            sub_par = 1 - sub_par
        if E.stamp_sel is not None or t in (2, 5, 8, 11, 14, 17): E.stamp(f"G2t{t}")
        if t == PUB4 - 1:
            if E.vm.count("HS3") < 4: print(f"; note: flushing GELU(P3) at t={t}: {st.pending_cost()} slots", file=sys.stderr);
            while E.vm.count("HS3") < 4:
                st.tick(); E.raw("s_nop 0"); st.fill(E, 2)
        if t == PUB5 - 1:
            if not qadded:
                st.flush(E); G.quarter(bufq, hstoreq_fn); qadded = True
            if st.pending(): print(f"; note: flushing GELU(PQ) at t={t}: {st.pending_cost()} slots", file=sys.stderr)
            st.flush(E)
    assert side.empty(), "side ops left"
    E.raw("; MARK_END")
    E.skew_on = False
    final(E, opt)
    return finish(E)

FIRST = [0, 5, 10, 14]
CNT = [5, 5, 4, 4]
RED = 73728
V_PUB2 = 2
KEEP = 128
RCV = 40

def final_setup(E):
    T0, T1 = V_T0, V_T1
    L = V_LANE
    G = []
    G.append(f"s_mul_i32 {s('t0')}, {s('wave')}, 18432\ns_add_u32 {s('t0')}, {s('t0')}, {RED}\nv_add_u32 v{V_RED}, {s('t0')}, v{V_L16}")
    G.append(f"s_xor_b32 {s('t1')}, {s('wave')}, 2\ns_mul_i32 {s('t1')}, {s('t1')}, 18432\ns_add_u32 {s('t1')}, {s('t1')}, {RED}\nv_add_u32 v{V_RED2}, {s('t1')}, v{V_L16}")
    G.append(f"s_lshl_b32 {s('t0')}, {s('mb')}, 3\ns_add_u32 {s('t0')}, {s('t0')}, {s('jj')}\ns_lshl_b32 {s('t0')}, {s('t0')}, 2\ns_add_u32 {s('t0')}, {s('t0')}, {s('wave')}\n"
             f"s_mul_i32 {s('t0')}, {s('t0')}, {16*5120}\ns_add_u32 {s('t0')}, {s('t0')}, {WS_P}\n"
             f"s_mul_i32 {s('t1')}, {s('sk')}, 5120\ns_add_u32 {s('pst')}, {s('t0')}, {s('t1')}\n"
             f"s_mul_i32 {s('t1')}, {s('sk')}, {4*5120}\ns_add_u32 {s('pld')}, {s('t0')}, {s('t1')}")
    G.append(f"s_lshl_b32 {s('t0')}, {s('mb')}, 8\ns_and_b32 {s('t1')}, {s('jj')}, 1\ns_lshl_b32 {s('t1')}, {s('t1')}, 7\ns_add_u32 {s('t0')}, {s('t0')}, {s('t1')}\n"
             f"s_lshl_b32 {s('t1')}, {s('th')}, 6\ns_add_u32 {s('t0')}, {s('t0')}, {s('t1')}\ns_lshl_b32 {s('t1')}, {s('kh')}, 5\ns_add_u32 {s('t0')}, {s('t0')}, {s('t1')}\n"
             f"s_mul_i32 {s('t0')}, {s('t0')}, {XROW}\ns_lshr_b32 {s('t1')}, {s('jj')}, 1\ns_mul_i32 {s('t1')}, {s('t1')}, 288\ns_add_u32 {s('outb')}, {s('t0')}, {s('t1')}")
    G.append(f"v_and_b32 v{T0}, 15, v{L}\nv_mul_u32_u24 v{T0}, {XROW}, v{T0}")
    G.append(f"v_lshrrev_b32 v{T1}, 4, v{L}\nv_lshl_add_u32 v{V_OUT}, v{T1}, 3, v{T0}")
    G.append(f"s_lshl_b32 {s('t0')}, {s('mb')}, 5\ns_add_u32 {s('t0')}, {s('t0')}, {s('jj')}\ns_lshl_b32 {s('t0')}, {s('t0')}, 2\ns_add_u32 {s('t0')}, {s('t0')}, {s('wave')}\n"
             f"s_lshl_b32 {s('t0')}, {s('t0')}, 7\ns_add_u32 {s('t0')}, {s('t0')}, {WS_F + 32768}\n"
             f"s_lshl_b32 {s('t1')}, {s('sk')}, 12\ns_add_u32 {s('pf2')}, {s('t0')}, {s('t1')}\n"
             f"v_min_u32 v{T0}, 3, v{L}\n"
             f"v_lshlrev_b32 v{T0}, 12, v{T0}\nv_add_u32 v{V_FO}, {s('t0')}, v{T0}")
    G.append(f"v_cmp_eq_u32 vcc, 0, v{L}\nv_mov_b32 v{T0}, {OOB}\nv_mov_b32 v{T1}, 0\ns_nop 0\nv_cndmask_b32 v{V_PUB2}, v{T0}, v{T1}, vcc")
    return G

def red_write(E, dt):
    for j in range(2):
        E.ds(f"ds_write_b128 v{V_RED}, {ar(acc2(dt, 2 + j))} offset:{(2*dt+j)*1024}")
def keep_reads(dt):
    return [f"v_accvgpr_read_b32 v{KEEP + (2*dt+j)*4 + r}, a{acc2(dt, j) + r}" for j in range(2) for r in range(4)]

def final(E, opt):
    R = E.raw
    R("s_nop 7")
    for dt in (6, 7, 8):
        red_write(E, dt)
        for x in keep_reads(dt): R(x)
    E.wait(ds=0, barrier=True)
    for ph in range(18):
        E.ds(f"ds_read_b128 {vr(RCV + 4*ph)}, v{V_RED2} offset:{ph*1024}")
    base_vm = list(E.vm); base_done = E.vm_done; base_ds = E.ds_out
    labs = [E.label(f"fin{k}") for k in range(4)]
    end = E.label("finend")
    R(f"s_cmp_eq_u32 {s('sk')}, 1\ns_cbranch_scc1 {labs[1]}\ns_cmp_eq_u32 {s('sk')}, 2\ns_cbranch_scc1 {labs[2]}\ns_cmp_eq_u32 {s('sk')}, 3\ns_cbranch_scc1 {labs[3]}")
    for sv in range(4):
        E.vm = list(base_vm); E.vm_done = base_done; E.ds_out = base_ds
        R(f"{labs[sv]}:")
        own = list(range(FIRST[sv], FIRST[sv] + CNT[sv]))
        XBF = OPT.get("xbf", 0)
        order = [ph for ph in range(18) if ph not in own] + own
        done_ds = -1
        for n, ph in enumerate(order):
            need = ph
            if need > done_ds:
                left = 17 - need
                E.wait(ds=min(left, E.ds_out))
                done_ds = need
            for r in range(4):
                R(f"v_add_f32 v{KEEP + 4*ph + r}, v{KEEP + 4*ph + r}, v{RCV + 4*ph + r}")
            if ph not in own:
                dest = max(d for d in range(4) if FIRST[d] <= ph)
                sig = ph - FIRST[dest]
                if not XBF:
                    R(f"s_add_u32 {s('so')}, {s('pst')}, {dest*4*5120 + sig*1024}")
                    E.vmem(f"buffer_store_dwordx4 {vr(KEEP + 4*ph)}, v{V_L16}, {srd(SRD_W)}, {s('so')} offen sc1", "PSx")
                else:
                    pb = RCV + 4 * (ph - (sig & 1)) + 2 * (sig & 1)
                    R(f"v_cvt_pk_bf16_f32 v{pb}, v{KEEP+4*ph}, v{KEEP+4*ph+1}")
                    R(f"v_cvt_pk_bf16_f32 v{pb+1}, v{KEEP+4*ph+2}, v{KEEP+4*ph+3}")
                    lastsig = CNT[dest] - 1
                    if (sig & 1) == 1 or sig == lastsig:
                        base = RCV + 4 * (ph - (sig & 1))
                        R(f"s_add_u32 {s('so')}, {s('pst')}, {dest*4*5120 + (sig >> 1)*1024}")
                        E.vmem(f"buffer_store_dwordx4 {vr(base)}, v{V_L16}, {srd(SRD_W)}, {s('so')} offen sc1", "PSx")
        E.stamp("F_red")
        R("s_waitcnt vmcnt(0)")
        E.vm_done = len(E.vm)
        E.stamp("F_ps")
        publish_op(6, V_PUB2, "pf2")(E)
        poll_check(E, "f", 6, voff=V_FO, issued=False)
        E.vm_done = len(E.vm)
        E.stamp("F_poll")
        srcs = [k for k in range(4) if k != sv]
        LD = RCV
        if not XBF:
            for sig in range(CNT[sv]):
                for n, src in enumerate(srcs):
                    R(f"s_add_u32 {s('so')}, {s('pld')}, {src*5120 + sig*1024}")
                    E.vmem(f"buffer_load_dwordx4 {vr(LD + (sig*3+n)*4)}, v{V_L16}, {srd(SRD_W)}, {s('so')} offen sc1", f"PL{sig}" if n == 2 else "PLx")
        else:
            npair = (CNT[sv] + 1) // 2
            for k in range(npair):
                for n, src in enumerate(srcs):
                    R(f"s_add_u32 {s('so')}, {s('pld')}, {src*5120 + k*1024}")
                    E.vmem(f"buffer_load_dwordx4 {vr(LD + (k*3+n)*4)}, v{V_L16}, {srd(SRD_W)}, {s('so')} offen sc1", f"PL{k}" if n == 2 else "PLx")
        for sig in range(CNT[sv]):
            ph = FIRST[sv] + sig
            dt, j = ph >> 1, ph & 1
            R(f"s_add_u32 {s('so')}, {s('outb')}, {dt*32 + j*16*XROW}")
            b = KEEP + 4 * ph
            if not XBF:
                E.wait(vm=f"PL{sig}")
                for r in range(4):
                    a = [LD + (sig*3+n)*4 + r for n in range(3)]
                    R(f"v_add_f32 v{a[0]}, v{a[0]}, v{a[1]}")
                    R(f"v_add_f32 v{b+r}, v{b+r}, v{a[2]}")
                    R(f"v_add_f32 v{b+r}, v{b+r}, v{a[0]}")
            else:
                E.wait(vm=f"PL{sig >> 1}")
                TMP = 100
                for n in range(3):
                    for h in range(2):
                        src_r = LD + ((sig >> 1)*3+n)*4 + 2*(sig & 1) + h
                        R(f"v_lshlrev_b32 v{TMP}, 16, v{src_r}")
                        R(f"v_and_b32 v{TMP+1}, 0xffff0000, v{src_r}")
                        R(f"v_add_f32 v{b+2*h}, v{b+2*h}, v{TMP}")
                        R(f"v_add_f32 v{b+2*h+1}, v{b+2*h+1}, v{TMP+1}")
            R(f"v_cvt_pk_bf16_f32 v{b}, v{b}, v{b+1}")
            R(f"v_cvt_pk_bf16_f32 v{b+1}, v{b+2}, v{b+3}")
            E.vmem(f"buffer_store_dwordx2 {vr(b, 2)}, v{V_OUT}, {srd(SRD_O)}, {s('so')} offen{' sc1' if OPT.get('outsc1', 0) else ''}", "OUT")
        if sv < 3: R(f"s_branch {end}")
    R(f"{end}:")

def ablate(E):
    if not any(OPT.get(k) for k in ("x_nobar", "x_novm", "x_nogelu", "x_nods", "x_nowait", "x_nod", "x_noh", "x_novmw")): return
    out = []; on = False
    for l in E.L:
        if l.startswith("; MARK_ABL"): on = True
        if l.startswith("; MARK_END"): on = False
        if on:
            if OPT.get("x_nobar") and l.startswith("s_barrier"): continue
            if OPT.get("x_novm") and l.startswith("buffer_"): continue
            if OPT.get("x_novm") and l.startswith("s_waitcnt vmcnt"):
                l = re.sub(r"vmcnt\(\d+\) ?", "", l)
                if l.strip() == "s_waitcnt": continue
            if OPT.get("x_nod") and l.startswith("buffer_load_dwordx4 v") and l.endswith("lds"): continue
            if OPT.get("x_noh") and l.startswith("buffer_load_dwordx") and " a[" in l: continue
            if OPT.get("x_novmw") and l.startswith("s_waitcnt vmcnt"):
                l = re.sub(r"vmcnt\(\d+\) ?", "", l)
                if l.strip() == "s_waitcnt": continue
            if OPT.get("x_nogelu") and re.match(r"v_(mul_f32|fma_f32|exp_f32|rcp_f32|add_f32|cvt_pk)", l): continue
            if OPT.get("x_nods") and l.startswith("ds_read"): continue
        out.append(l)
    E.L = out

def finish(E):
    ablate(E)
    if E.do_stamp:
        E.raw("s_waitcnt vmcnt(0)")
        E.stamp("end")
        E.raw(f"s_lshl_b32 {s('t0')}, s2, 2\ns_add_u32 {s('t0')}, {s('t0')}, {s('wave')}\ns_lshl_b32 {s('t0')}, {s('t0')}, 7\ns_add_u32 {s('t0')}, {s('t0')}, {60 << 20}")
        E.raw(f"v_mov_b32 v{V_T1}, 0")
        for i in range(len(E.stamps)):
            E.raw(f"v_mov_b32 v{V_T0}, s{86+i}")
            E.raw(f"buffer_store_dword v{V_T0}, v{V_T1}, {srd(SRD_W)}, {s('t0')} offen offset:{4*i}")
        E.raw("s_waitcnt vmcnt(0)")
        print("STAMPS=" + ",".join(E.stamps), file=sys.stderr)
    E.raw("L_end:")
    E.raw("s_endpgm")
    for x in E.slow: E.raw(x)
    E.raw("s_endpgm")
    E.raw("L_codeend:")
    return E

def emit_file(opt):
    E = build(opt)
    hdr = open("standalone__glu_gated_geglu__prompt.s.ref").read().split("\n") if opt.get("hdr", True) else []
    out = []
    for l in hdr:
        if l.startswith("; @launch") or l.startswith("; Override") or l.startswith("; grid=") : continue
        if l.startswith(";"): out.append(l)
        else: break
    out.append(f"; @launch grid=(256,1,1) block=(256,1,1) lds={LDS_BYTES}")
    out.append('.amdgcn_target "amdgcn-amd-amdhsa--gfx950"')
    out.append(".text")
    out.append(f".globl {KNAME}")
    out.append(".p2align 8")
    out.append(f".type {KNAME},@function")
    out.append(f"{KNAME}:")
    out += E.L
    out.append(".fill 64, 4, 0xbf800000")
    out.append('.section .rodata,"a"')
    out.append(".p2align 6")
    out.append(f".amdhsa_kernel {KNAME}")
    out += ["  .amdhsa_next_free_vgpr 512", "  .amdhsa_next_free_sgpr 102", "  .amdhsa_accum_offset 256",
            "  .amdhsa_group_segment_fixed_size 0", "  .amdhsa_kernarg_size 56", "  .amdhsa_user_sgpr_count 2",
            "  .amdhsa_user_sgpr_kernarg_segment_ptr 1", "  .amdhsa_system_sgpr_workgroup_id_x 1",
            "  .amdhsa_float_denorm_mode_32 3",
            ".end_amdhsa_kernel"]
    return "\n".join(out) + "\n"

if __name__ == "__main__":
    opt = {}
    path = sys.argv[1] if len(sys.argv) > 1 else "k.s"
    for a in sys.argv[2:]:
        k, v = a.split("=")
        opt[k] = int(v) if v.lstrip("-").isdigit() else v
    open(path, "w").write(emit_file(opt))
```

```python
import sys, struct, re

KNAME = "standalone__glu_gated_geglu__prompt_kernel"
HSC = " sc1"
WQE = True
OPT = {}

DM, DF, NTOK = 576, 4608, 2048
XROW = DM * 2
WROW = DF * 2
LDS_BYTES = 163840
W1_KS = 8192
XST = 98304
WD_SLOT = 18432
SCRATCH = 147456
H_KS = 4096
WS_P = 32 << 20
WS_F = 56 << 20
WS_SIZE = 64 << 20
OOB = 0x40000000
GA = -2.0 * 0.7978845608028654 * 1.4426950408889634
GB = GA * 0.044715
SPIN_MAX = 400000

def f2u(x): return struct.unpack('<I', struct.pack('<f', x))[0]

S = {}
SRD_X, SRD_G, SRD_U, SRD_D, SRD_W, SRD_O, SRD_F, SRD_Q = 8, 12, 16, 20, 24, 28, 32, 36
def srd(b): return f"s[{b}:{b+3}]"
_n = 40
for nm in ["wave", "mb", "sk", "jj", "cu", "th", "kh", "xoff", "w1col", "wqcol", "hst", "hstq", "hldA", "hldB", "hlqA", "hlqB",
           "wd0", "wdq", "flagh", "t0", "t1", "t2", "t3", "t4", "t5", "m0w", "m0x", "m0q", "m0d", "m0d5", "kb", "pst", "pld",
           "outb", "spin", "phi0", "so", "so2", "pf", "tA", "tB", "pf2", "nonce"]:
    S[nm] = _n; _n += 1
assert _n <= 100
def s(n): return f"s{S[n]}"

V_LANE = 1
V_W1 = 2
V_WQ = 3
V_A = 4
V_AQ = 10
V_L16 = 11
V_L8 = 12
V_KA = 13
V_PUB = 14
V_ONE = 15
V_FL = 16
V_T0 = 17; V_T1 = 18; V_T2 = 19; V_T3 = 20
V_X = 21
V_XR = 25
V_WD = 27
V_HS = 32
V_GT = 40
N_GSET = 4
V_T128 = 56; V_T128H = 57; V_T128B = 58
V_TROW = 40; V_TROWB = 41; V_TROWQ = 42
V_PUBD = 43; V_NA = 44; V_NB = 45
V_FH = 59
V_A2 = 60
V_Z = 63
V_XO = 64
V_AR = 96
V_BUF = [128, 192]
V_FO = 21; V_OUT = 22; V_RED = 23; V_RED2 = 24

def xreg(ks, tt):
    i = ks * 4 + tt
    if i < 64: return f"a[{4*i}:{4*i+3}]"
    b = V_XO + 4 * (i - 64)
    return f"v[{b}:{b+3}]"
def hreg(t, tt):
    b = 16 * (t % 7) + 4 * tt
    return b
def acc2(dt, tt):
    b = 112 + 16 * dt + 4 * tt
    return b

def expected_count(tag):
    if tag.startswith("POLL") or tag.startswith("PUB"): return 1
    if tag == "WQ": return 9
    if tag == "NONCE": return 1
    if tag == "TCH": return -1
    if tag == "PS": return 18
    if tag in ("PSx", "PLx", "OUT"): return -1
    if tag.startswith("PL"): return 1
    if tag.startswith("HS"): return 4
    if tag[0] == "X": return 4
    if tag[0] == "W": return 6
    if tag[0] == "D": return 5
    if tag[0] == "H": return 4 if int(tag[1:]) < 16 else 8
    raise KeyError(tag)

class Emit:
    def __init__(self):
        self.L = []
        self.vm = []
        self.vm_done = 0
        self.dsq = []
        self.ds_done = 0
        self.slow = []
        self.nlab = 0
        self.do_stamp = False
        self.events = set()
        self.skew_on = False
        self.stamps = []
        self.stamp_sel = None
    def raw(self, t):
        for x in t.split("\n"):
            self.L.append(x)
    def vmem(self, text, tag):
        self.L.append(text)
        self.vm.append(tag)
    @property
    def ds_out(self): return len(self.dsq) - self.ds_done
    @ds_out.setter
    def ds_out(self, n):
        if n == 0: self.ds_done = len(self.dsq)
        elif n < self.ds_out: self.ds_done = len(self.dsq) - n
        else:
            self.ds_done = len(self.dsq) - n
    def ds(self, text, tag=None):
        if self.ds_out >= 15:
            self.L.append("s_waitcnt lgkmcnt(10)")
            self.ds_out = 10
        self.L.append(text)
        self.dsq.append(tag)
    def wait_dstag(self, tag):
        idx = max(i for i, t in enumerate(self.dsq) if t == tag)
        if idx < self.ds_done: return
        n = min(len(self.dsq) - 1 - idx, 15)
        self.L.append(f"s_waitcnt lgkmcnt({n})")
        self.ds_done = len(self.dsq) - n
    def _vmN(self, tags):
        idx = -1
        for tg in tags:
            exp = expected_count(tg)
            got = self.vm.count(tg)
            if exp < 0: continue
            assert got == exp, f"wait on {tg}: {got} ops issued, expected {exp}"
        for i, t in enumerate(self.vm):
            if t in tags: idx = i
        assert idx >= 0, f"no vmem op with tags {tags}"
        if idx < self.vm_done: return None
        return min(len(self.vm) - 1 - idx, 63)
    def wait(self, vm=None, ds=None, barrier=False):
        parts = []
        if vm is not None:
            if isinstance(vm, str): vm = [vm]
            n = self._vmN(set(vm))
            if n is not None:
                parts.append(f"vmcnt({n})")
                self.vm_done = max(self.vm_done, len(self.vm) - n)
        if ds is not None and self.ds_out > ds:
            parts.append(f"lgkmcnt({ds})")
            self.ds_out = ds
        if parts:
            self.L.append("s_waitcnt " + " ".join(parts))
        if barrier:
            self.L.append("s_barrier")
            if OPT.get("skew") and self.skew_on:
                for k in range(1, 4):
                    lab = self.label("sk")
                    self.L.append(f"s_cmp_ge_u32 {s('wave')}, {k}")
                    self.L.append(f"s_cbranch_scc0 {lab}")
                    self.L.append(f"s_nop {OPT['skew']}")
                    self.L.append(f"{lab}:")
    def wait_all(self):
        self.L.append("s_waitcnt vmcnt(0) lgkmcnt(0)")
        self.vm_done = len(self.vm); self.ds_out = 0
    def assert_done(self, tag):
        found = False
        for i, t in enumerate(self.vm):
            if t == tag:
                found = True
                assert i < self.vm_done, f"tag {tag} not complete"
        assert found, f"tag {tag} never issued"
    def issued(self, tag):
        return tag in self.vm
    def stamp(self, name):
        if not self.do_stamp: return
        if self.stamp_sel is not None and name not in self.stamp_sel and name not in ("start", "end"): return
        if name in self.stamps: idx = self.stamps.index(name)
        else:
            idx = len(self.stamps)
            assert idx < 16
            self.stamps.append(name)
        self.L.append("s_memtime s[84:85]" if OPT.get("cyc") else "s_memrealtime s[84:85]")
        self.L.append("s_waitcnt lgkmcnt(0)")
        self.ds_out = 0
        self.L.append(f"s_mov_b32 s{86+idx}, s84")
    def label(self, base):
        self.nlab += 1
        return f"L_{base}_{self.nlab}"

class Item:
    def __init__(self, text, cost, deps=()):
        self.text = text; self.cost = cost; self.deps = list(deps); self.placed = None

class Stream:
    def __init__(self):
        self.items = []; self.head = 0; self.gap = 0
    def add(self, text, cost, deps=()):
        it = Item(text, cost, deps); self.items.append(it); return it
    def pending(self):
        return sum(1 for it in self.items[self.head:] if it.placed is None)
    def pending_cost(self):
        return sum(it.cost for it in self.items[self.head:] if it.placed is None)
    def tick(self):
        self.gap += 1
    def fill(self, E, cap, window=48):
        used = 0
        while used < cap:
            while self.head < len(self.items) and self.items[self.head].placed is not None:
                self.head += 1
            pick = None
            for it in self.items[self.head:self.head + window]:
                if it.placed is not None or it.cost > cap - used: continue
                if all(d.placed is not None and self.gap >= d.placed + delta for d, delta in it.deps):
                    pick = it; break
            if pick is None: break
            pick.placed = self.gap
            if callable(pick.text): pick.text(E)
            else: E.raw(pick.text)
            used += pick.cost
        return used
    def flush(self, E):
        n = 0
        while self.pending():
            self.tick()
            E.raw("s_nop 0")
            self.fill(E, 4)
            n += 1
        return n

class Gelu:
    def __init__(self, st):
        self.st = st
        self.pairno = 0
        self.set_last = [None] * N_GSET
        self.nset = N_GSET
        self.stg = 0
        self.stg_last = [None, None]
    def pair(self, g0, u0, g1, u1, dst):
        st = self.st
        k = self.pairno % self.nset; self.pairno += 1
        T0, T1, G0, G1 = [V_GT + 4 * k + i for i in range(4)]
        prev = [(self.set_last[k], 0)] if self.set_last[k] is not None else []
        sprev = dst[1]
        a0 = st.add(f"v_mul_f32 v{T0}, v{g0}, v{g0}", 1, prev)
        a1 = st.add(f"v_mul_f32 v{T1}, v{g1}, v{g1}", 1, prev)
        b0 = st.add(f"v_fma_f32 v{T0}, v{T0}, {s('kb')}, v{V_KA}", 1, [(a0, 0)])
        b1 = st.add(f"v_fma_f32 v{T1}, v{T1}, {s('kb')}, v{V_KA}", 1, [(a1, 0)])
        c0 = st.add(f"v_mul_f32 v{T0}, v{T0}, v{g0}", 1, [(b0, 0)])
        c1 = st.add(f"v_mul_f32 v{T1}, v{T1}, v{g1}", 1, [(b1, 0)])
        e0 = st.add(f"v_exp_f32 v{T0}, v{T0}", 2, [(c0, 0)])
        e1 = st.add(f"v_exp_f32 v{T1}, v{T1}", 2, [(c1, 0)])
        m0 = st.add(f"v_mul_f32 v{G0}, v{g0}, v{u0}", 1, prev)
        m1 = st.add(f"v_mul_f32 v{G1}, v{g1}, v{u1}", 1, prev)
        d0 = st.add(f"v_add_f32 v{T0}, 1.0, v{T0}", 1, [(e0, 1)])
        d1 = st.add(f"v_add_f32 v{T1}, 1.0, v{T1}", 1, [(e1, 1)])
        r0 = st.add(f"v_rcp_f32 v{T0}, v{T0}", 2, [(d0, 0)])
        r1 = st.add(f"v_rcp_f32 v{T1}, v{T1}", 2, [(d1, 0)])
        h0 = st.add(f"v_mul_f32 v{G0}, v{G0}, v{T0}", 1, [(r0, 1), (m0, 0)])
        h1 = st.add(f"v_mul_f32 v{G1}, v{G1}, v{T1}", 1, [(r1, 1), (m1, 0)])
        pk = st.add(f"v_cvt_pk_bf16_f32 v{dst[0]}, v{G0}, v{G1}", 1, [(h0, 0), (h1, 0)] + ([(sprev, 2)] if sprev is not None else []))
        self.set_last[k] = pk
        return pk
    def full_pass(self, buf, store_fn):
        last = None
        for tt in range(4):
            sg = self.stg % 2; self.stg += 1
            base = V_HS + 4 * sg
            pks = []
            for grp in range(2):
                for hp in range(2):
                    g = buf + (grp * 2 + 0) * 16 + tt * 4 + 2 * hp
                    u = buf + (grp * 2 + 1) * 16 + tt * 4 + 2 * hp
                    pks.append(self.pair(g, u, g + 1, u + 1, (base + grp * 2 + hp, self.stg_last[sg])))
            stt = self.st.add((lambda E, tt=tt, base=base: store_fn(E, tt, base)), 2, [(p, 1) for p in pks])
            self.stg_last[sg] = stt
            last = stt
        return last
    def half_pass(self, buf, half, store_fn):
        for pp in range(2):
            for tq in range(2):
                sg = self.stg % 2; self.stg += 1
                base = V_HS + 4 * sg
                pks = []
                for grp in range(2):
                    g_ = 2 * pp + grp
                    for hp in range(2):
                        g = buf + ((g_ * 2 + 0) * 2 + tq) * 4 + 2 * hp
                        u = buf + ((g_ * 2 + 1) * 2 + tq) * 4 + 2 * hp
                        pks.append(self.pair(g, u, g + 1, u + 1, (base + grp * 2 + hp, self.stg_last[sg])))
                stt = self.st.add((lambda E, pp=pp, tt=2 * half + tq, base=base: store_fn(E, pp, tt, base)), 2, [(p, 1) for p in pks])
                self.stg_last[sg] = stt
    def quarter(self, buf, store_fn):
        last = None
        for tt in range(4):
            sg = self.stg % 2; self.stg += 1
            base = V_HS + 4 * sg
            pks = []
            for hp in range(2):
                g = buf + tt * 4 + 2 * hp
                u = buf + 16 + tt * 4 + 2 * hp
                pks.append(self.pair(g, u, g + 1, u + 1, (base + hp, self.stg_last[sg])))
            stt = self.st.add((lambda E, tt=tt, base=base: store_fn(E, tt, base)), 2, [(p, 1) for p in pks])
            self.stg_last[sg] = stt
            last = stt
        return last

def mfma(d, a, b, first, dpre="v"):
    c = "0" if first else f"{dpre}[{d}:{d+3}]"
    return f"v_mfma_f32_16x16x32_bf16 {dpre}[{d}:{d+3}], {a}, {b}, {c}"

def vr(b, n=4): return f"v[{b}:{b+n-1}]"
def ar(b, n=4): return f"a[{b}:{b+n-1}]"

def prologue(E, opt):
    R = E.raw
    L = V_LANE
    T0, T1, T2, T3 = V_T0, V_T1, V_T2, V_T3
    R("s_cmp_ge_u32 s2, 256")
    R("s_cbranch_scc1 L_end")
    R("s_load_dwordx4 s[4:7], s[0:1], 0")
    R("s_load_dwordx4 s[16:19], s[0:1], 16")
    R("s_load_dwordx4 s[28:31], s[0:1], 32")
    R("s_load_dwordx2 s[24:25], s[0:1], 48")
    R("s_memrealtime s[84:85]")
    R(f"v_and_b32 v{L}, 63, v0")
    R(f"v_lshrrev_b32 v{T0}, 6, v0")
    R(f"v_cmp_eq_u32 vcc, 0, v0")
    R(f"v_readfirstlane_b32 {s('wave')}, v{T0}")
    R(f"v_mov_b32 v{T0}, {OOB}")
    R(f"v_mov_b32 v{T1}, 0")
    R(f"v_lshlrev_b32 v{V_T128}, 7, v{L}")
    R(f"v_cndmask_b32 v{V_PUB}, v{T0}, v{T1}, vcc")
    if opt.get("tcode", 1):
        R(f"s_getpc_b64 s[36:37]")
        R(f"L_pc:")
        R(f"s_sub_u32 s36, s36, L_pc-{KNAME}\ns_subb_u32 s37, s37, 0")
        R(f"s_mov_b32 s38, L_codeend-{KNAME}\ns_mov_b32 s39, 0x20000")
        R(f"s_lshr_b32 {s('t0')}, s2, 1\ns_and_b32 {s('t0')}, {s('t0')}, 4\ns_add_u32 {s('t0')}, {s('t0')}, {s('wave')}\ns_lshl_b32 {s('t0')}, {s('t0')}, 13")
        E.vmem(f"buffer_load_dword v{V_DUM}, v{V_T128}, s[36:39], {s('t0')} offen", "TCH")
    R(f"s_and_b32 {s('sk')}, s2, 3")
    R(f"s_lshr_b32 {s('t0')}, s2, 2\ns_and_b32 {s('t0')}, {s('t0')}, 1")
    R(f"s_lshr_b32 {s('t1')}, s2, 3")
    R(f"s_and_b32 {s('jj')}, {s('t1')}, 7")
    R(f"s_lshr_b32 {s('t1')}, {s('t1')}, 3")
    R(f"s_lshl_b32 {s('mb')}, {s('t0')}, 2\ns_add_u32 {s('mb')}, {s('mb')}, {s('t1')}")
    R(f"s_lshl_b32 {s('t0')}, {s('mb')}, 2\ns_add_u32 {s('t0')}, {s('t0')}, {s('wave')}\ns_mul_i32 {s('xoff')}, {s('t0')}, {64*XROW}")
    R(f"s_lshl_b32 {s('m0x')}, {s('wave')}, {12 if opt.get('th2', 0) else 14}\ns_add_u32 {s('m0x')}, {s('m0x')}, {XST}")
    R(f"v_lshrrev_b32 v{T0}, 3, v{L}")
    R(f"v_and_b32 v{T1}, 7, v{L}")
    R(f"v_lshrrev_b32 v{T2}, 1, v{T0}")
    R(f"v_xor_b32 v{T2}, v{T2}, v{T1}")
    R(f"v_mul_u32_u24 v{T3}, {XROW}, v{T0}")
    R(f"v_lshl_add_u32 v{V_X}, v{T2}, 4, v{T3}")
    R(f"v_xor_b32 v{V_X+1}, 64, v{V_X}")
    R(f"v_add_u32 v{V_X+2}, {2*(8*XROW-1024)}, v{V_X}")
    R(f"v_add_u32 v{V_X+3}, {3*(8*XROW-1024)}, v{V_X+1}")
    R(f"v_add_u32 v{V_X+1}, {1*(8*XROW-1024)}, v{V_X+1}")
    R(f"s_and_b32 {s('th')}, {s('wave')}, 1\ns_lshr_b32 {s('kh')}, {s('wave')}, 1")
    R(f"v_and_b32 v{T2}, 2, v{T0}")
    R(f"v_xor_b32 v{T2}, v{T2}, v{T1}")
    R(f"s_lshl_b32 {s('t0')}, {s('th')}, 2")
    R(f"v_xor_b32 v{T2}, {s('t0')}, v{T2}")
    R(f"v_mul_u32_u24 v{T3}, {WROW}, v{T0}")
    R(f"v_lshl_add_u32 v{V_W1}, v{T2}, 4, v{T3}")
    R(f"s_mul_i32 {s('t0')}, {s('wave')}, {8*WROW}")
    R(f"v_add_u32 v{V_W1}, {s('t0')}, v{V_W1}")
    R(f"s_mul_i32 {s('t0')}, {s('sk')}, 2304")
    R(f"s_lshl_b32 {s('t1')}, {s('jj')}, 8\ns_add_u32 {s('w1col')}, {s('t0')}, {s('t1')}")
    R(f"s_lshl_b32 {s('m0w')}, {s('wave')}, 11")
    R("s_waitcnt lgkmcnt(0)")
    E.stamp("karg")
    R(f"s_mov_b32 s8, s4\ns_mov_b32 s9, s5\ns_mov_b32 s10, {NTOK*XROW}\ns_mov_b32 s11, 0x20000")

V_TCH = 48
def coop_setup(E):
    R = E.raw; L = V_LANE
    lx = E.label("cx"); le = E.label("ce")
    R(f"s_lshr_b32 {s('t0')}, s2, 3\ns_lshl_b32 {s('t0')}, {s('t0')}, 2\ns_add_u32 {s('t0')}, {s('t0')}, {s('wave')}")
    R(f"s_mov_b32 s36, s4\ns_mov_b32 s37, s5\ns_mov_b32 s38, {NTOK*XROW}\ns_mov_b32 s39, 0x20000")
    R(f"v_mul_u32_u24 v{V_T0}, {XROW}, v{L}")
    R(f"s_cmp_lt_u32 {s('t0')}, 64")
    R(f"s_cbranch_scc1 {lx}")
    R(f"s_sub_u32 {s('t0')}, {s('t0')}, 64\ns_cmp_lt_u32 {s('t0')}, 32")
    R(f"s_cselect_b32 s36, s6, s16\ns_cselect_b32 s37, s7, s17\ns_mov_b32 s38, {DM*WROW}")
    R(f"s_and_b32 {s('t1')}, {s('t0')}, 3\ns_mul_i32 {s('t1')}, {s('t1')}, {48*WROW}")
    R(f"s_lshr_b32 {s('t2')}, {s('t0')}, 2\ns_and_b32 {s('t2')}, {s('t2')}, 7\ns_lshl_b32 {s('t2')}, {s('t2')}, 8\ns_add_u32 {s('t1')}, {s('t1')}, {s('t2')}")
    R(f"s_mul_i32 {s('t2')}, {s('sk')}, 2304\ns_add_u32 {s('tA')}, {s('t1')}, {s('t2')}\ns_mov_b32 {s('tB')}, {192*WROW}")
    R(f"v_mul_u32_u24 v{V_TCH}, {WROW}, v{L}")
    R(f"s_branch {le}")
    R(f"{lx}:")
    R(f"s_lshr_b32 {s('t1')}, {s('t0')}, 4\ns_and_b32 {s('t2')}, {s('mb')}, 4\ns_add_u32 {s('t1')}, {s('t1')}, {s('t2')}\ns_lshl_b32 {s('t1')}, {s('t1')}, 8")
    R(f"s_and_b32 {s('t2')}, {s('t0')}, 15\ns_lshl_b32 {s('t2')}, {s('t2')}, 4\ns_add_u32 {s('t1')}, {s('t1')}, {s('t2')}\ns_mul_i32 {s('tA')}, {s('t1')}, {XROW}\ns_mov_b32 {s('tB')}, 384")
    R(f"v_mul_u32_u24 v{V_T0}, 21846, v{L}\nv_lshrrev_b32 v{V_T0}, 16, v{V_T0}")
    R(f"v_mul_u32_u24 v{V_T1}, 3, v{V_T0}\nv_sub_u32 v{V_T1}, v{L}, v{V_T1}")
    R(f"v_mul_u32_u24 v{V_T0}, {XROW}, v{V_T0}\nv_lshl_add_u32 v{V_TCH}, v{V_T1}, 7, v{V_T0}")
    R(f"{le}:")
    R(f"v_mov_b32 v{V_T0}, {OOB}\nv_cmp_gt_u32 vcc, 48, v{L}\ns_nop 1\nv_cndmask_b32 v{V_TCH}, v{V_T0}, v{V_TCH}, vcc")

def coop_touch(E, g):
    E.vmem(f"buffer_load_dword v{V_DUM}, v{V_TCH}, s[36:39], {s('tA')} offen", "TCH")
    if g < 2: E.raw(f"s_add_u32 {s('tA')}, {s('tA')}, {s('tB')}")

def prologue_w(E):
    R = E.raw
    R(f"s_mov_b32 s12, s6\ns_mov_b32 s13, s7\ns_mov_b32 s14, {DM*WROW}\ns_mov_b32 s15, 0x20000")
    R(f"s_mov_b32 s20, s18\ns_mov_b32 s21, s19\ns_mov_b32 s22, {DF*XROW}\ns_mov_b32 s23, 0x20000")
    R(f"s_sub_u32 s16, s16, 1024\ns_subb_u32 s17, s17, 0\ns_mov_b32 s18, {DM*WROW+1024}\ns_mov_b32 s19, 0x20000")
    R(f"s_mov_b32 s32, s30\ns_mov_b32 s33, s31\ns_mov_b32 s34, 256\ns_mov_b32 s35, 0x20000")
    R(f"s_mov_b32 s30, {NTOK*XROW}\ns_mov_b32 s31, 0x20000")
    R(f"s_mov_b32 s26, {WS_SIZE}\ns_mov_b32 s27, 0x20000")

def issue_x(E, piece):
    c, hf = piece >> 1, piece & 1
    E.raw(f"s_add_u32 m0, {s('m0x')}, {(piece % 4) * 4096}")
    E.raw(f"s_add_u32 {s('so2')}, {s('xoff')}, {hf * 32 * XROW + c * 128}")
    for u in range(4):
        E.vmem(f"buffer_load_dwordx4 v{V_X+u}, {srd(SRD_X)}, {s('so2')} offen offset:{u*1024} lds", f"X{piece}")

def w1_ops(line, ks):
    def setup(E):
        E.raw(f"s_add_u32 m0, {s('m0w')}, {ks * W1_KS}")
        E.raw(f"s_add_u32 {s('so')}, {s('w1col')}, {ks * 32 * WROW + line * 128}")
    def g(E): E.vmem(f"buffer_load_dwordx4 v{V_W1}, {srd(SRD_G)}, {s('so')} offen lds", f"W{line}_{ks//3}")
    def u(E): E.vmem(f"buffer_load_dwordx4 v{V_W1}, {srd(SRD_U)}, {s('so')} offen offset:1024 lds", f"W{line}_{ks//3}")
    return setup, g, u

def issue_w1_slot(E, line, slot):
    for ks in range(3 * slot, 3 * slot + 3):
        a, b, c = w1_ops(line, ks)
        a(E); b(E); c(E)

def read_x(E, chunk):
    out = []
    for hf in range(2):
        piece = 2 * chunk + hf
        for h in range(2):
            for tp in range(2):
                ks = 2 * chunk + h
                tt = 2 * hf + tp
                out.append(f"ds_read_b128 {xreg(ks, tt)}, v{V_XR + h} offset:{(piece % 4) * 4096 + tp * 2048}")
    return out

def areads_w1(ph, ks, par=None, alt=False):
    out = []
    reg, kk = divmod(ks, 6)
    if par is None: par = ks & 1
    for f in range(4):
        grp, mat = f >> 1, f & 1
        d = V_AR + 16 * par + 4 * f
        base = (V_AB if alt else V_A) + 2 * reg + grp
        for sec in range(2):
            out.append(f"ds_read_b64_tr_b16 v[{d+2*sec}:{d+2*sec+1}], v{base} offset:{kk*W1_KS + mat*1024 + sec*512}")
    return out

def areads_q(ks, par):
    out = []
    kk = (ks if ks < 8 else ks - 8) if WQE else ks
    for mat in range(2):
        d = V_AR + 16 * par + 4 * mat
        for sec in range(2):
            out.append(f"ds_read_b64_tr_b16 v[{d+2*sec}:{d+2*sec+1}], v{V_AQ} offset:{kk*2048 + mat*1024 + sec*256}")
    return out

def areads_g2(t, sub, par):
    slot = (t + 2) % 8
    reg, sl = divmod(slot, 3)
    out = []
    for k in range(3):
        dt = 3 * sub + k
        d = V_AR + 12 * par + 4 * k
        for sec in range(2):
            out.append(f"ds_read_b64_tr_b16 v[{d+2*sec}:{d+2*sec+1}], v{V_A2+reg} offset:{sl*WD_SLOT + dt*32 + sec*4608}")
    return out

def kap(t):
    return 4 * (t & 3) + (t >> 2)

def wd_ops(t):
    slot = (t + 2) % 8
    def setup(E):
        E.raw(f"s_add_u32 m0, {s('m0d')}, {slot * WD_SLOT}")
        if OPT.get("nowd"):
            E.raw(f"s_mov_b32 {s('so')}, {OOB}"); return
        if t < 16: E.raw(f"s_add_u32 {s('so')}, {s('wd0')}, {32 * kap(t) * XROW}")
        else: E.raw(f"s_add_u32 {s('so')}, {s('wdq')}, {32 * (t - 16) * XROW}")
    def mk(i):
        def f(E): E.vmem(f"buffer_load_dwordx4 v{V_WD+i}, {srd(SRD_D)}, {s('so')} offen offset:{i*1024} lds", f"D{t}")
        return f
    def setup5(E):
        E.raw(f"s_add_u32 m0, {s('m0d5')}, {slot * WD_SLOT}")
    def d4(E):
        E.raw("s_mov_b32 exec_hi, 0")
        E.vmem(f"buffer_load_dwordx4 v{V_WD+4}, {srd(SRD_D)}, {s('so')} offen lds", f"D{t}")
        E.raw("s_mov_b32 exec_hi, -1")
    return [(setup, 's'), (mk(0), 'v'), (mk(1), 'v'), (mk(2), 'v'), (mk(3), 'v'), (setup5, 's'), (d4, 'v')]

def h_ops(t):
    ops = []
    if t < 16:
        def setup(E):
            if OPT.get("noh"):
                E.raw(f"s_mov_b32 {s('tA')}, {OOB}"); E.raw(f"s_mov_b32 {s('tB')}, {OOB}"); return
            E.raw(f"s_add_u32 {s('tA')}, {s('hldA')}, {kap(t) * H_KS}")
            E.raw(f"s_add_u32 {s('tB')}, {s('hldB')}, {kap(t) * H_KS}")
        ops.append((setup, 's'))
        for tt in range(4):
            def f(E, tt=tt):
                so = s('tA') if tt < 2 else s('tB')
                E.vmem(f"buffer_load_dwordx4 {ar(hreg(t, tt))}, v{V_L16}, {srd(SRD_W)}, {so} offen offset:{(tt & 1) * 1024}{HSC}", f"H{t}")
            ops.append((f, 'v'))
    else:
        def setup(E):
            E.raw(f"s_add_u32 {s('tA')}, {s('hlqA')}, {(t - 16) * H_KS}")
            E.raw(f"s_add_u32 {s('tB')}, {s('hlqB')}, {(t - 16) * H_KS}")
        ops.append((setup, 's'))
        for tt in range(4):
            for hf in range(2):
                def f(E, tt=tt, hf=hf):
                    so = s('tA') if tt < 2 else s('tB')
                    b = hreg(t, tt) + 2 * hf
                    E.vmem(f"buffer_load_dwordx2 {ar(b, 2)}, v{V_L8}, {srd(SRD_W)}, {so} offen offset:{(tt & 1) * 1024 + hf * 512}{HSC}", f"H{t}")
                ops.append((f, 'v'))
    return ops

def publish_op(level, vpub=None, spf="pf"):
    def f(E):
        E.raw(f"s_add_u32 {s('t0')}, {s('nonce')}, {level}")
        E.raw(f"v_mov_b32 v{V_ONE}, {s('t0')}")
        E.vmem(f"buffer_store_dword v{V_ONE}, v{V_PUB if vpub is None else vpub}, {srd(SRD_W)}, {s(spf)} offen sc1", f"PUB{level}")
    return f

def nonce_write(E):
    E.raw(f"s_or_b32 s84, s84, 1")
    E.raw(f"s_cmp_eq_u32 s2, 0")
    E.raw(f"s_cselect_b32 {s('t0')}, 0, {OOB}")
    E.raw(f"v_mov_b32 v{V_ONE}, s84")
    E.vmem(f"buffer_store_dword v{V_ONE}, v{V_PUB}, {srd(SRD_F)}, {s('t0')} offen sc1", "TCH")

def nonce_ops():
    def a(E):
        E.vmem(f"buffer_load_dword v{V_T1}, v{V_Z}, {srd(SRD_F)}, 0 offen sc1", "NONCE")
    def b(E):
        ok = E.label("nok"); slow = E.label("nslow"); chk = E.label("nchk")
        E.wait(vm="NONCE")
        E.raw(f"v_readfirstlane_b32 {s('nonce')}, v{V_T1}")
        E.raw(f"s_cmp_eq_u32 {s('nonce')}, 0")
        E.raw(f"s_cbranch_scc1 {slow}")
        E.raw(f"{ok}:")
        E.slow += [f"{slow}:", f"s_mov_b32 {s('spin')}, 0", f"{chk}:",
                   f"buffer_load_dword v{V_T1}, v{V_Z}, {srd(SRD_F)}, 0 offen sc1", "s_waitcnt vmcnt(0)",
                   f"v_readfirstlane_b32 {s('nonce')}, v{V_T1}",
                   f"s_add_u32 {s('spin')}, {s('spin')}, 1", f"s_cmp_gt_u32 {s('spin')}, {SPIN_MAX}", f"s_cbranch_scc1 {ok}",
                   f"s_cmp_eq_u32 {s('nonce')}, 0", f"s_cbranch_scc1 {chk}", f"s_branch {ok}"]
    nop = lambda E: None
    return a, b, nop, nop

V_DUM = 0
def touch(E, vreg, srdb, so, tag="TCH"):
    E.vmem(f"buffer_load_dword v{V_DUM}, v{vreg}, {srd(srdb)}, {so} offen", tag)

def touch_ops_wd():
    def setup(E):
        E.raw(f"s_and_b32 {s('t0')}, {s('mb')}, 3\ns_lshl_b32 {s('t0')}, {s('t0')}, 3\ns_add_u32 {s('t0')}, {s('t0')}, {s('jj')}")
        E.raw(f"s_lshl_b32 {s('t0')}, {s('t0')}, 2\ns_add_u32 {s('t0')}, {s('t0')}, {s('wave')}\ns_mul_i32 {s('t0')}, {s('t0')}, {81*128}")
        E.raw(f"s_mul_i32 {s('t1')}, {s('sk')}, {1152*XROW}\ns_add_u32 {s('so')}, {s('t0')}, {s('t1')}")
    return [(setup, 's'), (lambda E: touch(E, V_T128, SRD_D, s('so')), 'v'), (lambda E: touch(E, V_T128B, SRD_D, s('so')), 'v')]

def touch_ops_w1(line):
    def setup(E):
        E.raw(f"s_and_b32 {s('t0')}, {s('mb')}, 3\ns_lshl_b32 {s('t0')}, {s('t0')}, 1\ns_add_u32 {s('t0')}, {s('t0')}, {s('kh')}")
        E.raw(f"s_mul_i32 {s('t0')}, {s('t0')}, {72*WROW}\ns_add_u32 {s('so')}, {s('t0')}, {s('w1col')}")
        if line: E.raw(f"s_add_u32 {s('so')}, {s('so')}, {line*128}")
    return [(setup, 's'), (lambda E: touch(E, V_TROW, SRD_Q, s('so')), 'v'), (lambda E: touch(E, V_TROWB, SRD_Q, s('so')), 'v')]

def touch_ops_wq():
    def setup(E):
        E.raw(f"s_and_b32 {s('t0')}, {s('jj')}, 3\ns_lshl_b32 {s('t0')}, {s('t0')}, 2\ns_and_b32 {s('t1')}, {s('mb')}, 3\ns_add_u32 {s('t0')}, {s('t0')}, {s('t1')}")
        E.raw(f"s_lshl_b32 {s('t0')}, {s('t0')}, 1\ns_add_u32 {s('t0')}, {s('t0')}, {s('kh')}\ns_mul_i32 {s('t0')}, {s('t0')}, {18*WROW}")
        E.raw(f"s_mul_i32 {s('t1')}, {s('sk')}, 2304\ns_add_u32 {s('t0')}, {s('t0')}, {s('t1')}\ns_lshl_b32 {s('t1')}, {s('jj')}, 5\ns_add_u32 {s('t0')}, {s('t0')}, {s('t1')}\ns_add_u32 {s('so')}, {s('t0')}, 2048")
    return [(setup, 's'), (lambda E: touch(E, V_TROWQ, SRD_Q, s('so')), 'v')]

def touch_ops_x():
    def setup(E):
        E.raw(f"s_lshl_b32 {s('t0')}, {s('jj')}, 2\ns_add_u32 {s('t0')}, {s('t0')}, {s('wave')}\ns_lshl_b32 {s('t0')}, {s('t0')}, 3")
        E.raw(f"s_lshl_b32 {s('t1')}, {s('mb')}, 8\ns_add_u32 {s('t0')}, {s('t0')}, {s('t1')}\ns_mul_i32 {s('so')}, {s('t0')}, {XROW}")
    return [(setup, 's'), (lambda E: touch(E, V_T128, SRD_X, s('so')), 'v'), (lambda E: touch(E, V_T128B, SRD_X, s('so')), 'v')]

def touch_ops_h(p0, np_):
    def setup(E):
        E.raw(f"s_lshr_b32 {s('t0')}, {s('jj')}, 1\ns_lshl_b32 {s('t0')}, {s('t0')}, 14\ns_add_u32 {s('t0')}, {s('t0')}, {s('hldA')}")
        E.raw(f"s_lshl_b32 {s('t1')}, {s('kh')}, 11\ns_sub_u32 {s('so')}, {s('t0')}, {s('t1')}")
        if p0: E.raw(f"s_add_u32 {s('so')}, {s('so')}, {p0*H_KS}")
    v = V_T128 if np_ == 2 else V_T128H
    return [(setup, 's'), (lambda E: touch(E, v, SRD_W, s('so')), 'v')]

def selftouch_op(p):
    def f(E):
        if OPT.get("noself", 1): return
        E.raw(f"s_add_u32 {s('t4')}, {s('hst')}, {p * H_KS}")
        E.vmem(f"buffer_load_dword v{V_DUM}, v{V_T128H}, {srd(SRD_W)}, {s('t4')} offen sc1", "TCH")
    return f

def touch_code(E):
    R = E.raw
    R(f"s_getpc_b64 s[4:5]")
    R(f"L_pc:")
    R(f"s_sub_u32 s4, s4, L_pc-{KNAME}")
    R(f"s_subb_u32 s5, s5, 0")
    R(f"s_mov_b32 s6, L_codeend-{KNAME}")
    R(f"s_mov_b32 s7, 0x20000")
    R(f"s_lshr_b32 {s('t0')}, s2, 3\ns_lshl_b32 {s('t0')}, {s('t0')}, 2\ns_add_u32 {s('t0')}, {s('t0')}, {s('wave')}\ns_and_b32 {s('t0')}, {s('t0')}, 7\ns_lshl_b32 {s('t0')}, {s('t0')}, 13")
    E.vmem(f"buffer_load_dword v{V_DUM}, v{V_T128}, s[4:7], {s('t0')} offen", "TCH")

def touch_mall_w(E):
    R = E.raw
    R(f"s_lshl_b32 {s('t0')}, s2, 2\ns_add_u32 {s('t0')}, {s('t0')}, {s('wave')}\ns_and_b32 {s('t0')}, {s('t0')}, 511\ns_mul_i32 {s('t0')}, {s('t0')}, {81*128}")
    R(f"s_cmp_lt_u32 s2, 128")
    R(f"s_cselect_b32 s4, s12, s16\ns_cselect_b32 s5, s13, s17\ns_cselect_b32 {s('t1')}, 0, 1024")
    R(f"s_mov_b32 s6, {DM*WROW+1024}\ns_mov_b32 s7, 0x20000\ns_add_u32 {s('t0')}, {s('t0')}, {s('t1')}")
    E.vmem(f"buffer_load_dword v{V_DUM}, v{V_T128}, s[4:7], {s('t0')} offen", "TCH")
    E.vmem(f"buffer_load_dword v{V_DUM}, v{V_T128B}, s[4:7], {s('t0')} offen", "TCH")

def selftouchq_op():
    def f(E):
        E.raw(f"v_lshrrev_b32 v{V_T0}, 2, v{V_LANE}\nv_lshlrev_b32 v{V_T0}, 10, v{V_T0}\nv_and_b32 v{V_T1}, 3, v{V_LANE}\nv_lshl_add_u32 v{V_T0}, v{V_T1}, 7, v{V_T0}")
        E.raw(f"v_mov_b32 v{V_T1}, {OOB}\nv_cmp_gt_u32 vcc, 16, v{V_LANE}\ns_nop 1\nv_cndmask_b32 v{V_T0}, v{V_T1}, v{V_T0}, vcc")
        E.vmem(f"buffer_load_dword v{V_DUM}, v{V_T0}, {srd(SRD_W)}, {s('hstq')} offen sc1", "TCH")
    return f

def tlb_ops():
    def setup(E):
        L = V_LANE
        E.raw(f"s_lshl_b32 {s('t0')}, {s('mb')}, 3\ns_add_u32 {s('t0')}, {s('t0')}, {s('jj')}\ns_lshl_b32 {s('t0')}, {s('t0')}, 2\ns_add_u32 {s('t0')}, {s('t0')}, {s('wave')}")
        E.raw(f"s_mul_i32 {s('t0')}, {s('t0')}, {16*5120}\ns_add_u32 {s('t0')}, {s('t0')}, {WS_P}")
        E.raw(f"v_mov_b32 v{V_T0}, {OOB}\nv_writelane_b32 v{V_T0}, {s('hst')}, 0\nv_writelane_b32 v{V_T0}, {s('pf')}, 1\nv_writelane_b32 v{V_T0}, {s('t0')}, 2")
        E.raw(f"s_lshl_b32 {s('so')}, {s('mb')}, 8\ns_mul_i32 {s('so')}, {s('so')}, {XROW}")
    return [(setup, 's'),
            (lambda E: E.vmem(f"buffer_load_dword v{V_DUM}, v{V_T0}, {srd(SRD_W)}, 0 offen sc1", "TCH"), 'v'),
            (lambda E: E.vmem(f"buffer_load_dword v{V_DUM}, v{V_Z}, {srd(SRD_O)}, {s('so')} offen", "TCH"), 'v'),
            (lambda E: E.vmem(f"buffer_load_dword v{V_DUM}, v{V_Z}, {srd(SRD_D)}, {s('wd0')} offen", "TCH"), 'v')]

def touch_regs(E):
    R = E.raw; L = V_LANE
    R(f"v_lshlrev_b32 v{V_T128}, 7, v{L}")
    R(f"v_mov_b32 v{V_T128H}, {OOB}")
    R(f"v_cmp_gt_u32 vcc, 17, v{L}")
    R(f"v_add_u32 v{V_T128B}, {64*128}, v{V_T128}")
    R(f"v_mul_u32_u24 v{V_TROW}, {WROW}, v{L}")
    R(f"v_cndmask_b32 v{V_T128B}, v{V_T128H}, v{V_T128B}, vcc")
    R(f"v_cmp_gt_u32 vcc, 8, v{L}")
    R(f"v_add_u32 v{V_TROWB}, {64*WROW}, v{V_TROW}")
    R(f"s_nop 0")
    R(f"v_cndmask_b32 v{V_TROWB}, v{V_T128H}, v{V_TROWB}, vcc")
    R(f"v_cmp_gt_u32 vcc, 18, v{L}")
    R(f"s_nop 1")
    R(f"v_cndmask_b32 v{V_TROWQ}, v{V_T128H}, v{V_TROW}, vcc")
    R(f"v_cmp_gt_u32 vcc, 32, v{L}")
    R(f"s_nop 1")
    R(f"v_cndmask_b32 v{V_T128H}, v{V_T128H}, v{V_T128}, vcc")

def emit_ops(E, ops):
    for f, k in ops:
        f(E)

def poll_issue(name):
    def f(E):
        E.vmem(f"buffer_load_dword v{V_FL}, v{V_FH}, {srd(SRD_W)}, 0 offen sc1", f"POLL{name}")
    return f

def poll_check(E, name, level, voff=None, issued=True):
    voff = V_FH if voff is None else voff
    ok = E.label("pok"); slow = E.label("pslow"); chk = E.label("pchk")
    if OPT.get("nopoll"):
        if issued: E.wait(vm=f"POLL{name}")
        return
    test = [f"s_add_u32 {s('t0')}, {s('nonce')}, {level}",
            f"v_subrev_u32 v{V_FL}, {s('t0')}, v{V_FL}",
            f"v_cmp_lt_u32 vcc, {6 - level}, v{V_FL}"]
    if issued:
        E.wait(vm=f"POLL{name}")
        for x in test: E.raw(x)
        if OPT.get("vccnop", 0): E.raw("s_nop 4")
        E.raw(f"s_cbranch_vccnz {slow}")
    else:
        E.raw(f"s_branch {slow}")
    E.raw(f"{ok}:")
    E.slow += [f"{slow}:",
               f"s_mov_b32 {s('spin')}, 0",
               f"{chk}:",
               f"buffer_load_dword v{V_FL}, v{voff}, {srd(SRD_W)}, 0 offen sc1",
               "s_waitcnt vmcnt(0)"] + test + [
               f"s_add_u32 {s('spin')}, {s('spin')}, 1",
               f"s_cmp_gt_u32 {s('spin')}, {SPIN_MAX}",
               f"s_cbranch_scc1 {ok}",
               f"s_cbranch_vccnz {chk}",
               f"s_branch {ok}"]

V_AB = 50
def setupA(E):
    R = E.raw
    L = V_LANE
    T0, T1, T2, T3 = V_T0, V_T1, V_T2, V_T3
    R(f"v_lshrrev_b32 v{T0}, 4, v{L}")
    R(f"v_and_b32 v{T1}, 15, v{L}")
    R(f"v_lshrrev_b32 v{T2}, 1, v{T1}")
    R(f"v_xor_b32 v{T2}, v{T2}, v{T0}")
    R(f"v_lshlrev_b32 v{T3}, 7, v{T1}")
    R(f"v_lshl_add_u32 v{V_XR}, v{T2}, 4, v{T3}")
    R(f"v_add_u32 v{V_XR}, {s('m0x')}, v{V_XR}")
    R(f"v_xor_b32 v{V_XR+1}, 64, v{V_XR}")
    R(f"v_lshrrev_b32 v{T2}, 2, v{T1}")
    R(f"v_lshlrev_b32 v{T3}, 11, v{T0}")
    R(f"v_lshl_add_u32 v{T3}, v{T2}, 7, v{T3}")
    R(f"v_and_b32 v{T2}, 3, v{T1}")
    R(f"v_lshl_add_u32 v{T3}, v{T2}, 3, v{T3}")
    R(f"v_and_b32 v{T2}, 1, v{T0}")
    R(f"v_lshlrev_b32 v{T2}, 6, v{T2}")
    R(f"v_add_u32 v{T3}, v{T3}, v{T2}")
    R(f"v_bfe_u32 v{T2}, v{T1}, 3, 1")
    R(f"v_lshl_add_u32 v{V_A}, v{T2}, 5, v{T3}")
    R(f"v_xor_b32 v{V_A+1}, 32, v{V_A}")
    for r in range(1, 3):
        R(f"v_add_u32 v{V_A+2*r}, {r*49152}, v{V_A}")
        R(f"v_add_u32 v{V_A+2*r+1}, {r*49152}, v{V_A+1}")
    for i in range(6):
        R(f"v_xor_b32 v{V_AB+i}, 64, v{V_A+i}")

def setupB():
    G = []
    R = G.append
    L = V_LANE
    T0, T1, T2, T3 = 44, 45, 46, 47
    u0, u1, u2, u3, u4 = s('pst'), s('pld'), s('outb'), s('phi0'), s('spin')
    R(f"s_add_u32 {u0}, s16, 1024\ns_addc_u32 {u1}, s17, 0\ns_cmp_eq_u32 {s('th')}, 0\ns_cselect_b32 s36, s12, {u0}\ns_cselect_b32 s37, s13, {u1}\ns_mov_b32 s38, {DM*WROW}\ns_mov_b32 s39, 0x20000")
    R(f"s_lshl_b32 {s('cu')}, {s('mb')}, 5\ns_lshl_b32 {u0}, {s('sk')}, 3\ns_add_u32 {s('cu')}, {s('cu')}, {u0}\ns_add_u32 {s('cu')}, {s('cu')}, {s('jj')}")
    R(f"s_mul_i32 {u0}, {s('sk')}, 2304\ns_lshl_b32 {u1}, {s('jj')}, 5\ns_add_u32 {s('wqcol')}, {u0}, {u1}\ns_add_u32 {s('wqcol')}, {s('wqcol')}, 2048")
    R(f"s_mul_i32 {u1}, {s('kh')}, {32*WROW}\ns_add_u32 {s('wqcol')}, {s('wqcol')}, {u1}\ns_lshl_b32 {s('m0q')}, {s('wave')}, 10")
    R(f"v_mov_b32 v{V_T128H}, {OOB}\nv_cmp_gt_u32 vcc, 17, v{L}\nv_add_u32 v{V_T128B}, {64*128}, v{V_T128}\nv_mul_u32_u24 v{V_TROW}, {WROW}, v{L}\nv_cndmask_b32 v{V_T128B}, v{V_T128H}, v{V_T128B}, vcc")
    R(f"v_cmp_gt_u32 vcc, 8, v{L}\nv_add_u32 v{V_TROWB}, {64*WROW}, v{V_TROW}\ns_nop 0\nv_cndmask_b32 v{V_TROWB}, v{V_T128H}, v{V_TROWB}, vcc")
    R(f"v_cmp_gt_u32 vcc, 18, v{L}\ns_nop 1\nv_cndmask_b32 v{V_TROWQ}, v{V_T128H}, v{V_TROW}, vcc")
    R(f"v_cmp_gt_u32 vcc, 32, v{L}\ns_nop 1\nv_cndmask_b32 v{V_T128H}, v{V_T128H}, v{V_T128}, vcc")
    R(f"v_lshrrev_b32 v{T0}, 4, v{L}\nv_and_b32 v{T1}, 15, v{L}")
    R(f"v_lshrrev_b32 v{T2}, 1, v{T0}\nv_lshlrev_b32 v{T3}, 9, v{T2}")
    R(f"v_and_b32 v{T2}, 1, v{T0}\nv_lshl_add_u32 v{T3}, v{T2}, 7, v{T3}")
    R(f"v_lshrrev_b32 v{T2}, 2, v{T1}\nv_lshl_add_u32 v{T3}, v{T2}, 5, v{T3}")
    R(f"v_and_b32 v{T2}, 3, v{T1}\nv_lshl_add_u32 v{V_AQ}, v{T2}, 3, v{T3}")
    R(f"v_lshrrev_b32 v{T2}, 2, v{T1}\nv_lshl_add_u32 v{T2}, v{T0}, 2, v{T2}")
    R(f"v_mul_u32_u24 v{T2}, 288, v{T2}\nv_and_b32 v{T3}, 3, v{T1}")
    R(f"v_lshl_add_u32 v{T2}, v{T3}, 3, v{T2}\ns_mul_i32 {u0}, {s('kh')}, 9216\nv_add_u32 v{V_A2}, {u0}, v{T2}")
    R(f"v_add_u32 v{V_A2+1}, {3*WD_SLOT}, v{V_A2}\nv_add_u32 v{V_A2+2}, {6*WD_SLOT}, v{V_A2}")
    R(f"v_lshrrev_b32 v{T0}, 1, v{L}\nv_and_b32 v{T1}, 0x13, v{T0}")
    R(f"v_and_b32 v{T2}, 4, v{T0}\nv_lshl_or_b32 v{T1}, v{T2}, 1, v{T1}")
    R(f"v_and_b32 v{T2}, 8, v{T0}\nv_lshrrev_b32 v{T2}, 1, v{T2}")
    R(f"v_or_b32 v{T1}, v{T1}, v{T2}\nv_mul_u32_u24 v{T1}, {WROW}, v{T1}")
    R(f"v_and_b32 v{T2}, 1, v{L}\nv_lshl_add_u32 v{V_WQ}, v{T2}, 4, v{T1}")
    for ip in range(5):
        if ip < 4:
            R(f"s_lshl_b32 {u0}, {s('th')}, 8\nv_add_u32 v{T0}, {u0}, v{L}" + (f"\nv_add_u32 v{T0}, {64*ip}, v{T0}" if ip else ""))
        else:
            R(f"s_lshl_b32 {u0}, {s('th')}, 5\ns_add_u32 {u0}, {u0}, 512\nv_and_b32 v{T0}, 31, v{L}\nv_add_u32 v{T0}, {u0}, v{T0}")
        R(f"v_mul_u32_u24 v{T1}, 3641, v{T0}\nv_lshrrev_b32 v{T1}, 16, v{T1}")
        R(f"v_mul_u32_u24 v{T2}, 18, v{T1}\nv_sub_u32 v{T2}, v{T0}, v{T2}")
        R(f"v_mul_u32_u24 v{T1}, {XROW}, v{T1}\nv_lshl_add_u32 v{V_WD+ip}, v{T2}, 4, v{T1}" + (f"\nv_subrev_u32 v{V_WD+ip}, {ip*1024}, v{V_WD+ip}" if 0 < ip < 4 else ""))
    R(f"s_mul_i32 {u1}, {s('kh')}, 9216\ns_lshl_b32 {u2}, {s('th')}, 9\ns_add_u32 {u2}, {u2}, {u1}\ns_add_u32 {s('m0d5')}, {u2}, 8192\n"
      f"s_lshl_b32 {u2}, {s('th')}, 12\ns_add_u32 {s('m0d')}, {u1}, {u2}")
    R(f"v_lshlrev_b32 v{V_L16}, 4, v{L}\nv_lshlrev_b32 v{V_L8}, 3, v{L}")
    R(f"v_mov_b32 v{V_KA}, 0x{f2u(GA):08x}\ns_mov_b32 {s('kb')}, 0x{f2u(GB):08x}\nv_mov_b32 v{V_Z}, 0")
    R(f"s_lshl_b32 {s('pf')}, {s('cu')}, 7\ns_add_u32 {s('pf')}, {s('pf')}, {WS_F}\nv_mov_b32 v{V_PUBD}, v{V_PUB}")
    R(f"s_and_b32 {s('flagh')}, {s('cu')}, 0xf8\ns_lshl_b32 {u0}, {s('kh')}, 2\ns_add_u32 {s('flagh')}, {s('flagh')}, {u0}\n"
      f"s_lshl_b32 {s('flagh')}, {s('flagh')}, 7\ns_add_u32 {s('flagh')}, {s('flagh')}, {WS_F}\nv_min_u32 v{T0}, 3, v{L}")
    R(f"v_lshlrev_b32 v{T0}, 7, v{T0}\nv_add_u32 v{V_FH}, {s('flagh')}, v{T0}")
    R(f"s_lshl_b32 {u0}, {s('mb')}, 2\ns_add_u32 {u0}, {u0}, {s('sk')}\ns_lshl_b32 {u0}, {u0}, 2\n"
      f"s_add_u32 {u1}, {u0}, {s('wave')}\ns_mul_i32 {u1}, {u1}, {36*H_KS}\n"
      f"s_lshl_b32 {u2}, {s('jj')}, 14\ns_add_u32 {s('hst')}, {u1}, {u2}\n"
      f"s_lshr_b32 {u2}, {s('jj')}, 1\ns_add_u32 {u2}, {u2}, 32\ns_lshl_b32 {u2}, {u2}, 12\ns_add_u32 {s('hstq')}, {u1}, {u2}\n"
      f"s_and_b32 {u2}, {s('jj')}, 1\ns_lshl_b32 {u3}, {u2}, 9\ns_add_u32 {s('hstq')}, {s('hstq')}, {u3}\n"
      f"s_lshl_b32 {u2}, {u2}, 1\ns_add_u32 {u2}, {u2}, {s('th')}\n"
      f"s_add_u32 {u1}, {u0}, {u2}\ns_mul_i32 {u1}, {u1}, {36*H_KS}\n"
      f"s_lshl_b32 {u2}, {s('kh')}, 11\ns_sub_u32 {u3}, 2048, {u2}\n"
      f"s_lshl_b32 {u4}, {s('kh')}, 16\ns_add_u32 {u4}, {u4}, {u1}\n"
      f"s_add_u32 {s('hldA')}, {u4}, {u2}\ns_add_u32 {s('hldB')}, {u4}, {u3}\n"
      f"s_lshl_b32 {u4}, {s('kh')}, 13\ns_add_u32 {u4}, {u4}, {32*H_KS}\ns_add_u32 {u4}, {u4}, {u1}\n"
      f"s_add_u32 {s('hlqA')}, {u4}, {u2}\ns_add_u32 {s('hlqB')}, {u4}, {u3}")
    R(f"s_lshr_b32 {u0}, {s('jj')}, 1\ns_mul_i32 {u0}, {u0}, 288\n"
      f"s_mul_i32 {u1}, {s('sk')}, {1152*XROW}\ns_add_u32 {u0}, {u0}, {u1}\n"
      f"s_mul_i32 {u1}, {s('kh')}, {512*XROW}\ns_add_u32 {s('wd0')}, {u0}, {u1}\n"
      f"s_mul_i32 {u1}, {s('kh')}, {64*XROW}\ns_add_u32 {s('wdq')}, {u0}, {u1}\ns_add_u32 {s('wdq')}, {s('wdq')}, {1024*XROW}")
    return G

class Side:
    def __init__(self):
        self.q = []; self.m = 0; self.clock = 0.0; self.hi = []
    def add(self, ops):
        for o in ops: self.q.append((o[0], o[1], o[2] if len(o) > 2 else -1))
    def add_rated(self, ops, cost, earliest=None):
        st = max(self.clock, self.m if earliest is None else earliest)
        nv = sum(1 for o in ops if o[1] == 'v')
        k = 0
        for o in ops:
            nb = int(st + k * cost / nv)
            self.q.append((o[0], o[1], nb))
            if o[1] == 'v': k += 1
        self.clock = st + cost
    def add_hi(self, f): self.hi.append(f)
    def empty(self): return not self.q and not self.hi
    def take_gap(self, E):
        if self.hi:
            self.hi.pop(0)(E); return 2
        if not self.q: return 0
        f, kind, nb = self.q[0]
        if kind == 'v' and nb < self.m:
            self.q.pop(0); f(E); return 2
        return 0
    def take_scalar(self, E):
        if self.q and self.q[0][1] == 's' and self.q[0][2] <= self.m + 2:
            f, _, _ = self.q.pop(0); f(E); return 1
        return 0
    def drain(self, E):
        while self.hi: self.hi.pop(0)(E)
        while self.q:
            f, kind, nb = self.q.pop(0)
            f(E)
            if kind == 's': E.raw("s_nop 0")

def kstep(E, st, side, mf, reads, side_gaps=(), cap_extra=0):
    reads = list(reads)
    n = len(mf)
    for i, m in enumerate(mf):
        E.raw(m)
        st.tick()
        side.m += 1
        cap = 2 + cap_extra
        if reads:
            E.ds(reads.pop(0)); cap -= 1
        elif i in side_gaps:
            u = side.take_gap(E)
            cap -= u
            if u: cap = min(cap, 0)
        if cap > 0:
            if (i + 1) in side_gaps or (i + 1 == n):
                cap -= side.take_scalar(E)
        if cap > 0:
            st.fill(E, cap)

def gemm1_mf(buf, ks, first, par=None):
    mf = []
    if par is None: par = ks & 1
    for f in range(4):
        grp, mat = f >> 1, f & 1
        a = vr(V_AR + 16 * par + 4 * f)
        for tt in range(4):
            mf.append(mfma(buf + (grp * 2 + mat) * 16 + tt * 4, a, xreg(ks, tt), first))
    return mf

XB = [0, 24576, 49152]
def issue_xp(E, c, hf, b):
    E.raw(f"s_add_u32 m0, {s('m0x')}, {XB[b]}")
    E.raw(f"s_add_u32 {s('so2')}, {s('xoff')}, {hf * 32 * XROW + c * 128}")
    for u in range(4):
        E.vmem(f"buffer_load_dwordx4 v{V_X+u}, {srd(SRD_X)}, {s('so2')} offen offset:{u*1024} lds", f"X{hf}_{c}")
def xp_ops(c, hf, b):
    ops = [((lambda E: (E.raw(f"s_add_u32 m0, {s('m0x')}, {XB[b]}"), E.raw(f"s_add_u32 {s('so')}, {s('xoff')}, {hf * 32 * XROW + c * 128}"))), 's')]
    for u in range(4):
        ops.append(((lambda E, u=u: E.vmem(f"buffer_load_dwordx4 v{V_X+u}, {srd(SRD_X)}, {s('so')} offen offset:{u*1024} lds", f"X{hf}_{c}")), 'v'))
    return ops
def read_xp(c, hf, b):
    return [(f"ds_read_b128 {xreg(2*c+h, 2*hf+tp)}, v{V_XR + h} offset:{XB[b] + tp * 2048}", f"xr{hf}_{c}") for h in range(2) for tp in range(2)]

def areads_half(ks, gp, par, tagn):
    out = []
    reg, kk = divmod(ks, 6)
    for f in range(4):
        grp, mat = f >> 1, f & 1
        d = V_AR + 16 * par + 4 * f
        base = (V_AB if gp else V_A) + 2 * reg + grp
        for sec in range(2):
            out.append((f"ds_read_b64_tr_b16 v[{d+2*sec}:{d+2*sec+1}], v{base} offset:{kk*W1_KS + mat*1024 + sec*512}", f"a{tagn}_{f}"))
    return out

def half_step(E, st, side, n, ks, gp, half, first, reads, xq, cap_extra=0, vm_ok=True):
    par = n & 1
    buf = V_BUF[half]
    i = 0
    for f in range(4):
        g_, mat = 2 * gp + (f >> 1), f & 1
        E.wait_dstag(f"a{n}_{f}")
        for tq in range(2):
            d = buf + ((g_ * 2 + mat) * 2 + tq) * 4
            E.raw(mfma(d, vr(V_AR + 16 * par + 4 * f), xreg(ks, 2 * half + tq), first))
            st.tick(); side.m += 1
            cap = 2 + cap_extra
            if reads:
                t_, tg = reads.pop(0); E.ds(t_, tg); cap -= 1
            if xq and i >= 2:
                t_, tg = xq.pop(0); E.ds(t_, tg); cap -= 1
            elif vm_ok and (i & 1) == 1:
                u = side.take_gap(E)
                if u: cap = 0
            if cap > 0: cap -= side.take_scalar(E)
            if cap > 0: st.fill(E, cap)
            i += 1

def l1_ops(c):
    ops = []
    for kk in range(3 * c, 3 * c + 3):
        a, b, d = w1_ops(1, kk)
        ops += [(a, 's'), (b, 'v'), (d, 'v')]
    return ops

def p0ab(E, st, side, G, opt):
    NA, NB, NC, ND = nonce_ops()
    seq = [(ks, gp) for ks in range(18) for gp in range(2)]
    xq = []
    b_issue = {8: 6, 11: 7, 14: 8, 17: 0}
    b_read = {10: 6, 13: 7, 16: 8}
    for n, (ks, gp) in enumerate(seq):
        if gp == 1 and ks % 3 == 2 and ks < 17:
            if ks == 8: E.wait_dstag("xr0_7")
            E.wait(vm=f"W0_{ks//3+1}", barrier=True)
        if gp == 0:
            if ks % 2 == 0: E.wait_dstag(f"xr0_{ks//2}")
            if 1 <= ks <= 5:
                E.wait_dstag(f"xr0_{ks}")
                issue_xp(E, ks + 3, 0, (ks + 3) % 3)
            if ks == 1: issue_w1_slot(E, 0, 2)
            if ks == 3: issue_w1_slot(E, 0, 3)
            if ks in b_issue:
                prev = {8: "xr0_8", 11: "xr1_6", 14: "xr1_7", 17: "xr1_8"}[ks]
                E.wait_dstag(prev)
                side.add(xp_ops(b_issue[ks], 1, 2))
            if ks == 11: st.flush(E)
            if ks == 12 and opt.get("touch", 1): side.add(touch_ops_wq())
            if ks == opt.get("txb", 6):
                E.raw(f"v_mov_b32 v{V_T0}, {OOB}\nv_cmp_gt_u32 vcc, 36, v{V_LANE}\ns_lshl_b32 {s('t0')}, {s('jj')}, 2\ns_add_u32 {s('t0')}, {s('t0')}, 32\ns_mul_i32 {s('t0')}, {s('t0')}, {XROW}")
                E.raw(f"v_cndmask_b32 v{V_T0}, v{V_T0}, v{V_T128}, vcc\ns_add_u32 {s('t0')}, {s('t0')}, {s('xoff')}")
                touch(E, V_T0, SRD_X, s('t0'))
            if ks == opt.get("tl1", 7):
                st.flush(E)
                if ks >= 8: side.add(touch_ops_w1(1))
                else: emit_ops(E, touch_ops_w1(1))
            if ks == 13: NA(E)
            E.stamp(f"P0k{ks}")
        if gp == 1 and ks == 8:
            for sl in (4, 5):
                for kk in range(3 * sl, 3 * sl + 3):
                    a, b, c = w1_ops(0, kk)
                    side.add([(a, 's'), (b, 'v'), (c, 'v')])
        if gp == 1 and ks <= 7:
            E.wait(vm=f"X0_{ks+1}")
            xq += read_xp(ks + 1, 0, (ks + 1) % 3)
        if gp == 1 and ks in b_read:
            E.wait(vm=f"X1_{b_read[ks]}"); xq += read_xp(b_read[ks], 1, 2)
        if n + 1 < len(seq): nks, ngp = seq[n + 1]
        else: nks, ngp = 12, 0
        reads = areads_half(nks, ngp, (n + 1) & 1, n + 1)
        half_step(E, st, side, n, ks, gp, 0, ks == 0, reads, xq, vm_ok=(ks >= 8), cap_extra=(2 if st.pending() else 0))
        assert not xq
    E.stamp("P0end")
    E.raw(f"s_add_u32 {s('t3')}, {s('hst')}, 0")
    E.raw(f"s_add_u32 {s('t2')}, {s('hst')}, {H_KS}")
    def hs_fn(tag):
        def f(E, pp, tt, base):
            E.vmem(f"buffer_store_dwordx4 {vr(base)}, v{V_L16}, {srd(SRD_W)}, {s('t3' if pp == 0 else 't2')} offen offset:{tt*1024} sc1", tag)
        return f
    G.nset = 2
    G.half_pass(V_BUF[0], 0, hs_fn("HS0"))
    G.nset = N_GSET; G.pairno = 0
    order = [(12 + p) % 18 for p in range(18)]
    seq = [(pos, gp) for pos in range(18) for gp in range(2)]
    n0 = 36
    issue = {2: [(2, 2, "xr1_0")], 3: [(1, 0, None)], 5: [(3, 2, "xr1_2")], 6: [(4, 1, None), (5, 0, "xr1_1")]}
    rd = {1: (0, 2), 4: (2, 2), 5: (1, 0), 7: (3, 2), 8: (4, 1), 9: (5, 0)}
    for m, (pos, gp) in enumerate(seq):
        n = n0 + m
        ks = order[pos]
        if gp == 0:
            if pos in (3, 6, 9, 12, 15):
                if pos == 12: E.wait_dstag("xr1_5"); E.wait_dstag("xr1_4")
                E.wait(barrier=True)
            if ks % 2 == 0: E.wait_dstag(f"xr1_{ks//2}")
            for c, b, tg in issue.get(pos, []):
                if tg: E.wait_dstag(tg)
                side.add(xp_ops(c, 1, b))
            if pos == 9: side.add(l1_ops(0))
            if pos == 12: side.add(l1_ops(1)); side.add(l1_ops(4))
            if pos == 15: side.add(l1_ops(2)); side.add(l1_ops(5))
            if pos == 14: NB(E)
        if gp == 1 and pos in rd:
            c, b = rd[pos]
            E.wait(vm=f"X1_{c}"); xq += read_xp(c, 1, b)
        if pos == 17 and gp == 1:
            E.wait(vm="W1_0", barrier=True)
            reads = [(t_, "p2a") for t_ in areads_w1(0, 0, par=(n + 1) & 1)]
        else:
            npos, ngp = seq[m + 1]
            reads = areads_half(order[npos], ngp, (n + 1) & 1, n + 1)
        half_step(E, st, side, n, ks, gp, 1, pos == 0, reads, xq, cap_extra=(1 if st.pending_cost() > 9.0 * (len(seq) - m) else 0))
        assert not xq
    nfl = st.flush(E)
    if nfl: print(f"; note: P0b GELU flush {nfl}", file=sys.stderr)
    E.stamp("P1end")
    G.half_pass(V_BUF[1], 1, hs_fn("HS1"))

def toggle_bases(E):
    for i in range(6):
        E.raw(f"v_xor_b32 v{V_A+i}, 64, v{V_A+i}")

def hstore_fn(p):
    def f(E, tt, base):
        E.vmem(f"buffer_store_dwordx4 {vr(base)}, v{V_L16}, {srd(SRD_W)}, {s('so2')} offen offset:{tt*1024} sc1", f"HS{p}")
    return f
def hstoreq_fn(E, tt, base):
    E.vmem(f"buffer_store_dwordx2 {vr(base, 2)}, v{V_L8}, {srd(SRD_W)}, {s('hstq')} offen offset:{tt*1024} sc1", "HS4")

def wq_ops(lo=0, hi=9):
    ops = []
    for i in range(lo, hi):
        def setup(E, i=i):
            dst = (SCRATCH + i * 4096) if (WQE and i < 4) else ((i - 4) * 4096 if WQE else i * 4096)
            E.raw(f"s_add_u32 m0, {s('m0q')}, {dst}")
            E.raw(f"s_add_u32 {s('so')}, {s('wqcol')}, {i * 64 * WROW}")
        def d(E): E.vmem(f"buffer_load_dwordx4 v{V_WQ}, {srd(SRD_Q)}, {s('so')} offen lds", "WQ")
        ops += [(setup, 's'), (d, 'v')]
    return ops

def build(opt):
    global OPT
    OPT = opt
    E = Emit()
    E.do_stamp = bool(opt.get("stamp"))
    if isinstance(opt.get("stamp"), str): E.stamp_sel = set(opt["stamp"].split("+"))
    global HSC, WQE
    HSC = "" if opt.get("hplain") else " sc1"
    WQE = bool(opt.get("wqe", 1))
    st = Stream()
    G = Gelu(st)
    side = Side()
    E.stamp("start")
    prologue(E, opt)
    TH2 = opt.get("th2", 0)
    coop = opt.get("coop", 0) if not TH2 else 0
    if coop == 1:
        coop_setup(E); coop_touch(E, 0)
    if TH2: issue_xp(E, 0, 0, 0)
    else:
        issue_x(E, 0); issue_x(E, 1)
    E.stamp("i1")
    if coop >= 2:
        coop_setup(E); E.raw(f"s_add_u32 {s('tA')}, {s('tA')}, {s('tB')}")
    prologue_w(E)
    issue_w1_slot(E, 0, 0)
    nonce_write(E)
    if coop == 1 or coop == 3: coop_touch(E, 1)
    if TH2:
        issue_xp(E, 1, 0, 1); issue_xp(E, 2, 0, 2)
    else:
        issue_x(E, 2); issue_x(E, 3)
    if coop == 3: coop_touch(E, 2)
    setupA(E)
    issue_w1_slot(E, 0, 1)
    if coop == 2: coop_touch(E, 1)
    if coop == 1 or coop == 2: coop_touch(E, 2)
    NCOMB = opt.get("ncomb", 8)
    if TH2:
        E.wait(vm="X0_0")
        E.stamp("x01")
        for t_, tg in read_xp(0, 0, 0): E.ds(t_, tg)
        E.wait(ds=0)
        issue_xp(E, 3, 0, 0)
        E.wait(vm="W0_0", barrier=True)
        for t_, tg in areads_half(0, 0, 0, 0): E.ds(t_, tg)
    else:
        E.wait(vm=["X0", "X1"])
        E.stamp("x01")
        for r in read_x(E, 0): E.ds(r)
        E.wait(ds=0)
        issue_x(E, 4); issue_x(E, 5)
        E.wait(vm="W0_0", barrier=True)
        for r in areads_w1(0, 0, par=0): E.ds(r)
    E.stamp("P0go")
    SG = (9, 11, 13)
    NA, NB, NC, ND = nonce_ops()
    prev = None
    setup_items = []
    for grp in setupB():
        prev = st.add(grp, min(2, grp.count("\n") + 1), [(prev, 0)] if prev else [])
        setup_items.append(prev)
    FULL = False
    l1_queued = 0
    p0_par = 0
    if TH2:
        p0ab(E, st, side, G, opt)
    else:
        steps = []
        for ks in range(18):
            steps.append(("A", ks))
            if ks < NCOMB: steps.append(("B", ks))
        def last_half(ks): return ("B", ks) if ks < NCOMB else ("A", ks)
        FULL = (NCOMB == 18)
        l1_queued = 0
        for n, (kind, ks) in enumerate(steps):
            par = n & 1
            bar = False; tags = []
            for c in range(1, 6):
                if (kind, ks) == last_half(3 * c - 1): bar = True; tags.append(f"W0_{c}")
            if FULL and (kind, ks) == ("B", 17): bar = True; tags.append("W1_0")
            E.wait(vm=(tags if tags else None), ds=0, barrier=bar)
            if bar and ks == 8:
                for sl in (4, 5):
                    for kk in range(3 * sl, 3 * sl + 3):
                        a, b, c = w1_ops(0, kk)
                        side.add([(a, 's'), (b, 'v'), (c, 'v')])
            if bar and ks >= 8:
                free = (ks + 1) // 3 if ks < NCOMB else min(NCOMB // 3, (ks + 1) // 3)
                free = min(free, 4 if ks < 14 else 6)
                while l1_queued < free:
                    for kk in range(3 * l1_queued, 3 * l1_queued + 3):
                        a, b, c = w1_ops(1, kk)
                        side.add([(a, 's'), (b, 'v'), (c, 'v')])
                    l1_queued += 1
            if kind == "A":
                if 1 <= ks <= 6:
                    issue_x(E, 2 * (ks + 2)); issue_x(E, 2 * (ks + 2) + 1)
                if ks == 1: issue_w1_slot(E, 0, 2)
                if ks == 3: issue_w1_slot(E, 0, 3)
                if ks == 11: st.flush(E)
                if ks == 12 and opt.get("tlb", 0): side.add(tlb_ops())
                if ks == 12 and opt.get("touch", 1):
                    side.add(touch_ops_wq())
                    if not FULL and not opt.get("tw1", 0): side.add(touch_ops_w1(1))
                if opt.get("tw1", 0) and ks == opt.get("tw1", 0):
                    assert setup_items[8].placed is not None, "touch registers not ready"
                    emit_ops(E, touch_ops_w1(1))
                if opt.get("tw45", 0) and ks == opt.get("tw45", 0):
                    assert setup_items[8].placed is not None, "touch registers not ready"
                    E.raw(f"v_mov_b32 v{V_T0}, {OOB}\nv_cmp_gt_u32 vcc, 24, v{V_LANE}\ns_and_b32 {s('t0')}, {s('mb')}, 3\ns_lshl_b32 {s('t0')}, {s('t0')}, 1\ns_add_u32 {s('t0')}, {s('t0')}, {s('kh')}")
                    E.raw(f"v_cndmask_b32 v{V_T0}, v{V_T0}, v{V_TROW}, vcc\ns_mul_i32 {s('t0')}, {s('t0')}, {24*WROW}\ns_add_u32 {s('t0')}, {s('t0')}, {s('w1col')}\ns_add_u32 {s('t0')}, {s('t0')}, {384*WROW}")
                    touch(E, V_T0, SRD_Q, s('t0'))
                if ks == 13: NA(E)
                if ks == 17 and not FULL: toggle_bases(E)
                E.stamp(f"P0k{ks}")
            if FULL and (kind, ks) == ("B", 15):
                NB(E)
            if FULL and (kind, ks) == ("A", 17 + 0): pass
            if n + 1 < len(steps):
                nk, nks = steps[n + 1]
                reads = areads_w1(0, nks, par=1 - par, alt=(nk == "B"))
            elif FULL:
                reads = areads_w1(0, 0, par=1 - par)
            else:
                reads = areads_w1(1, NCOMB, par=1 - par)
            if FULL and (kind, ks) == ("B", 17): NC(E)
            mf = gemm1_mf(V_BUF[0 if kind == "A" else 1], ks, ks == 0, par=par)
            if (kind, ks) == last_half(ks) and ks <= 7:
                xr = read_x(E, ks + 1)
                for i, m in enumerate(mf):
                    E.raw(m); st.tick()
                    if i < 8: E.ds(reads[i])
                    else:
                        if i == 8: E.wait(vm=[f"X{2*(ks+1)}", f"X{2*(ks+1)+1}"])
                        E.ds(xr[i - 8])
                    st.fill(E, 1)
            else:
                kstep(E, st, side, mf, reads, side_gaps=(8, 9, 10, 11, 12, 13, 14, 15) if ks >= 8 else ())
        st.flush(E)
        p0_par = len(steps) & 1
        E.stamp("P0end")
    if opt.get("abl") == "p1": E.raw("; MARK_ABL")
    RATE = float(opt.get("rate", 3.8))
    PB, PC, PD = opt.get("PB", 2), opt.get("PC", 9), opt.get("PD", 13)
    PUB4, PUB5 = opt.get("pub4", 5), opt.get("pub5", 9)
    def plan_tail():
        G2 = 432
        items = []
        if WQE: items.append(("WQ", wq_ops(4, 9), 20 * RATE, 32, 272 - 30))
        else: items.append(("WQ", wq_ops(), 36 * RATE, 80, 272 - 30))
        de = {0: 128, 1: 128, 2: 176, 3: 224, 4: 272, 5: 272, 6: 424, 7: 424}
        for u in range(18):
            e = de[u] if u < 8 else G2 + 36 * (u - 7)
            dl = 424 if u == 0 else G2 + 36 * (u - 1) + 24
            items.append((f"D{u}", wd_ops(u), 6.15 * RATE, e, dl))
        for u in range(18):
            if u <= 6: e = 288 + 8 * (u + 1) + 2
            else: e = G2 + 36 * (u - 6)
            if 8 <= u <= 11: e = max(e, G2 + 36 * PB)
            if 12 <= u <= 15: e = max(e, G2 + 36 * PC)
            if u >= 16: e = max(e, G2 + 36 * PD)
            dl = G2 + 36 * u
            if u >= 16: dl = G2 + 36 * (u - OPT.get("hlead", 2))
            items.append((f"H{u}", h_ops(u), 4 * RATE, e, dl))
        clock = 32 if WQE else 80
        order = []
        rem = list(items)
        while rem:
            legal = [it for it in rem if it[3] <= clock]
            if not legal:
                clock = min(it[3] for it in rem); continue
            it = min(legal, key=lambda x: x[4])
            rem.remove(it)
            order.append((it, clock))
            if clock + it[2] > it[4] and not it[0].startswith("H1"): print(f"; plan: {it[0]} start {clock:.0f} end {clock+it[2]:.0f} deadline {it[4]} LATE", file=sys.stderr)
            clock += it[2]
        side.clock = 0
        def gate_of(name):
            u = int(name[1:]) if name != "WQ" else None
            if name == "WQ": return ["P3bar2" if WQE else "P3bar5"]
            if name[0] == "D":
                if u < 8: return [{0: "P3bar8", 1: "P3bar8", 2: "P3bar11", 3: "P3bar14", 4: "P3bar17", 5: "P3bar17", 6: "PQbar17", 7: "PQbar17"}[u]]
                return [f"G2bar{u-8}"]
            g = ["pollA" if u < 8 else "pollB" if u < 12 else "pollC" if u < 16 else "pollD"]
            g.append(f"PQdone{u}" if u <= 6 else f"G2done{u-7}")
            return g
        for it, c in order:
            gates = gate_of(it[0])
            ops = []
            for o in it[1]:
                if o[1] == 'v':
                    def w(E, f=o[0], gates=gates, nm=it[0]):
                        for g_ in gates: assert g_ in E.events, f"{nm} emitted before {g_}"
                        f(E)
                    ops.append((w, 'v'))
                else: ops.append(o)
            side.add_rated(ops, it[2], earliest=c)
    if FULL:
        E.wait(ds=0); ND(E)
        E.raw(f"s_add_u32 {s('so2')}, {s('hst')}, 0")
        G.full_pass(V_BUF[0], hstore_fn(0))
        st.flush(E)
        E.stamp("P1end")
    for p in ((2, 3) if (FULL or TH2) else (1, 2, 3)):
        line, ph = p >> 1, p & 1
        buf = V_BUF[p & 1]
        E.raw(f"s_add_u32 {s('so2')}, {s('hst')}, {(p - 1) * H_KS}")
        if not (TH2 and p == 2): G.full_pass(V_BUF[(p - 1) & 1], hstore_fn(p - 1))
        if p == 3:
            assert side.empty()
            side.m = 0
            plan_tail()
        for ks in range(NCOMB if p == 1 else 0, 18):
            par = (ks & 1) if p > 1 else ((p0_par + ks - NCOMB) & 1)
            bar = (ks % 3 == 2)
            tags = []
            if bar:
                if p == 1 and ks == 17: tags.append("W1_0")
                if p == 2 and ks < 17:
                    if opt.get("p2bar", 0):
                        if ks == 2: tags += ["W1_1", "W1_2"]
                        elif ks == 8: tags += ["W1_3", "W1_4", "W1_5"]
                        else: bar = False
                    else: tags.append(f"W1_{ks//3+1}")
                if p == 3 and ks == 17: tags.append("WQ")
                if p >= 2 and ks == 2: tags.append(f"HS{p-2}")
                if p == 2 and ks == 17: bar = False
            if p == 1 and ks == 14:
                NB(E)
            E.wait(vm=(tags if tags else None), ds=0, barrier=bar)
            if p == 3 and bar: E.events.add(f"P3bar{ks}")
            if p == 1 and ks == 14: NC(E)
            if p == 1 and ks == 15: ND(E)
            if bar:
                c = ks // 3
                if p >= 2 and ks == 2:
                    side.add_hi(publish_op(p - 1))
                    if opt.get("touch", 1):
                        if not TH2: side.add_hi(selftouch_op(p - 2))
                        elif p == 3: side.add_hi(selftouch_op(0)); side.add_hi(selftouch_op(1))
                    if TH2 and p == 2: side.add(l1_ops(3))
                if p == 1 and c >= l1_queued:
                    for kk in range(3 * c, 3 * c + 3):
                        a, b, d = w1_ops(1, kk)
                        side.add([(a, 's'), (b, 'v'), (d, 'v')])
            if p == 2 and ks == 6 and opt.get("touch", 1): side.add(touch_ops_wd())
            if p == 2 and ks == 9 and WQE: side.add(wq_ops(0, 4))
            if p == 3 and ks == 17 and WQE: E.raw(f"v_add_u32 v{V_AQ}, {SCRATCH}, v{V_AQ}")
            if p == 3 and ks == 15: side.add_hi(poll_issue("a"))
            if ks == 17 and p < 3: toggle_bases(E)
            if ks < 17: reads = areads_w1(ph, ks + 1, par=1 - par)
            elif p < 3: reads = areads_w1(1 - ph, 0, par=1 - par)
            else: reads = areads_q(0, 0)
            sg = SG
            if p == 3 and ks >= 5: sg = (8, 9, 11, 13, 15)
            kstep(E, st, side, gemm1_mf(buf, ks, ks == 0 and not (p == 1 and NCOMB > 0), par=par), reads, side_gaps=sg,
                  cap_extra=(1 if (p == 1 and NCOMB > 0 and st.pending_cost() > 19 * (17 - ks)) else 0))
        n = st.flush(E)
        if n: print(f"; note: pass {p}: GELU flush {n} gaps", file=sys.stderr)
        if p == 2: assert side.empty(), f"side not empty after pass {p}"
        E.stamp(f"P{p}end")
    E.raw(f"s_add_u32 {s('so2')}, {s('hst')}, {3 * H_KS}")
    G.full_pass(V_BUF[1], hstore_fn(3))
    bufq = V_BUF[0]
    for ks in range(18):
        bar = ks in (3, 17)
        tags = []
        if ks == 3: tags.append("HS2")
        if ks == 17: tags.append("D0")
        E.wait(vm=(tags if tags else None), ds=0, barrier=bar)
        if bar: E.events.add(f"PQbar{ks}")
        if ks >= 1: E.events.add(f"PQdone{ks-1}")
        if ks == 3:
            side.add_hi(publish_op(3))
            if opt.get("touch", 1): side.add_hi(selftouch_op(2))
        if ks == 1:
            poll_check(E, "a", 2); E.events.add("pollA")
        if ks == 7 and WQE: E.raw(f"v_subrev_u32 v{V_AQ}, {SCRATCH}, v{V_AQ}")
        mf = []
        for mat in range(2):
            a = vr(V_AR + 16 * (ks & 1) + 4 * mat)
            for tt in range(4):
                mf.append(mfma(bufq + mat * 16 + tt * 4, a, xreg(ks, tt), ks == 0))
        reads = areads_q(ks + 1, (ks + 1) & 1) if ks < 17 else areads_g2(0, 0, 0)
        kstep(E, st, side, mf, reads, side_gaps=(4, 5, 6, 7) if ks < 17 else (6, 7), cap_extra=opt.get("capq", 0))
    if opt.get("stop") == "g1":
        st.flush(E)
        G.quarter(bufq, hstoreq_fn)
        st.flush(E)
        side.q = []; side.hi = []
        E.wait_all()
        return finish(E)
    E.stamp("PQend")
    if opt.get("abl", "g2") == "g2": E.raw("; MARK_ABL")
    E.skew_on = True
    qadded = False
    sub_par = 0
    for t in range(18):
        for sub in range(3):
            tags = []
            bar = (sub == 2)
            if sub == 0: tags.append(f"H{t}")
            if bar and t < 17: tags.append(f"D{t+1}")
            pub = None
            if bar and t == PUB4: tags.append("HS3"); pub = 4
            if bar and t == PUB5: tags.append("HS4"); pub = 5
            E.wait(vm=(tags if tags else None), ds=0, barrier=bar)
            if bar: E.events.add(f"G2bar{t}")
            if sub == 0 and t >= 1: E.events.add(f"G2done{t-1}")
            if OPT.get("hchk") and sub == 0:
                for tt in range(4):
                    b = hreg(t, tt)
                    lab = E.label("hc")
                    E.raw(f"v_accvgpr_read_b32 v{V_T0}, a{b}\nv_accvgpr_read_b32 v{V_T1}, a{b+1}\nv_or_b32 v{V_T0}, v{V_T0}, v{V_T1}")
                    E.raw(f"v_accvgpr_read_b32 v{V_T1}, a{b+2}\nv_or_b32 v{V_T0}, v{V_T0}, v{V_T1}\nv_accvgpr_read_b32 v{V_T1}, a{b+3}\nv_or_b32 v{V_T0}, v{V_T0}, v{V_T1}")
                    E.raw(f"v_and_b32 v{V_T0}, 0x40004000, v{V_T0}\nv_cmp_ne_u32 vcc, 0, v{V_T0}\ns_nop 4\ns_cbranch_vccz {lab}")
                    E.raw(f"s_lshl_b32 {s('t0')}, s2, 2\ns_add_u32 {s('t0')}, {s('t0')}, {s('wave')}\ns_lshl_b32 {s('t0')}, {s('t0')}, 2\ns_add_u32 {s('t0')}, {s('t0')}, {61 << 20}")
                    E.raw(f"v_mov_b32 v{V_T1}, {t * 16 + tt + 1}\nv_mov_b32 v{V_T0}, 0")
                    E.raw(f"buffer_store_dword v{V_T1}, v{V_T0}, {srd(SRD_W)}, {s('t0')} offen\ns_waitcnt vmcnt(0)")
                    E.raw(f"{lab}:")
            if pub:
                side.add_hi(publish_op(pub))
                if pub == 4 and opt.get("touch", 1): side.add_hi(selftouch_op(3))
                if pub == 5 and opt.get("touchq", 0): side.add_hi(selftouchq_op())
            if sub == 0:
                if not qadded and st.pending() == 0:
                    G.quarter(bufq, hstoreq_fn); qadded = True
                if t == PB - 1: side.add_hi(poll_issue("b"))
                if t == PB: poll_check(E, "b", 3); E.events.add("pollB")
                if t == PC - 1: side.add_hi(poll_issue("c"))
                if t == PC: poll_check(E, "c", 4); E.events.add("pollC")
                if t == PD - 1: side.add_hi(poll_issue("d"))
                if t == PD: poll_check(E, "d", 5); E.events.add("pollD")
            mf = []
            for k in range(3):
                dt = 3 * sub + k
                a = vr(V_AR + 12 * sub_par + 4 * k)
                for tt in range(4):
                    mf.append(mfma(acc2(dt, tt), a, ar(hreg(t, tt)), t == 0, "a"))
            if sub < 2: reads = areads_g2(t, sub + 1, 1 - sub_par)
            elif t < 17: reads = areads_g2(t + 1, 0, 1 - sub_par)
            else: reads = []
            if t == 12 and sub == 0:
                prev = None
                for grp in final_setup(E):
                    prev = st.add(grp, 2, [(prev, 1)] if prev else [])
            if t == 17 and sub >= 1:
                for dt in range(3 * (sub - 1), 3 * sub):
                    for j in range(2):
                        st.add((lambda E, dt=dt, j=j: E.ds(f"ds_write_b128 v{V_RED}, {ar(acc2(dt, 2 + j))} offset:{(2*dt+j)*1024}")), 2, [])
                    for x in keep_reads(dt): st.add(x, 1, [])
                st.tick(); st.tick()
                E.raw("s_nop 3")
            kstep(E, st, side, mf, reads, side_gaps=(6, 7, 8, 9, 10, 11), cap_extra=(opt.get("capg", 1) if t < PUB5 else 0))
            if t == 17 and sub == 2: st.flush(E)
            sub_par = 1 - sub_par
        if E.stamp_sel is not None or t in (2, 5, 8, 11, 14, 17): E.stamp(f"G2t{t}")
        if t == PUB4 - 1:
            if E.vm.count("HS3") < 4: print(f"; note: flushing GELU(P3) at t={t}: {st.pending_cost()} slots", file=sys.stderr);
            while E.vm.count("HS3") < 4:
                st.tick(); E.raw("s_nop 0"); st.fill(E, 2)
        if t == PUB5 - 1:
            if not qadded:
                st.flush(E); G.quarter(bufq, hstoreq_fn); qadded = True
            if st.pending(): print(f"; note: flushing GELU(PQ) at t={t}: {st.pending_cost()} slots", file=sys.stderr)
            st.flush(E)
    assert side.empty(), "side ops left"
    E.raw("; MARK_END")
    E.skew_on = False
    final(E, opt)
    return finish(E)

FIRST = [0, 5, 10, 14]
CNT = [5, 5, 4, 4]
RED = 73728
V_PUB2 = 2
KEEP = 128
RCV = 40

def final_setup(E):
    T0, T1 = V_T0, V_T1
    L = V_LANE
    G = []
    G.append(f"s_mul_i32 {s('t0')}, {s('wave')}, 18432\ns_add_u32 {s('t0')}, {s('t0')}, {RED}\nv_add_u32 v{V_RED}, {s('t0')}, v{V_L16}")
    G.append(f"s_xor_b32 {s('t1')}, {s('wave')}, 2\ns_mul_i32 {s('t1')}, {s('t1')}, 18432\ns_add_u32 {s('t1')}, {s('t1')}, {RED}\nv_add_u32 v{V_RED2}, {s('t1')}, v{V_L16}")
    G.append(f"s_lshl_b32 {s('t0')}, {s('mb')}, 3\ns_add_u32 {s('t0')}, {s('t0')}, {s('jj')}\ns_lshl_b32 {s('t0')}, {s('t0')}, 2\ns_add_u32 {s('t0')}, {s('t0')}, {s('wave')}\n"
             f"s_mul_i32 {s('t0')}, {s('t0')}, {16*5120}\ns_add_u32 {s('t0')}, {s('t0')}, {WS_P}\n"
             f"s_mul_i32 {s('t1')}, {s('sk')}, 5120\ns_add_u32 {s('pst')}, {s('t0')}, {s('t1')}\n"
             f"s_mul_i32 {s('t1')}, {s('sk')}, {4*5120}\ns_add_u32 {s('pld')}, {s('t0')}, {s('t1')}")
    G.append(f"s_lshl_b32 {s('t0')}, {s('mb')}, 8\ns_and_b32 {s('t1')}, {s('jj')}, 1\ns_lshl_b32 {s('t1')}, {s('t1')}, 7\ns_add_u32 {s('t0')}, {s('t0')}, {s('t1')}\n"
             f"s_lshl_b32 {s('t1')}, {s('th')}, 6\ns_add_u32 {s('t0')}, {s('t0')}, {s('t1')}\ns_lshl_b32 {s('t1')}, {s('kh')}, 5\ns_add_u32 {s('t0')}, {s('t0')}, {s('t1')}\n"
             f"s_mul_i32 {s('t0')}, {s('t0')}, {XROW}\ns_lshr_b32 {s('t1')}, {s('jj')}, 1\ns_mul_i32 {s('t1')}, {s('t1')}, 288\ns_add_u32 {s('outb')}, {s('t0')}, {s('t1')}")
    G.append(f"v_and_b32 v{T0}, 15, v{L}\nv_mul_u32_u24 v{T0}, {XROW}, v{T0}")
    G.append(f"v_lshrrev_b32 v{T1}, 4, v{L}\nv_lshl_add_u32 v{V_OUT}, v{T1}, 3, v{T0}")
    G.append(f"s_lshl_b32 {s('t0')}, {s('mb')}, 5\ns_add_u32 {s('t0')}, {s('t0')}, {s('jj')}\ns_lshl_b32 {s('t0')}, {s('t0')}, 2\ns_add_u32 {s('t0')}, {s('t0')}, {s('wave')}\n"
             f"s_lshl_b32 {s('t0')}, {s('t0')}, 7\ns_add_u32 {s('t0')}, {s('t0')}, {WS_F + 32768}\n"
             f"s_lshl_b32 {s('t1')}, {s('sk')}, 12\ns_add_u32 {s('pf2')}, {s('t0')}, {s('t1')}\n"
             f"v_min_u32 v{T0}, 3, v{L}\n"
             f"v_lshlrev_b32 v{T0}, 12, v{T0}\nv_add_u32 v{V_FO}, {s('t0')}, v{T0}")
    G.append(f"v_cmp_eq_u32 vcc, 0, v{L}\nv_mov_b32 v{T0}, {OOB}\nv_mov_b32 v{T1}, 0\ns_nop 0\nv_cndmask_b32 v{V_PUB2}, v{T0}, v{T1}, vcc")
    return G

def red_write(E, dt):
    for j in range(2):
        E.ds(f"ds_write_b128 v{V_RED}, {ar(acc2(dt, 2 + j))} offset:{(2*dt+j)*1024}")
def keep_reads(dt):
    return [f"v_accvgpr_read_b32 v{KEEP + (2*dt+j)*4 + r}, a{acc2(dt, j) + r}" for j in range(2) for r in range(4)]

def final(E, opt):
    R = E.raw
    R("s_nop 7")
    for dt in (6, 7, 8):
        red_write(E, dt)
        for x in keep_reads(dt): R(x)
    E.wait(ds=0, barrier=True)
    for ph in range(18):
        E.ds(f"ds_read_b128 {vr(RCV + 4*ph)}, v{V_RED2} offset:{ph*1024}")
    base_vm = list(E.vm); base_done = E.vm_done; base_ds = E.ds_out
    labs = [E.label(f"fin{k}") for k in range(4)]
    end = E.label("finend")
    R(f"s_cmp_eq_u32 {s('sk')}, 1\ns_cbranch_scc1 {labs[1]}\ns_cmp_eq_u32 {s('sk')}, 2\ns_cbranch_scc1 {labs[2]}\ns_cmp_eq_u32 {s('sk')}, 3\ns_cbranch_scc1 {labs[3]}")
    for sv in range(4):
        E.vm = list(base_vm); E.vm_done = base_done; E.ds_out = base_ds
        R(f"{labs[sv]}:")
        own = list(range(FIRST[sv], FIRST[sv] + CNT[sv]))
        XBF = OPT.get("xbf", 1)
        order = [ph for ph in range(18) if ph not in own] + own
        done_ds = -1
        for n, ph in enumerate(order):
            need = ph
            if need > done_ds:
                left = 17 - need
                E.wait(ds=min(left, E.ds_out))
                done_ds = need
            for r in range(4):
                R(f"v_add_f32 v{KEEP + 4*ph + r}, v{KEEP + 4*ph + r}, v{RCV + 4*ph + r}")
            if ph not in own:
                dest = max(d for d in range(4) if FIRST[d] <= ph)
                sig = ph - FIRST[dest]
                if not XBF:
                    R(f"s_add_u32 {s('so')}, {s('pst')}, {dest*4*5120 + sig*1024}")
                    E.vmem(f"buffer_store_dwordx4 {vr(KEEP + 4*ph)}, v{V_L16}, {srd(SRD_W)}, {s('so')} offen sc1", "PSx")
                else:
                    pb = RCV + 4 * (ph - (sig & 1)) + 2 * (sig & 1)
                    R(f"v_cvt_pk_bf16_f32 v{pb}, v{KEEP+4*ph}, v{KEEP+4*ph+1}")
                    R(f"v_cvt_pk_bf16_f32 v{pb+1}, v{KEEP+4*ph+2}, v{KEEP+4*ph+3}")
                    lastsig = CNT[dest] - 1
                    if (sig & 1) == 1 or sig == lastsig:
                        base = RCV + 4 * (ph - (sig & 1))
                        R(f"s_add_u32 {s('so')}, {s('pst')}, {dest*4*5120 + (sig >> 1)*1024}")
                        E.vmem(f"buffer_store_dwordx4 {vr(base)}, v{V_L16}, {srd(SRD_W)}, {s('so')} offen sc1", "PSx")
        E.stamp("F_red")
        R("s_waitcnt vmcnt(0)")
        E.vm_done = len(E.vm)
        E.stamp("F_ps")
        publish_op(6, V_PUB2, "pf2")(E)
        poll_check(E, "f", 6, voff=V_FO, issued=False)
        E.vm_done = len(E.vm)
        E.stamp("F_poll")
        srcs = [k for k in range(4) if k != sv]
        LD = RCV
        if not XBF:
            for sig in range(CNT[sv]):
                for n, src in enumerate(srcs):
                    R(f"s_add_u32 {s('so')}, {s('pld')}, {src*5120 + sig*1024}")
                    E.vmem(f"buffer_load_dwordx4 {vr(LD + (sig*3+n)*4)}, v{V_L16}, {srd(SRD_W)}, {s('so')} offen sc1", f"PL{sig}" if n == 2 else "PLx")
        else:
            npair = (CNT[sv] + 1) // 2
            for k in range(npair):
                for n, src in enumerate(srcs):
                    R(f"s_add_u32 {s('so')}, {s('pld')}, {src*5120 + k*1024}")
                    E.vmem(f"buffer_load_dwordx4 {vr(LD + (k*3+n)*4)}, v{V_L16}, {srd(SRD_W)}, {s('so')} offen sc1", f"PL{k}" if n == 2 else "PLx")
        for sig in range(CNT[sv]):
            ph = FIRST[sv] + sig
            dt, j = ph >> 1, ph & 1
            R(f"s_add_u32 {s('so')}, {s('outb')}, {dt*32 + j*16*XROW}")
            b = KEEP + 4 * ph
            if not XBF:
                E.wait(vm=f"PL{sig}")
                for r in range(4):
                    a = [LD + (sig*3+n)*4 + r for n in range(3)]
                    R(f"v_add_f32 v{a[0]}, v{a[0]}, v{a[1]}")
                    R(f"v_add_f32 v{b+r}, v{b+r}, v{a[2]}")
                    R(f"v_add_f32 v{b+r}, v{b+r}, v{a[0]}")
            else:
                E.wait(vm=f"PL{sig >> 1}")
                TMP = 100
                for n in range(3):
                    for h in range(2):
                        src_r = LD + ((sig >> 1)*3+n)*4 + 2*(sig & 1) + h
                        R(f"v_lshlrev_b32 v{TMP}, 16, v{src_r}")
                        R(f"v_and_b32 v{TMP+1}, 0xffff0000, v{src_r}")
                        R(f"v_add_f32 v{b+2*h}, v{b+2*h}, v{TMP}")
                        R(f"v_add_f32 v{b+2*h+1}, v{b+2*h+1}, v{TMP+1}")
            R(f"v_cvt_pk_bf16_f32 v{b}, v{b}, v{b+1}")
            R(f"v_cvt_pk_bf16_f32 v{b+1}, v{b+2}, v{b+3}")
            E.vmem(f"buffer_store_dwordx2 {vr(b, 2)}, v{V_OUT}, {srd(SRD_O)}, {s('so')} offen{' sc1' if OPT.get('outsc1', 0) else ''}", "OUT")
        if sv < 3: R(f"s_branch {end}")
    R(f"{end}:")

def ablate(E):
    if not any(OPT.get(k) for k in ("x_nobar", "x_novm", "x_nogelu", "x_nods", "x_nowait", "x_nod", "x_noh", "x_novmw")): return
    out = []; on = False
    for l in E.L:
        if l.startswith("; MARK_ABL"): on = True
        if l.startswith("; MARK_END"): on = False
        if on:
            if OPT.get("x_nobar") and l.startswith("s_barrier"): continue
            if OPT.get("x_novm") and l.startswith("buffer_"): continue
            if OPT.get("x_novm") and l.startswith("s_waitcnt vmcnt"):
                l = re.sub(r"vmcnt\(\d+\) ?", "", l)
                if l.strip() == "s_waitcnt": continue
            if OPT.get("x_nod") and l.startswith("buffer_load_dwordx4 v") and l.endswith("lds"): continue
            if OPT.get("x_noh") and l.startswith("buffer_load_dwordx") and " a[" in l: continue
            if OPT.get("x_novmw") and l.startswith("s_waitcnt vmcnt"):
                l = re.sub(r"vmcnt\(\d+\) ?", "", l)
                if l.strip() == "s_waitcnt": continue
            if OPT.get("x_nogelu") and re.match(r"v_(mul_f32|fma_f32|exp_f32|rcp_f32|add_f32|cvt_pk)", l): continue
            if OPT.get("x_nods") and l.startswith("ds_read"): continue
        out.append(l)
    E.L = out

def finish(E):
    ablate(E)
    if E.do_stamp:
        E.raw("s_waitcnt vmcnt(0)")
        E.stamp("end")
        E.raw(f"s_lshl_b32 {s('t0')}, s2, 2\ns_add_u32 {s('t0')}, {s('t0')}, {s('wave')}\ns_lshl_b32 {s('t0')}, {s('t0')}, 7\ns_add_u32 {s('t0')}, {s('t0')}, {60 << 20}")
        E.raw(f"v_mov_b32 v{V_T1}, 0")
        for i in range(len(E.stamps)):
            E.raw(f"v_mov_b32 v{V_T0}, s{86+i}")
            E.raw(f"buffer_store_dword v{V_T0}, v{V_T1}, {srd(SRD_W)}, {s('t0')} offen offset:{4*i}")
        E.raw("s_waitcnt vmcnt(0)")
        print("STAMPS=" + ",".join(E.stamps), file=sys.stderr)
    E.raw("L_end:")
    E.raw("s_endpgm")
    for x in E.slow: E.raw(x)
    E.raw("s_endpgm")
    E.raw("L_codeend:")
    return E

def emit_file(opt):
    E = build(opt)
    hdr = open("standalone__glu_gated_geglu__prompt.s.ref").read().split("\n") if opt.get("hdr", True) else []
    out = []
    for l in hdr:
        if l.startswith("; @launch") or l.startswith("; Override") or l.startswith("; grid=") : continue
        if l.startswith(";"): out.append(l)
        else: break
    out.append(f"; @launch grid=(256,1,1) block=(256,1,1) lds={LDS_BYTES}")
    out.append('.amdgcn_target "amdgcn-amd-amdhsa--gfx950"')
    out.append(".text")
    out.append(f".globl {KNAME}")
    out.append(".p2align 8")
    out.append(f".type {KNAME},@function")
    out.append(f"{KNAME}:")
    out += E.L
    out.append(".fill 64, 4, 0xbf800000")
    out.append('.section .rodata,"a"')
    out.append(".p2align 6")
    out.append(f".amdhsa_kernel {KNAME}")
    out += ["  .amdhsa_next_free_vgpr 512", "  .amdhsa_next_free_sgpr 102", "  .amdhsa_accum_offset 256",
            "  .amdhsa_group_segment_fixed_size 0", "  .amdhsa_kernarg_size 56", "  .amdhsa_user_sgpr_count 2",
            "  .amdhsa_user_sgpr_kernarg_segment_ptr 1", "  .amdhsa_system_sgpr_workgroup_id_x 1",
            "  .amdhsa_float_denorm_mode_32 3",
            ".end_amdhsa_kernel"]
    return "\n".join(out) + "\n"

if __name__ == "__main__":
    opt = {}
    path = sys.argv[1] if len(sys.argv) > 1 else "k.s"
    for a in sys.argv[2:]:
        k, v = a.split("=")
        opt[k] = int(v) if v.lstrip("-").isdigit() else v
    open(path, "w").write(emit_file(opt))
```

```python
import sys, struct, re

KNAME = "standalone__glu_gated_geglu__prompt_kernel"
HSC = " sc1"
WQE = True
G2X = False
OPT = {}

DM, DF, NTOK = 576, 4608, 2048
XROW = DM * 2
WROW = DF * 2
LDS_BYTES = 163840
W1_KS = 8192
XST = 98304
WD_SLOT = 18432
SCRATCH = 147456
H_KS = 4096
WS_P = 32 << 20
WS_F = 56 << 20
WS_SIZE = 64 << 20
OOB = 0x40000000
GA = -2.0 * 0.7978845608028654 * 1.4426950408889634
GB = GA * 0.044715
SPIN_MAX = 400000

def f2u(x): return struct.unpack('<I', struct.pack('<f', x))[0]

S = {}
SRD_X, SRD_G, SRD_U, SRD_D, SRD_W, SRD_O, SRD_F, SRD_Q = 8, 12, 16, 20, 24, 28, 32, 36
def srd(b): return f"s[{b}:{b+3}]"
_n = 40
for nm in ["wave", "mb", "sk", "jj", "cu", "th", "kh", "xoff", "w1col", "wqcol", "hst", "hstq", "hldA", "hldB", "hlqA", "hlqB",
           "wd0", "wdq", "flagh", "t0", "t1", "t2", "t3", "t4", "t5", "m0w", "m0x", "m0q", "m0d", "m0d5", "kb", "pst", "pld",
           "outb", "spin", "phi0", "so", "so2", "pf", "tA", "tB", "pf2", "nonce"]:
    S[nm] = _n; _n += 1
assert _n <= 100
def s(n): return f"s{S[n]}"

V_LANE = 1
V_W1 = 2
V_WQ = 3
V_A = 4
V_AQ = 10
V_L16 = 11
V_L8 = 12
V_KA = 13
V_PUB = 14
V_ONE = 15
V_FL = 16
V_T0 = 17; V_T1 = 18; V_T2 = 19; V_T3 = 20
V_X = 21
V_XR = 25
V_WD = 27
V_HS = 32
V_GT = 40
N_GSET = 4
V_T128 = 56; V_T128H = 57; V_T128B = 58
V_TROW = 40; V_TROWB = 41; V_TROWQ = 42
V_PUBD = 43; V_NA = 44; V_NB = 45
V_FH = 59
V_A2 = 60
V_Z = 63
V_XO = 64
V_AR = 96
V_BUF = [128, 192]
V_FO = 21; V_OUT = 22; V_RED = 23; V_RED2 = 24

def xreg(ks, tt):
    i = ks * 4 + tt
    if i < 64: return f"a[{4*i}:{4*i+3}]"
    b = V_XO + 4 * (i - 64)
    return f"v[{b}:{b+3}]"
def hreg(t, tt):
    b = 16 * (t % 7) + 4 * tt
    return b
def acc2(dt, tt):
    b = 112 + 16 * dt + 4 * tt
    return b

def expected_count(tag):
    if tag.startswith("POLL") or tag.startswith("PUB"): return 1
    if tag == "WQ": return 9
    if tag == "NONCE": return 1
    if tag == "TCH": return -1
    if tag == "PS": return 18
    if tag in ("PSx", "PLx", "OUT"): return -1
    if tag.startswith("PL"): return 1
    if tag.startswith("HS"): return 4
    if tag[0] == "X": return 4
    if tag[0] == "W": return 6
    if tag[0] == "D": return 3 if G2X else 5
    if tag[0] == "H": return 4 if int(tag[1:]) < 16 else 8
    raise KeyError(tag)

class Emit:
    def __init__(self):
        self.L = []
        self.vm = []
        self.vm_done = 0
        self.dsq = []
        self.ds_done = 0
        self.slow = []
        self.nlab = 0
        self.do_stamp = False
        self.events = set()
        self.skew_on = False
        self.stamps = []
        self.stamp_sel = None
    def raw(self, t):
        for x in t.split("\n"):
            self.L.append(x)
    def vmem(self, text, tag):
        self.L.append(text)
        self.vm.append(tag)
    @property
    def ds_out(self): return len(self.dsq) - self.ds_done
    @ds_out.setter
    def ds_out(self, n):
        if n == 0: self.ds_done = len(self.dsq)
        elif n < self.ds_out: self.ds_done = len(self.dsq) - n
        else:
            self.ds_done = len(self.dsq) - n
    def ds(self, text, tag=None):
        if self.ds_out >= 15:
            self.L.append("s_waitcnt lgkmcnt(10)")
            self.ds_out = 10
        self.L.append(text)
        self.dsq.append(tag)
    def wait_dstag(self, tag):
        idx = max(i for i, t in enumerate(self.dsq) if t == tag)
        if idx < self.ds_done: return
        n = min(len(self.dsq) - 1 - idx, 15)
        self.L.append(f"s_waitcnt lgkmcnt({n})")
        self.ds_done = len(self.dsq) - n
    def _vmN(self, tags):
        idx = -1
        for tg in tags:
            exp = expected_count(tg)
            got = self.vm.count(tg)
            if exp < 0: continue
            assert got == exp, f"wait on {tg}: {got} ops issued, expected {exp}"
        for i, t in enumerate(self.vm):
            if t in tags: idx = i
        assert idx >= 0, f"no vmem op with tags {tags}"
        if idx < self.vm_done: return None
        return min(len(self.vm) - 1 - idx, 63)
    def wait(self, vm=None, ds=None, barrier=False):
        parts = []
        if vm is not None:
            if isinstance(vm, str): vm = [vm]
            n = self._vmN(set(vm))
            if n is not None:
                parts.append(f"vmcnt({n})")
                self.vm_done = max(self.vm_done, len(self.vm) - n)
        if ds is not None and self.ds_out > ds:
            parts.append(f"lgkmcnt({ds})")
            self.ds_out = ds
        if parts:
            self.L.append("s_waitcnt " + " ".join(parts))
        if barrier:
            self.L.append("s_barrier")
            if OPT.get("skew") and self.skew_on:
                for k in range(1, 4):
                    lab = self.label("sk")
                    self.L.append(f"s_cmp_ge_u32 {s('wave')}, {k}")
                    self.L.append(f"s_cbranch_scc0 {lab}")
                    self.L.append(f"s_nop {OPT['skew']}")
                    self.L.append(f"{lab}:")
    def wait_all(self):
        self.L.append("s_waitcnt vmcnt(0) lgkmcnt(0)")
        self.vm_done = len(self.vm); self.ds_out = 0
    def assert_done(self, tag):
        found = False
        for i, t in enumerate(self.vm):
            if t == tag:
                found = True
                assert i < self.vm_done, f"tag {tag} not complete"
        assert found, f"tag {tag} never issued"
    def issued(self, tag):
        return tag in self.vm
    def stamp(self, name):
        if not self.do_stamp: return
        if self.stamp_sel is not None and name not in self.stamp_sel and name not in ("start", "end"): return
        if name in self.stamps: idx = self.stamps.index(name)
        else:
            idx = len(self.stamps)
            assert idx < 16
            self.stamps.append(name)
        self.L.append("s_memtime s[84:85]" if OPT.get("cyc") else "s_memrealtime s[84:85]")
        self.L.append("s_waitcnt lgkmcnt(0)")
        self.ds_out = 0
        self.L.append(f"s_mov_b32 s{86+idx}, s84")
    def label(self, base):
        self.nlab += 1
        return f"L_{base}_{self.nlab}"

class Item:
    def __init__(self, text, cost, deps=()):
        self.text = text; self.cost = cost; self.deps = list(deps); self.placed = None

class Stream:
    def __init__(self):
        self.items = []; self.head = 0; self.gap = 0
    def add(self, text, cost, deps=()):
        it = Item(text, cost, deps); self.items.append(it); return it
    def pending(self):
        return sum(1 for it in self.items[self.head:] if it.placed is None)
    def pending_cost(self):
        return sum(it.cost for it in self.items[self.head:] if it.placed is None)
    def tick(self):
        self.gap += 1
    def fill(self, E, cap, window=48):
        used = 0
        while used < cap:
            while self.head < len(self.items) and self.items[self.head].placed is not None:
                self.head += 1
            pick = None
            for it in self.items[self.head:self.head + window]:
                if it.placed is not None or it.cost > cap - used: continue
                if all(d.placed is not None and self.gap >= d.placed + delta for d, delta in it.deps):
                    pick = it; break
            if pick is None: break
            pick.placed = self.gap
            if callable(pick.text): pick.text(E)
            else: E.raw(pick.text)
            used += pick.cost
        return used
    def flush(self, E):
        n = 0
        while self.pending():
            self.tick()
            E.raw("s_nop 0")
            self.fill(E, 4)
            n += 1
        return n

class Gelu:
    def __init__(self, st):
        self.st = st
        self.pairno = 0
        self.set_last = [None] * N_GSET
        self.nset = N_GSET
        self.stg = 0
        self.stg_last = [None, None]
    def pair(self, g0, u0, g1, u1, dst):
        st = self.st
        k = self.pairno % self.nset; self.pairno += 1
        T0, T1, G0, G1 = [V_GT + 4 * k + i for i in range(4)]
        prev = [(self.set_last[k], 0)] if self.set_last[k] is not None else []
        sprev = dst[1]
        a0 = st.add(f"v_mul_f32 v{T0}, v{g0}, v{g0}", 1, prev)
        a1 = st.add(f"v_mul_f32 v{T1}, v{g1}, v{g1}", 1, prev)
        b0 = st.add(f"v_fma_f32 v{T0}, v{T0}, {s('kb')}, v{V_KA}", 1, [(a0, 0)])
        b1 = st.add(f"v_fma_f32 v{T1}, v{T1}, {s('kb')}, v{V_KA}", 1, [(a1, 0)])
        c0 = st.add(f"v_mul_f32 v{T0}, v{T0}, v{g0}", 1, [(b0, 0)])
        c1 = st.add(f"v_mul_f32 v{T1}, v{T1}, v{g1}", 1, [(b1, 0)])
        e0 = st.add(f"v_exp_f32 v{T0}, v{T0}", 2, [(c0, 0)])
        e1 = st.add(f"v_exp_f32 v{T1}, v{T1}", 2, [(c1, 0)])
        m0 = st.add(f"v_mul_f32 v{G0}, v{g0}, v{u0}", 1, prev)
        m1 = st.add(f"v_mul_f32 v{G1}, v{g1}, v{u1}", 1, prev)
        d0 = st.add(f"v_add_f32 v{T0}, 1.0, v{T0}", 1, [(e0, 1)])
        d1 = st.add(f"v_add_f32 v{T1}, 1.0, v{T1}", 1, [(e1, 1)])
        r0 = st.add(f"v_rcp_f32 v{T0}, v{T0}", 2, [(d0, 0)])
        r1 = st.add(f"v_rcp_f32 v{T1}, v{T1}", 2, [(d1, 0)])
        h0 = st.add(f"v_mul_f32 v{G0}, v{G0}, v{T0}", 1, [(r0, 1), (m0, 0)])
        h1 = st.add(f"v_mul_f32 v{G1}, v{G1}, v{T1}", 1, [(r1, 1), (m1, 0)])
        pk = st.add(f"v_cvt_pk_bf16_f32 v{dst[0]}, v{G0}, v{G1}", 1, [(h0, 0), (h1, 0)] + ([(sprev, 2)] if sprev is not None else []))
        self.set_last[k] = pk
        return pk
    def full_pass(self, buf, store_fn):
        last = None
        for tt in range(4):
            sg = self.stg % 2; self.stg += 1
            base = V_HS + 4 * sg
            pks = []
            for grp in range(2):
                for hp in range(2):
                    g = buf + (grp * 2 + 0) * 16 + tt * 4 + 2 * hp
                    u = buf + (grp * 2 + 1) * 16 + tt * 4 + 2 * hp
                    pks.append(self.pair(g, u, g + 1, u + 1, (base + grp * 2 + hp, self.stg_last[sg])))
            stt = self.st.add((lambda E, tt=tt, base=base: store_fn(E, tt, base)), 2, [(p, 1) for p in pks])
            self.stg_last[sg] = stt
            last = stt
        return last
    def half_pass(self, buf, half, store_fn):
        for pp in range(2):
            for tq in range(2):
                sg = self.stg % 2; self.stg += 1
                base = V_HS + 4 * sg
                pks = []
                for grp in range(2):
                    g_ = 2 * pp + grp
                    for hp in range(2):
                        g = buf + ((g_ * 2 + 0) * 2 + tq) * 4 + 2 * hp
                        u = buf + ((g_ * 2 + 1) * 2 + tq) * 4 + 2 * hp
                        pks.append(self.pair(g, u, g + 1, u + 1, (base + grp * 2 + hp, self.stg_last[sg])))
                stt = self.st.add((lambda E, pp=pp, tt=2 * half + tq, base=base: store_fn(E, pp, tt, base)), 2, [(p, 1) for p in pks])
                self.stg_last[sg] = stt
    def quarter(self, buf, store_fn):
        last = None
        for tt in range(4):
            sg = self.stg % 2; self.stg += 1
            base = V_HS + 4 * sg
            pks = []
            for hp in range(2):
                g = buf + tt * 4 + 2 * hp
                u = buf + 16 + tt * 4 + 2 * hp
                pks.append(self.pair(g, u, g + 1, u + 1, (base + hp, self.stg_last[sg])))
            stt = self.st.add((lambda E, tt=tt, base=base: store_fn(E, tt, base)), 2, [(p, 1) for p in pks])
            self.stg_last[sg] = stt
            last = stt
        return last

def mfma(d, a, b, first, dpre="v"):
    c = "0" if first else f"{dpre}[{d}:{d+3}]"
    return f"v_mfma_f32_16x16x32_bf16 {dpre}[{d}:{d+3}], {a}, {b}, {c}"

def vr(b, n=4): return f"v[{b}:{b+n-1}]"
def ar(b, n=4): return f"a[{b}:{b+n-1}]"

def prologue(E, opt):
    R = E.raw
    L = V_LANE
    T0, T1, T2, T3 = V_T0, V_T1, V_T2, V_T3
    R("s_cmp_ge_u32 s2, 256")
    R("s_cbranch_scc1 L_end")
    R("s_load_dwordx4 s[4:7], s[0:1], 0")
    R("s_load_dwordx4 s[16:19], s[0:1], 16")
    R("s_load_dwordx4 s[28:31], s[0:1], 32")
    R("s_load_dwordx2 s[24:25], s[0:1], 48")
    R("s_memrealtime s[84:85]")
    R(f"v_and_b32 v{L}, 63, v0")
    R(f"v_lshrrev_b32 v{T0}, 6, v0")
    R(f"v_cmp_eq_u32 vcc, 0, v0")
    R(f"v_readfirstlane_b32 {s('wave')}, v{T0}")
    R(f"v_mov_b32 v{T0}, {OOB}")
    R(f"v_mov_b32 v{T1}, 0")
    R(f"v_lshlrev_b32 v{V_T128}, 7, v{L}")
    R(f"v_cndmask_b32 v{V_PUB}, v{T0}, v{T1}, vcc")
    if opt.get("tcode", 1):
        R(f"s_getpc_b64 s[36:37]")
        R(f"L_pc:")
        R(f"s_sub_u32 s36, s36, L_pc-{KNAME}\ns_subb_u32 s37, s37, 0")
        R(f"s_mov_b32 s38, L_codeend-{KNAME}\ns_mov_b32 s39, 0x20000")
        R(f"s_lshr_b32 {s('t0')}, s2, 1\ns_and_b32 {s('t0')}, {s('t0')}, 4\ns_add_u32 {s('t0')}, {s('t0')}, {s('wave')}\ns_lshl_b32 {s('t0')}, {s('t0')}, 13")
        E.vmem(f"buffer_load_dword v{V_DUM}, v{V_T128}, s[36:39], {s('t0')} offen", "TCH")
    R(f"s_and_b32 {s('sk')}, s2, 3")
    R(f"s_lshr_b32 {s('t0')}, s2, 2\ns_and_b32 {s('t0')}, {s('t0')}, 1")
    R(f"s_lshr_b32 {s('t1')}, s2, 3")
    R(f"s_and_b32 {s('jj')}, {s('t1')}, 7")
    R(f"s_lshr_b32 {s('t1')}, {s('t1')}, 3")
    R(f"s_lshl_b32 {s('mb')}, {s('t0')}, 2\ns_add_u32 {s('mb')}, {s('mb')}, {s('t1')}")
    R(f"s_lshl_b32 {s('t0')}, {s('mb')}, 2\ns_add_u32 {s('t0')}, {s('t0')}, {s('wave')}\ns_mul_i32 {s('xoff')}, {s('t0')}, {64*XROW}")
    R(f"s_lshl_b32 {s('m0x')}, {s('wave')}, {12 if opt.get('th2', 0) else 14}\ns_add_u32 {s('m0x')}, {s('m0x')}, {XST}")
    R(f"v_lshrrev_b32 v{T0}, 3, v{L}")
    R(f"v_and_b32 v{T1}, 7, v{L}")
    R(f"v_lshrrev_b32 v{T2}, 1, v{T0}")
    R(f"v_xor_b32 v{T2}, v{T2}, v{T1}")
    R(f"v_mul_u32_u24 v{T3}, {XROW}, v{T0}")
    R(f"v_lshl_add_u32 v{V_X}, v{T2}, 4, v{T3}")
    R(f"v_xor_b32 v{V_X+1}, 64, v{V_X}")
    R(f"v_add_u32 v{V_X+2}, {2*(8*XROW-1024)}, v{V_X}")
    R(f"v_add_u32 v{V_X+3}, {3*(8*XROW-1024)}, v{V_X+1}")
    R(f"v_add_u32 v{V_X+1}, {1*(8*XROW-1024)}, v{V_X+1}")
    R(f"s_and_b32 {s('th')}, {s('wave')}, 1\ns_lshr_b32 {s('kh')}, {s('wave')}, 1")
    R(f"v_and_b32 v{T2}, 2, v{T0}")
    R(f"v_xor_b32 v{T2}, v{T2}, v{T1}")
    R(f"s_lshl_b32 {s('t0')}, {s('th')}, 2")
    R(f"v_xor_b32 v{T2}, {s('t0')}, v{T2}")
    R(f"v_mul_u32_u24 v{T3}, {WROW}, v{T0}")
    R(f"v_lshl_add_u32 v{V_W1}, v{T2}, 4, v{T3}")
    R(f"s_mul_i32 {s('t0')}, {s('wave')}, {8*WROW}")
    R(f"v_add_u32 v{V_W1}, {s('t0')}, v{V_W1}")
    R(f"s_mul_i32 {s('t0')}, {s('sk')}, 2304")
    R(f"s_lshl_b32 {s('t1')}, {s('jj')}, 8\ns_add_u32 {s('w1col')}, {s('t0')}, {s('t1')}")
    R(f"s_lshl_b32 {s('m0w')}, {s('wave')}, 11")
    R("s_waitcnt lgkmcnt(0)")
    E.stamp("karg")
    R(f"s_mov_b32 s8, s4\ns_mov_b32 s9, s5\ns_mov_b32 s10, {NTOK*XROW}\ns_mov_b32 s11, 0x20000")

V_TCH = 48
def coop_setup(E):
    R = E.raw; L = V_LANE
    lx = E.label("cx"); le = E.label("ce")
    R(f"s_lshr_b32 {s('t0')}, s2, 3\ns_lshl_b32 {s('t0')}, {s('t0')}, 2\ns_add_u32 {s('t0')}, {s('t0')}, {s('wave')}")
    R(f"s_mov_b32 s36, s4\ns_mov_b32 s37, s5\ns_mov_b32 s38, {NTOK*XROW}\ns_mov_b32 s39, 0x20000")
    R(f"v_mul_u32_u24 v{V_T0}, {XROW}, v{L}")
    R(f"s_cmp_lt_u32 {s('t0')}, 64")
    R(f"s_cbranch_scc1 {lx}")
    R(f"s_sub_u32 {s('t0')}, {s('t0')}, 64\ns_cmp_lt_u32 {s('t0')}, 32")
    R(f"s_cselect_b32 s36, s6, s16\ns_cselect_b32 s37, s7, s17\ns_mov_b32 s38, {DM*WROW}")
    R(f"s_and_b32 {s('t1')}, {s('t0')}, 3\ns_mul_i32 {s('t1')}, {s('t1')}, {48*WROW}")
    R(f"s_lshr_b32 {s('t2')}, {s('t0')}, 2\ns_and_b32 {s('t2')}, {s('t2')}, 7\ns_lshl_b32 {s('t2')}, {s('t2')}, 8\ns_add_u32 {s('t1')}, {s('t1')}, {s('t2')}")
    R(f"s_mul_i32 {s('t2')}, {s('sk')}, 2304\ns_add_u32 {s('tA')}, {s('t1')}, {s('t2')}\ns_mov_b32 {s('tB')}, {192*WROW}")
    R(f"v_mul_u32_u24 v{V_TCH}, {WROW}, v{L}")
    R(f"s_branch {le}")
    R(f"{lx}:")
    R(f"s_lshr_b32 {s('t1')}, {s('t0')}, 4\ns_and_b32 {s('t2')}, {s('mb')}, 4\ns_add_u32 {s('t1')}, {s('t1')}, {s('t2')}\ns_lshl_b32 {s('t1')}, {s('t1')}, 8")
    R(f"s_and_b32 {s('t2')}, {s('t0')}, 15\ns_lshl_b32 {s('t2')}, {s('t2')}, 4\ns_add_u32 {s('t1')}, {s('t1')}, {s('t2')}\ns_mul_i32 {s('tA')}, {s('t1')}, {XROW}\ns_mov_b32 {s('tB')}, 384")
    R(f"v_mul_u32_u24 v{V_T0}, 21846, v{L}\nv_lshrrev_b32 v{V_T0}, 16, v{V_T0}")
    R(f"v_mul_u32_u24 v{V_T1}, 3, v{V_T0}\nv_sub_u32 v{V_T1}, v{L}, v{V_T1}")
    R(f"v_mul_u32_u24 v{V_T0}, {XROW}, v{V_T0}\nv_lshl_add_u32 v{V_TCH}, v{V_T1}, 7, v{V_T0}")
    R(f"{le}:")
    R(f"v_mov_b32 v{V_T0}, {OOB}\nv_cmp_gt_u32 vcc, 48, v{L}\ns_nop 1\nv_cndmask_b32 v{V_TCH}, v{V_T0}, v{V_TCH}, vcc")

def coop_touch(E, g):
    E.vmem(f"buffer_load_dword v{V_DUM}, v{V_TCH}, s[36:39], {s('tA')} offen", "TCH")
    if g < 2: E.raw(f"s_add_u32 {s('tA')}, {s('tA')}, {s('tB')}")

def prologue_w(E):
    R = E.raw
    R(f"s_mov_b32 s12, s6\ns_mov_b32 s13, s7\ns_mov_b32 s14, {DM*WROW}\ns_mov_b32 s15, 0x20000")
    R(f"s_mov_b32 s20, s18\ns_mov_b32 s21, s19\ns_mov_b32 s22, {DF*XROW}\ns_mov_b32 s23, 0x20000")
    R(f"s_sub_u32 s16, s16, 1024\ns_subb_u32 s17, s17, 0\ns_mov_b32 s18, {DM*WROW+1024}\ns_mov_b32 s19, 0x20000")
    R(f"s_mov_b32 s32, s30\ns_mov_b32 s33, s31\ns_mov_b32 s34, 256\ns_mov_b32 s35, 0x20000")
    R(f"s_mov_b32 s30, {NTOK*XROW}\ns_mov_b32 s31, 0x20000")
    R(f"s_mov_b32 s26, {WS_SIZE}\ns_mov_b32 s27, 0x20000")

def issue_x(E, piece):
    c, hf = piece >> 1, piece & 1
    E.raw(f"s_add_u32 m0, {s('m0x')}, {(piece % 4) * 4096}")
    E.raw(f"s_add_u32 {s('so2')}, {s('xoff')}, {hf * 32 * XROW + c * 128}")
    for u in range(4):
        E.vmem(f"buffer_load_dwordx4 v{V_X+u}, {srd(SRD_X)}, {s('so2')} offen offset:{u*1024} lds", f"X{piece}")

def w1_ops(line, ks):
    def setup(E):
        E.raw(f"s_add_u32 m0, {s('m0w')}, {ks * W1_KS}")
        E.raw(f"s_add_u32 {s('so')}, {s('w1col')}, {ks * 32 * WROW + line * 128}")
    def g(E): E.vmem(f"buffer_load_dwordx4 v{V_W1}, {srd(SRD_G)}, {s('so')} offen lds", f"W{line}_{ks//3}")
    def u(E): E.vmem(f"buffer_load_dwordx4 v{V_W1}, {srd(SRD_U)}, {s('so')} offen offset:1024 lds", f"W{line}_{ks//3}")
    return setup, g, u

def issue_w1_slot(E, line, slot):
    for ks in range(3 * slot, 3 * slot + 3):
        a, b, c = w1_ops(line, ks)
        a(E); b(E); c(E)

def read_x(E, chunk):
    out = []
    for hf in range(2):
        piece = 2 * chunk + hf
        for h in range(2):
            for tp in range(2):
                ks = 2 * chunk + h
                tt = 2 * hf + tp
                out.append(f"ds_read_b128 {xreg(ks, tt)}, v{V_XR + h} offset:{(piece % 4) * 4096 + tp * 2048}")
    return out

def areads_w1(ph, ks, par=None, alt=False):
    out = []
    reg, kk = divmod(ks, 6)
    if par is None: par = ks & 1
    for f in range(4):
        grp, mat = f >> 1, f & 1
        d = V_AR + 16 * par + 4 * f
        base = (V_AB if alt else V_A) + 2 * reg + grp
        for sec in range(2):
            out.append(f"ds_read_b64_tr_b16 v[{d+2*sec}:{d+2*sec+1}], v{base} offset:{kk*W1_KS + mat*1024 + sec*512}")
    return out

def areads_q(ks, par):
    out = []
    kk = (ks if ks < 8 else ks - 8) if WQE else ks
    for mat in range(2):
        d = V_AR + 16 * par + 4 * mat
        for sec in range(2):
            out.append(f"ds_read_b64_tr_b16 v[{d+2*sec}:{d+2*sec+1}], v{V_AQ} offset:{kk*2048 + mat*1024 + sec*256}")
    return out

def areads_g2(t, sub, par):
    if G2X:
        slot = (t + 3) % 16
        reg, sl = divmod(slot, 6)
        out = []
        for k in range(3):
            dt = 3 * sub + k
            d = V_AR + 12 * par + 4 * k
            for sec in range(2):
                out.append(f"ds_read_b64_tr_b16 v[{d+2*sec}:{d+2*sec+1}], v{V_A2+reg} offset:{sl*9216 + dt*32 + sec*4608}")
        return out
    slot = (t + 2) % 8
    reg, sl = divmod(slot, 3)
    out = []
    for k in range(3):
        dt = 3 * sub + k
        d = V_AR + 12 * par + 4 * k
        for sec in range(2):
            out.append(f"ds_read_b64_tr_b16 v[{d+2*sec}:{d+2*sec+1}], v{V_A2+reg} offset:{sl*WD_SLOT + dt*32 + sec*4608}")
    return out

def kap(t):
    return 4 * (t & 3) + (t >> 2)

def wd_ops(t):
    if G2X:
        slot = (t + 3) % 16
        def setup(E):
            E.raw(f"s_add_u32 m0, {s('m0d')}, {slot * 9216}")
            if t < 16: E.raw(f"s_add_u32 {s('so')}, {s('wd0')}, {32 * kap(t) * XROW}")
            else: E.raw(f"s_add_u32 {s('so')}, {s('wdq')}, {32 * (t - 16) * XROW}")
        def d0(E): E.vmem(f"buffer_load_dwordx4 v{V_WD}, {srd(SRD_D)}, {s('so')} offen lds", f"D{t}")
        def s1(E): E.raw(f"s_add_u32 m0, {s('m0d')}, {slot * 9216 + 4096}")
        def d1(E): E.vmem(f"buffer_load_dwordx4 v{V_WD+1}, {srd(SRD_D)}, {s('so')} offen lds", f"D{t}")
        def s2(E): E.raw(f"s_add_u32 m0, {s('m0d5')}, {slot * 9216}")
        def d2(E):
            E.raw("s_mov_b64 exec, 0xffff")
            E.vmem(f"buffer_load_dwordx4 v{V_WD+2}, {srd(SRD_D)}, {s('so')} offen lds", f"D{t}")
            E.raw("s_mov_b64 exec, -1")
        return [(setup, 's'), (d0, 'v'), (s1, 's'), (d1, 'v'), (s2, 's'), (d2, 'v')]
    slot = (t + 2) % 8
    def setup(E):
        E.raw(f"s_add_u32 m0, {s('m0d')}, {slot * WD_SLOT}")
        if OPT.get("nowd"):
            E.raw(f"s_mov_b32 {s('so')}, {OOB}"); return
        if t < 16: E.raw(f"s_add_u32 {s('so')}, {s('wd0')}, {32 * kap(t) * XROW}")
        else: E.raw(f"s_add_u32 {s('so')}, {s('wdq')}, {32 * (t - 16) * XROW}")
    def mk(i):
        def f(E): E.vmem(f"buffer_load_dwordx4 v{V_WD+i}, {srd(SRD_D)}, {s('so')} offen offset:{i*1024} lds", f"D{t}")
        return f
    def setup5(E):
        E.raw(f"s_add_u32 m0, {s('m0d5')}, {slot * WD_SLOT}")
    def d4(E):
        E.raw("s_mov_b32 exec_hi, 0")
        E.vmem(f"buffer_load_dwordx4 v{V_WD+4}, {srd(SRD_D)}, {s('so')} offen lds", f"D{t}")
        E.raw("s_mov_b32 exec_hi, -1")
    return [(setup, 's'), (mk(0), 'v'), (mk(1), 'v'), (mk(2), 'v'), (mk(3), 'v'), (setup5, 's'), (d4, 'v')]

def h_ops(t):
    ops = []
    if G2X:
        if t < 16:
            ops.append(((lambda E: E.raw(f"s_add_u32 {s('tA')}, {s('hldA')}, {kap(t) * H_KS}")), 's'))
            for tt in range(4):
                ops.append(((lambda E, tt=tt: E.vmem(f"buffer_load_dwordx4 {ar(hreg(t, tt))}, v{V_L16}, {srd(SRD_W)}, {s('tA')} offen offset:{tt * 1024}{HSC}", f"H{t}")), 'v'))
        else:
            ops.append(((lambda E: E.raw(f"s_add_u32 {s('tA')}, {s('hlqA')}, {(t - 16) * H_KS}")), 's'))
            for tt in range(4):
                for hf in range(2):
                    ops.append(((lambda E, tt=tt, hf=hf: E.vmem(f"buffer_load_dwordx2 {ar(hreg(t, tt) + 2 * hf, 2)}, v{V_L8}, {srd(SRD_W)}, {s('tA')} offen offset:{tt * 1024 + hf * 512}{HSC}", f"H{t}")), 'v'))
        return ops
    if t < 16:
        def setup(E):
            if OPT.get("noh"):
                E.raw(f"s_mov_b32 {s('tA')}, {OOB}"); E.raw(f"s_mov_b32 {s('tB')}, {OOB}"); return
            E.raw(f"s_add_u32 {s('tA')}, {s('hldA')}, {kap(t) * H_KS}")
            E.raw(f"s_add_u32 {s('tB')}, {s('hldB')}, {kap(t) * H_KS}")
        ops.append((setup, 's'))
        for tt in range(4):
            def f(E, tt=tt):
                so = s('tA') if tt < 2 else s('tB')
                E.vmem(f"buffer_load_dwordx4 {ar(hreg(t, tt))}, v{V_L16}, {srd(SRD_W)}, {so} offen offset:{(tt & 1) * 1024}{HSC}", f"H{t}")
            ops.append((f, 'v'))
    else:
        def setup(E):
            E.raw(f"s_add_u32 {s('tA')}, {s('hlqA')}, {(t - 16) * H_KS}")
            E.raw(f"s_add_u32 {s('tB')}, {s('hlqB')}, {(t - 16) * H_KS}")
        ops.append((setup, 's'))
        for tt in range(4):
            for hf in range(2):
                def f(E, tt=tt, hf=hf):
                    so = s('tA') if tt < 2 else s('tB')
                    b = hreg(t, tt) + 2 * hf
                    E.vmem(f"buffer_load_dwordx2 {ar(b, 2)}, v{V_L8}, {srd(SRD_W)}, {so} offen offset:{(tt & 1) * 1024 + hf * 512}{HSC}", f"H{t}")
                ops.append((f, 'v'))
    return ops

def publish_op(level, vpub=None, spf="pf"):
    def f(E):
        E.raw(f"s_add_u32 {s('t0')}, {s('nonce')}, {level}")
        E.raw(f"v_mov_b32 v{V_ONE}, {s('t0')}")
        E.vmem(f"buffer_store_dword v{V_ONE}, v{V_PUB if vpub is None else vpub}, {srd(SRD_W)}, {s(spf)} offen sc1", f"PUB{level}")
    return f

def nonce_write(E):
    E.raw(f"s_or_b32 s84, s84, 1")
    E.raw(f"s_cmp_eq_u32 s2, 0")
    E.raw(f"s_cselect_b32 {s('t0')}, 0, {OOB}")
    E.raw(f"v_mov_b32 v{V_ONE}, s84")
    E.vmem(f"buffer_store_dword v{V_ONE}, v{V_PUB}, {srd(SRD_F)}, {s('t0')} offen sc1", "TCH")

def nonce_ops():
    def a(E):
        E.vmem(f"buffer_load_dword v{V_T1}, v{V_Z}, {srd(SRD_F)}, 0 offen sc1", "NONCE")
    def b(E):
        ok = E.label("nok"); slow = E.label("nslow"); chk = E.label("nchk")
        E.wait(vm="NONCE")
        E.raw(f"v_readfirstlane_b32 {s('nonce')}, v{V_T1}")
        E.raw(f"s_cmp_eq_u32 {s('nonce')}, 0")
        E.raw(f"s_cbranch_scc1 {slow}")
        E.raw(f"{ok}:")
        E.slow += [f"{slow}:", f"s_mov_b32 {s('spin')}, 0", f"{chk}:",
                   f"buffer_load_dword v{V_T1}, v{V_Z}, {srd(SRD_F)}, 0 offen sc1", "s_waitcnt vmcnt(0)",
                   f"v_readfirstlane_b32 {s('nonce')}, v{V_T1}",
                   f"s_add_u32 {s('spin')}, {s('spin')}, 1", f"s_cmp_gt_u32 {s('spin')}, {SPIN_MAX}", f"s_cbranch_scc1 {ok}",
                   f"s_cmp_eq_u32 {s('nonce')}, 0", f"s_cbranch_scc1 {chk}", f"s_branch {ok}"]
    nop = lambda E: None
    return a, b, nop, nop

V_DUM = 0
def touch(E, vreg, srdb, so, tag="TCH"):
    E.vmem(f"buffer_load_dword v{V_DUM}, v{vreg}, {srd(srdb)}, {so} offen", tag)

def touch_ops_wd():
    def setup(E):
        E.raw(f"s_and_b32 {s('t0')}, {s('mb')}, 3\ns_lshl_b32 {s('t0')}, {s('t0')}, 3\ns_add_u32 {s('t0')}, {s('t0')}, {s('jj')}")
        E.raw(f"s_lshl_b32 {s('t0')}, {s('t0')}, 2\ns_add_u32 {s('t0')}, {s('t0')}, {s('wave')}\ns_mul_i32 {s('t0')}, {s('t0')}, {81*128}")
        E.raw(f"s_mul_i32 {s('t1')}, {s('sk')}, {1152*XROW}\ns_add_u32 {s('so')}, {s('t0')}, {s('t1')}")
    return [(setup, 's'), (lambda E: touch(E, V_T128, SRD_D, s('so')), 'v'), (lambda E: touch(E, V_T128B, SRD_D, s('so')), 'v')]

def touch_ops_w1(line):
    def setup(E):
        E.raw(f"s_and_b32 {s('t0')}, {s('mb')}, 3\ns_lshl_b32 {s('t0')}, {s('t0')}, 1\ns_add_u32 {s('t0')}, {s('t0')}, {s('kh')}")
        E.raw(f"s_mul_i32 {s('t0')}, {s('t0')}, {72*WROW}\ns_add_u32 {s('so')}, {s('t0')}, {s('w1col')}")
        if line: E.raw(f"s_add_u32 {s('so')}, {s('so')}, {line*128}")
    return [(setup, 's'), (lambda E: touch(E, V_TROW, SRD_Q, s('so')), 'v'), (lambda E: touch(E, V_TROWB, SRD_Q, s('so')), 'v')]

def touch_ops_wq():
    def setup(E):
        E.raw(f"s_and_b32 {s('t0')}, {s('jj')}, 3\ns_lshl_b32 {s('t0')}, {s('t0')}, 2\ns_and_b32 {s('t1')}, {s('mb')}, 3\ns_add_u32 {s('t0')}, {s('t0')}, {s('t1')}")
        E.raw(f"s_lshl_b32 {s('t0')}, {s('t0')}, 1\ns_add_u32 {s('t0')}, {s('t0')}, {s('kh')}\ns_mul_i32 {s('t0')}, {s('t0')}, {18*WROW}")
        E.raw(f"s_mul_i32 {s('t1')}, {s('sk')}, 2304\ns_add_u32 {s('t0')}, {s('t0')}, {s('t1')}\ns_lshl_b32 {s('t1')}, {s('jj')}, 5\ns_add_u32 {s('t0')}, {s('t0')}, {s('t1')}\ns_add_u32 {s('so')}, {s('t0')}, 2048")
    return [(setup, 's'), (lambda E: touch(E, V_TROWQ, SRD_Q, s('so')), 'v')]

def touch_ops_x():
    def setup(E):
        E.raw(f"s_lshl_b32 {s('t0')}, {s('jj')}, 2\ns_add_u32 {s('t0')}, {s('t0')}, {s('wave')}\ns_lshl_b32 {s('t0')}, {s('t0')}, 3")
        E.raw(f"s_lshl_b32 {s('t1')}, {s('mb')}, 8\ns_add_u32 {s('t0')}, {s('t0')}, {s('t1')}\ns_mul_i32 {s('so')}, {s('t0')}, {XROW}")
    return [(setup, 's'), (lambda E: touch(E, V_T128, SRD_X, s('so')), 'v'), (lambda E: touch(E, V_T128B, SRD_X, s('so')), 'v')]

def touch_ops_h(p0, np_):
    def setup(E):
        E.raw(f"s_lshr_b32 {s('t0')}, {s('jj')}, 1\ns_lshl_b32 {s('t0')}, {s('t0')}, 14\ns_add_u32 {s('t0')}, {s('t0')}, {s('hldA')}")
        E.raw(f"s_lshl_b32 {s('t1')}, {s('kh')}, 11\ns_sub_u32 {s('so')}, {s('t0')}, {s('t1')}")
        if p0: E.raw(f"s_add_u32 {s('so')}, {s('so')}, {p0*H_KS}")
    v = V_T128 if np_ == 2 else V_T128H
    return [(setup, 's'), (lambda E: touch(E, v, SRD_W, s('so')), 'v')]

def selftouch_op(p):
    def f(E):
        if OPT.get("noself", 1): return
        E.raw(f"s_add_u32 {s('t4')}, {s('hst')}, {p * H_KS}")
        E.vmem(f"buffer_load_dword v{V_DUM}, v{V_T128H}, {srd(SRD_W)}, {s('t4')} offen sc1", "TCH")
    return f

def touch_code(E):
    R = E.raw
    R(f"s_getpc_b64 s[4:5]")
    R(f"L_pc:")
    R(f"s_sub_u32 s4, s4, L_pc-{KNAME}")
    R(f"s_subb_u32 s5, s5, 0")
    R(f"s_mov_b32 s6, L_codeend-{KNAME}")
    R(f"s_mov_b32 s7, 0x20000")
    R(f"s_lshr_b32 {s('t0')}, s2, 3\ns_lshl_b32 {s('t0')}, {s('t0')}, 2\ns_add_u32 {s('t0')}, {s('t0')}, {s('wave')}\ns_and_b32 {s('t0')}, {s('t0')}, 7\ns_lshl_b32 {s('t0')}, {s('t0')}, 13")
    E.vmem(f"buffer_load_dword v{V_DUM}, v{V_T128}, s[4:7], {s('t0')} offen", "TCH")

def touch_mall_w(E):
    R = E.raw
    R(f"s_lshl_b32 {s('t0')}, s2, 2\ns_add_u32 {s('t0')}, {s('t0')}, {s('wave')}\ns_and_b32 {s('t0')}, {s('t0')}, 511\ns_mul_i32 {s('t0')}, {s('t0')}, {81*128}")
    R(f"s_cmp_lt_u32 s2, 128")
    R(f"s_cselect_b32 s4, s12, s16\ns_cselect_b32 s5, s13, s17\ns_cselect_b32 {s('t1')}, 0, 1024")
    R(f"s_mov_b32 s6, {DM*WROW+1024}\ns_mov_b32 s7, 0x20000\ns_add_u32 {s('t0')}, {s('t0')}, {s('t1')}")
    E.vmem(f"buffer_load_dword v{V_DUM}, v{V_T128}, s[4:7], {s('t0')} offen", "TCH")
    E.vmem(f"buffer_load_dword v{V_DUM}, v{V_T128B}, s[4:7], {s('t0')} offen", "TCH")

def selftouchq_op():
    def f(E):
        E.raw(f"v_lshrrev_b32 v{V_T0}, 2, v{V_LANE}\nv_lshlrev_b32 v{V_T0}, 10, v{V_T0}\nv_and_b32 v{V_T1}, 3, v{V_LANE}\nv_lshl_add_u32 v{V_T0}, v{V_T1}, 7, v{V_T0}")
        E.raw(f"v_mov_b32 v{V_T1}, {OOB}\nv_cmp_gt_u32 vcc, 16, v{V_LANE}\ns_nop 1\nv_cndmask_b32 v{V_T0}, v{V_T1}, v{V_T0}, vcc")
        E.vmem(f"buffer_load_dword v{V_DUM}, v{V_T0}, {srd(SRD_W)}, {s('hstq')} offen sc1", "TCH")
    return f

def tlb_ops():
    def setup(E):
        L = V_LANE
        E.raw(f"s_lshl_b32 {s('t0')}, {s('mb')}, 3\ns_add_u32 {s('t0')}, {s('t0')}, {s('jj')}\ns_lshl_b32 {s('t0')}, {s('t0')}, 2\ns_add_u32 {s('t0')}, {s('t0')}, {s('wave')}")
        E.raw(f"s_mul_i32 {s('t0')}, {s('t0')}, {16*5120}\ns_add_u32 {s('t0')}, {s('t0')}, {WS_P}")
        E.raw(f"v_mov_b32 v{V_T0}, {OOB}\nv_writelane_b32 v{V_T0}, {s('hst')}, 0\nv_writelane_b32 v{V_T0}, {s('pf')}, 1\nv_writelane_b32 v{V_T0}, {s('t0')}, 2")
        E.raw(f"s_lshl_b32 {s('so')}, {s('mb')}, 8\ns_mul_i32 {s('so')}, {s('so')}, {XROW}")
    return [(setup, 's'),
            (lambda E: E.vmem(f"buffer_load_dword v{V_DUM}, v{V_T0}, {srd(SRD_W)}, 0 offen sc1", "TCH"), 'v'),
            (lambda E: E.vmem(f"buffer_load_dword v{V_DUM}, v{V_Z}, {srd(SRD_O)}, {s('so')} offen", "TCH"), 'v'),
            (lambda E: E.vmem(f"buffer_load_dword v{V_DUM}, v{V_Z}, {srd(SRD_D)}, {s('wd0')} offen", "TCH"), 'v')]

def touch_regs(E):
    R = E.raw; L = V_LANE
    R(f"v_lshlrev_b32 v{V_T128}, 7, v{L}")
    R(f"v_mov_b32 v{V_T128H}, {OOB}")
    R(f"v_cmp_gt_u32 vcc, 17, v{L}")
    R(f"v_add_u32 v{V_T128B}, {64*128}, v{V_T128}")
    R(f"v_mul_u32_u24 v{V_TROW}, {WROW}, v{L}")
    R(f"v_cndmask_b32 v{V_T128B}, v{V_T128H}, v{V_T128B}, vcc")
    R(f"v_cmp_gt_u32 vcc, 8, v{L}")
    R(f"v_add_u32 v{V_TROWB}, {64*WROW}, v{V_TROW}")
    R(f"s_nop 0")
    R(f"v_cndmask_b32 v{V_TROWB}, v{V_T128H}, v{V_TROWB}, vcc")
    R(f"v_cmp_gt_u32 vcc, 18, v{L}")
    R(f"s_nop 1")
    R(f"v_cndmask_b32 v{V_TROWQ}, v{V_T128H}, v{V_TROW}, vcc")
    R(f"v_cmp_gt_u32 vcc, 32, v{L}")
    R(f"s_nop 1")
    R(f"v_cndmask_b32 v{V_T128H}, v{V_T128H}, v{V_T128}, vcc")

def emit_ops(E, ops):
    for f, k in ops:
        f(E)

def poll_issue(name):
    def f(E):
        E.vmem(f"buffer_load_dword v{V_FL}, v{V_FH}, {srd(SRD_W)}, 0 offen sc1", f"POLL{name}")
    return f

def poll_check(E, name, level, voff=None, issued=True):
    voff = V_FH if voff is None else voff
    ok = E.label("pok"); slow = E.label("pslow"); chk = E.label("pchk")
    if OPT.get("nopoll"):
        if issued: E.wait(vm=f"POLL{name}")
        return
    test = [f"s_add_u32 {s('t0')}, {s('nonce')}, {level}",
            f"v_subrev_u32 v{V_FL}, {s('t0')}, v{V_FL}",
            f"v_cmp_lt_u32 vcc, {6 - level}, v{V_FL}"]
    if issued:
        E.wait(vm=f"POLL{name}")
        for x in test: E.raw(x)
        if OPT.get("vccnop", 0): E.raw("s_nop 4")
        E.raw(f"s_cbranch_vccnz {slow}")
    else:
        E.raw(f"s_branch {slow}")
    E.raw(f"{ok}:")
    E.slow += [f"{slow}:",
               f"s_mov_b32 {s('spin')}, 0",
               f"{chk}:"] + ([f"s_sleep {OPT['slp']}"] if OPT.get("slp") else []) + [
               f"buffer_load_dword v{V_FL}, v{voff}, {srd(SRD_W)}, 0 offen sc1",
               "s_waitcnt vmcnt(0)"] + test + [
               f"s_add_u32 {s('spin')}, {s('spin')}, 1",
               f"s_cmp_gt_u32 {s('spin')}, {SPIN_MAX}",
               f"s_cbranch_scc1 {ok}",
               f"s_cbranch_vccnz {chk}",
               f"s_branch {ok}"]

V_AB = 50
def setupA(E):
    R = E.raw
    L = V_LANE
    T0, T1, T2, T3 = V_T0, V_T1, V_T2, V_T3
    R(f"v_lshrrev_b32 v{T0}, 4, v{L}")
    R(f"v_and_b32 v{T1}, 15, v{L}")
    R(f"v_lshrrev_b32 v{T2}, 1, v{T1}")
    R(f"v_xor_b32 v{T2}, v{T2}, v{T0}")
    R(f"v_lshlrev_b32 v{T3}, 7, v{T1}")
    R(f"v_lshl_add_u32 v{V_XR}, v{T2}, 4, v{T3}")
    R(f"v_add_u32 v{V_XR}, {s('m0x')}, v{V_XR}")
    R(f"v_xor_b32 v{V_XR+1}, 64, v{V_XR}")
    R(f"v_lshrrev_b32 v{T2}, 2, v{T1}")
    R(f"v_lshlrev_b32 v{T3}, 11, v{T0}")
    R(f"v_lshl_add_u32 v{T3}, v{T2}, 7, v{T3}")
    R(f"v_and_b32 v{T2}, 3, v{T1}")
    R(f"v_lshl_add_u32 v{T3}, v{T2}, 3, v{T3}")
    R(f"v_and_b32 v{T2}, 1, v{T0}")
    R(f"v_lshlrev_b32 v{T2}, 6, v{T2}")
    R(f"v_add_u32 v{T3}, v{T3}, v{T2}")
    R(f"v_bfe_u32 v{T2}, v{T1}, 3, 1")
    R(f"v_lshl_add_u32 v{V_A}, v{T2}, 5, v{T3}")
    R(f"v_xor_b32 v{V_A+1}, 32, v{V_A}")
    for r in range(1, 3):
        R(f"v_add_u32 v{V_A+2*r}, {r*49152}, v{V_A}")
        R(f"v_add_u32 v{V_A+2*r+1}, {r*49152}, v{V_A+1}")
    for i in range(6):
        R(f"v_xor_b32 v{V_AB+i}, 64, v{V_A+i}")

def setupB():
    G = []
    R = G.append
    L = V_LANE
    T0, T1, T2, T3 = 44, 45, 46, 47
    u0, u1, u2, u3, u4 = s('pst'), s('pld'), s('outb'), s('phi0'), s('spin')
    R(f"s_add_u32 {u0}, s16, 1024\ns_addc_u32 {u1}, s17, 0\ns_cmp_eq_u32 {s('th')}, 0\ns_cselect_b32 s36, s12, {u0}\ns_cselect_b32 s37, s13, {u1}\ns_mov_b32 s38, {DM*WROW}\ns_mov_b32 s39, 0x20000")
    R(f"s_lshl_b32 {s('cu')}, {s('mb')}, 5\ns_lshl_b32 {u0}, {s('sk')}, 3\ns_add_u32 {s('cu')}, {s('cu')}, {u0}\ns_add_u32 {s('cu')}, {s('cu')}, {s('jj')}")
    R(f"s_mul_i32 {u0}, {s('sk')}, 2304\ns_lshl_b32 {u1}, {s('jj')}, 5\ns_add_u32 {s('wqcol')}, {u0}, {u1}\ns_add_u32 {s('wqcol')}, {s('wqcol')}, 2048")
    R(f"s_mul_i32 {u1}, {s('kh')}, {32*WROW}\ns_add_u32 {s('wqcol')}, {s('wqcol')}, {u1}\ns_lshl_b32 {s('m0q')}, {s('wave')}, 10")
    R(f"v_mov_b32 v{V_T128H}, {OOB}\nv_cmp_gt_u32 vcc, 17, v{L}\nv_add_u32 v{V_T128B}, {64*128}, v{V_T128}\nv_mul_u32_u24 v{V_TROW}, {WROW}, v{L}\nv_cndmask_b32 v{V_T128B}, v{V_T128H}, v{V_T128B}, vcc")
    R(f"v_cmp_gt_u32 vcc, 8, v{L}\nv_add_u32 v{V_TROWB}, {64*WROW}, v{V_TROW}\ns_nop 0\nv_cndmask_b32 v{V_TROWB}, v{V_T128H}, v{V_TROWB}, vcc")
    R(f"v_cmp_gt_u32 vcc, 18, v{L}\ns_nop 1\nv_cndmask_b32 v{V_TROWQ}, v{V_T128H}, v{V_TROW}, vcc")
    R(f"v_cmp_gt_u32 vcc, 32, v{L}\ns_nop 1\nv_cndmask_b32 v{V_T128H}, v{V_T128H}, v{V_T128}, vcc")
    R(f"v_lshrrev_b32 v{T0}, 4, v{L}\nv_and_b32 v{T1}, 15, v{L}")
    R(f"v_lshrrev_b32 v{T2}, 1, v{T0}\nv_lshlrev_b32 v{T3}, 9, v{T2}")
    R(f"v_and_b32 v{T2}, 1, v{T0}\nv_lshl_add_u32 v{T3}, v{T2}, 7, v{T3}")
    R(f"v_lshrrev_b32 v{T2}, 2, v{T1}\nv_lshl_add_u32 v{T3}, v{T2}, 5, v{T3}")
    R(f"v_and_b32 v{T2}, 3, v{T1}\nv_lshl_add_u32 v{V_AQ}, v{T2}, 3, v{T3}")
    R(f"v_lshrrev_b32 v{T2}, 2, v{T1}\nv_lshl_add_u32 v{T2}, v{T0}, 2, v{T2}")
    R(f"v_mul_u32_u24 v{T2}, 288, v{T2}\nv_and_b32 v{T3}, 3, v{T1}")
    if G2X:
        R(f"v_lshl_add_u32 v{V_A2}, v{T3}, 3, v{T2}\ns_lshr_b32 {s('t5')}, {s('jj')}, 2")
    else:
        R(f"v_lshl_add_u32 v{T2}, v{T3}, 3, v{T2}\ns_mul_i32 {u0}, {s('kh')}, 9216\nv_add_u32 v{V_A2}, {u0}, v{T2}")
    R(f"v_add_u32 v{V_A2+1}, {3*WD_SLOT}, v{V_A2}\nv_add_u32 v{V_A2+2}, {6*WD_SLOT}, v{V_A2}")
    R(f"v_lshrrev_b32 v{T0}, 1, v{L}\nv_and_b32 v{T1}, 0x13, v{T0}")
    R(f"v_and_b32 v{T2}, 4, v{T0}\nv_lshl_or_b32 v{T1}, v{T2}, 1, v{T1}")
    R(f"v_and_b32 v{T2}, 8, v{T0}\nv_lshrrev_b32 v{T2}, 1, v{T2}")
    R(f"v_or_b32 v{T1}, v{T1}, v{T2}\nv_mul_u32_u24 v{T1}, {WROW}, v{T1}")
    R(f"v_and_b32 v{T2}, 1, v{L}\nv_lshl_add_u32 v{V_WQ}, v{T2}, 4, v{T1}")
    for ip in (range(3) if G2X else []):
        if ip < 2: R(f"s_lshl_b32 {u0}, {s('wave')}, 6\nv_add_u32 v{T0}, {u0}, v{L}" + (f"\nv_add_u32 v{T0}, 256, v{T0}" if ip else ""))
        else: R(f"s_lshl_b32 {u0}, {s('wave')}, 4\ns_add_u32 {u0}, {u0}, 512\nv_and_b32 v{T0}, 15, v{L}\nv_add_u32 v{T0}, {u0}, v{T0}")
        R(f"v_mul_u32_u24 v{T1}, 3641, v{T0}\nv_lshrrev_b32 v{T1}, 16, v{T1}")
        R(f"v_mul_u32_u24 v{T2}, 18, v{T1}\nv_sub_u32 v{T2}, v{T0}, v{T2}")
        R(f"v_mul_u32_u24 v{T1}, {XROW}, v{T1}\nv_lshl_add_u32 v{V_WD+ip}, v{T2}, 4, v{T1}")
    if G2X: R(f"s_lshl_b32 {s('m0d')}, {s('wave')}, 10\ns_lshl_b32 {u0}, {s('wave')}, 8\ns_add_u32 {s('m0d5')}, {u0}, 8192")
    for ip in ([] if G2X else range(5)):
        if ip < 4:
            R(f"s_lshl_b32 {u0}, {s('th')}, 8\nv_add_u32 v{T0}, {u0}, v{L}" + (f"\nv_add_u32 v{T0}, {64*ip}, v{T0}" if ip else ""))
        else:
            R(f"s_lshl_b32 {u0}, {s('th')}, 5\ns_add_u32 {u0}, {u0}, 512\nv_and_b32 v{T0}, 31, v{L}\nv_add_u32 v{T0}, {u0}, v{T0}")
        R(f"v_mul_u32_u24 v{T1}, 3641, v{T0}\nv_lshrrev_b32 v{T1}, 16, v{T1}")
        R(f"v_mul_u32_u24 v{T2}, 18, v{T1}\nv_sub_u32 v{T2}, v{T0}, v{T2}")
        R(f"v_mul_u32_u24 v{T1}, {XROW}, v{T1}\nv_lshl_add_u32 v{V_WD+ip}, v{T2}, 4, v{T1}" + (f"\nv_subrev_u32 v{V_WD+ip}, {ip*1024}, v{V_WD+ip}" if 0 < ip < 4 else ""))
    if not G2X:
        R(f"s_mul_i32 {u1}, {s('kh')}, 9216\ns_lshl_b32 {u2}, {s('th')}, 9\ns_add_u32 {u2}, {u2}, {u1}\ns_add_u32 {s('m0d5')}, {u2}, 8192\n"
          f"s_lshl_b32 {u2}, {s('th')}, 12\ns_add_u32 {s('m0d')}, {u1}, {u2}")
    KH = s('t5') if G2X else s('kh')
    R(f"v_lshlrev_b32 v{V_L16}, 4, v{L}\nv_lshlrev_b32 v{V_L8}, 3, v{L}")
    R(f"v_mov_b32 v{V_KA}, 0x{f2u(GA):08x}\ns_mov_b32 {s('kb')}, 0x{f2u(GB):08x}\nv_mov_b32 v{V_Z}, 0")
    R(f"s_lshl_b32 {s('pf')}, {s('cu')}, 7\ns_add_u32 {s('pf')}, {s('pf')}, {WS_F}\nv_mov_b32 v{V_PUBD}, v{V_PUB}")
    R(f"s_and_b32 {s('flagh')}, {s('cu')}, 0xf8\ns_lshl_b32 {u0}, {KH}, 2\ns_add_u32 {s('flagh')}, {s('flagh')}, {u0}\n"
      f"s_lshl_b32 {s('flagh')}, {s('flagh')}, 7\ns_add_u32 {s('flagh')}, {s('flagh')}, {WS_F}\nv_min_u32 v{T0}, 3, v{L}")
    R(f"v_lshlrev_b32 v{T0}, 7, v{T0}\nv_add_u32 v{V_FH}, {s('flagh')}, v{T0}")
    R(f"s_lshl_b32 {u0}, {s('mb')}, 2\ns_add_u32 {u0}, {u0}, {s('sk')}\ns_lshl_b32 {u0}, {u0}, 2\n"
      f"s_add_u32 {u1}, {u0}, {s('wave')}\ns_mul_i32 {u1}, {u1}, {36*H_KS}\n"
      f"s_lshl_b32 {u2}, {s('jj')}, 14\ns_add_u32 {s('hst')}, {u1}, {u2}\n"
      f"s_lshr_b32 {u2}, {s('jj')}, 1\ns_add_u32 {u2}, {u2}, 32\ns_lshl_b32 {u2}, {u2}, 12\ns_add_u32 {s('hstq')}, {u1}, {u2}\n"
      f"s_and_b32 {u2}, {s('jj')}, 1\ns_lshl_b32 {u3}, {u2}, 9\ns_add_u32 {s('hstq')}, {s('hstq')}, {u3}\n"
      + (f"s_lshl_b32 {u4}, {KH}, 16\ns_add_u32 {s('hldA')}, {u4}, {u1}\n"
         f"s_lshl_b32 {u4}, {KH}, 13\ns_add_u32 {u4}, {u4}, {32*H_KS}\ns_add_u32 {s('hlqA')}, {u4}, {u1}" if G2X else
      f"s_lshl_b32 {u2}, {u2}, 1\ns_add_u32 {u2}, {u2}, {s('th')}\n"
      f"s_add_u32 {u1}, {u0}, {u2}\ns_mul_i32 {u1}, {u1}, {36*H_KS}\n"
      f"s_lshl_b32 {u2}, {s('kh')}, 11\ns_sub_u32 {u3}, 2048, {u2}\n"
      f"s_lshl_b32 {u4}, {s('kh')}, 16\ns_add_u32 {u4}, {u4}, {u1}\n"
      f"s_add_u32 {s('hldA')}, {u4}, {u2}\ns_add_u32 {s('hldB')}, {u4}, {u3}\n"
      f"s_lshl_b32 {u4}, {s('kh')}, 13\ns_add_u32 {u4}, {u4}, {32*H_KS}\ns_add_u32 {u4}, {u4}, {u1}\n"
      f"s_add_u32 {s('hlqA')}, {u4}, {u2}\ns_add_u32 {s('hlqB')}, {u4}, {u3}"))
    R((f"s_and_b32 {u0}, {s('jj')}, 3\n" if G2X else f"s_lshr_b32 {u0}, {s('jj')}, 1\n") + f"s_mul_i32 {u0}, {u0}, 288\n"
      f"s_mul_i32 {u1}, {s('sk')}, {1152*XROW}\ns_add_u32 {u0}, {u0}, {u1}\n"
      f"s_mul_i32 {u1}, {KH}, {512*XROW}\ns_add_u32 {s('wd0')}, {u0}, {u1}\n"
      f"s_mul_i32 {u1}, {KH}, {64*XROW}\ns_add_u32 {s('wdq')}, {u0}, {u1}\ns_add_u32 {s('wdq')}, {s('wdq')}, {1024*XROW}")
    return G

class Side:
    def __init__(self):
        self.q = []; self.m = 0; self.clock = 0.0; self.hi = []
    def add(self, ops):
        for o in ops: self.q.append((o[0], o[1], o[2] if len(o) > 2 else -1))
    def add_rated(self, ops, cost, earliest=None):
        st = max(self.clock, self.m if earliest is None else earliest)
        nv = sum(1 for o in ops if o[1] == 'v')
        k = 0
        for o in ops:
            nb = int(st + k * cost / nv)
            self.q.append((o[0], o[1], nb))
            if o[1] == 'v': k += 1
        self.clock = st + cost
    def add_hi(self, f): self.hi.append(f)
    def empty(self): return not self.q and not self.hi
    def take_gap(self, E):
        if self.hi:
            self.hi.pop(0)(E); return 2
        if not self.q: return 0
        f, kind, nb = self.q[0]
        if kind == 'v' and nb < self.m:
            self.q.pop(0); f(E); return 2
        return 0
    def take_scalar(self, E):
        if self.q and self.q[0][1] == 's' and self.q[0][2] <= self.m + 2:
            f, _, _ = self.q.pop(0); f(E); return 1
        return 0
    def drain(self, E):
        while self.hi: self.hi.pop(0)(E)
        while self.q:
            f, kind, nb = self.q.pop(0)
            f(E)
            if kind == 's': E.raw("s_nop 0")

def kstep(E, st, side, mf, reads, side_gaps=(), cap_extra=0):
    reads = list(reads)
    n = len(mf)
    for i, m in enumerate(mf):
        E.raw(m)
        st.tick()
        side.m += 1
        cap = 2 + cap_extra
        if reads:
            E.ds(reads.pop(0)); cap -= 1
        elif i in side_gaps:
            u = side.take_gap(E)
            cap -= u
            if u: cap = min(cap, 0)
        if cap > 0:
            if (i + 1) in side_gaps or (i + 1 == n):
                cap -= side.take_scalar(E)
        if cap > 0:
            st.fill(E, cap)

def gemm1_mf(buf, ks, first, par=None):
    mf = []
    if par is None: par = ks & 1
    for f in range(4):
        grp, mat = f >> 1, f & 1
        a = vr(V_AR + 16 * par + 4 * f)
        for tt in range(4):
            mf.append(mfma(buf + (grp * 2 + mat) * 16 + tt * 4, a, xreg(ks, tt), first))
    return mf

XB = [0, 24576, 49152]
def issue_xp(E, c, hf, b):
    E.raw(f"s_add_u32 m0, {s('m0x')}, {XB[b]}")
    E.raw(f"s_add_u32 {s('so2')}, {s('xoff')}, {hf * 32 * XROW + c * 128}")
    for u in range(4):
        E.vmem(f"buffer_load_dwordx4 v{V_X+u}, {srd(SRD_X)}, {s('so2')} offen offset:{u*1024} lds", f"X{hf}_{c}")
def xp_ops(c, hf, b):
    ops = [((lambda E: (E.raw(f"s_add_u32 m0, {s('m0x')}, {XB[b]}"), E.raw(f"s_add_u32 {s('so')}, {s('xoff')}, {hf * 32 * XROW + c * 128}"))), 's')]
    for u in range(4):
        ops.append(((lambda E, u=u: E.vmem(f"buffer_load_dwordx4 v{V_X+u}, {srd(SRD_X)}, {s('so')} offen offset:{u*1024} lds", f"X{hf}_{c}")), 'v'))
    return ops
def read_xp(c, hf, b):
    return [(f"ds_read_b128 {xreg(2*c+h, 2*hf+tp)}, v{V_XR + h} offset:{XB[b] + tp * 2048}", f"xr{hf}_{c}") for h in range(2) for tp in range(2)]

def areads_half(ks, gp, par, tagn):
    out = []
    reg, kk = divmod(ks, 6)
    for f in range(4):
        grp, mat = f >> 1, f & 1
        d = V_AR + 16 * par + 4 * f
        base = (V_AB if gp else V_A) + 2 * reg + grp
        for sec in range(2):
            out.append((f"ds_read_b64_tr_b16 v[{d+2*sec}:{d+2*sec+1}], v{base} offset:{kk*W1_KS + mat*1024 + sec*512}", f"a{tagn}_{f}"))
    return out

def half_step(E, st, side, n, ks, gp, half, first, reads, xq, cap_extra=0, vm_ok=True):
    par = n & 1
    buf = V_BUF[half]
    i = 0
    for f in range(4):
        g_, mat = 2 * gp + (f >> 1), f & 1
        E.wait_dstag(f"a{n}_{f}")
        for tq in range(2):
            d = buf + ((g_ * 2 + mat) * 2 + tq) * 4
            E.raw(mfma(d, vr(V_AR + 16 * par + 4 * f), xreg(ks, 2 * half + tq), first))
            st.tick(); side.m += 1
            cap = 2 + cap_extra
            if reads:
                t_, tg = reads.pop(0); E.ds(t_, tg); cap -= 1
            if xq and i >= 2:
                t_, tg = xq.pop(0); E.ds(t_, tg); cap -= 1
            elif vm_ok and (i & 1) == 1:
                u = side.take_gap(E)
                if u: cap = 0
            if cap > 0: cap -= side.take_scalar(E)
            if cap > 0: st.fill(E, cap)
            i += 1

def l1_ops(c):
    ops = []
    for kk in range(3 * c, 3 * c + 3):
        a, b, d = w1_ops(1, kk)
        ops += [(a, 's'), (b, 'v'), (d, 'v')]
    return ops

def p0ab(E, st, side, G, opt):
    NA, NB, NC, ND = nonce_ops()
    seq = [(ks, gp) for ks in range(18) for gp in range(2)]
    xq = []
    b_issue = {8: 6, 11: 7, 14: 8, 17: 0}
    b_read = {10: 6, 13: 7, 16: 8}
    for n, (ks, gp) in enumerate(seq):
        if gp == 1 and ks % 3 == 2 and ks < 17:
            if ks == 8: E.wait_dstag("xr0_7")
            E.wait(vm=f"W0_{ks//3+1}", barrier=True)
        if gp == 0:
            if ks % 2 == 0: E.wait_dstag(f"xr0_{ks//2}")
            if 1 <= ks <= 5:
                E.wait_dstag(f"xr0_{ks}")
                issue_xp(E, ks + 3, 0, (ks + 3) % 3)
            if ks == 1: issue_w1_slot(E, 0, 2)
            if ks == 3: issue_w1_slot(E, 0, 3)
            if ks in b_issue:
                prev = {8: "xr0_8", 11: "xr1_6", 14: "xr1_7", 17: "xr1_8"}[ks]
                E.wait_dstag(prev)
                side.add(xp_ops(b_issue[ks], 1, 2))
            if ks == 11: st.flush(E)
            if ks == 12 and opt.get("touch", 1): side.add(touch_ops_wq())
            if ks == opt.get("txb", 6):
                E.raw(f"v_mov_b32 v{V_T0}, {OOB}\nv_cmp_gt_u32 vcc, 36, v{V_LANE}\ns_lshl_b32 {s('t0')}, {s('jj')}, 2\ns_add_u32 {s('t0')}, {s('t0')}, 32\ns_mul_i32 {s('t0')}, {s('t0')}, {XROW}")
                E.raw(f"v_cndmask_b32 v{V_T0}, v{V_T0}, v{V_T128}, vcc\ns_add_u32 {s('t0')}, {s('t0')}, {s('xoff')}")
                touch(E, V_T0, SRD_X, s('t0'))
            if ks == opt.get("tl1", 7):
                st.flush(E)
                if ks >= 8: side.add(touch_ops_w1(1))
                else: emit_ops(E, touch_ops_w1(1))
            if ks == 13: NA(E)
            E.stamp(f"P0k{ks}")
        if gp == 1 and ks == 8:
            for sl in (4, 5):
                for kk in range(3 * sl, 3 * sl + 3):
                    a, b, c = w1_ops(0, kk)
                    side.add([(a, 's'), (b, 'v'), (c, 'v')])
        if gp == 1 and ks <= 7:
            E.wait(vm=f"X0_{ks+1}")
            xq += read_xp(ks + 1, 0, (ks + 1) % 3)
        if gp == 1 and ks in b_read:
            E.wait(vm=f"X1_{b_read[ks]}"); xq += read_xp(b_read[ks], 1, 2)
        if n + 1 < len(seq): nks, ngp = seq[n + 1]
        else: nks, ngp = 12, 0
        reads = areads_half(nks, ngp, (n + 1) & 1, n + 1)
        half_step(E, st, side, n, ks, gp, 0, ks == 0, reads, xq, vm_ok=(ks >= 8), cap_extra=(2 if st.pending() else 0))
        assert not xq
    E.stamp("P0end")
    E.raw(f"s_add_u32 {s('t3')}, {s('hst')}, 0")
    E.raw(f"s_add_u32 {s('t2')}, {s('hst')}, {H_KS}")
    def hs_fn(tag):
        def f(E, pp, tt, base):
            E.vmem(f"buffer_store_dwordx4 {vr(base)}, v{V_L16}, {srd(SRD_W)}, {s('t3' if pp == 0 else 't2')} offen offset:{tt*1024} sc1", tag)
        return f
    G.nset = 2
    G.half_pass(V_BUF[0], 0, hs_fn("HS0"))
    G.nset = N_GSET; G.pairno = 0
    order = [(12 + p) % 18 for p in range(18)]
    seq = [(pos, gp) for pos in range(18) for gp in range(2)]
    n0 = 36
    issue = {2: [(2, 2, "xr1_0")], 3: [(1, 0, None)], 5: [(3, 2, "xr1_2")], 6: [(4, 1, None), (5, 0, "xr1_1")]}
    rd = {1: (0, 2), 4: (2, 2), 5: (1, 0), 7: (3, 2), 8: (4, 1), 9: (5, 0)}
    for m, (pos, gp) in enumerate(seq):
        n = n0 + m
        ks = order[pos]
        if gp == 0:
            if pos in (3, 6, 9, 12, 15):
                if pos == 12: E.wait_dstag("xr1_5"); E.wait_dstag("xr1_4")
                E.wait(barrier=True)
            if ks % 2 == 0: E.wait_dstag(f"xr1_{ks//2}")
            for c, b, tg in issue.get(pos, []):
                if tg: E.wait_dstag(tg)
                side.add(xp_ops(c, 1, b))
            if pos == 9: side.add(l1_ops(0))
            if pos == 12: side.add(l1_ops(1)); side.add(l1_ops(4))
            if pos == 15: side.add(l1_ops(2)); side.add(l1_ops(5))
            if pos == 14: NB(E)
        if gp == 1 and pos in rd:
            c, b = rd[pos]
            E.wait(vm=f"X1_{c}"); xq += read_xp(c, 1, b)
        if pos == 17 and gp == 1:
            E.wait(vm="W1_0", barrier=True)
            reads = [(t_, "p2a") for t_ in areads_w1(0, 0, par=(n + 1) & 1)]
        else:
            npos, ngp = seq[m + 1]
            reads = areads_half(order[npos], ngp, (n + 1) & 1, n + 1)
        half_step(E, st, side, n, ks, gp, 1, pos == 0, reads, xq, cap_extra=(1 if st.pending_cost() > 9.0 * (len(seq) - m) else 0))
        assert not xq
    nfl = st.flush(E)
    if nfl: print(f"; note: P0b GELU flush {nfl}", file=sys.stderr)
    E.stamp("P1end")
    G.half_pass(V_BUF[1], 1, hs_fn("HS1"))

def toggle_bases(E):
    for i in range(6):
        E.raw(f"v_xor_b32 v{V_A+i}, 64, v{V_A+i}")

def hstore_fn(p):
    def f(E, tt, base):
        E.vmem(f"buffer_store_dwordx4 {vr(base)}, v{V_L16}, {srd(SRD_W)}, {s('so2')} offen offset:{tt*1024} sc1", f"HS{p}")
    return f
def hstoreq_fn(E, tt, base):
    E.vmem(f"buffer_store_dwordx2 {vr(base, 2)}, v{V_L8}, {srd(SRD_W)}, {s('hstq')} offen offset:{tt*1024} sc1", "HS4")

def wq_ops(lo=0, hi=9):
    ops = []
    for i in range(lo, hi):
        def setup(E, i=i):
            dst = (SCRATCH + i * 4096) if (WQE and i < 4) else ((i - 4) * 4096 if WQE else i * 4096)
            E.raw(f"s_add_u32 m0, {s('m0q')}, {dst}")
            E.raw(f"s_add_u32 {s('so')}, {s('wqcol')}, {i * 64 * WROW}")
        def d(E): E.vmem(f"buffer_load_dwordx4 v{V_WQ}, {srd(SRD_Q)}, {s('so')} offen lds", "WQ")
        ops += [(setup, 's'), (d, 'v')]
    return ops

def build(opt):
    global OPT
    OPT = opt
    E = Emit()
    E.do_stamp = bool(opt.get("stamp"))
    if isinstance(opt.get("stamp"), str): E.stamp_sel = set(opt["stamp"].split("+"))
    global HSC, WQE, G2X
    G2X = bool(opt.get("g2x", 0))
    HSC = "" if opt.get("hplain") else " sc1"
    WQE = bool(opt.get("wqe", 1))
    st = Stream()
    G = Gelu(st)
    side = Side()
    E.stamp("start")
    prologue(E, opt)
    TH2 = opt.get("th2", 0)
    coop = opt.get("coop", 0) if not TH2 else 0
    if coop == 1:
        coop_setup(E); coop_touch(E, 0)
    if TH2: issue_xp(E, 0, 0, 0)
    else:
        issue_x(E, 0); issue_x(E, 1)
    E.stamp("i1")
    if coop >= 2:
        coop_setup(E); E.raw(f"s_add_u32 {s('tA')}, {s('tA')}, {s('tB')}")
    prologue_w(E)
    issue_w1_slot(E, 0, 0)
    nonce_write(E)
    if coop == 1 or coop == 3: coop_touch(E, 1)
    if TH2:
        issue_xp(E, 1, 0, 1); issue_xp(E, 2, 0, 2)
    else:
        issue_x(E, 2); issue_x(E, 3)
    if coop == 3: coop_touch(E, 2)
    setupA(E)
    issue_w1_slot(E, 0, 1)
    if coop == 2: coop_touch(E, 1)
    if coop == 1 or coop == 2: coop_touch(E, 2)
    NCOMB = opt.get("ncomb", 8)
    if TH2:
        E.wait(vm="X0_0")
        E.stamp("x01")
        for t_, tg in read_xp(0, 0, 0): E.ds(t_, tg)
        E.wait(ds=0)
        issue_xp(E, 3, 0, 0)
        E.wait(vm="W0_0", barrier=True)
        for t_, tg in areads_half(0, 0, 0, 0): E.ds(t_, tg)
    else:
        E.wait(vm=["X0", "X1"])
        E.stamp("x01")
        for r in read_x(E, 0): E.ds(r)
        E.wait(ds=0)
        issue_x(E, 4); issue_x(E, 5)
        E.wait(vm="W0_0", barrier=True)
        for r in areads_w1(0, 0, par=0): E.ds(r)
    E.stamp("P0go")
    SG = (9, 11, 13)
    NA, NB, NC, ND = nonce_ops()
    prev = None
    setup_items = []
    for grp in setupB():
        prev = st.add(grp, min(2, grp.count("\n") + 1), [(prev, 0)] if prev else [])
        setup_items.append(prev)
    FULL = False
    l1_queued = 0
    p0_par = 0
    if TH2:
        p0ab(E, st, side, G, opt)
    else:
        steps = []
        for ks in range(18):
            steps.append(("A", ks))
            if ks < NCOMB: steps.append(("B", ks))
        def last_half(ks): return ("B", ks) if ks < NCOMB else ("A", ks)
        FULL = (NCOMB == 18)
        l1_queued = 0
        for n, (kind, ks) in enumerate(steps):
            par = n & 1
            bar = False; tags = []
            for c in range(1, 6):
                if (kind, ks) == last_half(3 * c - 1): bar = True; tags.append(f"W0_{c}")
            if FULL and (kind, ks) == ("B", 17): bar = True; tags.append("W1_0")
            E.wait(vm=(tags if tags else None), ds=0, barrier=bar)
            if bar and ks == 8:
                for sl in (4, 5):
                    for kk in range(3 * sl, 3 * sl + 3):
                        a, b, c = w1_ops(0, kk)
                        side.add([(a, 's'), (b, 'v'), (c, 'v')])
            if bar and ks >= 8:
                free = (ks + 1) // 3 if ks < NCOMB else min(NCOMB // 3, (ks + 1) // 3)
                free = min(free, 4 if ks < 14 else 6)
                while l1_queued < free:
                    for kk in range(3 * l1_queued, 3 * l1_queued + 3):
                        a, b, c = w1_ops(1, kk)
                        side.add([(a, 's'), (b, 'v'), (c, 'v')])
                    l1_queued += 1
            if kind == "A":
                if 1 <= ks <= 6:
                    issue_x(E, 2 * (ks + 2)); issue_x(E, 2 * (ks + 2) + 1)
                if ks == 1: issue_w1_slot(E, 0, 2)
                if ks == 3: issue_w1_slot(E, 0, 3)
                if ks == 11: st.flush(E)
                if ks == 12 and opt.get("tlb", 0): side.add(tlb_ops())
                if ks == 12 and opt.get("touch", 1):
                    side.add(touch_ops_wq())
                    if not FULL and not opt.get("tw1", 0): side.add(touch_ops_w1(1))
                if opt.get("tw1", 0) and ks == opt.get("tw1", 0):
                    assert setup_items[8].placed is not None, "touch registers not ready"
                    emit_ops(E, touch_ops_w1(1))
                if opt.get("tw45", 0) and ks == opt.get("tw45", 0):
                    assert setup_items[8].placed is not None, "touch registers not ready"
                    E.raw(f"v_mov_b32 v{V_T0}, {OOB}\nv_cmp_gt_u32 vcc, 24, v{V_LANE}\ns_and_b32 {s('t0')}, {s('mb')}, 3\ns_lshl_b32 {s('t0')}, {s('t0')}, 1\ns_add_u32 {s('t0')}, {s('t0')}, {s('kh')}")
                    E.raw(f"v_cndmask_b32 v{V_T0}, v{V_T0}, v{V_TROW}, vcc\ns_mul_i32 {s('t0')}, {s('t0')}, {24*WROW}\ns_add_u32 {s('t0')}, {s('t0')}, {s('w1col')}\ns_add_u32 {s('t0')}, {s('t0')}, {384*WROW}")
                    touch(E, V_T0, SRD_Q, s('t0'))
                if ks == 13: NA(E)
                if ks == 17 and not FULL: toggle_bases(E)
                E.stamp(f"P0k{ks}")
            if FULL and (kind, ks) == ("B", 15):
                NB(E)
            if FULL and (kind, ks) == ("A", 17 + 0): pass
            if n + 1 < len(steps):
                nk, nks = steps[n + 1]
                reads = areads_w1(0, nks, par=1 - par, alt=(nk == "B"))
            elif FULL:
                reads = areads_w1(0, 0, par=1 - par)
            else:
                reads = areads_w1(1, NCOMB, par=1 - par)
            if FULL and (kind, ks) == ("B", 17): NC(E)
            mf = gemm1_mf(V_BUF[0 if kind == "A" else 1], ks, ks == 0, par=par)
            if (kind, ks) == last_half(ks) and ks <= 7:
                xr = read_x(E, ks + 1)
                for i, m in enumerate(mf):
                    E.raw(m); st.tick()
                    if i < 8: E.ds(reads[i])
                    else:
                        if i == 8: E.wait(vm=[f"X{2*(ks+1)}", f"X{2*(ks+1)+1}"])
                        E.ds(xr[i - 8])
                    st.fill(E, 1)
            else:
                kstep(E, st, side, mf, reads, side_gaps=(8, 9, 10, 11, 12, 13, 14, 15) if ks >= 8 else ())
        st.flush(E)
        p0_par = len(steps) & 1
        E.stamp("P0end")
    if opt.get("abl") == "p1": E.raw("; MARK_ABL")
    RATE = float(opt.get("rate", 3.8))
    PB, PC, PD = opt.get("PB", 2), opt.get("PC", 9), opt.get("PD", 13)
    PUB4, PUB5 = opt.get("pub4", 5), opt.get("pub5", 9)
    G2BAR = [2, 5, 8, 11, 14, 17] if G2X else ([1, 3, 5, 7, 9, 11, 13, 15, 17] if opt.get("bar2") else list(range(18)))
    def plan_tail():
        G2 = 432
        items = []
        if WQE: items.append(("WQ", wq_ops(4, 9), 20 * RATE, 32, 272 - 30))
        else: items.append(("WQ", wq_ops(), 36 * RATE, 80, 272 - 30))
        de = {0: 128, 1: 128, 2: 176, 3: 224, 4: 272, 5: 272, 6: 424, 7: 424}
        dex = {0: 5, 1: 5, 2: 8, 3: 8, 4: 8, 5: 11, 6: 11, 7: 14, 8: 14, 9: 14, 10: 17, 11: 17, 12: 17}
        for u in range(18):
            if G2X:
                if u <= 12: e = 16 * dex[u]
                elif u <= 15: e = 424
                else: e = G2 + 36 * G2BAR[0] + 24 + 1
                tb = max(k for k in [-1] + G2BAR if k < u)
                dl = 424 if tb < 0 else G2 + 36 * tb + 24
                items.append((f"D{u}", wd_ops(u), 3.3 * RATE, e, dl - 20))
                continue
            e = de[u] if u < 8 else G2 + 36 * (u - 7)
            dl = 424 if u == 0 else G2 + 36 * (u - 1) + 24
            if opt.get("bar2"):
                if u >= 8:
                    fb = min(k for k in G2BAR if k >= u - 8)
                    e = G2 + 36 * fb + 24 + 1
                tb = max(k for k in [-1] + G2BAR if k < u)
                dl = 424 if tb < 0 else G2 + 36 * tb + 24
            items.append((f"D{u}", wd_ops(u), 6.15 * RATE, e, dl))
        for u in range(18):
            if u <= 6: e = 288 + 8 * (u + 1) + 2
            else: e = G2 + 36 * (u - 6)
            if 8 <= u <= 11: e = max(e, G2 + 36 * PB)
            if 12 <= u <= 15: e = max(e, G2 + 36 * PC)
            if u >= 16: e = max(e, G2 + 36 * PD)
            dl = G2 + 36 * u
            if u >= 16: dl = G2 + 36 * (u - OPT.get("hlead", 2))
            items.append((f"H{u}", h_ops(u), 4 * RATE, e, dl))
        clock = 32 if WQE else 80
        order = []
        rem = list(items)
        while rem:
            legal = [it for it in rem if it[3] <= clock]
            if not legal:
                clock = min(it[3] for it in rem); continue
            it = min(legal, key=lambda x: x[4])
            rem.remove(it)
            order.append((it, clock))
            if clock + it[2] > it[4] and not it[0].startswith("H1"): print(f"; plan: {it[0]} start {clock:.0f} end {clock+it[2]:.0f} deadline {it[4]} LATE", file=sys.stderr)
            clock += it[2]
        side.clock = 0
        def gate_of(name):
            u = int(name[1:]) if name != "WQ" else None
            if name == "WQ": return ["P3bar2" if WQE else "P3bar5"]
            if name[0] == "D" and G2X:
                if u <= 12: return [f"P3bar{dex[u]}"]
                if u <= 15: return ["PQbar17"]
                return [f"G2bar{G2BAR[0]}"]
            if name[0] == "D":
                if u < 8: return [{0: "P3bar8", 1: "P3bar8", 2: "P3bar11", 3: "P3bar14", 4: "P3bar17", 5: "P3bar17", 6: "PQbar17", 7: "PQbar17"}[u]]
                return [f"G2bar{min(k for k in G2BAR if k >= u - 8)}"]
            g = ["pollA" if u < 8 else "pollB" if u < 12 else "pollC" if u < 16 else "pollD"]
            g.append(f"PQdone{u}" if u <= 6 else f"G2done{u-7}")
            return g
        for it, c in order:
            gates = gate_of(it[0])
            ops = []
            for o in it[1]:
                if o[1] == 'v':
                    def w(E, f=o[0], gates=gates, nm=it[0]):
                        for g_ in gates: assert g_ in E.events, f"{nm} emitted before {g_}"
                        f(E)
                    ops.append((w, 'v'))
                else: ops.append(o)
            side.add_rated(ops, it[2], earliest=c)
    if FULL:
        E.wait(ds=0); ND(E)
        E.raw(f"s_add_u32 {s('so2')}, {s('hst')}, 0")
        G.full_pass(V_BUF[0], hstore_fn(0))
        st.flush(E)
        E.stamp("P1end")
    for p in ((2, 3) if (FULL or TH2) else (1, 2, 3)):
        line, ph = p >> 1, p & 1
        buf = V_BUF[p & 1]
        E.raw(f"s_add_u32 {s('so2')}, {s('hst')}, {(p - 1) * H_KS}")
        if not (TH2 and p == 2): G.full_pass(V_BUF[(p - 1) & 1], hstore_fn(p - 1))
        if p == 3:
            assert side.empty()
            side.m = 0
            plan_tail()
        for ks in range(NCOMB if p == 1 else 0, 18):
            par = (ks & 1) if p > 1 else ((p0_par + ks - NCOMB) & 1)
            bar = (ks % 3 == 2)
            tags = []
            if bar:
                if p == 1 and ks == 17: tags.append("W1_0")
                if p == 2 and ks < 17:
                    if opt.get("p2bar", 0):
                        if ks == 2: tags += ["W1_1", "W1_2"]
                        elif ks == 8: tags += ["W1_3", "W1_4", "W1_5"]
                        else: bar = False
                    else: tags.append(f"W1_{ks//3+1}")
                if p == 3 and ks == 17: tags.append("WQ")
                if p >= 2 and ks == 2: tags.append(f"HS{p-2}")
                if p == 2 and ks == 17: bar = False
            if p == 1 and ks == 14:
                NB(E)
            E.wait(vm=(tags if tags else None), ds=0, barrier=bar)
            if p == 3 and bar: E.events.add(f"P3bar{ks}")
            if p == 1 and ks == 14: NC(E)
            if p == 1 and ks == 15: ND(E)
            if bar:
                c = ks // 3
                if p >= 2 and ks == 2:
                    side.add_hi(publish_op(p - 1))
                    if opt.get("touch", 1):
                        if not TH2: side.add_hi(selftouch_op(p - 2))
                        elif p == 3: side.add_hi(selftouch_op(0)); side.add_hi(selftouch_op(1))
                    if TH2 and p == 2: side.add(l1_ops(3))
                if p == 1 and c >= l1_queued:
                    for kk in range(3 * c, 3 * c + 3):
                        a, b, d = w1_ops(1, kk)
                        side.add([(a, 's'), (b, 'v'), (d, 'v')])
            if p == 2 and ks == 6 and opt.get("touch", 1): side.add(touch_ops_wd())
            if p == 2 and ks == 9 and WQE: side.add(wq_ops(0, 4))
            if p == 3 and ks == 17 and WQE: E.raw(f"v_add_u32 v{V_AQ}, {SCRATCH}, v{V_AQ}")
            if p == 3 and ks == 15: side.add_hi(poll_issue("a"))
            if ks == 17 and p < 3: toggle_bases(E)
            if ks < 17: reads = areads_w1(ph, ks + 1, par=1 - par)
            elif p < 3: reads = areads_w1(1 - ph, 0, par=1 - par)
            else: reads = areads_q(0, 0)
            sg = SG
            if p == 3 and ks >= 5: sg = (8, 9, 11, 13, 15)
            kstep(E, st, side, gemm1_mf(buf, ks, ks == 0 and not (p == 1 and NCOMB > 0), par=par), reads, side_gaps=sg,
                  cap_extra=(1 if (p == 1 and NCOMB > 0 and st.pending_cost() > 19 * (17 - ks)) else 0))
        n = st.flush(E)
        if n: print(f"; note: pass {p}: GELU flush {n} gaps", file=sys.stderr)
        if p == 2: assert side.empty(), f"side not empty after pass {p}"
        E.stamp(f"P{p}end")
    E.raw(f"s_add_u32 {s('so2')}, {s('hst')}, {3 * H_KS}")
    G.full_pass(V_BUF[1], hstore_fn(3))
    bufq = V_BUF[0]
    for ks in range(18):
        bar = ks in (3, 17)
        tags = []
        if ks == 3: tags.append("HS2")
        if ks == 17: tags += (["D0", "D1", "D2"] if G2X else ["D0", "D1"] if opt.get("bar2") else ["D0"])
        E.wait(vm=(tags if tags else None), ds=0, barrier=bar)
        if bar: E.events.add(f"PQbar{ks}")
        if ks >= 1: E.events.add(f"PQdone{ks-1}")
        if ks == 3:
            side.add_hi(publish_op(3))
            if opt.get("touch", 1): side.add_hi(selftouch_op(2))
        if ks == 1:
            poll_check(E, "a", 2); E.events.add("pollA")
        if ks == 7 and WQE: E.raw(f"v_subrev_u32 v{V_AQ}, {SCRATCH}, v{V_AQ}")
        mf = []
        for mat in range(2):
            a = vr(V_AR + 16 * (ks & 1) + 4 * mat)
            for tt in range(4):
                mf.append(mfma(bufq + mat * 16 + tt * 4, a, xreg(ks, tt), ks == 0))
        reads = areads_q(ks + 1, (ks + 1) & 1) if ks < 17 else areads_g2(0, 0, 0)
        kstep(E, st, side, mf, reads, side_gaps=(4, 5, 6, 7) if ks < 17 else (6, 7), cap_extra=opt.get("capq", 0))
    if opt.get("stop") == "g1":
        st.flush(E)
        G.quarter(bufq, hstoreq_fn)
        st.flush(E)
        side.q = []; side.hi = []
        E.wait_all()
        return finish(E)
    E.stamp("PQend")
    if opt.get("abl", "g2") == "g2": E.raw("; MARK_ABL")
    E.skew_on = True
    qadded = False
    sub_par = 0
    for t in range(18):
        for sub in range(3):
            tags = []
            bar = (sub == 2) and (t in G2BAR or t == PUB4 or t == PUB5)
            if sub == 0: tags.append(f"H{t}")
            if bar and t < 17 and not G2X and t in G2BAR:
                tags.append(f"D{t+1}")
                if opt.get("bar2") and t + 2 < 18: tags.append(f"D{t+2}")
            if bar and G2X and t in G2BAR: tags += [f"D{u}" for u in range(t + 1, min(t + 4, 18))]
            pub = None
            if bar and t == PUB4: tags.append("HS3"); pub = 4
            if bar and t == PUB5: tags.append("HS4"); pub = 5
            E.wait(vm=(tags if tags else None), ds=0, barrier=bar)
            if bar: E.events.add(f"G2bar{t}")
            if sub == 0 and t >= 1: E.events.add(f"G2done{t-1}")
            if OPT.get("hchk") and sub == 0:
                for tt in range(4):
                    b = hreg(t, tt)
                    lab = E.label("hc")
                    E.raw(f"v_accvgpr_read_b32 v{V_T0}, a{b}\nv_accvgpr_read_b32 v{V_T1}, a{b+1}\nv_or_b32 v{V_T0}, v{V_T0}, v{V_T1}")
                    E.raw(f"v_accvgpr_read_b32 v{V_T1}, a{b+2}\nv_or_b32 v{V_T0}, v{V_T0}, v{V_T1}\nv_accvgpr_read_b32 v{V_T1}, a{b+3}\nv_or_b32 v{V_T0}, v{V_T0}, v{V_T1}")
                    E.raw(f"v_and_b32 v{V_T0}, 0x40004000, v{V_T0}\nv_cmp_ne_u32 vcc, 0, v{V_T0}\ns_nop 4\ns_cbranch_vccz {lab}")
                    E.raw(f"s_lshl_b32 {s('t0')}, s2, 2\ns_add_u32 {s('t0')}, {s('t0')}, {s('wave')}\ns_lshl_b32 {s('t0')}, {s('t0')}, 2\ns_add_u32 {s('t0')}, {s('t0')}, {61 << 20}")
                    E.raw(f"v_mov_b32 v{V_T1}, {t * 16 + tt + 1}\nv_mov_b32 v{V_T0}, 0")
                    E.raw(f"buffer_store_dword v{V_T1}, v{V_T0}, {srd(SRD_W)}, {s('t0')} offen\ns_waitcnt vmcnt(0)")
                    E.raw(f"{lab}:")
            if pub:
                side.add_hi(publish_op(pub))
                if pub == 4 and opt.get("touch", 1): side.add_hi(selftouch_op(3))
                if pub == 5 and opt.get("touchq", 0): side.add_hi(selftouchq_op())
            if sub == 0:
                if not qadded and st.pending() == 0:
                    G.quarter(bufq, hstoreq_fn); qadded = True
                if t == PB - 1: side.add_hi(poll_issue("b"))
                if t == PB: poll_check(E, "b", 3); E.events.add("pollB")
                if t == PC - 1: side.add_hi(poll_issue("c"))
                if t == PC: poll_check(E, "c", 4); E.events.add("pollC")
                if t == PD - 1: side.add_hi(poll_issue("d"))
                if t == PD: poll_check(E, "d", 5); E.events.add("pollD")
            mf = []
            for k in range(3):
                dt = 3 * sub + k
                a = vr(V_AR + 12 * sub_par + 4 * k)
                for tt in range(4):
                    mf.append(mfma(acc2(dt, tt), a, ar(hreg(t, tt)), t == 0, "a"))
            if sub < 2: reads = areads_g2(t, sub + 1, 1 - sub_par)
            elif t < 17: reads = areads_g2(t + 1, 0, 1 - sub_par)
            else: reads = []
            if t == 12 and sub == 0:
                prev = None
                for grp in (final8_setup() if G2X else final_setup(E)):
                    prev = st.add(grp, 2, [(prev, 1)] if prev else [])
            if t == 17 and sub >= 1 and G2X:
                final8_pack(st, range(12 * (sub - 1), 12 * sub))
                st.tick(); st.tick()
                E.raw("s_nop 3")
            if t == 17 and sub >= 1 and not G2X:
                for dt in range(3 * (sub - 1), 3 * sub):
                    for j in range(2):
                        st.add((lambda E, dt=dt, j=j: E.ds(f"ds_write_b128 v{V_RED}, {ar(acc2(dt, 2 + j))} offset:{(2*dt+j)*1024}")), 2, [])
                    for x in keep_reads(dt): st.add(x, 1, [])
                st.tick(); st.tick()
                E.raw("s_nop 3")
            kstep(E, st, side, mf, reads, side_gaps=(6, 7, 8, 9, 10, 11), cap_extra=(opt.get("capg", 1) if t < PUB5 else 0))
            if t == 17 and sub == 2: st.flush(E)
            sub_par = 1 - sub_par
        if E.stamp_sel is not None or t in (2, 5, 8, 11, 14, 17): E.stamp(f"G2t{t}")
        if t == PUB4 - 1:
            if E.vm.count("HS3") < 4: print(f"; note: flushing GELU(P3) at t={t}: {st.pending_cost()} slots", file=sys.stderr);
            while E.vm.count("HS3") < 4:
                st.tick(); E.raw("s_nop 0"); st.fill(E, 2)
        if t == PUB5 - 1:
            if not qadded:
                st.flush(E); G.quarter(bufq, hstoreq_fn); qadded = True
            if st.pending(): print(f"; note: flushing GELU(PQ) at t={t}: {st.pending_cost()} slots", file=sys.stderr)
            st.flush(E)
    assert side.empty(), "side ops left"
    E.raw("; MARK_END")
    E.skew_on = False
    if G2X: final8(E, st, opt)
    else: final(E, opt)
    return finish(E)

FIRST = [0, 5, 10, 14]
CNT = [5, 5, 4, 4]
RED = 73728
V_PUB2 = 2
KEEP = 128
RCV = 40

def final_setup(E):
    T0, T1 = V_T0, V_T1
    L = V_LANE
    G = []
    G.append(f"s_mul_i32 {s('t0')}, {s('wave')}, 18432\ns_add_u32 {s('t0')}, {s('t0')}, {RED}\nv_add_u32 v{V_RED}, {s('t0')}, v{V_L16}")
    G.append(f"s_xor_b32 {s('t1')}, {s('wave')}, 2\ns_mul_i32 {s('t1')}, {s('t1')}, 18432\ns_add_u32 {s('t1')}, {s('t1')}, {RED}\nv_add_u32 v{V_RED2}, {s('t1')}, v{V_L16}")
    G.append(f"s_lshl_b32 {s('t0')}, {s('mb')}, 3\ns_add_u32 {s('t0')}, {s('t0')}, {s('jj')}\ns_lshl_b32 {s('t0')}, {s('t0')}, 2\ns_add_u32 {s('t0')}, {s('t0')}, {s('wave')}\n"
             f"s_mul_i32 {s('t0')}, {s('t0')}, {16*5120}\ns_add_u32 {s('t0')}, {s('t0')}, {WS_P}\n"
             f"s_mul_i32 {s('t1')}, {s('sk')}, 5120\ns_add_u32 {s('pst')}, {s('t0')}, {s('t1')}\n"
             f"s_mul_i32 {s('t1')}, {s('sk')}, {4*5120}\ns_add_u32 {s('pld')}, {s('t0')}, {s('t1')}")
    G.append(f"s_lshl_b32 {s('t0')}, {s('mb')}, 8\ns_and_b32 {s('t1')}, {s('jj')}, 1\ns_lshl_b32 {s('t1')}, {s('t1')}, 7\ns_add_u32 {s('t0')}, {s('t0')}, {s('t1')}\n"
             f"s_lshl_b32 {s('t1')}, {s('th')}, 6\ns_add_u32 {s('t0')}, {s('t0')}, {s('t1')}\ns_lshl_b32 {s('t1')}, {s('kh')}, 5\ns_add_u32 {s('t0')}, {s('t0')}, {s('t1')}\n"
             f"s_mul_i32 {s('t0')}, {s('t0')}, {XROW}\ns_lshr_b32 {s('t1')}, {s('jj')}, 1\ns_mul_i32 {s('t1')}, {s('t1')}, 288\ns_add_u32 {s('outb')}, {s('t0')}, {s('t1')}")
    G.append(f"v_and_b32 v{T0}, 15, v{L}\nv_mul_u32_u24 v{T0}, {XROW}, v{T0}")
    G.append(f"v_lshrrev_b32 v{T1}, 4, v{L}\nv_lshl_add_u32 v{V_OUT}, v{T1}, 3, v{T0}")
    G.append(f"s_lshl_b32 {s('t0')}, {s('mb')}, 5\ns_add_u32 {s('t0')}, {s('t0')}, {s('jj')}\ns_lshl_b32 {s('t0')}, {s('t0')}, 2\ns_add_u32 {s('t0')}, {s('t0')}, {s('wave')}\n"
             f"s_lshl_b32 {s('t0')}, {s('t0')}, 7\ns_add_u32 {s('t0')}, {s('t0')}, {WS_F + 32768}\n"
             f"s_lshl_b32 {s('t1')}, {s('sk')}, 12\ns_add_u32 {s('pf2')}, {s('t0')}, {s('t1')}\n"
             f"v_min_u32 v{T0}, 3, v{L}\n"
             f"v_lshlrev_b32 v{T0}, 12, v{T0}\nv_add_u32 v{V_FO}, {s('t0')}, v{T0}")
    G.append(f"v_cmp_eq_u32 vcc, 0, v{L}\nv_mov_b32 v{T0}, {OOB}\nv_mov_b32 v{T1}, 0\ns_nop 0\nv_cndmask_b32 v{V_PUB2}, v{T0}, v{T1}, vcc")
    return G

def red_write(E, dt):
    for j in range(2):
        E.ds(f"ds_write_b128 v{V_RED}, {ar(acc2(dt, 2 + j))} offset:{(2*dt+j)*1024}")
def keep_reads(dt):
    return [f"v_accvgpr_read_b32 v{KEEP + (2*dt+j)*4 + r}, a{acc2(dt, j) + r}" for j in range(2) for r in range(4)]

def final(E, opt):
    R = E.raw
    R("s_nop 7")
    for dt in (6, 7, 8):
        red_write(E, dt)
        for x in keep_reads(dt): R(x)
    E.wait(ds=0, barrier=True)
    for ph in range(18):
        E.ds(f"ds_read_b128 {vr(RCV + 4*ph)}, v{V_RED2} offset:{ph*1024}")
    base_vm = list(E.vm); base_done = E.vm_done; base_ds = E.ds_out
    labs = [E.label(f"fin{k}") for k in range(4)]
    end = E.label("finend")
    R(f"s_cmp_eq_u32 {s('sk')}, 1\ns_cbranch_scc1 {labs[1]}\ns_cmp_eq_u32 {s('sk')}, 2\ns_cbranch_scc1 {labs[2]}\ns_cmp_eq_u32 {s('sk')}, 3\ns_cbranch_scc1 {labs[3]}")
    for sv in range(4):
        E.vm = list(base_vm); E.vm_done = base_done; E.ds_out = base_ds
        R(f"{labs[sv]}:")
        own = list(range(FIRST[sv], FIRST[sv] + CNT[sv]))
        XBF = OPT.get("xbf", 1)
        order = [ph for ph in range(18) if ph not in own] + own
        done_ds = -1
        for n, ph in enumerate(order):
            need = ph
            if need > done_ds:
                left = 17 - need
                E.wait(ds=min(left, E.ds_out))
                done_ds = need
            for r in range(4):
                R(f"v_add_f32 v{KEEP + 4*ph + r}, v{KEEP + 4*ph + r}, v{RCV + 4*ph + r}")
            if ph not in own:
                dest = max(d for d in range(4) if FIRST[d] <= ph)
                sig = ph - FIRST[dest]
                if not XBF:
                    R(f"s_add_u32 {s('so')}, {s('pst')}, {dest*4*5120 + sig*1024}")
                    E.vmem(f"buffer_store_dwordx4 {vr(KEEP + 4*ph)}, v{V_L16}, {srd(SRD_W)}, {s('so')} offen sc1", "PSx")
                else:
                    pb = RCV + 4 * (ph - (sig & 1)) + 2 * (sig & 1)
                    R(f"v_cvt_pk_bf16_f32 v{pb}, v{KEEP+4*ph}, v{KEEP+4*ph+1}")
                    R(f"v_cvt_pk_bf16_f32 v{pb+1}, v{KEEP+4*ph+2}, v{KEEP+4*ph+3}")
                    lastsig = CNT[dest] - 1
                    if (sig & 1) == 1 or sig == lastsig:
                        base = RCV + 4 * (ph - (sig & 1))
                        R(f"s_add_u32 {s('so')}, {s('pst')}, {dest*4*5120 + (sig >> 1)*1024}")
                        E.vmem(f"buffer_store_dwordx4 {vr(base)}, v{V_L16}, {srd(SRD_W)}, {s('so')} offen sc1", "PSx")
        E.stamp("F_red")
        R("s_waitcnt vmcnt(0)")
        E.vm_done = len(E.vm)
        E.stamp("F_ps")
        publish_op(6, V_PUB2, "pf2")(E)
        poll_check(E, "f", 6, voff=V_FO, issued=False)
        E.vm_done = len(E.vm)
        E.stamp("F_poll")
        srcs = [k for k in range(4) if k != sv]
        LD = RCV
        if not XBF:
            for sig in range(CNT[sv]):
                for n, src in enumerate(srcs):
                    R(f"s_add_u32 {s('so')}, {s('pld')}, {src*5120 + sig*1024}")
                    E.vmem(f"buffer_load_dwordx4 {vr(LD + (sig*3+n)*4)}, v{V_L16}, {srd(SRD_W)}, {s('so')} offen sc1", f"PL{sig}" if n == 2 else "PLx")
        else:
            npair = (CNT[sv] + 1) // 2
            for k in range(npair):
                for n, src in enumerate(srcs):
                    R(f"s_add_u32 {s('so')}, {s('pld')}, {src*5120 + k*1024}")
                    E.vmem(f"buffer_load_dwordx4 {vr(LD + (k*3+n)*4)}, v{V_L16}, {srd(SRD_W)}, {s('so')} offen sc1", f"PL{k}" if n == 2 else "PLx")
        for sig in range(CNT[sv]):
            ph = FIRST[sv] + sig
            dt, j = ph >> 1, ph & 1
            R(f"s_add_u32 {s('so')}, {s('outb')}, {dt*32 + j*16*XROW}")
            b = KEEP + 4 * ph
            if not XBF:
                E.wait(vm=f"PL{sig}")
                for r in range(4):
                    a = [LD + (sig*3+n)*4 + r for n in range(3)]
                    R(f"v_add_f32 v{a[0]}, v{a[0]}, v{a[1]}")
                    R(f"v_add_f32 v{b+r}, v{b+r}, v{a[2]}")
                    R(f"v_add_f32 v{b+r}, v{b+r}, v{a[0]}")
            else:
                E.wait(vm=f"PL{sig >> 1}")
                TMP = 100
                for n in range(3):
                    for h in range(2):
                        src_r = LD + ((sig >> 1)*3+n)*4 + 2*(sig & 1) + h
                        R(f"v_lshlrev_b32 v{TMP}, 16, v{src_r}")
                        R(f"v_and_b32 v{TMP+1}, 0xffff0000, v{src_r}")
                        R(f"v_add_f32 v{b+2*h}, v{b+2*h}, v{TMP}")
                        R(f"v_add_f32 v{b+2*h+1}, v{b+2*h+1}, v{TMP+1}")
            R(f"v_cvt_pk_bf16_f32 v{b}, v{b}, v{b+1}")
            R(f"v_cvt_pk_bf16_f32 v{b+1}, v{b+2}, v{b+3}")
            E.vmem(f"buffer_store_dwordx2 {vr(b, 2)}, v{V_OUT}, {srd(SRD_O)}, {s('so')} offen{' sc1' if OPT.get('outsc1', 0) else ''}", "OUT")
        if sv < 3: R(f"s_branch {end}")
    R(f"{end}:")

FIRST8 = [0, 5, 10, 15, 20, 24, 28, 32]
CNT8 = [5, 5, 5, 5, 4, 4, 4, 4]
PK8 = 128
P8_SLOT = 3072
def final8_setup():
    T0, T1 = V_T0, V_T1
    L = V_LANE
    G = []
    G.append(f"s_lshl_b32 {s('phi0')}, {s('sk')}, 1\ns_add_u32 {s('phi0')}, {s('phi0')}, {s('t5')}\n"
             f"s_and_b32 {s('t1')}, {s('jj')}, 3\ns_lshl_b32 {s('t0')}, {s('mb')}, 2\ns_add_u32 {s('t0')}, {s('t0')}, {s('t1')}\n"
             f"s_lshl_b32 {s('pf2')}, {s('t0')}, 3\n"
             f"s_lshl_b32 {s('t0')}, {s('t0')}, 2\ns_add_u32 {s('t0')}, {s('t0')}, {s('wave')}\ns_mul_i32 {s('t0')}, {s('t0')}, {64*P8_SLOT}\ns_add_u32 {s('t0')}, {s('t0')}, {WS_P}\n"
             f"s_mul_i32 {s('t1')}, {s('phi0')}, {P8_SLOT}\ns_add_u32 {s('pst')}, {s('t0')}, {s('t1')}\n"
             f"s_mul_i32 {s('t1')}, {s('phi0')}, {8*P8_SLOT}\ns_add_u32 {s('pld')}, {s('t0')}, {s('t1')}")
    G.append(f"s_lshl_b32 {s('t0')}, {s('pf2')}, 2\ns_add_u32 {s('t0')}, {s('t0')}, {s('wave')}\ns_lshl_b32 {s('t0')}, {s('t0')}, 7\ns_add_u32 {s('t0')}, {s('t0')}, {WS_F + 32768}\n"
             f"s_lshl_b32 {s('t1')}, {s('phi0')}, 9\ns_add_u32 {s('pf2')}, {s('t0')}, {s('t1')}\n"
             f"v_min_u32 v{T0}, 7, v{L}\nv_lshlrev_b32 v{T0}, 9, v{T0}\nv_add_u32 v{V_FO}, {s('t0')}, v{T0}")
    G.append(f"s_lshl_b32 {s('t0')}, {s('mb')}, 2\ns_add_u32 {s('t0')}, {s('t0')}, {s('wave')}\ns_mul_i32 {s('t0')}, {s('t0')}, {64*XROW}\n"
             f"s_and_b32 {s('t1')}, {s('jj')}, 3\ns_mul_i32 {s('t1')}, {s('t1')}, 288\ns_add_u32 {s('outb')}, {s('t0')}, {s('t1')}")
    G.append(f"v_and_b32 v{T0}, 15, v{L}\nv_mul_u32_u24 v{T0}, {XROW}, v{T0}")
    G.append(f"v_lshrrev_b32 v{T1}, 4, v{L}\nv_lshl_add_u32 v{V_OUT}, v{T1}, 3, v{T0}")
    G.append(f"v_cmp_eq_u32 vcc, 0, v{L}\nv_mov_b32 v{T0}, {OOB}\nv_mov_b32 v{T1}, 0\ns_nop 0\nv_cndmask_b32 v{V_PUB2}, v{T0}, v{T1}, vcc")
    G.append(f"s_mul_i32 {s('t0')}, {s('phi0')}, 5\ns_lshl_b32 {s('t1')}, {s('phi0')}, 2\ns_add_u32 {s('t1')}, {s('t1')}, 4\ns_cmp_lt_u32 {s('phi0')}, 4\n"
             f"s_cselect_b32 {s('phi0')}, {s('t0')}, {s('t1')}\ns_cselect_b32 {s('hldB')}, 5, 4")
    return G

def store_index8(ph):
    dest = max(d for d in range(8) if FIRST8[d] <= ph)
    sig = ph - FIRST8[dest]
    idx = sum((CNT8[d] + 1) // 2 for d in range(dest)) + (sig >> 1)
    return dest, sig, idx

_pk8_items = {}
def final8_pack(st, phis):
    for ph in phis:
        dt, tt = ph >> 2, ph & 3
        dest, sig, idx = store_index8(ph)
        a = acc2(dt, tt)
        tmp = 40 + 4 * (ph % 4)
        prev = _pk8_items.get(("tmp", ph % 4))
        rds = [st.add(f"v_accvgpr_read_b32 v{tmp+r}, a{a+r}", 1, [(prev, 0)] if prev else []) for r in range(4)]
        d = PK8 + 4 * idx + 2 * (sig & 1)
        c0 = st.add(f"v_cvt_pk_bf16_f32 v{d}, v{tmp}, v{tmp+1}", 1, [(rds[0], 0), (rds[1], 0)])
        c1 = st.add(f"v_cvt_pk_bf16_f32 v{d+1}, v{tmp+2}, v{tmp+3}", 1, [(rds[2], 0), (rds[3], 0)])
        _pk8_items[("tmp", ph % 4)] = c1
        _pk8_items[("c", ph)] = (c0, c1)
        if (sig & 1) == 1 or sig == CNT8[dest] - 1:
            deps = [(c0, 1), (c1, 1)]
            if sig & 1: deps += [(x, 1) for x in _pk8_items[("c", ph - 1)]]
            def f(E, dest=dest, sig=sig, idx=idx):
                E.raw(f"s_add_u32 {s('so')}, {s('pst')}, {dest*8*P8_SLOT + (sig >> 1)*1024}")
                E.vmem(f"buffer_store_dwordx4 {vr(PK8 + 4*idx)}, v{V_L16}, {srd(SRD_W)}, {s('so')} offen sc1", "PSx")
            st.add(f, 2, deps)

def final8(E, st, opt):
    R = E.raw
    R("s_nop 7")
    final8_pack(st, range(24, 36))
    while st.pending():
        st.tick(); n = st.fill(E, 6)
        if n == 0: R("s_nop 0")
    _pk8_items.clear()
    E.stamp("F_red")
    R("s_waitcnt vmcnt(0)")
    E.vm_done = len(E.vm)
    E.stamp("F_ps")
    publish_op(6, V_PUB2, "pf2")(E)
    poll_check(E, "f", 6, voff=V_FO, issued=False)
    E.vm_done = len(E.vm)
    E.stamp("F_poll")
    LD = 32
    for k in range(3):
        for src in range(8):
            R(f"s_add_u32 {s('so')}, {s('pld')}, {src*P8_SLOT + k*1024}")
            E.vmem(f"buffer_load_dwordx4 {vr(LD + (src*3+k)*4)}, v{V_L16}, {srd(SRD_W)}, {s('so')} offen sc1", f"PL{k}" if src == 7 else "PLx")
    ACC = 128; TMP = 160
    for sig in range(5):
        k, hf = sig >> 1, sig & 1
        R(f"s_add_u32 {s('t0')}, {s('phi0')}, {sig}\ns_lshr_b32 {s('t1')}, {s('t0')}, 2\ns_lshl_b32 {s('t1')}, {s('t1')}, 5\ns_and_b32 {s('t0')}, {s('t0')}, 3\ns_mul_i32 {s('t0')}, {s('t0')}, {16*XROW}")
        R(f"s_add_u32 {s('so')}, {s('outb')}, {s('t1')}\ns_add_u32 {s('so')}, {s('so')}, {s('t0')}")
        if sig == 4: R(f"s_cmp_lt_u32 4, {s('hldB')}\ns_cselect_b32 {s('so')}, {s('so')}, {OOB}")
        E.wait(vm=f"PL{k}")
        b = ACC + 4 * sig
        for src in range(8):
            r0 = LD + (src*3+k)*4 + 2*hf
            for h in range(2):
                if src == 0:
                    R(f"v_lshlrev_b32 v{b+2*h}, 16, v{r0+h}")
                    R(f"v_and_b32 v{b+2*h+1}, 0xffff0000, v{r0+h}")
                else:
                    tm = TMP + 2 * ((src + h) % 4)
                    R(f"v_lshlrev_b32 v{tm}, 16, v{r0+h}")
                    R(f"v_and_b32 v{tm+1}, 0xffff0000, v{r0+h}")
                    R(f"v_add_f32 v{b+2*h}, v{b+2*h}, v{tm}")
                    R(f"v_add_f32 v{b+2*h+1}, v{b+2*h+1}, v{tm+1}")
        R(f"v_cvt_pk_bf16_f32 v{b}, v{b}, v{b+1}")
        R(f"v_cvt_pk_bf16_f32 v{b+1}, v{b+2}, v{b+3}")
        E.vmem(f"buffer_store_dwordx2 {vr(b, 2)}, v{V_OUT}, {srd(SRD_O)}, {s('so')} offen", "OUT")

def ablate(E):
    if not any(OPT.get(k) for k in ("x_nobar", "x_novm", "x_nogelu", "x_nods", "x_nowait", "x_nod", "x_noh", "x_novmw")): return
    out = []; on = False
    for l in E.L:
        if l.startswith("; MARK_ABL"): on = True
        if l.startswith("; MARK_END"): on = False
        if on:
            if OPT.get("x_nobar") and l.startswith("s_barrier"): continue
            if OPT.get("x_novm") and l.startswith("buffer_"): continue
            if OPT.get("x_novm") and l.startswith("s_waitcnt vmcnt"):
                l = re.sub(r"vmcnt\(\d+\) ?", "", l)
                if l.strip() == "s_waitcnt": continue
            if OPT.get("x_nod") and l.startswith("buffer_load_dwordx4 v") and l.endswith("lds"): continue
            if OPT.get("x_noh") and l.startswith("buffer_load_dwordx") and " a[" in l: continue
            if OPT.get("x_novmw") and l.startswith("s_waitcnt vmcnt"):
                l = re.sub(r"vmcnt\(\d+\) ?", "", l)
                if l.strip() == "s_waitcnt": continue
            if OPT.get("x_nogelu") and re.match(r"v_(mul_f32|fma_f32|exp_f32|rcp_f32|add_f32|cvt_pk)", l): continue
            if OPT.get("x_nods") and l.startswith("ds_read"): continue
        out.append(l)
    E.L = out

def finish(E):
    ablate(E)
    if E.do_stamp:
        E.raw("s_waitcnt vmcnt(0)")
        E.stamp("end")
        E.raw(f"s_lshl_b32 {s('t0')}, s2, 2\ns_add_u32 {s('t0')}, {s('t0')}, {s('wave')}\ns_lshl_b32 {s('t0')}, {s('t0')}, 7\ns_add_u32 {s('t0')}, {s('t0')}, {60 << 20}")
        E.raw(f"v_mov_b32 v{V_T1}, 0")
        for i in range(len(E.stamps)):
            E.raw(f"v_mov_b32 v{V_T0}, s{86+i}")
            E.raw(f"buffer_store_dword v{V_T0}, v{V_T1}, {srd(SRD_W)}, {s('t0')} offen offset:{4*i}")
        E.raw("s_waitcnt vmcnt(0)")
        print("STAMPS=" + ",".join(E.stamps), file=sys.stderr)
    E.raw("L_end:")
    E.raw("s_endpgm")
    for x in E.slow: E.raw(x)
    E.raw("s_endpgm")
    E.raw("L_codeend:")
    return E

def emit_file(opt):
    E = build(opt)
    hdr = open("standalone__glu_gated_geglu__prompt.s.ref").read().split("\n") if opt.get("hdr", True) else []
    out = []
    for l in hdr:
        if l.startswith("; @launch") or l.startswith("; Override") or l.startswith("; grid=") : continue
        if l.startswith(";"): out.append(l)
        else: break
    out.append(f"; @launch grid=(256,1,1) block=(256,1,1) lds={LDS_BYTES}")
    out.append('.amdgcn_target "amdgcn-amd-amdhsa--gfx950"')
    out.append(".text")
    out.append(f".globl {KNAME}")
    out.append(".p2align 8")
    out.append(f".type {KNAME},@function")
    out.append(f"{KNAME}:")
    out += E.L
    out.append(".fill 64, 4, 0xbf800000")
    out.append('.section .rodata,"a"')
    out.append(".p2align 6")
    out.append(f".amdhsa_kernel {KNAME}")
    out += ["  .amdhsa_next_free_vgpr 512", "  .amdhsa_next_free_sgpr 102", "  .amdhsa_accum_offset 256",
            "  .amdhsa_group_segment_fixed_size 0", "  .amdhsa_kernarg_size 56", "  .amdhsa_user_sgpr_count 2",
            "  .amdhsa_user_sgpr_kernarg_segment_ptr 1", "  .amdhsa_system_sgpr_workgroup_id_x 1",
            "  .amdhsa_float_denorm_mode_32 3",
            ".end_amdhsa_kernel"]
    return "\n".join(out) + "\n"

if __name__ == "__main__":
    opt = {}
    path = sys.argv[1] if len(sys.argv) > 1 else "k.s"
    for a in sys.argv[2:]:
        k, v = a.split("=")
        opt[k] = int(v) if v.lstrip("-").isdigit() else v
    open(path, "w").write(emit_file(opt))
```

```python
import sys, struct, re

KNAME = "standalone__glu_gated_geglu__prompt_kernel"
HSC = " sc1"
WQE = True
G2X = False
OPT = {}

DM, DF, NTOK = 576, 4608, 2048
XROW = DM * 2
WROW = DF * 2
LDS_BYTES = 163840
W1_KS = 8192
XST = 98304
WD_SLOT = 18432
SCRATCH = 147456
H_KS = 4096
WS_P = 32 << 20
WS_F = 56 << 20
WS_SIZE = 64 << 20
OOB = 0x40000000
GA = -2.0 * 0.7978845608028654 * 1.4426950408889634
GB = GA * 0.044715
SPIN_MAX = 400000

def f2u(x): return struct.unpack('<I', struct.pack('<f', x))[0]

S = {}
SRD_X, SRD_G, SRD_U, SRD_D, SRD_W, SRD_O, SRD_F, SRD_Q = 8, 12, 16, 20, 24, 28, 32, 36
def srd(b): return f"s[{b}:{b+3}]"
_n = 40
for nm in ["wave", "mb", "sk", "jj", "cu", "th", "kh", "xoff", "w1col", "wqcol", "hst", "hstq", "hldA", "hldB", "hlqA", "hlqB",
           "wd0", "wdq", "flagh", "t0", "t1", "t2", "t3", "t4", "t5", "m0w", "m0x", "m0q", "m0d", "m0d5", "kb", "pst", "pld",
           "outb", "spin", "phi0", "so", "so2", "pf", "tA", "tB", "pf2", "nonce"]:
    S[nm] = _n; _n += 1
assert _n <= 100
def s(n): return f"s{S[n]}"

V_LANE = 1
V_W1 = 2
V_WQ = 3
V_A = 4
V_AQ = 10
V_L16 = 11
V_L8 = 12
V_KA = 13
V_PUB = 14
V_ONE = 15
V_FL = 16
V_T0 = 17; V_T1 = 18; V_T2 = 19; V_T3 = 20
V_X = 21
V_XR = 25
V_WD = 27
V_HS = 32
V_GT = 40
N_GSET = 4
V_T128 = 56; V_T128H = 57; V_T128B = 58
V_TROW = 40; V_TROWB = 41; V_TROWQ = 42
V_PUBD = 43; V_NA = 44; V_NB = 45
V_FH = 59
V_A2 = 60
V_Z = 63
V_XO = 64
V_AR = 96
V_BUF = [128, 192]
V_FO = 21; V_OUT = 22; V_RED = 23; V_RED2 = 24

def xreg(ks, tt):
    i = ks * 4 + tt
    if i < 64: return f"a[{4*i}:{4*i+3}]"
    b = V_XO + 4 * (i - 64)
    return f"v[{b}:{b+3}]"
def hreg(t, tt):
    b = 16 * (t % 7) + 4 * tt
    return b
def acc2(dt, tt):
    b = 112 + 16 * dt + 4 * tt
    return b

def expected_count(tag):
    if tag.startswith("POLL") or tag.startswith("PUB"): return 1
    if tag == "WQ": return 9
    if tag == "NONCE": return 1
    if tag == "TCH": return -1
    if tag == "PS": return 18
    if tag in ("PSx", "PLx", "OUT"): return -1
    if tag.startswith("PL"): return 1
    if tag.startswith("HS"): return 4
    if tag[0] == "X": return 4
    if tag[0] == "W": return 6
    if tag[0] == "D": return 3 if G2X else 5
    if tag[0] == "H": return 4 if int(tag[1:]) < 16 else 8
    raise KeyError(tag)

class Emit:
    def __init__(self):
        self.L = []
        self.vm = []
        self.vm_done = 0
        self.dsq = []
        self.ds_done = 0
        self.slow = []
        self.nlab = 0
        self.do_stamp = False
        self.events = set()
        self.skew_on = False
        self.stamps = []
        self.stamp_sel = None
    def raw(self, t):
        for x in t.split("\n"):
            self.L.append(x)
    def vmem(self, text, tag):
        self.L.append(text)
        self.vm.append(tag)
    @property
    def ds_out(self): return len(self.dsq) - self.ds_done
    @ds_out.setter
    def ds_out(self, n):
        if n == 0: self.ds_done = len(self.dsq)
        elif n < self.ds_out: self.ds_done = len(self.dsq) - n
        else:
            self.ds_done = len(self.dsq) - n
    def ds(self, text, tag=None):
        if self.ds_out >= 15:
            self.L.append("s_waitcnt lgkmcnt(10)")
            self.ds_out = 10
        self.L.append(text)
        self.dsq.append(tag)
    def wait_dstag(self, tag):
        idx = max(i for i, t in enumerate(self.dsq) if t == tag)
        if idx < self.ds_done: return
        n = min(len(self.dsq) - 1 - idx, 15)
        self.L.append(f"s_waitcnt lgkmcnt({n})")
        self.ds_done = len(self.dsq) - n
    def _vmN(self, tags):
        idx = -1
        for tg in tags:
            exp = expected_count(tg)
            got = self.vm.count(tg)
            if exp < 0: continue
            assert got == exp, f"wait on {tg}: {got} ops issued, expected {exp}"
        for i, t in enumerate(self.vm):
            if t in tags: idx = i
        assert idx >= 0, f"no vmem op with tags {tags}"
        if idx < self.vm_done: return None
        return min(len(self.vm) - 1 - idx, 63)
    def wait(self, vm=None, ds=None, barrier=False):
        parts = []
        if vm is not None:
            if isinstance(vm, str): vm = [vm]
            n = self._vmN(set(vm))
            if n is not None:
                parts.append(f"vmcnt({n})")
                self.vm_done = max(self.vm_done, len(self.vm) - n)
        if ds is not None and self.ds_out > ds:
            parts.append(f"lgkmcnt({ds})")
            self.ds_out = ds
        if parts:
            self.L.append("s_waitcnt " + " ".join(parts))
        if barrier:
            self.L.append("s_barrier")
            if OPT.get("skew") and self.skew_on:
                for k in range(1, 4):
                    lab = self.label("sk")
                    self.L.append(f"s_cmp_ge_u32 {s('wave')}, {k}")
                    self.L.append(f"s_cbranch_scc0 {lab}")
                    self.L.append(f"s_nop {OPT['skew']}")
                    self.L.append(f"{lab}:")
    def wait_all(self):
        self.L.append("s_waitcnt vmcnt(0) lgkmcnt(0)")
        self.vm_done = len(self.vm); self.ds_out = 0
    def assert_done(self, tag):
        found = False
        for i, t in enumerate(self.vm):
            if t == tag:
                found = True
                assert i < self.vm_done, f"tag {tag} not complete"
        assert found, f"tag {tag} never issued"
    def issued(self, tag):
        return tag in self.vm
    def stamp(self, name):
        if not self.do_stamp: return
        if self.stamp_sel is not None and name not in self.stamp_sel and name not in ("start", "end"): return
        if name in self.stamps: idx = self.stamps.index(name)
        else:
            idx = len(self.stamps)
            assert idx < 16
            self.stamps.append(name)
        self.L.append("s_memtime s[84:85]" if OPT.get("cyc") else "s_memrealtime s[84:85]")
        self.L.append("s_waitcnt lgkmcnt(0)")
        self.ds_out = 0
        self.L.append(f"s_mov_b32 s{86+idx}, s84")
    def label(self, base):
        self.nlab += 1
        return f"L_{base}_{self.nlab}"

class Item:
    def __init__(self, text, cost, deps=()):
        self.text = text; self.cost = cost; self.deps = list(deps); self.placed = None

class Stream:
    def __init__(self):
        self.items = []; self.head = 0; self.gap = 0
    def add(self, text, cost, deps=()):
        it = Item(text, cost, deps); self.items.append(it); return it
    def pending(self):
        return sum(1 for it in self.items[self.head:] if it.placed is None)
    def pending_cost(self):
        return sum(it.cost for it in self.items[self.head:] if it.placed is None)
    def tick(self):
        self.gap += 1
    def fill(self, E, cap, window=48):
        used = 0
        while used < cap:
            while self.head < len(self.items) and self.items[self.head].placed is not None:
                self.head += 1
            pick = None
            for it in self.items[self.head:self.head + window]:
                if it.placed is not None or it.cost > cap - used: continue
                if all(d.placed is not None and self.gap >= d.placed + delta for d, delta in it.deps):
                    pick = it; break
            if pick is None: break
            pick.placed = self.gap
            if callable(pick.text): pick.text(E)
            else: E.raw(pick.text)
            used += pick.cost
        return used
    def flush(self, E):
        n = 0
        while self.pending():
            self.tick()
            E.raw("s_nop 0")
            self.fill(E, 4)
            n += 1
        return n

class Gelu:
    def __init__(self, st):
        self.st = st
        self.pairno = 0
        self.set_last = [None] * N_GSET
        self.nset = N_GSET
        self.stg = 0
        self.stg_last = [None, None]
    def pair(self, g0, u0, g1, u1, dst):
        st = self.st
        k = self.pairno % self.nset; self.pairno += 1
        T0, T1, G0, G1 = [V_GT + 4 * k + i for i in range(4)]
        prev = [(self.set_last[k], 0)] if self.set_last[k] is not None else []
        sprev = dst[1]
        a0 = st.add(f"v_mul_f32 v{T0}, v{g0}, v{g0}", 1, prev)
        a1 = st.add(f"v_mul_f32 v{T1}, v{g1}, v{g1}", 1, prev)
        b0 = st.add(f"v_fma_f32 v{T0}, v{T0}, {s('kb')}, v{V_KA}", 1, [(a0, 0)])
        b1 = st.add(f"v_fma_f32 v{T1}, v{T1}, {s('kb')}, v{V_KA}", 1, [(a1, 0)])
        c0 = st.add(f"v_mul_f32 v{T0}, v{T0}, v{g0}", 1, [(b0, 0)])
        c1 = st.add(f"v_mul_f32 v{T1}, v{T1}, v{g1}", 1, [(b1, 0)])
        e0 = st.add(f"v_exp_f32 v{T0}, v{T0}", 2, [(c0, 0)])
        e1 = st.add(f"v_exp_f32 v{T1}, v{T1}", 2, [(c1, 0)])
        m0 = st.add(f"v_mul_f32 v{G0}, v{g0}, v{u0}", 1, prev)
        m1 = st.add(f"v_mul_f32 v{G1}, v{g1}, v{u1}", 1, prev)
        d0 = st.add(f"v_add_f32 v{T0}, 1.0, v{T0}", 1, [(e0, 1)])
        d1 = st.add(f"v_add_f32 v{T1}, 1.0, v{T1}", 1, [(e1, 1)])
        r0 = st.add(f"v_rcp_f32 v{T0}, v{T0}", 2, [(d0, 0)])
        r1 = st.add(f"v_rcp_f32 v{T1}, v{T1}", 2, [(d1, 0)])
        h0 = st.add(f"v_mul_f32 v{G0}, v{G0}, v{T0}", 1, [(r0, 1), (m0, 0)])
        h1 = st.add(f"v_mul_f32 v{G1}, v{G1}, v{T1}", 1, [(r1, 1), (m1, 0)])
        pk = st.add(f"v_cvt_pk_bf16_f32 v{dst[0]}, v{G0}, v{G1}", 1, [(h0, 0), (h1, 0)] + ([(sprev, 2)] if sprev is not None else []))
        self.set_last[k] = pk
        return pk
    def full_pass(self, buf, store_fn):
        last = None
        for tt in range(4):
            sg = self.stg % 2; self.stg += 1
            base = V_HS + 4 * sg
            pks = []
            for grp in range(2):
                for hp in range(2):
                    g = buf + (grp * 2 + 0) * 16 + tt * 4 + 2 * hp
                    u = buf + (grp * 2 + 1) * 16 + tt * 4 + 2 * hp
                    pks.append(self.pair(g, u, g + 1, u + 1, (base + grp * 2 + hp, self.stg_last[sg])))
            stt = self.st.add((lambda E, tt=tt, base=base: store_fn(E, tt, base)), 2, [(p, 1) for p in pks])
            self.stg_last[sg] = stt
            last = stt
        return last
    def half_pass(self, buf, half, store_fn):
        for pp in range(2):
            for tq in range(2):
                sg = self.stg % 2; self.stg += 1
                base = V_HS + 4 * sg
                pks = []
                for grp in range(2):
                    g_ = 2 * pp + grp
                    for hp in range(2):
                        g = buf + ((g_ * 2 + 0) * 2 + tq) * 4 + 2 * hp
                        u = buf + ((g_ * 2 + 1) * 2 + tq) * 4 + 2 * hp
                        pks.append(self.pair(g, u, g + 1, u + 1, (base + grp * 2 + hp, self.stg_last[sg])))
                stt = self.st.add((lambda E, pp=pp, tt=2 * half + tq, base=base: store_fn(E, pp, tt, base)), 2, [(p, 1) for p in pks])
                self.stg_last[sg] = stt
    def quarter(self, buf, store_fn):
        last = None
        for tt in range(4):
            sg = self.stg % 2; self.stg += 1
            base = V_HS + 4 * sg
            pks = []
            for hp in range(2):
                g = buf + tt * 4 + 2 * hp
                u = buf + 16 + tt * 4 + 2 * hp
                pks.append(self.pair(g, u, g + 1, u + 1, (base + hp, self.stg_last[sg])))
            stt = self.st.add((lambda E, tt=tt, base=base: store_fn(E, tt, base)), 2, [(p, 1) for p in pks])
            self.stg_last[sg] = stt
            last = stt
        return last

def mfma(d, a, b, first, dpre="v"):
    c = "0" if first else f"{dpre}[{d}:{d+3}]"
    return f"v_mfma_f32_16x16x32_bf16 {dpre}[{d}:{d+3}], {a}, {b}, {c}"

def vr(b, n=4): return f"v[{b}:{b+n-1}]"
def ar(b, n=4): return f"a[{b}:{b+n-1}]"

def prologue(E, opt):
    R = E.raw
    L = V_LANE
    T0, T1, T2, T3 = V_T0, V_T1, V_T2, V_T3
    R("s_cmp_ge_u32 s2, 256")
    R("s_cbranch_scc1 L_end")
    R("s_load_dwordx4 s[4:7], s[0:1], 0")
    R("s_load_dwordx4 s[16:19], s[0:1], 16")
    R("s_load_dwordx4 s[28:31], s[0:1], 32")
    R("s_load_dwordx2 s[24:25], s[0:1], 48")
    R("s_memrealtime s[84:85]")
    R(f"v_and_b32 v{L}, 63, v0")
    R(f"v_lshrrev_b32 v{T0}, 6, v0")
    R(f"v_cmp_eq_u32 vcc, 0, v0")
    R(f"v_readfirstlane_b32 {s('wave')}, v{T0}")
    R(f"v_mov_b32 v{T0}, {OOB}")
    R(f"v_mov_b32 v{T1}, 0")
    R(f"v_lshlrev_b32 v{V_T128}, 7, v{L}")
    R(f"v_cndmask_b32 v{V_PUB}, v{T0}, v{T1}, vcc")
    if opt.get("tcode", 1):
        R(f"s_getpc_b64 s[36:37]")
        R(f"L_pc:")
        R(f"s_sub_u32 s36, s36, L_pc-{KNAME}\ns_subb_u32 s37, s37, 0")
        R(f"s_mov_b32 s38, L_codeend-{KNAME}\ns_mov_b32 s39, 0x20000")
        R(f"s_lshr_b32 {s('t0')}, s2, 1\ns_and_b32 {s('t0')}, {s('t0')}, 4\ns_add_u32 {s('t0')}, {s('t0')}, {s('wave')}\ns_lshl_b32 {s('t0')}, {s('t0')}, 13")
        E.vmem(f"buffer_load_dword v{V_DUM}, v{V_T128}, s[36:39], {s('t0')} offen", "TCH")
    R(f"s_and_b32 {s('sk')}, s2, 3")
    R(f"s_lshr_b32 {s('t0')}, s2, 2\ns_and_b32 {s('t0')}, {s('t0')}, 1")
    R(f"s_lshr_b32 {s('t1')}, s2, 3")
    R(f"s_and_b32 {s('jj')}, {s('t1')}, 7")
    R(f"s_lshr_b32 {s('t1')}, {s('t1')}, 3")
    R(f"s_lshl_b32 {s('mb')}, {s('t0')}, 2\ns_add_u32 {s('mb')}, {s('mb')}, {s('t1')}")
    R(f"s_lshl_b32 {s('t0')}, {s('mb')}, 2\ns_add_u32 {s('t0')}, {s('t0')}, {s('wave')}\ns_mul_i32 {s('xoff')}, {s('t0')}, {64*XROW}")
    R(f"s_lshl_b32 {s('m0x')}, {s('wave')}, {12 if opt.get('th2', 0) else 14}\ns_add_u32 {s('m0x')}, {s('m0x')}, {XST}")
    R(f"v_lshrrev_b32 v{T0}, 3, v{L}")
    R(f"v_and_b32 v{T1}, 7, v{L}")
    R(f"v_lshrrev_b32 v{T2}, 1, v{T0}")
    R(f"v_xor_b32 v{T2}, v{T2}, v{T1}")
    R(f"v_mul_u32_u24 v{T3}, {XROW}, v{T0}")
    R(f"v_lshl_add_u32 v{V_X}, v{T2}, 4, v{T3}")
    R(f"v_xor_b32 v{V_X+1}, 64, v{V_X}")
    R(f"v_add_u32 v{V_X+2}, {2*(8*XROW-1024)}, v{V_X}")
    R(f"v_add_u32 v{V_X+3}, {3*(8*XROW-1024)}, v{V_X+1}")
    R(f"v_add_u32 v{V_X+1}, {1*(8*XROW-1024)}, v{V_X+1}")
    R(f"s_and_b32 {s('th')}, {s('wave')}, 1\ns_lshr_b32 {s('kh')}, {s('wave')}, 1")
    R(f"v_and_b32 v{T2}, 2, v{T0}")
    R(f"v_xor_b32 v{T2}, v{T2}, v{T1}")
    R(f"s_lshl_b32 {s('t0')}, {s('th')}, 2")
    R(f"v_xor_b32 v{T2}, {s('t0')}, v{T2}")
    R(f"v_mul_u32_u24 v{T3}, {WROW}, v{T0}")
    R(f"v_lshl_add_u32 v{V_W1}, v{T2}, 4, v{T3}")
    R(f"s_mul_i32 {s('t0')}, {s('wave')}, {8*WROW}")
    R(f"v_add_u32 v{V_W1}, {s('t0')}, v{V_W1}")
    R(f"s_mul_i32 {s('t0')}, {s('sk')}, 2304")
    R(f"s_lshl_b32 {s('t1')}, {s('jj')}, 8\ns_add_u32 {s('w1col')}, {s('t0')}, {s('t1')}")
    R(f"s_lshl_b32 {s('m0w')}, {s('wave')}, 11")
    R("s_waitcnt lgkmcnt(0)")
    E.stamp("karg")
    R(f"s_mov_b32 s8, s4\ns_mov_b32 s9, s5\ns_mov_b32 s10, {NTOK*XROW}\ns_mov_b32 s11, 0x20000")

V_TCH = 48
def coop_setup(E):
    R = E.raw; L = V_LANE
    lx = E.label("cx"); le = E.label("ce")
    R(f"s_lshr_b32 {s('t0')}, s2, 3\ns_lshl_b32 {s('t0')}, {s('t0')}, 2\ns_add_u32 {s('t0')}, {s('t0')}, {s('wave')}")
    R(f"s_mov_b32 s36, s4\ns_mov_b32 s37, s5\ns_mov_b32 s38, {NTOK*XROW}\ns_mov_b32 s39, 0x20000")
    R(f"v_mul_u32_u24 v{V_T0}, {XROW}, v{L}")
    R(f"s_cmp_lt_u32 {s('t0')}, 64")
    R(f"s_cbranch_scc1 {lx}")
    R(f"s_sub_u32 {s('t0')}, {s('t0')}, 64\ns_cmp_lt_u32 {s('t0')}, 32")
    R(f"s_cselect_b32 s36, s6, s16\ns_cselect_b32 s37, s7, s17\ns_mov_b32 s38, {DM*WROW}")
    R(f"s_and_b32 {s('t1')}, {s('t0')}, 3\ns_mul_i32 {s('t1')}, {s('t1')}, {48*WROW}")
    R(f"s_lshr_b32 {s('t2')}, {s('t0')}, 2\ns_and_b32 {s('t2')}, {s('t2')}, 7\ns_lshl_b32 {s('t2')}, {s('t2')}, 8\ns_add_u32 {s('t1')}, {s('t1')}, {s('t2')}")
    R(f"s_mul_i32 {s('t2')}, {s('sk')}, 2304\ns_add_u32 {s('tA')}, {s('t1')}, {s('t2')}\ns_mov_b32 {s('tB')}, {192*WROW}")
    R(f"v_mul_u32_u24 v{V_TCH}, {WROW}, v{L}")
    R(f"s_branch {le}")
    R(f"{lx}:")
    R(f"s_lshr_b32 {s('t1')}, {s('t0')}, 4\ns_and_b32 {s('t2')}, {s('mb')}, 4\ns_add_u32 {s('t1')}, {s('t1')}, {s('t2')}\ns_lshl_b32 {s('t1')}, {s('t1')}, 8")
    R(f"s_and_b32 {s('t2')}, {s('t0')}, 15\ns_lshl_b32 {s('t2')}, {s('t2')}, 4\ns_add_u32 {s('t1')}, {s('t1')}, {s('t2')}\ns_mul_i32 {s('tA')}, {s('t1')}, {XROW}\ns_mov_b32 {s('tB')}, 384")
    R(f"v_mul_u32_u24 v{V_T0}, 21846, v{L}\nv_lshrrev_b32 v{V_T0}, 16, v{V_T0}")
    R(f"v_mul_u32_u24 v{V_T1}, 3, v{V_T0}\nv_sub_u32 v{V_T1}, v{L}, v{V_T1}")
    R(f"v_mul_u32_u24 v{V_T0}, {XROW}, v{V_T0}\nv_lshl_add_u32 v{V_TCH}, v{V_T1}, 7, v{V_T0}")
    R(f"{le}:")
    R(f"v_mov_b32 v{V_T0}, {OOB}\nv_cmp_gt_u32 vcc, 48, v{L}\ns_nop 1\nv_cndmask_b32 v{V_TCH}, v{V_T0}, v{V_TCH}, vcc")

def coop_touch(E, g):
    E.vmem(f"buffer_load_dword v{V_DUM}, v{V_TCH}, s[36:39], {s('tA')} offen", "TCH")
    if g < 2: E.raw(f"s_add_u32 {s('tA')}, {s('tA')}, {s('tB')}")

def prologue_w(E):
    R = E.raw
    R(f"s_mov_b32 s12, s6\ns_mov_b32 s13, s7\ns_mov_b32 s14, {DM*WROW}\ns_mov_b32 s15, 0x20000")
    R(f"s_mov_b32 s20, s18\ns_mov_b32 s21, s19\ns_mov_b32 s22, {DF*XROW}\ns_mov_b32 s23, 0x20000")
    R(f"s_sub_u32 s16, s16, 1024\ns_subb_u32 s17, s17, 0\ns_mov_b32 s18, {DM*WROW+1024}\ns_mov_b32 s19, 0x20000")
    R(f"s_mov_b32 s32, s30\ns_mov_b32 s33, s31\ns_mov_b32 s34, 256\ns_mov_b32 s35, 0x20000")
    R(f"s_mov_b32 s30, {NTOK*XROW}\ns_mov_b32 s31, 0x20000")
    R(f"s_mov_b32 s26, {WS_SIZE}\ns_mov_b32 s27, 0x20000")

def issue_x(E, piece):
    c, hf = piece >> 1, piece & 1
    E.raw(f"s_add_u32 m0, {s('m0x')}, {(piece % 4) * 4096}")
    E.raw(f"s_add_u32 {s('so2')}, {s('xoff')}, {hf * 32 * XROW + c * 128}")
    for u in range(4):
        E.vmem(f"buffer_load_dwordx4 v{V_X+u}, {srd(SRD_X)}, {s('so2')} offen offset:{u*1024} lds", f"X{piece}")

def w1_ops(line, ks):
    def setup(E):
        E.raw(f"s_add_u32 m0, {s('m0w')}, {ks * W1_KS}")
        E.raw(f"s_add_u32 {s('so')}, {s('w1col')}, {ks * 32 * WROW + line * 128}")
    def g(E): E.vmem(f"buffer_load_dwordx4 v{V_W1}, {srd(SRD_G)}, {s('so')} offen lds", f"W{line}_{ks//3}")
    def u(E): E.vmem(f"buffer_load_dwordx4 v{V_W1}, {srd(SRD_U)}, {s('so')} offen offset:1024 lds", f"W{line}_{ks//3}")
    return setup, g, u

def issue_w1_slot(E, line, slot):
    for ks in range(3 * slot, 3 * slot + 3):
        a, b, c = w1_ops(line, ks)
        a(E); b(E); c(E)

def read_x(E, chunk):
    out = []
    for hf in range(2):
        piece = 2 * chunk + hf
        for h in range(2):
            for tp in range(2):
                ks = 2 * chunk + h
                tt = 2 * hf + tp
                out.append(f"ds_read_b128 {xreg(ks, tt)}, v{V_XR + h} offset:{(piece % 4) * 4096 + tp * 2048}")
    return out

def areads_w1(ph, ks, par=None, alt=False):
    out = []
    reg, kk = divmod(ks, 6)
    if par is None: par = ks & 1
    for f in range(4):
        grp, mat = f >> 1, f & 1
        d = V_AR + 16 * par + 4 * f
        base = (V_AB if alt else V_A) + 2 * reg + grp
        for sec in range(2):
            out.append(f"ds_read_b64_tr_b16 v[{d+2*sec}:{d+2*sec+1}], v{base} offset:{kk*W1_KS + mat*1024 + sec*512}")
    return out

def areads_q(ks, par):
    out = []
    kk = (ks if ks < 8 else ks - 8) if WQE else ks
    for mat in range(2):
        d = V_AR + 16 * par + 4 * mat
        for sec in range(2):
            out.append(f"ds_read_b64_tr_b16 v[{d+2*sec}:{d+2*sec+1}], v{V_AQ} offset:{kk*2048 + mat*1024 + sec*256}")
    return out

def areads_g2(t, sub, par):
    if G2X:
        slot = (t + 3) % 16
        reg, sl = divmod(slot, 6)
        out = []
        for k in range(3):
            dt = 3 * sub + k
            d = V_AR + 12 * par + 4 * k
            for sec in range(2):
                out.append(f"ds_read_b64_tr_b16 v[{d+2*sec}:{d+2*sec+1}], v{V_A2+reg} offset:{sl*9216 + dt*32 + sec*4608}")
        return out
    slot = (t + 2) % 8
    reg, sl = divmod(slot, 3)
    out = []
    for k in range(3):
        dt = 3 * sub + k
        d = V_AR + 12 * par + 4 * k
        for sec in range(2):
            out.append(f"ds_read_b64_tr_b16 v[{d+2*sec}:{d+2*sec+1}], v{V_A2+reg} offset:{sl*WD_SLOT + dt*32 + sec*4608}")
    return out

def kap(t):
    return 4 * (t & 3) + (t >> 2)

def wd_ops(t):
    if G2X:
        slot = (t + 3) % 16
        def setup(E):
            E.raw(f"s_add_u32 m0, {s('m0d')}, {slot * 9216}")
            if t < 16: E.raw(f"s_add_u32 {s('so')}, {s('wd0')}, {32 * kap(t) * XROW}")
            else: E.raw(f"s_add_u32 {s('so')}, {s('wdq')}, {32 * (t - 16) * XROW}")
        def d0(E): E.vmem(f"buffer_load_dwordx4 v{V_WD}, {srd(SRD_D)}, {s('so')} offen lds", f"D{t}")
        def s1(E): E.raw(f"s_add_u32 m0, {s('m0d')}, {slot * 9216 + 4096}")
        def d1(E): E.vmem(f"buffer_load_dwordx4 v{V_WD+1}, {srd(SRD_D)}, {s('so')} offen lds", f"D{t}")
        def s2(E): E.raw(f"s_add_u32 m0, {s('m0d5')}, {slot * 9216}")
        def d2(E):
            E.raw("s_mov_b64 exec, 0xffff")
            E.vmem(f"buffer_load_dwordx4 v{V_WD+2}, {srd(SRD_D)}, {s('so')} offen lds", f"D{t}")
            E.raw("s_mov_b64 exec, -1")
        return [(setup, 's'), (d0, 'v'), (s1, 's'), (d1, 'v'), (s2, 's'), (d2, 'v')]
    slot = (t + 2) % 8
    def setup(E):
        E.raw(f"s_add_u32 m0, {s('m0d')}, {slot * WD_SLOT}")
        if OPT.get("nowd"):
            E.raw(f"s_mov_b32 {s('so')}, {OOB}"); return
        if t < 16: E.raw(f"s_add_u32 {s('so')}, {s('wd0')}, {32 * kap(t) * XROW}")
        else: E.raw(f"s_add_u32 {s('so')}, {s('wdq')}, {32 * (t - 16) * XROW}")
    def mk(i):
        def f(E): E.vmem(f"buffer_load_dwordx4 v{V_WD+i}, {srd(SRD_D)}, {s('so')} offen offset:{i*1024} lds", f"D{t}")
        return f
    def setup5(E):
        E.raw(f"s_add_u32 m0, {s('m0d5')}, {slot * WD_SLOT}")
    def d4(E):
        E.raw("s_mov_b32 exec_hi, 0")
        E.vmem(f"buffer_load_dwordx4 v{V_WD+4}, {srd(SRD_D)}, {s('so')} offen lds", f"D{t}")
        E.raw("s_mov_b32 exec_hi, -1")
    return [(setup, 's'), (mk(0), 'v'), (mk(1), 'v'), (mk(2), 'v'), (mk(3), 'v'), (setup5, 's'), (d4, 'v')]

def h_ops(t):
    ops = []
    if G2X:
        if t < 16:
            ops.append(((lambda E: E.raw(f"s_add_u32 {s('tA')}, {s('hldA')}, {kap(t) * H_KS}")), 's'))
            for tt in range(4):
                ops.append(((lambda E, tt=tt: E.vmem(f"buffer_load_dwordx4 {ar(hreg(t, tt))}, v{V_L16}, {srd(SRD_W)}, {s('tA')} offen offset:{tt * 1024}{HSC}", f"H{t}")), 'v'))
        else:
            ops.append(((lambda E: E.raw(f"s_add_u32 {s('tA')}, {s('hlqA')}, {(t - 16) * H_KS}")), 's'))
            for tt in range(4):
                for hf in range(2):
                    ops.append(((lambda E, tt=tt, hf=hf: E.vmem(f"buffer_load_dwordx2 {ar(hreg(t, tt) + 2 * hf, 2)}, v{V_L8}, {srd(SRD_W)}, {s('tA')} offen offset:{tt * 1024 + hf * 512}{HSC}", f"H{t}")), 'v'))
        return ops
    if t < 16:
        def setup(E):
            if OPT.get("noh"):
                E.raw(f"s_mov_b32 {s('tA')}, {OOB}"); E.raw(f"s_mov_b32 {s('tB')}, {OOB}"); return
            E.raw(f"s_add_u32 {s('tA')}, {s('hldA')}, {kap(t) * H_KS}")
            E.raw(f"s_add_u32 {s('tB')}, {s('hldB')}, {kap(t) * H_KS}")
        ops.append((setup, 's'))
        for tt in range(4):
            def f(E, tt=tt):
                so = s('tA') if tt < 2 else s('tB')
                E.vmem(f"buffer_load_dwordx4 {ar(hreg(t, tt))}, v{V_L16}, {srd(SRD_W)}, {so} offen offset:{(tt & 1) * 1024}{HSC}", f"H{t}")
            ops.append((f, 'v'))
    else:
        def setup(E):
            E.raw(f"s_add_u32 {s('tA')}, {s('hlqA')}, {(t - 16) * H_KS}")
            E.raw(f"s_add_u32 {s('tB')}, {s('hlqB')}, {(t - 16) * H_KS}")
        ops.append((setup, 's'))
        for tt in range(4):
            for hf in range(2):
                def f(E, tt=tt, hf=hf):
                    so = s('tA') if tt < 2 else s('tB')
                    b = hreg(t, tt) + 2 * hf
                    E.vmem(f"buffer_load_dwordx2 {ar(b, 2)}, v{V_L8}, {srd(SRD_W)}, {so} offen offset:{(tt & 1) * 1024 + hf * 512}{HSC}", f"H{t}")
                ops.append((f, 'v'))
    return ops

def publish_op(level, vpub=None, spf="pf"):
    def f(E):
        E.raw(f"s_add_u32 {s('t0')}, {s('nonce')}, {level}")
        E.raw(f"v_mov_b32 v{V_ONE}, {s('t0')}")
        E.vmem(f"buffer_store_dword v{V_ONE}, v{V_PUB if vpub is None else vpub}, {srd(SRD_W)}, {s(spf)} offen sc1", f"PUB{level}")
    return f

def nonce_write(E):
    E.raw(f"s_or_b32 s84, s84, 1")
    E.raw(f"s_cmp_eq_u32 s2, 0")
    E.raw(f"s_cselect_b32 {s('t0')}, 0, {OOB}")
    E.raw(f"v_mov_b32 v{V_ONE}, s84")
    E.vmem(f"buffer_store_dword v{V_ONE}, v{V_PUB}, {srd(SRD_F)}, {s('t0')} offen sc1", "TCH")

def nonce_ops():
    def a(E):
        E.vmem(f"buffer_load_dword v{V_T1}, v{V_Z}, {srd(SRD_F)}, 0 offen sc1", "NONCE")
    def b(E):
        ok = E.label("nok"); slow = E.label("nslow"); chk = E.label("nchk")
        E.wait(vm="NONCE")
        E.raw(f"v_readfirstlane_b32 {s('nonce')}, v{V_T1}")
        E.raw(f"s_cmp_eq_u32 {s('nonce')}, 0")
        E.raw(f"s_cbranch_scc1 {slow}")
        E.raw(f"{ok}:")
        E.slow += [f"{slow}:", f"s_mov_b32 {s('spin')}, 0", f"{chk}:",
                   f"buffer_load_dword v{V_T1}, v{V_Z}, {srd(SRD_F)}, 0 offen sc1", "s_waitcnt vmcnt(0)",
                   f"v_readfirstlane_b32 {s('nonce')}, v{V_T1}",
                   f"s_add_u32 {s('spin')}, {s('spin')}, 1", f"s_cmp_gt_u32 {s('spin')}, {SPIN_MAX}", f"s_cbranch_scc1 {ok}",
                   f"s_cmp_eq_u32 {s('nonce')}, 0", f"s_cbranch_scc1 {chk}", f"s_branch {ok}"]
    nop = lambda E: None
    return a, b, nop, nop

V_DUM = 0
def touch(E, vreg, srdb, so, tag="TCH"):
    E.vmem(f"buffer_load_dword v{V_DUM}, v{vreg}, {srd(srdb)}, {so} offen", tag)

def touch_ops_wd():
    def setup(E):
        E.raw(f"s_and_b32 {s('t0')}, {s('mb')}, 3\ns_lshl_b32 {s('t0')}, {s('t0')}, 3\ns_add_u32 {s('t0')}, {s('t0')}, {s('jj')}")
        E.raw(f"s_lshl_b32 {s('t0')}, {s('t0')}, 2\ns_add_u32 {s('t0')}, {s('t0')}, {s('wave')}\ns_mul_i32 {s('t0')}, {s('t0')}, {81*128}")
        E.raw(f"s_mul_i32 {s('t1')}, {s('sk')}, {1152*XROW}\ns_add_u32 {s('so')}, {s('t0')}, {s('t1')}")
    return [(setup, 's'), (lambda E: touch(E, V_T128, SRD_D, s('so')), 'v'), (lambda E: touch(E, V_T128B, SRD_D, s('so')), 'v')]

def touch_ops_w1(line):
    def setup(E):
        E.raw(f"s_and_b32 {s('t0')}, {s('mb')}, 3\ns_lshl_b32 {s('t0')}, {s('t0')}, 1\ns_add_u32 {s('t0')}, {s('t0')}, {s('kh')}")
        E.raw(f"s_mul_i32 {s('t0')}, {s('t0')}, {72*WROW}\ns_add_u32 {s('so')}, {s('t0')}, {s('w1col')}")
        if line: E.raw(f"s_add_u32 {s('so')}, {s('so')}, {line*128}")
    return [(setup, 's'), (lambda E: touch(E, V_TROW, SRD_Q, s('so')), 'v'), (lambda E: touch(E, V_TROWB, SRD_Q, s('so')), 'v')]

def touch_ops_wq():
    def setup(E):
        E.raw(f"s_and_b32 {s('t0')}, {s('jj')}, 3\ns_lshl_b32 {s('t0')}, {s('t0')}, 2\ns_and_b32 {s('t1')}, {s('mb')}, 3\ns_add_u32 {s('t0')}, {s('t0')}, {s('t1')}")
        E.raw(f"s_lshl_b32 {s('t0')}, {s('t0')}, 1\ns_add_u32 {s('t0')}, {s('t0')}, {s('kh')}\ns_mul_i32 {s('t0')}, {s('t0')}, {18*WROW}")
        E.raw(f"s_mul_i32 {s('t1')}, {s('sk')}, 2304\ns_add_u32 {s('t0')}, {s('t0')}, {s('t1')}\ns_lshl_b32 {s('t1')}, {s('jj')}, 5\ns_add_u32 {s('t0')}, {s('t0')}, {s('t1')}\ns_add_u32 {s('so')}, {s('t0')}, 2048")
    return [(setup, 's'), (lambda E: touch(E, V_TROWQ, SRD_Q, s('so')), 'v')]

def touch_ops_x():
    def setup(E):
        E.raw(f"s_lshl_b32 {s('t0')}, {s('jj')}, 2\ns_add_u32 {s('t0')}, {s('t0')}, {s('wave')}\ns_lshl_b32 {s('t0')}, {s('t0')}, 3")
        E.raw(f"s_lshl_b32 {s('t1')}, {s('mb')}, 8\ns_add_u32 {s('t0')}, {s('t0')}, {s('t1')}\ns_mul_i32 {s('so')}, {s('t0')}, {XROW}")
    return [(setup, 's'), (lambda E: touch(E, V_T128, SRD_X, s('so')), 'v'), (lambda E: touch(E, V_T128B, SRD_X, s('so')), 'v')]

def touch_ops_h(p0, np_):
    def setup(E):
        E.raw(f"s_lshr_b32 {s('t0')}, {s('jj')}, 1\ns_lshl_b32 {s('t0')}, {s('t0')}, 14\ns_add_u32 {s('t0')}, {s('t0')}, {s('hldA')}")
        E.raw(f"s_lshl_b32 {s('t1')}, {s('kh')}, 11\ns_sub_u32 {s('so')}, {s('t0')}, {s('t1')}")
        if p0: E.raw(f"s_add_u32 {s('so')}, {s('so')}, {p0*H_KS}")
    v = V_T128 if np_ == 2 else V_T128H
    return [(setup, 's'), (lambda E: touch(E, v, SRD_W, s('so')), 'v')]

def selftouch_op(p):
    def f(E):
        if OPT.get("noself", 1): return
        E.raw(f"s_add_u32 {s('t4')}, {s('hst')}, {p * H_KS}")
        E.vmem(f"buffer_load_dword v{V_DUM}, v{V_T128H}, {srd(SRD_W)}, {s('t4')} offen sc1", "TCH")
    return f

def touch_code(E):
    R = E.raw
    R(f"s_getpc_b64 s[4:5]")
    R(f"L_pc:")
    R(f"s_sub_u32 s4, s4, L_pc-{KNAME}")
    R(f"s_subb_u32 s5, s5, 0")
    R(f"s_mov_b32 s6, L_codeend-{KNAME}")
    R(f"s_mov_b32 s7, 0x20000")
    R(f"s_lshr_b32 {s('t0')}, s2, 3\ns_lshl_b32 {s('t0')}, {s('t0')}, 2\ns_add_u32 {s('t0')}, {s('t0')}, {s('wave')}\ns_and_b32 {s('t0')}, {s('t0')}, 7\ns_lshl_b32 {s('t0')}, {s('t0')}, 13")
    E.vmem(f"buffer_load_dword v{V_DUM}, v{V_T128}, s[4:7], {s('t0')} offen", "TCH")

def touch_mall_w(E):
    R = E.raw
    R(f"s_lshl_b32 {s('t0')}, s2, 2\ns_add_u32 {s('t0')}, {s('t0')}, {s('wave')}\ns_and_b32 {s('t0')}, {s('t0')}, 511\ns_mul_i32 {s('t0')}, {s('t0')}, {81*128}")
    R(f"s_cmp_lt_u32 s2, 128")
    R(f"s_cselect_b32 s4, s12, s16\ns_cselect_b32 s5, s13, s17\ns_cselect_b32 {s('t1')}, 0, 1024")
    R(f"s_mov_b32 s6, {DM*WROW+1024}\ns_mov_b32 s7, 0x20000\ns_add_u32 {s('t0')}, {s('t0')}, {s('t1')}")
    E.vmem(f"buffer_load_dword v{V_DUM}, v{V_T128}, s[4:7], {s('t0')} offen", "TCH")
    E.vmem(f"buffer_load_dword v{V_DUM}, v{V_T128B}, s[4:7], {s('t0')} offen", "TCH")

def selftouchq_op():
    def f(E):
        E.raw(f"v_lshrrev_b32 v{V_T0}, 2, v{V_LANE}\nv_lshlrev_b32 v{V_T0}, 10, v{V_T0}\nv_and_b32 v{V_T1}, 3, v{V_LANE}\nv_lshl_add_u32 v{V_T0}, v{V_T1}, 7, v{V_T0}")
        E.raw(f"v_mov_b32 v{V_T1}, {OOB}\nv_cmp_gt_u32 vcc, 16, v{V_LANE}\ns_nop 1\nv_cndmask_b32 v{V_T0}, v{V_T1}, v{V_T0}, vcc")
        E.vmem(f"buffer_load_dword v{V_DUM}, v{V_T0}, {srd(SRD_W)}, {s('hstq')} offen sc1", "TCH")
    return f

def tlb_ops():
    def setup(E):
        L = V_LANE
        E.raw(f"s_lshl_b32 {s('t0')}, {s('mb')}, 3\ns_add_u32 {s('t0')}, {s('t0')}, {s('jj')}\ns_lshl_b32 {s('t0')}, {s('t0')}, 2\ns_add_u32 {s('t0')}, {s('t0')}, {s('wave')}")
        E.raw(f"s_mul_i32 {s('t0')}, {s('t0')}, {16*5120}\ns_add_u32 {s('t0')}, {s('t0')}, {WS_P}")
        E.raw(f"v_mov_b32 v{V_T0}, {OOB}\nv_writelane_b32 v{V_T0}, {s('hst')}, 0\nv_writelane_b32 v{V_T0}, {s('pf')}, 1\nv_writelane_b32 v{V_T0}, {s('t0')}, 2")
        E.raw(f"s_lshl_b32 {s('so')}, {s('mb')}, 8\ns_mul_i32 {s('so')}, {s('so')}, {XROW}")
    return [(setup, 's'),
            (lambda E: E.vmem(f"buffer_load_dword v{V_DUM}, v{V_T0}, {srd(SRD_W)}, 0 offen sc1", "TCH"), 'v'),
            (lambda E: E.vmem(f"buffer_load_dword v{V_DUM}, v{V_Z}, {srd(SRD_O)}, {s('so')} offen", "TCH"), 'v'),
            (lambda E: E.vmem(f"buffer_load_dword v{V_DUM}, v{V_Z}, {srd(SRD_D)}, {s('wd0')} offen", "TCH"), 'v')]

def touch_regs(E):
    R = E.raw; L = V_LANE
    R(f"v_lshlrev_b32 v{V_T128}, 7, v{L}")
    R(f"v_mov_b32 v{V_T128H}, {OOB}")
    R(f"v_cmp_gt_u32 vcc, 17, v{L}")
    R(f"v_add_u32 v{V_T128B}, {64*128}, v{V_T128}")
    R(f"v_mul_u32_u24 v{V_TROW}, {WROW}, v{L}")
    R(f"v_cndmask_b32 v{V_T128B}, v{V_T128H}, v{V_T128B}, vcc")
    R(f"v_cmp_gt_u32 vcc, 8, v{L}")
    R(f"v_add_u32 v{V_TROWB}, {64*WROW}, v{V_TROW}")
    R(f"s_nop 0")
    R(f"v_cndmask_b32 v{V_TROWB}, v{V_T128H}, v{V_TROWB}, vcc")
    R(f"v_cmp_gt_u32 vcc, 18, v{L}")
    R(f"s_nop 1")
    R(f"v_cndmask_b32 v{V_TROWQ}, v{V_T128H}, v{V_TROW}, vcc")
    R(f"v_cmp_gt_u32 vcc, 32, v{L}")
    R(f"s_nop 1")
    R(f"v_cndmask_b32 v{V_T128H}, v{V_T128H}, v{V_T128}, vcc")

def emit_ops(E, ops):
    for f, k in ops:
        f(E)

def poll_issue(name):
    def f(E):
        E.vmem(f"buffer_load_dword v{V_FL}, v{V_FH}, {srd(SRD_W)}, 0 offen sc1", f"POLL{name}")
    return f

def poll_check(E, name, level, voff=None, issued=True):
    voff = V_FH if voff is None else voff
    ok = E.label("pok"); slow = E.label("pslow"); chk = E.label("pchk")
    if OPT.get("nopoll"):
        if issued: E.wait(vm=f"POLL{name}")
        return
    test = [f"s_add_u32 {s('t0')}, {s('nonce')}, {level}",
            f"v_subrev_u32 v{V_FL}, {s('t0')}, v{V_FL}",
            f"v_cmp_lt_u32 vcc, {6 - level}, v{V_FL}"]
    if issued:
        E.wait(vm=f"POLL{name}")
        for x in test: E.raw(x)
        if OPT.get("vccnop", 0): E.raw("s_nop 4")
        E.raw(f"s_cbranch_vccnz {slow}")
    else:
        E.raw(f"s_branch {slow}")
    E.raw(f"{ok}:")
    E.slow += [f"{slow}:",
               f"s_mov_b32 {s('spin')}, 0",
               f"{chk}:"] + ([f"s_sleep {OPT.get('slp', 1)}"] if OPT.get("slp", 1) else []) + [
               f"buffer_load_dword v{V_FL}, v{voff}, {srd(SRD_W)}, 0 offen sc1",
               "s_waitcnt vmcnt(0)"] + test + [
               f"s_add_u32 {s('spin')}, {s('spin')}, 1",
               f"s_cmp_gt_u32 {s('spin')}, {SPIN_MAX}",
               f"s_cbranch_scc1 {ok}",
               f"s_cbranch_vccnz {chk}",
               f"s_branch {ok}"]

V_AB = 50
def setupA(E):
    R = E.raw
    L = V_LANE
    T0, T1, T2, T3 = V_T0, V_T1, V_T2, V_T3
    R(f"v_lshrrev_b32 v{T0}, 4, v{L}")
    R(f"v_and_b32 v{T1}, 15, v{L}")
    R(f"v_lshrrev_b32 v{T2}, 1, v{T1}")
    R(f"v_xor_b32 v{T2}, v{T2}, v{T0}")
    R(f"v_lshlrev_b32 v{T3}, 7, v{T1}")
    R(f"v_lshl_add_u32 v{V_XR}, v{T2}, 4, v{T3}")
    R(f"v_add_u32 v{V_XR}, {s('m0x')}, v{V_XR}")
    R(f"v_xor_b32 v{V_XR+1}, 64, v{V_XR}")
    R(f"v_lshrrev_b32 v{T2}, 2, v{T1}")
    R(f"v_lshlrev_b32 v{T3}, 11, v{T0}")
    R(f"v_lshl_add_u32 v{T3}, v{T2}, 7, v{T3}")
    R(f"v_and_b32 v{T2}, 3, v{T1}")
    R(f"v_lshl_add_u32 v{T3}, v{T2}, 3, v{T3}")
    R(f"v_and_b32 v{T2}, 1, v{T0}")
    R(f"v_lshlrev_b32 v{T2}, 6, v{T2}")
    R(f"v_add_u32 v{T3}, v{T3}, v{T2}")
    R(f"v_bfe_u32 v{T2}, v{T1}, 3, 1")
    R(f"v_lshl_add_u32 v{V_A}, v{T2}, 5, v{T3}")
    R(f"v_xor_b32 v{V_A+1}, 32, v{V_A}")
    for r in range(1, 3):
        R(f"v_add_u32 v{V_A+2*r}, {r*49152}, v{V_A}")
        R(f"v_add_u32 v{V_A+2*r+1}, {r*49152}, v{V_A+1}")
    for i in range(6):
        R(f"v_xor_b32 v{V_AB+i}, 64, v{V_A+i}")

def setupB():
    G = []
    R = G.append
    L = V_LANE
    T0, T1, T2, T3 = 44, 45, 46, 47
    u0, u1, u2, u3, u4 = s('pst'), s('pld'), s('outb'), s('phi0'), s('spin')
    R(f"s_add_u32 {u0}, s16, 1024\ns_addc_u32 {u1}, s17, 0\ns_cmp_eq_u32 {s('th')}, 0\ns_cselect_b32 s36, s12, {u0}\ns_cselect_b32 s37, s13, {u1}\ns_mov_b32 s38, {DM*WROW}\ns_mov_b32 s39, 0x20000")
    R(f"s_lshl_b32 {s('cu')}, {s('mb')}, 5\ns_lshl_b32 {u0}, {s('sk')}, 3\ns_add_u32 {s('cu')}, {s('cu')}, {u0}\ns_add_u32 {s('cu')}, {s('cu')}, {s('jj')}")
    R(f"s_mul_i32 {u0}, {s('sk')}, 2304\ns_lshl_b32 {u1}, {s('jj')}, 5\ns_add_u32 {s('wqcol')}, {u0}, {u1}\ns_add_u32 {s('wqcol')}, {s('wqcol')}, 2048")
    R(f"s_mul_i32 {u1}, {s('kh')}, {32*WROW}\ns_add_u32 {s('wqcol')}, {s('wqcol')}, {u1}\ns_lshl_b32 {s('m0q')}, {s('wave')}, 10")
    R(f"v_mov_b32 v{V_T128H}, {OOB}\nv_cmp_gt_u32 vcc, 17, v{L}\nv_add_u32 v{V_T128B}, {64*128}, v{V_T128}\nv_mul_u32_u24 v{V_TROW}, {WROW}, v{L}\nv_cndmask_b32 v{V_T128B}, v{V_T128H}, v{V_T128B}, vcc")
    R(f"v_cmp_gt_u32 vcc, 8, v{L}\nv_add_u32 v{V_TROWB}, {64*WROW}, v{V_TROW}\ns_nop 0\nv_cndmask_b32 v{V_TROWB}, v{V_T128H}, v{V_TROWB}, vcc")
    R(f"v_cmp_gt_u32 vcc, 18, v{L}\ns_nop 1\nv_cndmask_b32 v{V_TROWQ}, v{V_T128H}, v{V_TROW}, vcc")
    R(f"v_cmp_gt_u32 vcc, 32, v{L}\ns_nop 1\nv_cndmask_b32 v{V_T128H}, v{V_T128H}, v{V_T128}, vcc")
    R(f"v_lshrrev_b32 v{T0}, 4, v{L}\nv_and_b32 v{T1}, 15, v{L}")
    R(f"v_lshrrev_b32 v{T2}, 1, v{T0}\nv_lshlrev_b32 v{T3}, 9, v{T2}")
    R(f"v_and_b32 v{T2}, 1, v{T0}\nv_lshl_add_u32 v{T3}, v{T2}, 7, v{T3}")
    R(f"v_lshrrev_b32 v{T2}, 2, v{T1}\nv_lshl_add_u32 v{T3}, v{T2}, 5, v{T3}")
    R(f"v_and_b32 v{T2}, 3, v{T1}\nv_lshl_add_u32 v{V_AQ}, v{T2}, 3, v{T3}")
    R(f"v_lshrrev_b32 v{T2}, 2, v{T1}\nv_lshl_add_u32 v{T2}, v{T0}, 2, v{T2}")
    R(f"v_mul_u32_u24 v{T2}, 288, v{T2}\nv_and_b32 v{T3}, 3, v{T1}")
    if G2X:
        R(f"v_lshl_add_u32 v{V_A2}, v{T3}, 3, v{T2}\ns_lshr_b32 {s('t5')}, {s('jj')}, 2")
    else:
        R(f"v_lshl_add_u32 v{T2}, v{T3}, 3, v{T2}\ns_mul_i32 {u0}, {s('kh')}, 9216\nv_add_u32 v{V_A2}, {u0}, v{T2}")
    R(f"v_add_u32 v{V_A2+1}, {3*WD_SLOT}, v{V_A2}\nv_add_u32 v{V_A2+2}, {6*WD_SLOT}, v{V_A2}")
    R(f"v_lshrrev_b32 v{T0}, 1, v{L}\nv_and_b32 v{T1}, 0x13, v{T0}")
    R(f"v_and_b32 v{T2}, 4, v{T0}\nv_lshl_or_b32 v{T1}, v{T2}, 1, v{T1}")
    R(f"v_and_b32 v{T2}, 8, v{T0}\nv_lshrrev_b32 v{T2}, 1, v{T2}")
    R(f"v_or_b32 v{T1}, v{T1}, v{T2}\nv_mul_u32_u24 v{T1}, {WROW}, v{T1}")
    R(f"v_and_b32 v{T2}, 1, v{L}\nv_lshl_add_u32 v{V_WQ}, v{T2}, 4, v{T1}")
    for ip in (range(3) if G2X else []):
        if ip < 2: R(f"s_lshl_b32 {u0}, {s('wave')}, 6\nv_add_u32 v{T0}, {u0}, v{L}" + (f"\nv_add_u32 v{T0}, 256, v{T0}" if ip else ""))
        else: R(f"s_lshl_b32 {u0}, {s('wave')}, 4\ns_add_u32 {u0}, {u0}, 512\nv_and_b32 v{T0}, 15, v{L}\nv_add_u32 v{T0}, {u0}, v{T0}")
        R(f"v_mul_u32_u24 v{T1}, 3641, v{T0}\nv_lshrrev_b32 v{T1}, 16, v{T1}")
        R(f"v_mul_u32_u24 v{T2}, 18, v{T1}\nv_sub_u32 v{T2}, v{T0}, v{T2}")
        R(f"v_mul_u32_u24 v{T1}, {XROW}, v{T1}\nv_lshl_add_u32 v{V_WD+ip}, v{T2}, 4, v{T1}")
    if G2X: R(f"s_lshl_b32 {s('m0d')}, {s('wave')}, 10\ns_lshl_b32 {u0}, {s('wave')}, 8\ns_add_u32 {s('m0d5')}, {u0}, 8192")
    for ip in ([] if G2X else range(5)):
        if ip < 4:
            R(f"s_lshl_b32 {u0}, {s('th')}, 8\nv_add_u32 v{T0}, {u0}, v{L}" + (f"\nv_add_u32 v{T0}, {64*ip}, v{T0}" if ip else ""))
        else:
            R(f"s_lshl_b32 {u0}, {s('th')}, 5\ns_add_u32 {u0}, {u0}, 512\nv_and_b32 v{T0}, 31, v{L}\nv_add_u32 v{T0}, {u0}, v{T0}")
        R(f"v_mul_u32_u24 v{T1}, 3641, v{T0}\nv_lshrrev_b32 v{T1}, 16, v{T1}")
        R(f"v_mul_u32_u24 v{T2}, 18, v{T1}\nv_sub_u32 v{T2}, v{T0}, v{T2}")
        R(f"v_mul_u32_u24 v{T1}, {XROW}, v{T1}\nv_lshl_add_u32 v{V_WD+ip}, v{T2}, 4, v{T1}" + (f"\nv_subrev_u32 v{V_WD+ip}, {ip*1024}, v{V_WD+ip}" if 0 < ip < 4 else ""))
    if not G2X:
        R(f"s_mul_i32 {u1}, {s('kh')}, 9216\ns_lshl_b32 {u2}, {s('th')}, 9\ns_add_u32 {u2}, {u2}, {u1}\ns_add_u32 {s('m0d5')}, {u2}, 8192\n"
          f"s_lshl_b32 {u2}, {s('th')}, 12\ns_add_u32 {s('m0d')}, {u1}, {u2}")
    KH = s('t5') if G2X else s('kh')
    R(f"v_lshlrev_b32 v{V_L16}, 4, v{L}\nv_lshlrev_b32 v{V_L8}, 3, v{L}")
    R(f"v_mov_b32 v{V_KA}, 0x{f2u(GA):08x}\ns_mov_b32 {s('kb')}, 0x{f2u(GB):08x}\nv_mov_b32 v{V_Z}, 0")
    R(f"s_lshl_b32 {s('pf')}, {s('cu')}, 7\ns_add_u32 {s('pf')}, {s('pf')}, {WS_F}\nv_mov_b32 v{V_PUBD}, v{V_PUB}")
    R(f"s_and_b32 {s('flagh')}, {s('cu')}, 0xf8\ns_lshl_b32 {u0}, {KH}, 2\ns_add_u32 {s('flagh')}, {s('flagh')}, {u0}\n"
      f"s_lshl_b32 {s('flagh')}, {s('flagh')}, 7\ns_add_u32 {s('flagh')}, {s('flagh')}, {WS_F}\nv_min_u32 v{T0}, 3, v{L}")
    R(f"v_lshlrev_b32 v{T0}, 7, v{T0}\nv_add_u32 v{V_FH}, {s('flagh')}, v{T0}")
    R(f"s_lshl_b32 {u0}, {s('mb')}, 2\ns_add_u32 {u0}, {u0}, {s('sk')}\ns_lshl_b32 {u0}, {u0}, 2\n"
      f"s_add_u32 {u1}, {u0}, {s('wave')}\ns_mul_i32 {u1}, {u1}, {36*H_KS}\n"
      f"s_lshl_b32 {u2}, {s('jj')}, 14\ns_add_u32 {s('hst')}, {u1}, {u2}\n"
      f"s_lshr_b32 {u2}, {s('jj')}, 1\ns_add_u32 {u2}, {u2}, 32\ns_lshl_b32 {u2}, {u2}, 12\ns_add_u32 {s('hstq')}, {u1}, {u2}\n"
      f"s_and_b32 {u2}, {s('jj')}, 1\ns_lshl_b32 {u3}, {u2}, 9\ns_add_u32 {s('hstq')}, {s('hstq')}, {u3}\n"
      + (f"s_lshl_b32 {u4}, {KH}, 16\ns_add_u32 {s('hldA')}, {u4}, {u1}\n"
         f"s_lshl_b32 {u4}, {KH}, 13\ns_add_u32 {u4}, {u4}, {32*H_KS}\ns_add_u32 {s('hlqA')}, {u4}, {u1}" if G2X else
      f"s_lshl_b32 {u2}, {u2}, 1\ns_add_u32 {u2}, {u2}, {s('th')}\n"
      f"s_add_u32 {u1}, {u0}, {u2}\ns_mul_i32 {u1}, {u1}, {36*H_KS}\n"
      f"s_lshl_b32 {u2}, {s('kh')}, 11\ns_sub_u32 {u3}, 2048, {u2}\n"
      f"s_lshl_b32 {u4}, {s('kh')}, 16\ns_add_u32 {u4}, {u4}, {u1}\n"
      f"s_add_u32 {s('hldA')}, {u4}, {u2}\ns_add_u32 {s('hldB')}, {u4}, {u3}\n"
      f"s_lshl_b32 {u4}, {s('kh')}, 13\ns_add_u32 {u4}, {u4}, {32*H_KS}\ns_add_u32 {u4}, {u4}, {u1}\n"
      f"s_add_u32 {s('hlqA')}, {u4}, {u2}\ns_add_u32 {s('hlqB')}, {u4}, {u3}"))
    R((f"s_and_b32 {u0}, {s('jj')}, 3\n" if G2X else f"s_lshr_b32 {u0}, {s('jj')}, 1\n") + f"s_mul_i32 {u0}, {u0}, 288\n"
      f"s_mul_i32 {u1}, {s('sk')}, {1152*XROW}\ns_add_u32 {u0}, {u0}, {u1}\n"
      f"s_mul_i32 {u1}, {KH}, {512*XROW}\ns_add_u32 {s('wd0')}, {u0}, {u1}\n"
      f"s_mul_i32 {u1}, {KH}, {64*XROW}\ns_add_u32 {s('wdq')}, {u0}, {u1}\ns_add_u32 {s('wdq')}, {s('wdq')}, {1024*XROW}")
    return G

class Side:
    def __init__(self):
        self.q = []; self.m = 0; self.clock = 0.0; self.hi = []
    def add(self, ops):
        for o in ops: self.q.append((o[0], o[1], o[2] if len(o) > 2 else -1))
    def add_rated(self, ops, cost, earliest=None):
        st = max(self.clock, self.m if earliest is None else earliest)
        nv = sum(1 for o in ops if o[1] == 'v')
        k = 0
        for o in ops:
            nb = int(st + k * cost / nv)
            self.q.append((o[0], o[1], nb))
            if o[1] == 'v': k += 1
        self.clock = st + cost
    def add_hi(self, f): self.hi.append(f)
    def empty(self): return not self.q and not self.hi
    def take_gap(self, E):
        if self.hi:
            self.hi.pop(0)(E); return 2
        if not self.q: return 0
        f, kind, nb = self.q[0]
        if kind == 'v' and nb < self.m:
            self.q.pop(0); f(E); return 2
        return 0
    def take_scalar(self, E):
        if self.q and self.q[0][1] == 's' and self.q[0][2] <= self.m + 2:
            f, _, _ = self.q.pop(0); f(E); return 1
        return 0
    def drain(self, E):
        while self.hi: self.hi.pop(0)(E)
        while self.q:
            f, kind, nb = self.q.pop(0)
            f(E)
            if kind == 's': E.raw("s_nop 0")

def kstep(E, st, side, mf, reads, side_gaps=(), cap_extra=0):
    reads = list(reads)
    n = len(mf)
    for i, m in enumerate(mf):
        E.raw(m)
        st.tick()
        side.m += 1
        cap = 2 + cap_extra
        if reads:
            E.ds(reads.pop(0)); cap -= 1
        elif i in side_gaps:
            u = side.take_gap(E)
            cap -= u
            if u: cap = min(cap, 0)
        if cap > 0:
            if (i + 1) in side_gaps or (i + 1 == n):
                cap -= side.take_scalar(E)
        if cap > 0:
            st.fill(E, cap)

def gemm1_mf(buf, ks, first, par=None):
    mf = []
    if par is None: par = ks & 1
    for f in range(4):
        grp, mat = f >> 1, f & 1
        a = vr(V_AR + 16 * par + 4 * f)
        for tt in range(4):
            mf.append(mfma(buf + (grp * 2 + mat) * 16 + tt * 4, a, xreg(ks, tt), first))
    return mf

XB = [0, 24576, 49152]
def issue_xp(E, c, hf, b):
    E.raw(f"s_add_u32 m0, {s('m0x')}, {XB[b]}")
    E.raw(f"s_add_u32 {s('so2')}, {s('xoff')}, {hf * 32 * XROW + c * 128}")
    for u in range(4):
        E.vmem(f"buffer_load_dwordx4 v{V_X+u}, {srd(SRD_X)}, {s('so2')} offen offset:{u*1024} lds", f"X{hf}_{c}")
def xp_ops(c, hf, b):
    ops = [((lambda E: (E.raw(f"s_add_u32 m0, {s('m0x')}, {XB[b]}"), E.raw(f"s_add_u32 {s('so')}, {s('xoff')}, {hf * 32 * XROW + c * 128}"))), 's')]
    for u in range(4):
        ops.append(((lambda E, u=u: E.vmem(f"buffer_load_dwordx4 v{V_X+u}, {srd(SRD_X)}, {s('so')} offen offset:{u*1024} lds", f"X{hf}_{c}")), 'v'))
    return ops
def read_xp(c, hf, b):
    return [(f"ds_read_b128 {xreg(2*c+h, 2*hf+tp)}, v{V_XR + h} offset:{XB[b] + tp * 2048}", f"xr{hf}_{c}") for h in range(2) for tp in range(2)]

def areads_half(ks, gp, par, tagn):
    out = []
    reg, kk = divmod(ks, 6)
    for f in range(4):
        grp, mat = f >> 1, f & 1
        d = V_AR + 16 * par + 4 * f
        base = (V_AB if gp else V_A) + 2 * reg + grp
        for sec in range(2):
            out.append((f"ds_read_b64_tr_b16 v[{d+2*sec}:{d+2*sec+1}], v{base} offset:{kk*W1_KS + mat*1024 + sec*512}", f"a{tagn}_{f}"))
    return out

def half_step(E, st, side, n, ks, gp, half, first, reads, xq, cap_extra=0, vm_ok=True):
    par = n & 1
    buf = V_BUF[half]
    i = 0
    for f in range(4):
        g_, mat = 2 * gp + (f >> 1), f & 1
        E.wait_dstag(f"a{n}_{f}")
        for tq in range(2):
            d = buf + ((g_ * 2 + mat) * 2 + tq) * 4
            E.raw(mfma(d, vr(V_AR + 16 * par + 4 * f), xreg(ks, 2 * half + tq), first))
            st.tick(); side.m += 1
            cap = 2 + cap_extra
            if reads:
                t_, tg = reads.pop(0); E.ds(t_, tg); cap -= 1
            if xq and i >= 2:
                t_, tg = xq.pop(0); E.ds(t_, tg); cap -= 1
            elif vm_ok and (i & 1) == 1:
                u = side.take_gap(E)
                if u: cap = 0
            if cap > 0: cap -= side.take_scalar(E)
            if cap > 0: st.fill(E, cap)
            i += 1

def l1_ops(c):
    ops = []
    for kk in range(3 * c, 3 * c + 3):
        a, b, d = w1_ops(1, kk)
        ops += [(a, 's'), (b, 'v'), (d, 'v')]
    return ops

def p0ab(E, st, side, G, opt):
    NA, NB, NC, ND = nonce_ops()
    seq = [(ks, gp) for ks in range(18) for gp in range(2)]
    xq = []
    b_issue = {8: 6, 11: 7, 14: 8, 17: 0}
    b_read = {10: 6, 13: 7, 16: 8}
    for n, (ks, gp) in enumerate(seq):
        if gp == 1 and ks % 3 == 2 and ks < 17:
            if ks == 8: E.wait_dstag("xr0_7")
            E.wait(vm=f"W0_{ks//3+1}", barrier=True)
        if gp == 0:
            if ks % 2 == 0: E.wait_dstag(f"xr0_{ks//2}")
            if 1 <= ks <= 5:
                E.wait_dstag(f"xr0_{ks}")
                issue_xp(E, ks + 3, 0, (ks + 3) % 3)
            if ks == 1: issue_w1_slot(E, 0, 2)
            if ks == 3: issue_w1_slot(E, 0, 3)
            if ks in b_issue:
                prev = {8: "xr0_8", 11: "xr1_6", 14: "xr1_7", 17: "xr1_8"}[ks]
                E.wait_dstag(prev)
                side.add(xp_ops(b_issue[ks], 1, 2))
            if ks == 11: st.flush(E)
            if ks == 12 and opt.get("touch", 1): side.add(touch_ops_wq())
            if ks == opt.get("txb", 6):
                E.raw(f"v_mov_b32 v{V_T0}, {OOB}\nv_cmp_gt_u32 vcc, 36, v{V_LANE}\ns_lshl_b32 {s('t0')}, {s('jj')}, 2\ns_add_u32 {s('t0')}, {s('t0')}, 32\ns_mul_i32 {s('t0')}, {s('t0')}, {XROW}")
                E.raw(f"v_cndmask_b32 v{V_T0}, v{V_T0}, v{V_T128}, vcc\ns_add_u32 {s('t0')}, {s('t0')}, {s('xoff')}")
                touch(E, V_T0, SRD_X, s('t0'))
            if ks == opt.get("tl1", 7):
                st.flush(E)
                if ks >= 8: side.add(touch_ops_w1(1))
                else: emit_ops(E, touch_ops_w1(1))
            if ks == 13: NA(E)
            E.stamp(f"P0k{ks}")
        if gp == 1 and ks == 8:
            for sl in (4, 5):
                for kk in range(3 * sl, 3 * sl + 3):
                    a, b, c = w1_ops(0, kk)
                    side.add([(a, 's'), (b, 'v'), (c, 'v')])
        if gp == 1 and ks <= 7:
            E.wait(vm=f"X0_{ks+1}")
            xq += read_xp(ks + 1, 0, (ks + 1) % 3)
        if gp == 1 and ks in b_read:
            E.wait(vm=f"X1_{b_read[ks]}"); xq += read_xp(b_read[ks], 1, 2)
        if n + 1 < len(seq): nks, ngp = seq[n + 1]
        else: nks, ngp = 12, 0
        reads = areads_half(nks, ngp, (n + 1) & 1, n + 1)
        half_step(E, st, side, n, ks, gp, 0, ks == 0, reads, xq, vm_ok=(ks >= 8), cap_extra=(2 if st.pending() else 0))
        assert not xq
    E.stamp("P0end")
    E.raw(f"s_add_u32 {s('t3')}, {s('hst')}, 0")
    E.raw(f"s_add_u32 {s('t2')}, {s('hst')}, {H_KS}")
    def hs_fn(tag):
        def f(E, pp, tt, base):
            E.vmem(f"buffer_store_dwordx4 {vr(base)}, v{V_L16}, {srd(SRD_W)}, {s('t3' if pp == 0 else 't2')} offen offset:{tt*1024} sc1", tag)
        return f
    G.nset = 2
    G.half_pass(V_BUF[0], 0, hs_fn("HS0"))
    G.nset = N_GSET; G.pairno = 0
    order = [(12 + p) % 18 for p in range(18)]
    seq = [(pos, gp) for pos in range(18) for gp in range(2)]
    n0 = 36
    issue = {2: [(2, 2, "xr1_0")], 3: [(1, 0, None)], 5: [(3, 2, "xr1_2")], 6: [(4, 1, None), (5, 0, "xr1_1")]}
    rd = {1: (0, 2), 4: (2, 2), 5: (1, 0), 7: (3, 2), 8: (4, 1), 9: (5, 0)}
    for m, (pos, gp) in enumerate(seq):
        n = n0 + m
        ks = order[pos]
        if gp == 0:
            if pos in (3, 6, 9, 12, 15):
                if pos == 12: E.wait_dstag("xr1_5"); E.wait_dstag("xr1_4")
                E.wait(barrier=True)
            if ks % 2 == 0: E.wait_dstag(f"xr1_{ks//2}")
            for c, b, tg in issue.get(pos, []):
                if tg: E.wait_dstag(tg)
                side.add(xp_ops(c, 1, b))
            if pos == 9: side.add(l1_ops(0))
            if pos == 12: side.add(l1_ops(1)); side.add(l1_ops(4))
            if pos == 15: side.add(l1_ops(2)); side.add(l1_ops(5))
            if pos == 14: NB(E)
        if gp == 1 and pos in rd:
            c, b = rd[pos]
            E.wait(vm=f"X1_{c}"); xq += read_xp(c, 1, b)
        if pos == 17 and gp == 1:
            E.wait(vm="W1_0", barrier=True)
            reads = [(t_, "p2a") for t_ in areads_w1(0, 0, par=(n + 1) & 1)]
        else:
            npos, ngp = seq[m + 1]
            reads = areads_half(order[npos], ngp, (n + 1) & 1, n + 1)
        half_step(E, st, side, n, ks, gp, 1, pos == 0, reads, xq, cap_extra=(1 if st.pending_cost() > 9.0 * (len(seq) - m) else 0))
        assert not xq
    nfl = st.flush(E)
    if nfl: print(f"; note: P0b GELU flush {nfl}", file=sys.stderr)
    E.stamp("P1end")
    G.half_pass(V_BUF[1], 1, hs_fn("HS1"))

def toggle_bases(E):
    for i in range(6):
        E.raw(f"v_xor_b32 v{V_A+i}, 64, v{V_A+i}")

def hstore_fn(p):
    def f(E, tt, base):
        E.vmem(f"buffer_store_dwordx4 {vr(base)}, v{V_L16}, {srd(SRD_W)}, {s('so2')} offen offset:{tt*1024} sc1", f"HS{p}")
    return f
def hstoreq_fn(E, tt, base):
    E.vmem(f"buffer_store_dwordx2 {vr(base, 2)}, v{V_L8}, {srd(SRD_W)}, {s('hstq')} offen offset:{tt*1024} sc1", "HS4")

def wq_ops(lo=0, hi=9):
    ops = []
    for i in range(lo, hi):
        def setup(E, i=i):
            dst = (SCRATCH + i * 4096) if (WQE and i < 4) else ((i - 4) * 4096 if WQE else i * 4096)
            E.raw(f"s_add_u32 m0, {s('m0q')}, {dst}")
            E.raw(f"s_add_u32 {s('so')}, {s('wqcol')}, {i * 64 * WROW}")
        def d(E): E.vmem(f"buffer_load_dwordx4 v{V_WQ}, {srd(SRD_Q)}, {s('so')} offen lds", "WQ")
        ops += [(setup, 's'), (d, 'v')]
    return ops

def build(opt):
    global OPT
    OPT = opt
    E = Emit()
    E.do_stamp = bool(opt.get("stamp"))
    if isinstance(opt.get("stamp"), str): E.stamp_sel = set(opt["stamp"].split("+"))
    global HSC, WQE, G2X
    G2X = bool(opt.get("g2x", 0))
    HSC = "" if opt.get("hplain") else " sc1"
    WQE = bool(opt.get("wqe", 1))
    st = Stream()
    G = Gelu(st)
    side = Side()
    E.stamp("start")
    prologue(E, opt)
    TH2 = opt.get("th2", 0)
    coop = opt.get("coop", 0) if not TH2 else 0
    if coop == 1:
        coop_setup(E); coop_touch(E, 0)
    if TH2: issue_xp(E, 0, 0, 0)
    else:
        issue_x(E, 0); issue_x(E, 1)
    E.stamp("i1")
    if coop >= 2:
        coop_setup(E); E.raw(f"s_add_u32 {s('tA')}, {s('tA')}, {s('tB')}")
    prologue_w(E)
    issue_w1_slot(E, 0, 0)
    nonce_write(E)
    if coop == 1 or coop == 3: coop_touch(E, 1)
    if TH2:
        issue_xp(E, 1, 0, 1); issue_xp(E, 2, 0, 2)
    else:
        issue_x(E, 2); issue_x(E, 3)
    if coop == 3: coop_touch(E, 2)
    setupA(E)
    issue_w1_slot(E, 0, 1)
    if coop == 2: coop_touch(E, 1)
    if coop == 1 or coop == 2: coop_touch(E, 2)
    NCOMB = opt.get("ncomb", 8)
    if TH2:
        E.wait(vm="X0_0")
        E.stamp("x01")
        for t_, tg in read_xp(0, 0, 0): E.ds(t_, tg)
        E.wait(ds=0)
        issue_xp(E, 3, 0, 0)
        E.wait(vm="W0_0", barrier=True)
        for t_, tg in areads_half(0, 0, 0, 0): E.ds(t_, tg)
    else:
        E.wait(vm=["X0", "X1"])
        E.stamp("x01")
        for r in read_x(E, 0): E.ds(r)
        E.wait(ds=0)
        issue_x(E, 4); issue_x(E, 5)
        E.wait(vm="W0_0", barrier=True)
        for r in areads_w1(0, 0, par=0): E.ds(r)
    E.stamp("P0go")
    SG = (9, 11, 13)
    NA, NB, NC, ND = nonce_ops()
    prev = None
    setup_items = []
    for grp in setupB():
        prev = st.add(grp, min(2, grp.count("\n") + 1), [(prev, 0)] if prev else [])
        setup_items.append(prev)
    FULL = False
    l1_queued = 0
    p0_par = 0
    if TH2:
        p0ab(E, st, side, G, opt)
    else:
        steps = []
        for ks in range(18):
            steps.append(("A", ks))
            if ks < NCOMB: steps.append(("B", ks))
        def last_half(ks): return ("B", ks) if ks < NCOMB else ("A", ks)
        FULL = (NCOMB == 18)
        l1_queued = 0
        for n, (kind, ks) in enumerate(steps):
            par = n & 1
            bar = False; tags = []
            for c in range(1, 6):
                if (kind, ks) == last_half(3 * c - 1): bar = True; tags.append(f"W0_{c}")
            if FULL and (kind, ks) == ("B", 17): bar = True; tags.append("W1_0")
            E.wait(vm=(tags if tags else None), ds=0, barrier=bar)
            if bar and ks == 8:
                for sl in (4, 5):
                    for kk in range(3 * sl, 3 * sl + 3):
                        a, b, c = w1_ops(0, kk)
                        side.add([(a, 's'), (b, 'v'), (c, 'v')])
            if bar and ks >= 8:
                free = (ks + 1) // 3 if ks < NCOMB else min(NCOMB // 3, (ks + 1) // 3)
                free = min(free, 4 if ks < 14 else 6)
                while l1_queued < free:
                    for kk in range(3 * l1_queued, 3 * l1_queued + 3):
                        a, b, c = w1_ops(1, kk)
                        side.add([(a, 's'), (b, 'v'), (c, 'v')])
                    l1_queued += 1
            if kind == "A":
                if 1 <= ks <= 6:
                    issue_x(E, 2 * (ks + 2)); issue_x(E, 2 * (ks + 2) + 1)
                if ks == 1: issue_w1_slot(E, 0, 2)
                if ks == 3: issue_w1_slot(E, 0, 3)
                if ks == 11: st.flush(E)
                if ks == 12 and opt.get("tlb", 0): side.add(tlb_ops())
                if ks == 12 and opt.get("touch", 1):
                    side.add(touch_ops_wq())
                    if not FULL and not opt.get("tw1", 0): side.add(touch_ops_w1(1))
                if opt.get("tw1", 0) and ks == opt.get("tw1", 0):
                    assert setup_items[8].placed is not None, "touch registers not ready"
                    emit_ops(E, touch_ops_w1(1))
                if opt.get("tw45", 0) and ks == opt.get("tw45", 0):
                    assert setup_items[8].placed is not None, "touch registers not ready"
                    E.raw(f"v_mov_b32 v{V_T0}, {OOB}\nv_cmp_gt_u32 vcc, 24, v{V_LANE}\ns_and_b32 {s('t0')}, {s('mb')}, 3\ns_lshl_b32 {s('t0')}, {s('t0')}, 1\ns_add_u32 {s('t0')}, {s('t0')}, {s('kh')}")
                    E.raw(f"v_cndmask_b32 v{V_T0}, v{V_T0}, v{V_TROW}, vcc\ns_mul_i32 {s('t0')}, {s('t0')}, {24*WROW}\ns_add_u32 {s('t0')}, {s('t0')}, {s('w1col')}\ns_add_u32 {s('t0')}, {s('t0')}, {384*WROW}")
                    touch(E, V_T0, SRD_Q, s('t0'))
                if ks == 13: NA(E)
                if ks == 17 and not FULL: toggle_bases(E)
                E.stamp(f"P0k{ks}")
            if FULL and (kind, ks) == ("B", 15):
                NB(E)
            if FULL and (kind, ks) == ("A", 17 + 0): pass
            if n + 1 < len(steps):
                nk, nks = steps[n + 1]
                reads = areads_w1(0, nks, par=1 - par, alt=(nk == "B"))
            elif FULL:
                reads = areads_w1(0, 0, par=1 - par)
            else:
                reads = areads_w1(1, NCOMB, par=1 - par)
            if FULL and (kind, ks) == ("B", 17): NC(E)
            mf = gemm1_mf(V_BUF[0 if kind == "A" else 1], ks, ks == 0, par=par)
            if (kind, ks) == last_half(ks) and ks <= 7:
                xr = read_x(E, ks + 1)
                for i, m in enumerate(mf):
                    E.raw(m); st.tick()
                    if i < 8: E.ds(reads[i])
                    else:
                        if i == 8: E.wait(vm=[f"X{2*(ks+1)}", f"X{2*(ks+1)+1}"])
                        E.ds(xr[i - 8])
                    st.fill(E, 1)
            else:
                kstep(E, st, side, mf, reads, side_gaps=(8, 9, 10, 11, 12, 13, 14, 15) if ks >= 8 else ())
        st.flush(E)
        p0_par = len(steps) & 1
        E.stamp("P0end")
    if opt.get("abl") == "p1": E.raw("; MARK_ABL")
    RATE = float(opt.get("rate", 3.4))
    PB, PC, PD = opt.get("PB", 2), opt.get("PC", 9), opt.get("PD", 13)
    PUB4, PUB5 = opt.get("pub4", 5), opt.get("pub5", 9)
    G2BAR = [2, 5, 8, 11, 14, 17] if G2X else ([1, 3, 5, 7, 9, 11, 13, 15, 17] if opt.get("bar2", 1) else list(range(18)))
    def plan_tail():
        G2 = 432
        items = []
        if WQE: items.append(("WQ", wq_ops(4, 9), 20 * RATE, 32, 272 - 30))
        else: items.append(("WQ", wq_ops(), 36 * RATE, 80, 272 - 30))
        de = {0: 128, 1: 128, 2: 176, 3: 224, 4: 272, 5: 272, 6: 424, 7: 424}
        dex = {0: 5, 1: 5, 2: 8, 3: 8, 4: 8, 5: 11, 6: 11, 7: 14, 8: 14, 9: 14, 10: 17, 11: 17, 12: 17}
        for u in range(18):
            if G2X:
                if u <= 12: e = 16 * dex[u]
                elif u <= 15: e = 424
                else: e = G2 + 36 * G2BAR[0] + 24 + 1
                tb = max(k for k in [-1] + G2BAR if k < u)
                dl = 424 if tb < 0 else G2 + 36 * tb + 24
                items.append((f"D{u}", wd_ops(u), 3.3 * RATE, e, dl - 20))
                continue
            e = de[u] if u < 8 else G2 + 36 * (u - 7)
            dl = 424 if u == 0 else G2 + 36 * (u - 1) + 24
            if opt.get("bar2", 1):
                if u >= 8:
                    fb = min(k for k in G2BAR if k >= u - 8)
                    e = G2 + 36 * fb + 24 + 1
                tb = max(k for k in [-1] + G2BAR if k < u)
                dl = 424 if tb < 0 else G2 + 36 * tb + 24
            items.append((f"D{u}", wd_ops(u), 6.15 * RATE, e, dl))
        for u in range(18):
            if u <= 6: e = 288 + 8 * (u + 1) + 2
            else: e = G2 + 36 * (u - 6)
            if 8 <= u <= 11: e = max(e, G2 + 36 * PB)
            if 12 <= u <= 15: e = max(e, G2 + 36 * PC)
            if u >= 16: e = max(e, G2 + 36 * PD)
            dl = G2 + 36 * u
            if u >= 16: dl = G2 + 36 * (u - OPT.get("hlead", 2))
            items.append((f"H{u}", h_ops(u), 4 * RATE, e, dl))
        clock = 32 if WQE else 80
        order = []
        rem = list(items)
        while rem:
            legal = [it for it in rem if it[3] <= clock]
            if not legal:
                clock = min(it[3] for it in rem); continue
            it = min(legal, key=lambda x: x[4])
            rem.remove(it)
            order.append((it, clock))
            if clock + it[2] > it[4] and not it[0].startswith("H1"): print(f"; plan: {it[0]} start {clock:.0f} end {clock+it[2]:.0f} deadline {it[4]} LATE", file=sys.stderr)
            clock += it[2]
        side.clock = 0
        def gate_of(name):
            u = int(name[1:]) if name != "WQ" else None
            if name == "WQ": return ["P3bar2" if WQE else "P3bar5"]
            if name[0] == "D" and G2X:
                if u <= 12: return [f"P3bar{dex[u]}"]
                if u <= 15: return ["PQbar17"]
                return [f"G2bar{G2BAR[0]}"]
            if name[0] == "D":
                if u < 8: return [{0: "P3bar8", 1: "P3bar8", 2: "P3bar11", 3: "P3bar14", 4: "P3bar17", 5: "P3bar17", 6: "PQbar17", 7: "PQbar17"}[u]]
                return [f"G2bar{min(k for k in G2BAR if k >= u - 8)}"]
            g = ["pollA" if u < 8 else "pollB" if u < 12 else "pollC" if u < 16 else "pollD"]
            g.append(f"PQdone{u}" if u <= 6 else f"G2done{u-7}")
            return g
        for it, c in order:
            gates = gate_of(it[0])
            ops = []
            for o in it[1]:
                if o[1] == 'v':
                    def w(E, f=o[0], gates=gates, nm=it[0]):
                        for g_ in gates: assert g_ in E.events, f"{nm} emitted before {g_}"
                        f(E)
                    ops.append((w, 'v'))
                else: ops.append(o)
            side.add_rated(ops, it[2], earliest=c)
    if FULL:
        E.wait(ds=0); ND(E)
        E.raw(f"s_add_u32 {s('so2')}, {s('hst')}, 0")
        G.full_pass(V_BUF[0], hstore_fn(0))
        st.flush(E)
        E.stamp("P1end")
    for p in ((2, 3) if (FULL or TH2) else (1, 2, 3)):
        line, ph = p >> 1, p & 1
        buf = V_BUF[p & 1]
        E.raw(f"s_add_u32 {s('so2')}, {s('hst')}, {(p - 1) * H_KS}")
        if not (TH2 and p == 2): G.full_pass(V_BUF[(p - 1) & 1], hstore_fn(p - 1))
        if p == 3:
            assert side.empty()
            side.m = 0
            plan_tail()
        for ks in range(NCOMB if p == 1 else 0, 18):
            par = (ks & 1) if p > 1 else ((p0_par + ks - NCOMB) & 1)
            bar = (ks % 3 == 2)
            tags = []
            if bar:
                if p == 1 and ks == 17: tags.append("W1_0")
                if p == 2 and ks < 17:
                    if opt.get("p2bar", 0):
                        if ks == 2: tags += ["W1_1", "W1_2"]
                        elif ks == 8: tags += ["W1_3", "W1_4", "W1_5"]
                        else: bar = False
                    else: tags.append(f"W1_{ks//3+1}")
                if p == 3 and ks == 17: tags.append("WQ")
                if p >= 2 and ks == 2: tags.append(f"HS{p-2}")
                if p == 2 and ks == 17: bar = False
            if p == 1 and ks == 14:
                NB(E)
            E.wait(vm=(tags if tags else None), ds=0, barrier=bar)
            if p == 3 and bar: E.events.add(f"P3bar{ks}")
            if p == 1 and ks == 14: NC(E)
            if p == 1 and ks == 15: ND(E)
            if bar:
                c = ks // 3
                if p >= 2 and ks == 2:
                    side.add_hi(publish_op(p - 1))
                    if opt.get("touch", 1):
                        if not TH2: side.add_hi(selftouch_op(p - 2))
                        elif p == 3: side.add_hi(selftouch_op(0)); side.add_hi(selftouch_op(1))
                    if TH2 and p == 2: side.add(l1_ops(3))
                if p == 1 and c >= l1_queued:
                    for kk in range(3 * c, 3 * c + 3):
                        a, b, d = w1_ops(1, kk)
                        side.add([(a, 's'), (b, 'v'), (d, 'v')])
            if (p, ks) == tuple(divmod(opt.get("twd", 206), 100)) and opt.get("touch", 1): side.add(touch_ops_wd())
            if p == 2 and ks == 9 and WQE: side.add(wq_ops(0, 4))
            if p == 3 and ks == 17 and WQE: E.raw(f"v_add_u32 v{V_AQ}, {SCRATCH}, v{V_AQ}")
            if p == 3 and ks == 15: side.add_hi(poll_issue("a"))
            if ks == 17 and p < 3: toggle_bases(E)
            if ks < 17: reads = areads_w1(ph, ks + 1, par=1 - par)
            elif p < 3: reads = areads_w1(1 - ph, 0, par=1 - par)
            else: reads = areads_q(0, 0)
            sg = SG
            if p == 3 and ks >= 5: sg = (8, 9, 11, 13, 15)
            kstep(E, st, side, gemm1_mf(buf, ks, ks == 0 and not (p == 1 and NCOMB > 0), par=par), reads, side_gaps=sg,
                  cap_extra=(1 if (p == 1 and NCOMB > 0 and st.pending_cost() > 19 * (17 - ks)) else 0))
        n = st.flush(E)
        if n: print(f"; note: pass {p}: GELU flush {n} gaps", file=sys.stderr)
        if p == 2: assert side.empty(), f"side not empty after pass {p}"
        E.stamp(f"P{p}end")
    E.raw(f"s_add_u32 {s('so2')}, {s('hst')}, {3 * H_KS}")
    G.full_pass(V_BUF[1], hstore_fn(3))
    bufq = V_BUF[0]
    for ks in range(18):
        bar = ks in (3, 17)
        tags = []
        if ks == 3: tags.append("HS2")
        if ks == 17: tags += (["D0", "D1", "D2"] if G2X else ["D0", "D1"] if opt.get("bar2", 1) else ["D0"])
        E.wait(vm=(tags if tags else None), ds=0, barrier=bar)
        if bar: E.events.add(f"PQbar{ks}")
        if ks >= 1: E.events.add(f"PQdone{ks-1}")
        if ks == 3:
            side.add_hi(publish_op(3))
            if opt.get("touch", 1): side.add_hi(selftouch_op(2))
        if ks == 1:
            poll_check(E, "a", 2); E.events.add("pollA")
        if ks == 7 and WQE: E.raw(f"v_subrev_u32 v{V_AQ}, {SCRATCH}, v{V_AQ}")
        mf = []
        for mat in range(2):
            a = vr(V_AR + 16 * (ks & 1) + 4 * mat)
            for tt in range(4):
                mf.append(mfma(bufq + mat * 16 + tt * 4, a, xreg(ks, tt), ks == 0))
        reads = areads_q(ks + 1, (ks + 1) & 1) if ks < 17 else areads_g2(0, 0, 0)
        kstep(E, st, side, mf, reads, side_gaps=(4, 5, 6, 7) if ks < 17 else (6, 7), cap_extra=opt.get("capq", 0))
    if opt.get("stop") == "g1":
        st.flush(E)
        G.quarter(bufq, hstoreq_fn)
        st.flush(E)
        side.q = []; side.hi = []
        E.wait_all()
        return finish(E)
    E.stamp("PQend")
    if opt.get("abl", "g2") == "g2": E.raw("; MARK_ABL")
    E.skew_on = True
    qadded = False
    sub_par = 0
    for t in range(18):
        for sub in range(3):
            tags = []
            bar = (sub == 2) and (t in G2BAR or t == PUB4 or t == PUB5)
            if sub == 0: tags.append(f"H{t}")
            if bar and t < 17 and not G2X and t in G2BAR:
                tags.append(f"D{t+1}")
                if opt.get("bar2", 1) and t + 2 < 18: tags.append(f"D{t+2}")
            if bar and G2X and t in G2BAR: tags += [f"D{u}" for u in range(t + 1, min(t + 4, 18))]
            pub = None
            if bar and t == PUB4: tags.append("HS3"); pub = 4
            if bar and t == PUB5: tags.append("HS4"); pub = 5
            E.wait(vm=(tags if tags else None), ds=0, barrier=bar)
            if bar: E.events.add(f"G2bar{t}")
            if sub == 0 and t >= 1: E.events.add(f"G2done{t-1}")
            if OPT.get("hchk") and sub == 0:
                for tt in range(4):
                    b = hreg(t, tt)
                    lab = E.label("hc")
                    E.raw(f"v_accvgpr_read_b32 v{V_T0}, a{b}\nv_accvgpr_read_b32 v{V_T1}, a{b+1}\nv_or_b32 v{V_T0}, v{V_T0}, v{V_T1}")
                    E.raw(f"v_accvgpr_read_b32 v{V_T1}, a{b+2}\nv_or_b32 v{V_T0}, v{V_T0}, v{V_T1}\nv_accvgpr_read_b32 v{V_T1}, a{b+3}\nv_or_b32 v{V_T0}, v{V_T0}, v{V_T1}")
                    E.raw(f"v_and_b32 v{V_T0}, 0x40004000, v{V_T0}\nv_cmp_ne_u32 vcc, 0, v{V_T0}\ns_nop 4\ns_cbranch_vccz {lab}")
                    E.raw(f"s_lshl_b32 {s('t0')}, s2, 2\ns_add_u32 {s('t0')}, {s('t0')}, {s('wave')}\ns_lshl_b32 {s('t0')}, {s('t0')}, 2\ns_add_u32 {s('t0')}, {s('t0')}, {61 << 20}")
                    E.raw(f"v_mov_b32 v{V_T1}, {t * 16 + tt + 1}\nv_mov_b32 v{V_T0}, 0")
                    E.raw(f"buffer_store_dword v{V_T1}, v{V_T0}, {srd(SRD_W)}, {s('t0')} offen\ns_waitcnt vmcnt(0)")
                    E.raw(f"{lab}:")
            if pub:
                side.add_hi(publish_op(pub))
                if pub == 4 and opt.get("touch", 1): side.add_hi(selftouch_op(3))
                if pub == 5 and opt.get("touchq", 0): side.add_hi(selftouchq_op())
            if sub == 0:
                if not qadded and st.pending() == 0:
                    G.quarter(bufq, hstoreq_fn); qadded = True
                if t == PB - 1: side.add_hi(poll_issue("b"))
                if t == PB: poll_check(E, "b", 3); E.events.add("pollB")
                if t == PC - 1: side.add_hi(poll_issue("c"))
                if t == PC: poll_check(E, "c", 4); E.events.add("pollC")
                if t == PD - 1: side.add_hi(poll_issue("d"))
                if t == PD: poll_check(E, "d", 5); E.events.add("pollD")
            mf = []
            for k in range(3):
                dt = 3 * sub + k
                a = vr(V_AR + 12 * sub_par + 4 * k)
                for tt in range(4):
                    mf.append(mfma(acc2(dt, tt), a, ar(hreg(t, tt)), t == 0, "a"))
            if sub < 2: reads = areads_g2(t, sub + 1, 1 - sub_par)
            elif t < 17: reads = areads_g2(t + 1, 0, 1 - sub_par)
            else: reads = []
            if t == 12 and sub == 0:
                prev = None
                for grp in (final8_setup() if G2X else final_setup(E)):
                    prev = st.add(grp, 2, [(prev, 1)] if prev else [])
            if t == 17 and sub >= 1 and G2X:
                final8_pack(st, range(12 * (sub - 1), 12 * sub))
                st.tick(); st.tick()
                E.raw("s_nop 3")
            if t == 17 and sub >= 1 and not G2X:
                for dt in range(3 * (sub - 1), 3 * sub):
                    for j in range(2):
                        st.add((lambda E, dt=dt, j=j: E.ds(f"ds_write_b128 v{V_RED}, {ar(acc2(dt, 2 + j))} offset:{(2*dt+j)*1024}")), 2, [])
                    for x in keep_reads(dt): st.add(x, 1, [])
                st.tick(); st.tick()
                E.raw("s_nop 3")
            kstep(E, st, side, mf, reads, side_gaps=(6, 7, 8, 9, 10, 11), cap_extra=(opt.get("capg", 1) if t < PUB5 else 0))
            if t == 17 and sub == 2: st.flush(E)
            sub_par = 1 - sub_par
        if E.stamp_sel is not None or t in (2, 5, 8, 11, 14, 17): E.stamp(f"G2t{t}")
        if t == PUB4 - 1:
            if E.vm.count("HS3") < 4: print(f"; note: flushing GELU(P3) at t={t}: {st.pending_cost()} slots", file=sys.stderr);
            while E.vm.count("HS3") < 4:
                st.tick(); E.raw("s_nop 0"); st.fill(E, 2)
        if t == PUB5 - 1:
            if not qadded:
                st.flush(E); G.quarter(bufq, hstoreq_fn); qadded = True
            if st.pending(): print(f"; note: flushing GELU(PQ) at t={t}: {st.pending_cost()} slots", file=sys.stderr)
            st.flush(E)
    assert side.empty(), "side ops left"
    E.raw("; MARK_END")
    E.skew_on = False
    if G2X: final8(E, st, opt)
    else: final(E, opt)
    return finish(E)

FIRST = [0, 5, 10, 14]
CNT = [5, 5, 4, 4]
RED = 73728
V_PUB2 = 2
KEEP = 128
RCV = 40

def final_setup(E):
    T0, T1 = V_T0, V_T1
    L = V_LANE
    G = []
    G.append(f"s_mul_i32 {s('t0')}, {s('wave')}, 18432\ns_add_u32 {s('t0')}, {s('t0')}, {RED}\nv_add_u32 v{V_RED}, {s('t0')}, v{V_L16}")
    G.append(f"s_xor_b32 {s('t1')}, {s('wave')}, 2\ns_mul_i32 {s('t1')}, {s('t1')}, 18432\ns_add_u32 {s('t1')}, {s('t1')}, {RED}\nv_add_u32 v{V_RED2}, {s('t1')}, v{V_L16}")
    G.append(f"s_lshl_b32 {s('t0')}, {s('mb')}, 3\ns_add_u32 {s('t0')}, {s('t0')}, {s('jj')}\ns_lshl_b32 {s('t0')}, {s('t0')}, 2\ns_add_u32 {s('t0')}, {s('t0')}, {s('wave')}\n"
             f"s_mul_i32 {s('t0')}, {s('t0')}, {16*5120}\ns_add_u32 {s('t0')}, {s('t0')}, {WS_P}\n"
             f"s_mul_i32 {s('t1')}, {s('sk')}, 5120\ns_add_u32 {s('pst')}, {s('t0')}, {s('t1')}\n"
             f"s_mul_i32 {s('t1')}, {s('sk')}, {4*5120}\ns_add_u32 {s('pld')}, {s('t0')}, {s('t1')}")
    G.append(f"s_lshl_b32 {s('t0')}, {s('mb')}, 8\ns_and_b32 {s('t1')}, {s('jj')}, 1\ns_lshl_b32 {s('t1')}, {s('t1')}, 7\ns_add_u32 {s('t0')}, {s('t0')}, {s('t1')}\n"
             f"s_lshl_b32 {s('t1')}, {s('th')}, 6\ns_add_u32 {s('t0')}, {s('t0')}, {s('t1')}\ns_lshl_b32 {s('t1')}, {s('kh')}, 5\ns_add_u32 {s('t0')}, {s('t0')}, {s('t1')}\n"
             f"s_mul_i32 {s('t0')}, {s('t0')}, {XROW}\ns_lshr_b32 {s('t1')}, {s('jj')}, 1\ns_mul_i32 {s('t1')}, {s('t1')}, 288\ns_add_u32 {s('outb')}, {s('t0')}, {s('t1')}")
    G.append(f"v_and_b32 v{T0}, 15, v{L}\nv_mul_u32_u24 v{T0}, {XROW}, v{T0}")
    G.append(f"v_lshrrev_b32 v{T1}, 4, v{L}\nv_lshl_add_u32 v{V_OUT}, v{T1}, 3, v{T0}")
    G.append(f"s_lshl_b32 {s('t0')}, {s('mb')}, 5\ns_add_u32 {s('t0')}, {s('t0')}, {s('jj')}\ns_lshl_b32 {s('t0')}, {s('t0')}, 2\ns_add_u32 {s('t0')}, {s('t0')}, {s('wave')}\n"
             f"s_lshl_b32 {s('t0')}, {s('t0')}, 7\ns_add_u32 {s('t0')}, {s('t0')}, {WS_F + 32768}\n"
             f"s_lshl_b32 {s('t1')}, {s('sk')}, 12\ns_add_u32 {s('pf2')}, {s('t0')}, {s('t1')}\n"
             f"v_min_u32 v{T0}, 3, v{L}\n"
             f"v_lshlrev_b32 v{T0}, 12, v{T0}\nv_add_u32 v{V_FO}, {s('t0')}, v{T0}")
    G.append(f"v_cmp_eq_u32 vcc, 0, v{L}\nv_mov_b32 v{T0}, {OOB}\nv_mov_b32 v{T1}, 0\ns_nop 0\nv_cndmask_b32 v{V_PUB2}, v{T0}, v{T1}, vcc")
    return G

def red_write(E, dt):
    for j in range(2):
        E.ds(f"ds_write_b128 v{V_RED}, {ar(acc2(dt, 2 + j))} offset:{(2*dt+j)*1024}")
def keep_reads(dt):
    return [f"v_accvgpr_read_b32 v{KEEP + (2*dt+j)*4 + r}, a{acc2(dt, j) + r}" for j in range(2) for r in range(4)]

def final(E, opt):
    R = E.raw
    R("s_nop 7")
    for dt in (6, 7, 8):
        red_write(E, dt)
        for x in keep_reads(dt): R(x)
    E.wait(ds=0, barrier=True)
    for ph in range(18):
        E.ds(f"ds_read_b128 {vr(RCV + 4*ph)}, v{V_RED2} offset:{ph*1024}")
    base_vm = list(E.vm); base_done = E.vm_done; base_ds = E.ds_out
    labs = [E.label(f"fin{k}") for k in range(4)]
    end = E.label("finend")
    R(f"s_cmp_eq_u32 {s('sk')}, 1\ns_cbranch_scc1 {labs[1]}\ns_cmp_eq_u32 {s('sk')}, 2\ns_cbranch_scc1 {labs[2]}\ns_cmp_eq_u32 {s('sk')}, 3\ns_cbranch_scc1 {labs[3]}")
    for sv in range(4):
        E.vm = list(base_vm); E.vm_done = base_done; E.ds_out = base_ds
        R(f"{labs[sv]}:")
        own = list(range(FIRST[sv], FIRST[sv] + CNT[sv]))
        XBF = OPT.get("xbf", 1)
        order = [ph for ph in range(18) if ph not in own] + own
        done_ds = -1
        for n, ph in enumerate(order):
            need = ph
            if need > done_ds:
                left = 17 - need
                E.wait(ds=min(left, E.ds_out))
                done_ds = need
            for r in range(4):
                R(f"v_add_f32 v{KEEP + 4*ph + r}, v{KEEP + 4*ph + r}, v{RCV + 4*ph + r}")
            if ph not in own:
                dest = max(d for d in range(4) if FIRST[d] <= ph)
                sig = ph - FIRST[dest]
                if not XBF:
                    R(f"s_add_u32 {s('so')}, {s('pst')}, {dest*4*5120 + sig*1024}")
                    E.vmem(f"buffer_store_dwordx4 {vr(KEEP + 4*ph)}, v{V_L16}, {srd(SRD_W)}, {s('so')} offen sc1", "PSx")
                else:
                    pb = RCV + 4 * (ph - (sig & 1)) + 2 * (sig & 1)
                    R(f"v_cvt_pk_bf16_f32 v{pb}, v{KEEP+4*ph}, v{KEEP+4*ph+1}")
                    R(f"v_cvt_pk_bf16_f32 v{pb+1}, v{KEEP+4*ph+2}, v{KEEP+4*ph+3}")
                    lastsig = CNT[dest] - 1
                    if (sig & 1) == 1 or sig == lastsig:
                        base = RCV + 4 * (ph - (sig & 1))
                        R(f"s_add_u32 {s('so')}, {s('pst')}, {dest*4*5120 + (sig >> 1)*1024}")
                        E.vmem(f"buffer_store_dwordx4 {vr(base)}, v{V_L16}, {srd(SRD_W)}, {s('so')} offen sc1", "PSx")
        E.stamp("F_red")
        R("s_waitcnt vmcnt(0)")
        E.vm_done = len(E.vm)
        E.stamp("F_ps")
        publish_op(6, V_PUB2, "pf2")(E)
        poll_check(E, "f", 6, voff=V_FO, issued=False)
        E.vm_done = len(E.vm)
        E.stamp("F_poll")
        srcs = [k for k in range(4) if k != sv]
        LD = RCV
        if not XBF:
            for sig in range(CNT[sv]):
                for n, src in enumerate(srcs):
                    R(f"s_add_u32 {s('so')}, {s('pld')}, {src*5120 + sig*1024}")
                    E.vmem(f"buffer_load_dwordx4 {vr(LD + (sig*3+n)*4)}, v{V_L16}, {srd(SRD_W)}, {s('so')} offen sc1", f"PL{sig}" if n == 2 else "PLx")
        else:
            npair = (CNT[sv] + 1) // 2
            for k in range(npair):
                for n, src in enumerate(srcs):
                    R(f"s_add_u32 {s('so')}, {s('pld')}, {src*5120 + k*1024}")
                    E.vmem(f"buffer_load_dwordx4 {vr(LD + (k*3+n)*4)}, v{V_L16}, {srd(SRD_W)}, {s('so')} offen sc1", f"PL{k}" if n == 2 else "PLx")
        for sig in range(CNT[sv]):
            ph = FIRST[sv] + sig
            dt, j = ph >> 1, ph & 1
            R(f"s_add_u32 {s('so')}, {s('outb')}, {dt*32 + j*16*XROW}")
            b = KEEP + 4 * ph
            if not XBF:
                E.wait(vm=f"PL{sig}")
                for r in range(4):
                    a = [LD + (sig*3+n)*4 + r for n in range(3)]
                    R(f"v_add_f32 v{a[0]}, v{a[0]}, v{a[1]}")
                    R(f"v_add_f32 v{b+r}, v{b+r}, v{a[2]}")
                    R(f"v_add_f32 v{b+r}, v{b+r}, v{a[0]}")
            else:
                E.wait(vm=f"PL{sig >> 1}")
                TMP = 100
                for n in range(3):
                    for h in range(2):
                        src_r = LD + ((sig >> 1)*3+n)*4 + 2*(sig & 1) + h
                        R(f"v_lshlrev_b32 v{TMP}, 16, v{src_r}")
                        R(f"v_and_b32 v{TMP+1}, 0xffff0000, v{src_r}")
                        R(f"v_add_f32 v{b+2*h}, v{b+2*h}, v{TMP}")
                        R(f"v_add_f32 v{b+2*h+1}, v{b+2*h+1}, v{TMP+1}")
            R(f"v_cvt_pk_bf16_f32 v{b}, v{b}, v{b+1}")
            R(f"v_cvt_pk_bf16_f32 v{b+1}, v{b+2}, v{b+3}")
            E.vmem(f"buffer_store_dwordx2 {vr(b, 2)}, v{V_OUT}, {srd(SRD_O)}, {s('so')} offen{' sc1' if OPT.get('outsc1', 0) else ''}", "OUT")
        if sv < 3: R(f"s_branch {end}")
    R(f"{end}:")

FIRST8 = [0, 5, 10, 15, 20, 24, 28, 32]
CNT8 = [5, 5, 5, 5, 4, 4, 4, 4]
PK8 = 128
P8_SLOT = 3072
def final8_setup():
    T0, T1 = V_T0, V_T1
    L = V_LANE
    G = []
    G.append(f"s_lshl_b32 {s('phi0')}, {s('sk')}, 1\ns_add_u32 {s('phi0')}, {s('phi0')}, {s('t5')}\n"
             f"s_and_b32 {s('t1')}, {s('jj')}, 3\ns_lshl_b32 {s('t0')}, {s('mb')}, 2\ns_add_u32 {s('t0')}, {s('t0')}, {s('t1')}\n"
             f"s_lshl_b32 {s('pf2')}, {s('t0')}, 3\n"
             f"s_lshl_b32 {s('t0')}, {s('t0')}, 2\ns_add_u32 {s('t0')}, {s('t0')}, {s('wave')}\ns_mul_i32 {s('t0')}, {s('t0')}, {64*P8_SLOT}\ns_add_u32 {s('t0')}, {s('t0')}, {WS_P}\n"
             f"s_mul_i32 {s('t1')}, {s('phi0')}, {P8_SLOT}\ns_add_u32 {s('pst')}, {s('t0')}, {s('t1')}\n"
             f"s_mul_i32 {s('t1')}, {s('phi0')}, {8*P8_SLOT}\ns_add_u32 {s('pld')}, {s('t0')}, {s('t1')}")
    G.append(f"s_lshl_b32 {s('t0')}, {s('pf2')}, 2\ns_add_u32 {s('t0')}, {s('t0')}, {s('wave')}\ns_lshl_b32 {s('t0')}, {s('t0')}, 7\ns_add_u32 {s('t0')}, {s('t0')}, {WS_F + 32768}\n"
             f"s_lshl_b32 {s('t1')}, {s('phi0')}, 9\ns_add_u32 {s('pf2')}, {s('t0')}, {s('t1')}\n"
             f"v_min_u32 v{T0}, 7, v{L}\nv_lshlrev_b32 v{T0}, 9, v{T0}\nv_add_u32 v{V_FO}, {s('t0')}, v{T0}")
    G.append(f"s_lshl_b32 {s('t0')}, {s('mb')}, 2\ns_add_u32 {s('t0')}, {s('t0')}, {s('wave')}\ns_mul_i32 {s('t0')}, {s('t0')}, {64*XROW}\n"
             f"s_and_b32 {s('t1')}, {s('jj')}, 3\ns_mul_i32 {s('t1')}, {s('t1')}, 288\ns_add_u32 {s('outb')}, {s('t0')}, {s('t1')}")
    G.append(f"v_and_b32 v{T0}, 15, v{L}\nv_mul_u32_u24 v{T0}, {XROW}, v{T0}")
    G.append(f"v_lshrrev_b32 v{T1}, 4, v{L}\nv_lshl_add_u32 v{V_OUT}, v{T1}, 3, v{T0}")
    G.append(f"v_cmp_eq_u32 vcc, 0, v{L}\nv_mov_b32 v{T0}, {OOB}\nv_mov_b32 v{T1}, 0\ns_nop 0\nv_cndmask_b32 v{V_PUB2}, v{T0}, v{T1}, vcc")
    G.append(f"s_mul_i32 {s('t0')}, {s('phi0')}, 5\ns_lshl_b32 {s('t1')}, {s('phi0')}, 2\ns_add_u32 {s('t1')}, {s('t1')}, 4\ns_cmp_lt_u32 {s('phi0')}, 4\n"
             f"s_cselect_b32 {s('phi0')}, {s('t0')}, {s('t1')}\ns_cselect_b32 {s('hldB')}, 5, 4")
    return G

def store_index8(ph):
    dest = max(d for d in range(8) if FIRST8[d] <= ph)
    sig = ph - FIRST8[dest]
    idx = sum((CNT8[d] + 1) // 2 for d in range(dest)) + (sig >> 1)
    return dest, sig, idx

_pk8_items = {}
def final8_pack(st, phis):
    for ph in phis:
        dt, tt = ph >> 2, ph & 3
        dest, sig, idx = store_index8(ph)
        a = acc2(dt, tt)
        tmp = 40 + 4 * (ph % 4)
        prev = _pk8_items.get(("tmp", ph % 4))
        rds = [st.add(f"v_accvgpr_read_b32 v{tmp+r}, a{a+r}", 1, [(prev, 0)] if prev else []) for r in range(4)]
        d = PK8 + 4 * idx + 2 * (sig & 1)
        c0 = st.add(f"v_cvt_pk_bf16_f32 v{d}, v{tmp}, v{tmp+1}", 1, [(rds[0], 0), (rds[1], 0)])
        c1 = st.add(f"v_cvt_pk_bf16_f32 v{d+1}, v{tmp+2}, v{tmp+3}", 1, [(rds[2], 0), (rds[3], 0)])
        _pk8_items[("tmp", ph % 4)] = c1
        _pk8_items[("c", ph)] = (c0, c1)
        if (sig & 1) == 1 or sig == CNT8[dest] - 1:
            deps = [(c0, 1), (c1, 1)]
            if sig & 1: deps += [(x, 1) for x in _pk8_items[("c", ph - 1)]]
            def f(E, dest=dest, sig=sig, idx=idx):
                E.raw(f"s_add_u32 {s('so')}, {s('pst')}, {dest*8*P8_SLOT + (sig >> 1)*1024}")
                E.vmem(f"buffer_store_dwordx4 {vr(PK8 + 4*idx)}, v{V_L16}, {srd(SRD_W)}, {s('so')} offen sc1", "PSx")
            st.add(f, 2, deps)

def final8(E, st, opt):
    R = E.raw
    R("s_nop 7")
    final8_pack(st, range(24, 36))
    while st.pending():
        st.tick(); n = st.fill(E, 6)
        if n == 0: R("s_nop 0")
    _pk8_items.clear()
    E.stamp("F_red")
    R("s_waitcnt vmcnt(0)")
    E.vm_done = len(E.vm)
    E.stamp("F_ps")
    publish_op(6, V_PUB2, "pf2")(E)
    poll_check(E, "f", 6, voff=V_FO, issued=False)
    E.vm_done = len(E.vm)
    E.stamp("F_poll")
    LD = 32
    for k in range(3):
        for src in range(8):
            R(f"s_add_u32 {s('so')}, {s('pld')}, {src*P8_SLOT + k*1024}")
            E.vmem(f"buffer_load_dwordx4 {vr(LD + (src*3+k)*4)}, v{V_L16}, {srd(SRD_W)}, {s('so')} offen sc1", f"PL{k}" if src == 7 else "PLx")
    ACC = 128; TMP = 160
    for sig in range(5):
        k, hf = sig >> 1, sig & 1
        R(f"s_add_u32 {s('t0')}, {s('phi0')}, {sig}\ns_lshr_b32 {s('t1')}, {s('t0')}, 2\ns_lshl_b32 {s('t1')}, {s('t1')}, 5\ns_and_b32 {s('t0')}, {s('t0')}, 3\ns_mul_i32 {s('t0')}, {s('t0')}, {16*XROW}")
        R(f"s_add_u32 {s('so')}, {s('outb')}, {s('t1')}\ns_add_u32 {s('so')}, {s('so')}, {s('t0')}")
        if sig == 4: R(f"s_cmp_lt_u32 4, {s('hldB')}\ns_cselect_b32 {s('so')}, {s('so')}, {OOB}")
        E.wait(vm=f"PL{k}")
        b = ACC + 4 * sig
        for src in range(8):
            r0 = LD + (src*3+k)*4 + 2*hf
            for h in range(2):
                if src == 0:
                    R(f"v_lshlrev_b32 v{b+2*h}, 16, v{r0+h}")
                    R(f"v_and_b32 v{b+2*h+1}, 0xffff0000, v{r0+h}")
                else:
                    tm = TMP + 2 * ((src + h) % 4)
                    R(f"v_lshlrev_b32 v{tm}, 16, v{r0+h}")
                    R(f"v_and_b32 v{tm+1}, 0xffff0000, v{r0+h}")
                    R(f"v_add_f32 v{b+2*h}, v{b+2*h}, v{tm}")
                    R(f"v_add_f32 v{b+2*h+1}, v{b+2*h+1}, v{tm+1}")
        R(f"v_cvt_pk_bf16_f32 v{b}, v{b}, v{b+1}")
        R(f"v_cvt_pk_bf16_f32 v{b+1}, v{b+2}, v{b+3}")
        E.vmem(f"buffer_store_dwordx2 {vr(b, 2)}, v{V_OUT}, {srd(SRD_O)}, {s('so')} offen", "OUT")

def ablate(E):
    if not any(OPT.get(k) for k in ("x_nobar", "x_novm", "x_nogelu", "x_nods", "x_nowait", "x_nod", "x_noh", "x_novmw")): return
    out = []; on = False
    for l in E.L:
        if l.startswith("; MARK_ABL"): on = True
        if l.startswith("; MARK_END"): on = False
        if on:
            if OPT.get("x_nobar") and l.startswith("s_barrier"): continue
            if OPT.get("x_novm") and l.startswith("buffer_"): continue
            if OPT.get("x_novm") and l.startswith("s_waitcnt vmcnt"):
                l = re.sub(r"vmcnt\(\d+\) ?", "", l)
                if l.strip() == "s_waitcnt": continue
            if OPT.get("x_nod") and l.startswith("buffer_load_dwordx4 v") and l.endswith("lds"): continue
            if OPT.get("x_noh") and l.startswith("buffer_load_dwordx") and " a[" in l: continue
            if OPT.get("x_novmw") and l.startswith("s_waitcnt vmcnt"):
                l = re.sub(r"vmcnt\(\d+\) ?", "", l)
                if l.strip() == "s_waitcnt": continue
            if OPT.get("x_nogelu") and re.match(r"v_(mul_f32|fma_f32|exp_f32|rcp_f32|add_f32|cvt_pk)", l): continue
            if OPT.get("x_nods") and l.startswith("ds_read"): continue
        out.append(l)
    E.L = out

def finish(E):
    ablate(E)
    if E.do_stamp:
        E.raw("s_waitcnt vmcnt(0)")
        E.stamp("end")
        E.raw(f"s_lshl_b32 {s('t0')}, s2, 2\ns_add_u32 {s('t0')}, {s('t0')}, {s('wave')}\ns_lshl_b32 {s('t0')}, {s('t0')}, 7\ns_add_u32 {s('t0')}, {s('t0')}, {60 << 20}")
        E.raw(f"v_mov_b32 v{V_T1}, 0")
        for i in range(len(E.stamps)):
            E.raw(f"v_mov_b32 v{V_T0}, s{86+i}")
            E.raw(f"buffer_store_dword v{V_T0}, v{V_T1}, {srd(SRD_W)}, {s('t0')} offen offset:{4*i}")
        E.raw("s_waitcnt vmcnt(0)")
        print("STAMPS=" + ",".join(E.stamps), file=sys.stderr)
    E.raw("L_end:")
    E.raw("s_endpgm")
    for x in E.slow: E.raw(x)
    E.raw("s_endpgm")
    E.raw("L_codeend:")
    return E

def emit_file(opt):
    E = build(opt)
    hdr = open("standalone__glu_gated_geglu__prompt.s.ref").read().split("\n") if opt.get("hdr", True) else []
    out = []
    for l in hdr:
        if l.startswith("; @launch") or l.startswith("; Override") or l.startswith("; grid=") : continue
        if l.startswith(";"): out.append(l)
        else: break
    out.append(f"; @launch grid=(256,1,1) block=(256,1,1) lds={LDS_BYTES}")
    out.append('.amdgcn_target "amdgcn-amd-amdhsa--gfx950"')
    out.append(".text")
    out.append(f".globl {KNAME}")
    out.append(".p2align 8")
    out.append(f".type {KNAME},@function")
    out.append(f"{KNAME}:")
    out += E.L
    out.append(".fill 64, 4, 0xbf800000")
    out.append('.section .rodata,"a"')
    out.append(".p2align 6")
    out.append(f".amdhsa_kernel {KNAME}")
    out += ["  .amdhsa_next_free_vgpr 512", "  .amdhsa_next_free_sgpr 102", "  .amdhsa_accum_offset 256",
            "  .amdhsa_group_segment_fixed_size 0", "  .amdhsa_kernarg_size 56", "  .amdhsa_user_sgpr_count 2",
            "  .amdhsa_user_sgpr_kernarg_segment_ptr 1", "  .amdhsa_system_sgpr_workgroup_id_x 1",
            "  .amdhsa_float_denorm_mode_32 3",
            ".end_amdhsa_kernel"]
    return "\n".join(out) + "\n"

if __name__ == "__main__":
    opt = {}
    path = sys.argv[1] if len(sys.argv) > 1 else "k.s"
    for a in sys.argv[2:]:
        k, v = a.split("=")
        opt[k] = int(v) if v.lstrip("-").isdigit() else v
    open(path, "w").write(emit_file(opt))
```

```python
import sys, struct, re

KNAME = "standalone__glu_gated_geglu__prompt_kernel"
HSC = " sc1"
WQE = True
G2X = False
OPT = {}

DM, DF, NTOK = 576, 4608, 2048
XROW = DM * 2
WROW = DF * 2
LDS_BYTES = 163840
W1_KS = 8192
XST = 98304
WD_SLOT = 18432
SCRATCH = 147456
H_KS = 4096
WS_P = 32 << 20
WS_F = 56 << 20
WS_SIZE = 64 << 20
OOB = 0x40000000
GA = -2.0 * 0.7978845608028654 * 1.4426950408889634
GB = GA * 0.044715
SPIN_MAX = 400000

def f2u(x): return struct.unpack('<I', struct.pack('<f', x))[0]

S = {}
SRD_X, SRD_G, SRD_U, SRD_D, SRD_W, SRD_O, SRD_F, SRD_Q = 8, 12, 16, 20, 24, 28, 32, 36
def srd(b): return f"s[{b}:{b+3}]"
_n = 40
for nm in ["wave", "mb", "sk", "jj", "cu", "th", "kh", "xoff", "w1col", "wqcol", "hst", "hstq", "hldA", "hldB", "hlqA", "hlqB",
           "wd0", "wdq", "flagh", "t0", "t1", "t2", "t3", "t4", "t5", "m0w", "m0x", "m0q", "m0d", "m0d5", "kb", "pst", "pld",
           "outb", "spin", "phi0", "so", "so2", "pf", "tA", "tB", "pf2", "nonce"]:
    S[nm] = _n; _n += 1
assert _n <= 100
def s(n): return f"s{S[n]}"

V_LANE = 1
V_W1 = 2
V_WQ = 3
V_A = 4
V_AQ = 10
V_L16 = 11
V_L8 = 12
V_KA = 13
V_PUB = 14
V_ONE = 15
V_FL = 16
V_T0 = 17; V_T1 = 18; V_T2 = 19; V_T3 = 20
V_X = 21
V_XR = 25
V_WD = 27
V_HS = 32
V_GT = 40
N_GSET = 4
V_T128 = 56; V_T128H = 57; V_T128B = 58
V_TROW = 40; V_TROWB = 41; V_TROWQ = 42
V_PUBD = 43; V_NA = 44; V_NB = 45
V_FH = 59
V_A2 = 60
V_Z = 63
V_XO = 64
V_AR = 96
V_BUF = [128, 192]
V_FO = 21; V_OUT = 22; V_RED = 23; V_RED2 = 24

def xreg(ks, tt):
    i = ks * 4 + tt
    if i < 64: return f"a[{4*i}:{4*i+3}]"
    b = V_XO + 4 * (i - 64)
    return f"v[{b}:{b+3}]"
def hreg(t, tt):
    b = 16 * (t % 7) + 4 * tt
    return b
def acc2(dt, tt):
    b = 112 + 16 * dt + 4 * tt
    return b

def expected_count(tag):
    if tag.startswith("POLL") or tag.startswith("PUB"): return 1
    if tag == "WQ": return 9
    if tag == "NONCE": return 1
    if tag == "TCH": return -1
    if tag == "PS": return 18
    if tag in ("PSx", "PLx", "OUT"): return -1
    if tag.startswith("PL"): return 1
    if tag.startswith("HS"): return 4
    if tag[0] == "X": return 4
    if tag[0] == "W": return 6
    if tag[0] == "D": return 3 if G2X else 5
    if tag[0] == "H": return 4 if int(tag[1:]) < 16 else 8
    raise KeyError(tag)

class Emit:
    def __init__(self):
        self.L = []
        self.vm = []
        self.vm_done = 0
        self.dsq = []
        self.ds_done = 0
        self.slow = []
        self.nlab = 0
        self.do_stamp = False
        self.events = set()
        self.skew_on = False
        self.stamps = []
        self.stamp_sel = None
    def raw(self, t):
        for x in t.split("\n"):
            self.L.append(x)
    def vmem(self, text, tag):
        self.L.append(text)
        self.vm.append(tag)
    @property
    def ds_out(self): return len(self.dsq) - self.ds_done
    @ds_out.setter
    def ds_out(self, n):
        if n == 0: self.ds_done = len(self.dsq)
        elif n < self.ds_out: self.ds_done = len(self.dsq) - n
        else:
            self.ds_done = len(self.dsq) - n
    def ds(self, text, tag=None):
        if self.ds_out >= 15:
            self.L.append("s_waitcnt lgkmcnt(10)")
            self.ds_out = 10
        self.L.append(text)
        self.dsq.append(tag)
    def wait_dstag(self, tag):
        idx = max(i for i, t in enumerate(self.dsq) if t == tag)
        if idx < self.ds_done: return
        n = min(len(self.dsq) - 1 - idx, 15)
        self.L.append(f"s_waitcnt lgkmcnt({n})")
        self.ds_done = len(self.dsq) - n
    def _vmN(self, tags):
        idx = -1
        for tg in tags:
            exp = expected_count(tg)
            got = self.vm.count(tg)
            if exp < 0: continue
            assert got == exp, f"wait on {tg}: {got} ops issued, expected {exp}"
        for i, t in enumerate(self.vm):
            if t in tags: idx = i
        assert idx >= 0, f"no vmem op with tags {tags}"
        if idx < self.vm_done: return None
        return min(len(self.vm) - 1 - idx, 63)
    def wait(self, vm=None, ds=None, barrier=False):
        parts = []
        if vm is not None:
            if isinstance(vm, str): vm = [vm]
            n = self._vmN(set(vm))
            if n is not None:
                parts.append(f"vmcnt({n})")
                self.vm_done = max(self.vm_done, len(self.vm) - n)
        if ds is not None and self.ds_out > ds:
            parts.append(f"lgkmcnt({ds})")
            self.ds_out = ds
        if parts:
            self.L.append("s_waitcnt " + " ".join(parts))
        if barrier:
            self.L.append("s_barrier")
            if OPT.get("skew") and self.skew_on:
                for k in range(1, 4):
                    lab = self.label("sk")
                    self.L.append(f"s_cmp_ge_u32 {s('wave')}, {k}")
                    self.L.append(f"s_cbranch_scc0 {lab}")
                    self.L.append(f"s_nop {OPT['skew']}")
                    self.L.append(f"{lab}:")
    def wait_all(self):
        self.L.append("s_waitcnt vmcnt(0) lgkmcnt(0)")
        self.vm_done = len(self.vm); self.ds_out = 0
    def assert_done(self, tag):
        found = False
        for i, t in enumerate(self.vm):
            if t == tag:
                found = True
                assert i < self.vm_done, f"tag {tag} not complete"
        assert found, f"tag {tag} never issued"
    def issued(self, tag):
        return tag in self.vm
    def stamp(self, name):
        if not self.do_stamp: return
        if self.stamp_sel is not None and name not in self.stamp_sel and name not in ("start", "end"): return
        if name in self.stamps: idx = self.stamps.index(name)
        else:
            idx = len(self.stamps)
            assert idx < 16
            self.stamps.append(name)
        self.L.append("s_memtime s[84:85]" if OPT.get("cyc") else "s_memrealtime s[84:85]")
        self.L.append("s_waitcnt lgkmcnt(0)")
        self.ds_out = 0
        self.L.append(f"s_mov_b32 s{86+idx}, s84")
    def label(self, base):
        self.nlab += 1
        return f"L_{base}_{self.nlab}"

class Item:
    def __init__(self, text, cost, deps=()):
        self.text = text; self.cost = cost; self.deps = list(deps); self.placed = None

class Stream:
    def __init__(self):
        self.items = []; self.head = 0; self.gap = 0
    def add(self, text, cost, deps=()):
        it = Item(text, cost, deps); self.items.append(it); return it
    def pending(self):
        return sum(1 for it in self.items[self.head:] if it.placed is None)
    def pending_cost(self):
        return sum(it.cost for it in self.items[self.head:] if it.placed is None)
    def tick(self):
        self.gap += 1
    def fill(self, E, cap, window=48):
        used = 0
        while used < cap:
            while self.head < len(self.items) and self.items[self.head].placed is not None:
                self.head += 1
            pick = None
            for it in self.items[self.head:self.head + window]:
                if it.placed is not None or it.cost > cap - used: continue
                if all(d.placed is not None and self.gap >= d.placed + delta for d, delta in it.deps):
                    pick = it; break
            if pick is None: break
            pick.placed = self.gap
            if callable(pick.text): pick.text(E)
            else: E.raw(pick.text)
            used += pick.cost
        return used
    def flush(self, E):
        n = 0
        while self.pending():
            self.tick()
            E.raw("s_nop 0")
            self.fill(E, 4)
            n += 1
        return n

class Gelu:
    def __init__(self, st):
        self.st = st
        self.pairno = 0
        self.set_last = [None] * N_GSET
        self.nset = N_GSET
        self.stg = 0
        self.stg_last = [None, None]
    def pair(self, g0, u0, g1, u1, dst):
        st = self.st
        k = self.pairno % self.nset; self.pairno += 1
        T0, T1, G0, G1 = [V_GT + 4 * k + i for i in range(4)]
        prev = [(self.set_last[k], 0)] if self.set_last[k] is not None else []
        sprev = dst[1]
        a0 = st.add(f"v_mul_f32 v{T0}, v{g0}, v{g0}", 1, prev)
        a1 = st.add(f"v_mul_f32 v{T1}, v{g1}, v{g1}", 1, prev)
        b0 = st.add(f"v_fma_f32 v{T0}, v{T0}, {s('kb')}, v{V_KA}", 1, [(a0, 0)])
        b1 = st.add(f"v_fma_f32 v{T1}, v{T1}, {s('kb')}, v{V_KA}", 1, [(a1, 0)])
        c0 = st.add(f"v_mul_f32 v{T0}, v{T0}, v{g0}", 1, [(b0, 0)])
        c1 = st.add(f"v_mul_f32 v{T1}, v{T1}, v{g1}", 1, [(b1, 0)])
        e0 = st.add(f"v_exp_f32 v{T0}, v{T0}", 2, [(c0, 0)])
        e1 = st.add(f"v_exp_f32 v{T1}, v{T1}", 2, [(c1, 0)])
        m0 = st.add(f"v_mul_f32 v{G0}, v{g0}, v{u0}", 1, prev)
        m1 = st.add(f"v_mul_f32 v{G1}, v{g1}, v{u1}", 1, prev)
        d0 = st.add(f"v_add_f32 v{T0}, 1.0, v{T0}", 1, [(e0, 1)])
        d1 = st.add(f"v_add_f32 v{T1}, 1.0, v{T1}", 1, [(e1, 1)])
        r0 = st.add(f"v_rcp_f32 v{T0}, v{T0}", 2, [(d0, 0)])
        r1 = st.add(f"v_rcp_f32 v{T1}, v{T1}", 2, [(d1, 0)])
        h0 = st.add(f"v_mul_f32 v{G0}, v{G0}, v{T0}", 1, [(r0, 1), (m0, 0)])
        h1 = st.add(f"v_mul_f32 v{G1}, v{G1}, v{T1}", 1, [(r1, 1), (m1, 0)])
        pk = st.add(f"v_cvt_pk_bf16_f32 v{dst[0]}, v{G0}, v{G1}", 1, [(h0, 0), (h1, 0)] + ([(sprev, 2)] if sprev is not None else []))
        self.set_last[k] = pk
        return pk
    def full_pass(self, buf, store_fn):
        last = None
        for tt in range(4):
            sg = self.stg % 2; self.stg += 1
            base = V_HS + 4 * sg
            pks = []
            for grp in range(2):
                for hp in range(2):
                    g = buf + (grp * 2 + 0) * 16 + tt * 4 + 2 * hp
                    u = buf + (grp * 2 + 1) * 16 + tt * 4 + 2 * hp
                    pks.append(self.pair(g, u, g + 1, u + 1, (base + grp * 2 + hp, self.stg_last[sg])))
            stt = self.st.add((lambda E, tt=tt, base=base: store_fn(E, tt, base)), 2, [(p, 1) for p in pks])
            self.stg_last[sg] = stt
            last = stt
        return last
    def half_pass(self, buf, half, store_fn):
        for pp in range(2):
            for tq in range(2):
                sg = self.stg % 2; self.stg += 1
                base = V_HS + 4 * sg
                pks = []
                for grp in range(2):
                    g_ = 2 * pp + grp
                    for hp in range(2):
                        g = buf + ((g_ * 2 + 0) * 2 + tq) * 4 + 2 * hp
                        u = buf + ((g_ * 2 + 1) * 2 + tq) * 4 + 2 * hp
                        pks.append(self.pair(g, u, g + 1, u + 1, (base + grp * 2 + hp, self.stg_last[sg])))
                stt = self.st.add((lambda E, pp=pp, tt=2 * half + tq, base=base: store_fn(E, pp, tt, base)), 2, [(p, 1) for p in pks])
                self.stg_last[sg] = stt
    def quarter(self, buf, store_fn):
        last = None
        for tt in range(4):
            sg = self.stg % 2; self.stg += 1
            base = V_HS + 4 * sg
            pks = []
            for hp in range(2):
                g = buf + tt * 4 + 2 * hp
                u = buf + 16 + tt * 4 + 2 * hp
                pks.append(self.pair(g, u, g + 1, u + 1, (base + hp, self.stg_last[sg])))
            stt = self.st.add((lambda E, tt=tt, base=base: store_fn(E, tt, base)), 2, [(p, 1) for p in pks])
            self.stg_last[sg] = stt
            last = stt
        return last

def mfma(d, a, b, first, dpre="v"):
    c = "0" if first else f"{dpre}[{d}:{d+3}]"
    return f"v_mfma_f32_16x16x32_bf16 {dpre}[{d}:{d+3}], {a}, {b}, {c}"

def vr(b, n=4): return f"v[{b}:{b+n-1}]"
def ar(b, n=4): return f"a[{b}:{b+n-1}]"

def prologue(E, opt):
    R = E.raw
    L = V_LANE
    T0, T1, T2, T3 = V_T0, V_T1, V_T2, V_T3
    R("s_cmp_ge_u32 s2, 256")
    R("s_cbranch_scc1 L_end")
    R("s_load_dwordx4 s[4:7], s[0:1], 0")
    R("s_load_dwordx4 s[16:19], s[0:1], 16")
    R("s_load_dwordx4 s[28:31], s[0:1], 32")
    R("s_load_dwordx2 s[24:25], s[0:1], 48")
    R("s_memrealtime s[84:85]")
    R(f"v_and_b32 v{L}, 63, v0")
    R(f"v_lshrrev_b32 v{T0}, 6, v0")
    R(f"v_cmp_eq_u32 vcc, 0, v0")
    R(f"v_readfirstlane_b32 {s('wave')}, v{T0}")
    R(f"v_mov_b32 v{T0}, {OOB}")
    R(f"v_mov_b32 v{T1}, 0")
    R(f"v_lshlrev_b32 v{V_T128}, 7, v{L}")
    R(f"v_cndmask_b32 v{V_PUB}, v{T0}, v{T1}, vcc")
    if opt.get("tcode", 1):
        R(f"s_getpc_b64 s[36:37]")
        R(f"L_pc:")
        R(f"s_sub_u32 s36, s36, L_pc-{KNAME}\ns_subb_u32 s37, s37, 0")
        R(f"s_mov_b32 s38, L_codeend-{KNAME}\ns_mov_b32 s39, 0x20000")
        R(f"s_lshr_b32 {s('t0')}, s2, 1\ns_and_b32 {s('t0')}, {s('t0')}, 4\ns_add_u32 {s('t0')}, {s('t0')}, {s('wave')}\ns_lshl_b32 {s('t0')}, {s('t0')}, 13")
        E.vmem(f"buffer_load_dword v{V_DUM}, v{V_T128}, s[36:39], {s('t0')} offen", "TCH")
    R(f"s_and_b32 {s('sk')}, s2, 3")
    R(f"s_lshr_b32 {s('t0')}, s2, 2\ns_and_b32 {s('t0')}, {s('t0')}, 1")
    R(f"s_lshr_b32 {s('t1')}, s2, 3")
    R(f"s_and_b32 {s('jj')}, {s('t1')}, 7")
    R(f"s_lshr_b32 {s('t1')}, {s('t1')}, 3")
    R(f"s_lshl_b32 {s('mb')}, {s('t0')}, 2\ns_add_u32 {s('mb')}, {s('mb')}, {s('t1')}")
    R(f"s_lshl_b32 {s('t0')}, {s('mb')}, 2\ns_add_u32 {s('t0')}, {s('t0')}, {s('wave')}\ns_mul_i32 {s('xoff')}, {s('t0')}, {64*XROW}")
    R(f"s_lshl_b32 {s('m0x')}, {s('wave')}, {12 if opt.get('th2', 0) else 14}\ns_add_u32 {s('m0x')}, {s('m0x')}, {XST}")
    R(f"v_lshrrev_b32 v{T0}, 3, v{L}")
    R(f"v_and_b32 v{T1}, 7, v{L}")
    R(f"v_lshrrev_b32 v{T2}, 1, v{T0}")
    R(f"v_xor_b32 v{T2}, v{T2}, v{T1}")
    R(f"v_mul_u32_u24 v{T3}, {XROW}, v{T0}")
    R(f"v_lshl_add_u32 v{V_X}, v{T2}, 4, v{T3}")
    R(f"v_xor_b32 v{V_X+1}, 64, v{V_X}")
    R(f"v_add_u32 v{V_X+2}, {2*(8*XROW-1024)}, v{V_X}")
    R(f"v_add_u32 v{V_X+3}, {3*(8*XROW-1024)}, v{V_X+1}")
    R(f"v_add_u32 v{V_X+1}, {1*(8*XROW-1024)}, v{V_X+1}")
    R(f"s_and_b32 {s('th')}, {s('wave')}, 1\ns_lshr_b32 {s('kh')}, {s('wave')}, 1")
    R(f"v_and_b32 v{T2}, 2, v{T0}")
    R(f"v_xor_b32 v{T2}, v{T2}, v{T1}")
    R(f"s_lshl_b32 {s('t0')}, {s('th')}, 2")
    R(f"v_xor_b32 v{T2}, {s('t0')}, v{T2}")
    R(f"v_mul_u32_u24 v{T3}, {WROW}, v{T0}")
    R(f"v_lshl_add_u32 v{V_W1}, v{T2}, 4, v{T3}")
    R(f"s_mul_i32 {s('t0')}, {s('wave')}, {8*WROW}")
    R(f"v_add_u32 v{V_W1}, {s('t0')}, v{V_W1}")
    R(f"s_mul_i32 {s('t0')}, {s('sk')}, 2304")
    R(f"s_lshl_b32 {s('t1')}, {s('jj')}, 8\ns_add_u32 {s('w1col')}, {s('t0')}, {s('t1')}")
    R(f"s_lshl_b32 {s('m0w')}, {s('wave')}, 11")
    R("s_waitcnt lgkmcnt(0)")
    E.stamp("karg")
    R(f"s_mov_b32 s8, s4\ns_mov_b32 s9, s5\ns_mov_b32 s10, {NTOK*XROW}\ns_mov_b32 s11, 0x20000")

V_TCH = 48
def coop_setup(E):
    R = E.raw; L = V_LANE
    lx = E.label("cx"); le = E.label("ce")
    R(f"s_lshr_b32 {s('t0')}, s2, 3\ns_lshl_b32 {s('t0')}, {s('t0')}, 2\ns_add_u32 {s('t0')}, {s('t0')}, {s('wave')}")
    R(f"s_mov_b32 s36, s4\ns_mov_b32 s37, s5\ns_mov_b32 s38, {NTOK*XROW}\ns_mov_b32 s39, 0x20000")
    R(f"v_mul_u32_u24 v{V_T0}, {XROW}, v{L}")
    R(f"s_cmp_lt_u32 {s('t0')}, 64")
    R(f"s_cbranch_scc1 {lx}")
    R(f"s_sub_u32 {s('t0')}, {s('t0')}, 64\ns_cmp_lt_u32 {s('t0')}, 32")
    R(f"s_cselect_b32 s36, s6, s16\ns_cselect_b32 s37, s7, s17\ns_mov_b32 s38, {DM*WROW}")
    R(f"s_and_b32 {s('t1')}, {s('t0')}, 3\ns_mul_i32 {s('t1')}, {s('t1')}, {48*WROW}")
    R(f"s_lshr_b32 {s('t2')}, {s('t0')}, 2\ns_and_b32 {s('t2')}, {s('t2')}, 7\ns_lshl_b32 {s('t2')}, {s('t2')}, 8\ns_add_u32 {s('t1')}, {s('t1')}, {s('t2')}")
    R(f"s_mul_i32 {s('t2')}, {s('sk')}, 2304\ns_add_u32 {s('tA')}, {s('t1')}, {s('t2')}\ns_mov_b32 {s('tB')}, {192*WROW}")
    R(f"v_mul_u32_u24 v{V_TCH}, {WROW}, v{L}")
    R(f"s_branch {le}")
    R(f"{lx}:")
    R(f"s_lshr_b32 {s('t1')}, {s('t0')}, 4\ns_and_b32 {s('t2')}, {s('mb')}, 4\ns_add_u32 {s('t1')}, {s('t1')}, {s('t2')}\ns_lshl_b32 {s('t1')}, {s('t1')}, 8")
    R(f"s_and_b32 {s('t2')}, {s('t0')}, 15\ns_lshl_b32 {s('t2')}, {s('t2')}, 4\ns_add_u32 {s('t1')}, {s('t1')}, {s('t2')}\ns_mul_i32 {s('tA')}, {s('t1')}, {XROW}\ns_mov_b32 {s('tB')}, 384")
    R(f"v_mul_u32_u24 v{V_T0}, 21846, v{L}\nv_lshrrev_b32 v{V_T0}, 16, v{V_T0}")
    R(f"v_mul_u32_u24 v{V_T1}, 3, v{V_T0}\nv_sub_u32 v{V_T1}, v{L}, v{V_T1}")
    R(f"v_mul_u32_u24 v{V_T0}, {XROW}, v{V_T0}\nv_lshl_add_u32 v{V_TCH}, v{V_T1}, 7, v{V_T0}")
    R(f"{le}:")
    R(f"v_mov_b32 v{V_T0}, {OOB}\nv_cmp_gt_u32 vcc, 48, v{L}\ns_nop 1\nv_cndmask_b32 v{V_TCH}, v{V_T0}, v{V_TCH}, vcc")

def coop_touch(E, g):
    E.vmem(f"buffer_load_dword v{V_DUM}, v{V_TCH}, s[36:39], {s('tA')} offen", "TCH")
    if g < 2: E.raw(f"s_add_u32 {s('tA')}, {s('tA')}, {s('tB')}")

def prologue_w(E):
    R = E.raw
    R(f"s_mov_b32 s12, s6\ns_mov_b32 s13, s7\ns_mov_b32 s14, {DM*WROW}\ns_mov_b32 s15, 0x20000")
    R(f"s_mov_b32 s20, s18\ns_mov_b32 s21, s19\ns_mov_b32 s22, {DF*XROW}\ns_mov_b32 s23, 0x20000")
    R(f"s_sub_u32 s16, s16, 1024\ns_subb_u32 s17, s17, 0\ns_mov_b32 s18, {DM*WROW+1024}\ns_mov_b32 s19, 0x20000")
    R(f"s_mov_b32 s32, s30\ns_mov_b32 s33, s31\ns_mov_b32 s34, 256\ns_mov_b32 s35, 0x20000")
    R(f"s_mov_b32 s30, {NTOK*XROW}\ns_mov_b32 s31, 0x20000")
    R(f"s_mov_b32 s26, {WS_SIZE}\ns_mov_b32 s27, 0x20000")

def issue_x(E, piece):
    c, hf = piece >> 1, piece & 1
    E.raw(f"s_add_u32 m0, {s('m0x')}, {(piece % 4) * 4096}")
    E.raw(f"s_add_u32 {s('so2')}, {s('xoff')}, {hf * 32 * XROW + c * 128}")
    for u in range(4):
        E.vmem(f"buffer_load_dwordx4 v{V_X+u}, {srd(SRD_X)}, {s('so2')} offen offset:{u*1024} lds", f"X{piece}")

def w1_ops(line, ks):
    def setup(E):
        E.raw(f"s_add_u32 m0, {s('m0w')}, {ks * W1_KS}")
        E.raw(f"s_add_u32 {s('so')}, {s('w1col')}, {ks * 32 * WROW + line * 128}")
    def g(E): E.vmem(f"buffer_load_dwordx4 v{V_W1}, {srd(SRD_G)}, {s('so')} offen lds", f"W{line}_{ks//3}")
    def u(E): E.vmem(f"buffer_load_dwordx4 v{V_W1}, {srd(SRD_U)}, {s('so')} offen offset:1024 lds", f"W{line}_{ks//3}")
    return setup, g, u

def issue_w1_slot(E, line, slot):
    for ks in range(3 * slot, 3 * slot + 3):
        a, b, c = w1_ops(line, ks)
        a(E); b(E); c(E)

def read_x(E, chunk):
    out = []
    for hf in range(2):
        piece = 2 * chunk + hf
        for h in range(2):
            for tp in range(2):
                ks = 2 * chunk + h
                tt = 2 * hf + tp
                out.append(f"ds_read_b128 {xreg(ks, tt)}, v{V_XR + h} offset:{(piece % 4) * 4096 + tp * 2048}")
    return out

def areads_w1(ph, ks, par=None, alt=False):
    out = []
    reg, kk = divmod(ks, 6)
    if par is None: par = ks & 1
    for f in range(4):
        grp, mat = f >> 1, f & 1
        d = V_AR + 16 * par + 4 * f
        base = (V_AB if alt else V_A) + 2 * reg + grp
        for sec in range(2):
            out.append(f"ds_read_b64_tr_b16 v[{d+2*sec}:{d+2*sec+1}], v{base} offset:{kk*W1_KS + mat*1024 + sec*512}")
    return out

def areads_q(ks, par):
    out = []
    kk = (ks if ks < 8 else ks - 8) if WQE else ks
    for mat in range(2):
        d = V_AR + 16 * par + 4 * mat
        for sec in range(2):
            out.append(f"ds_read_b64_tr_b16 v[{d+2*sec}:{d+2*sec+1}], v{V_AQ} offset:{kk*2048 + mat*1024 + sec*256}")
    return out

def areads_g2(t, sub, par):
    if G2X:
        slot = (t + 3) % 16
        reg, sl = divmod(slot, 6)
        out = []
        for k in range(3):
            dt = 3 * sub + k
            d = V_AR + 12 * par + 4 * k
            for sec in range(2):
                out.append(f"ds_read_b64_tr_b16 v[{d+2*sec}:{d+2*sec+1}], v{V_A2+reg} offset:{sl*9216 + dt*32 + sec*4608}")
        return out
    slot = (t + 2) % 8
    reg, sl = divmod(slot, 3)
    out = []
    for k in range(3):
        dt = 3 * sub + k
        d = V_AR + 12 * par + 4 * k
        for sec in range(2):
            out.append(f"ds_read_b64_tr_b16 v[{d+2*sec}:{d+2*sec+1}], v{V_A2+reg} offset:{sl*WD_SLOT + dt*32 + sec*4608}")
    return out

def kap(t):
    return 4 * (t & 3) + (t >> 2)

def wd_ops(t):
    if G2X:
        slot = (t + 3) % 16
        def setup(E):
            E.raw(f"s_add_u32 m0, {s('m0d')}, {slot * 9216}")
            if t < 16: E.raw(f"s_add_u32 {s('so')}, {s('wd0')}, {32 * kap(t) * XROW}")
            else: E.raw(f"s_add_u32 {s('so')}, {s('wdq')}, {32 * (t - 16) * XROW}")
        def d0(E): E.vmem(f"buffer_load_dwordx4 v{V_WD}, {srd(SRD_D)}, {s('so')} offen lds", f"D{t}")
        def s1(E): E.raw(f"s_add_u32 m0, {s('m0d')}, {slot * 9216 + 4096}")
        def d1(E): E.vmem(f"buffer_load_dwordx4 v{V_WD+1}, {srd(SRD_D)}, {s('so')} offen lds", f"D{t}")
        def s2(E): E.raw(f"s_add_u32 m0, {s('m0d5')}, {slot * 9216}")
        def d2(E):
            E.raw("s_mov_b64 exec, 0xffff")
            E.vmem(f"buffer_load_dwordx4 v{V_WD+2}, {srd(SRD_D)}, {s('so')} offen lds", f"D{t}")
            E.raw("s_mov_b64 exec, -1")
        return [(setup, 's'), (d0, 'v'), (s1, 's'), (d1, 'v'), (s2, 's'), (d2, 'v')]
    slot = (t + 2) % 8
    def setup(E):
        E.raw(f"s_add_u32 m0, {s('m0d')}, {slot * WD_SLOT}")
        if OPT.get("nowd"):
            E.raw(f"s_mov_b32 {s('so')}, {OOB}"); return
        if t < 16: E.raw(f"s_add_u32 {s('so')}, {s('wd0')}, {32 * kap(t) * XROW}")
        else: E.raw(f"s_add_u32 {s('so')}, {s('wdq')}, {32 * (t - 16) * XROW}")
    def mk(i):
        def f(E): E.vmem(f"buffer_load_dwordx4 v{V_WD+i}, {srd(SRD_D)}, {s('so')} offen offset:{i*1024} lds", f"D{t}")
        return f
    def setup5(E):
        E.raw(f"s_add_u32 m0, {s('m0d5')}, {slot * WD_SLOT}")
    def d4(E):
        E.raw("s_mov_b32 exec_hi, 0")
        E.vmem(f"buffer_load_dwordx4 v{V_WD+4}, {srd(SRD_D)}, {s('so')} offen lds", f"D{t}")
        E.raw("s_mov_b32 exec_hi, -1")
    return [(setup, 's'), (mk(0), 'v'), (mk(1), 'v'), (mk(2), 'v'), (mk(3), 'v'), (setup5, 's'), (d4, 'v')]

def h_ops(t):
    ops = []
    if G2X:
        if t < 16:
            ops.append(((lambda E: E.raw(f"s_add_u32 {s('tA')}, {s('hldA')}, {kap(t) * H_KS}")), 's'))
            for tt in range(4):
                ops.append(((lambda E, tt=tt: E.vmem(f"buffer_load_dwordx4 {ar(hreg(t, tt))}, v{V_L16}, {srd(SRD_W)}, {s('tA')} offen offset:{tt * 1024}{HSC}", f"H{t}")), 'v'))
        else:
            ops.append(((lambda E: E.raw(f"s_add_u32 {s('tA')}, {s('hlqA')}, {(t - 16) * H_KS}")), 's'))
            for tt in range(4):
                for hf in range(2):
                    ops.append(((lambda E, tt=tt, hf=hf: E.vmem(f"buffer_load_dwordx2 {ar(hreg(t, tt) + 2 * hf, 2)}, v{V_L8}, {srd(SRD_W)}, {s('tA')} offen offset:{tt * 1024 + hf * 512}{HSC}", f"H{t}")), 'v'))
        return ops
    if t < 16:
        def setup(E):
            if OPT.get("noh"):
                E.raw(f"s_mov_b32 {s('tA')}, {OOB}"); E.raw(f"s_mov_b32 {s('tB')}, {OOB}"); return
            E.raw(f"s_add_u32 {s('tA')}, {s('hldA')}, {kap(t) * H_KS}")
            E.raw(f"s_add_u32 {s('tB')}, {s('hldB')}, {kap(t) * H_KS}")
        ops.append((setup, 's'))
        for tt in range(4):
            def f(E, tt=tt):
                so = s('tA') if tt < 2 else s('tB')
                E.vmem(f"buffer_load_dwordx4 {ar(hreg(t, tt))}, v{V_L16}, {srd(SRD_W)}, {so} offen offset:{(tt & 1) * 1024}{HSC}", f"H{t}")
            ops.append((f, 'v'))
    else:
        def setup(E):
            E.raw(f"s_add_u32 {s('tA')}, {s('hlqA')}, {(t - 16) * H_KS}")
            E.raw(f"s_add_u32 {s('tB')}, {s('hlqB')}, {(t - 16) * H_KS}")
        ops.append((setup, 's'))
        for tt in range(4):
            for hf in range(2):
                def f(E, tt=tt, hf=hf):
                    so = s('tA') if tt < 2 else s('tB')
                    b = hreg(t, tt) + 2 * hf
                    E.vmem(f"buffer_load_dwordx2 {ar(b, 2)}, v{V_L8}, {srd(SRD_W)}, {so} offen offset:{(tt & 1) * 1024 + hf * 512}{HSC}", f"H{t}")
                ops.append((f, 'v'))
    return ops

def publish_op(level, vpub=None, spf="pf"):
    def f(E):
        E.raw(f"s_add_u32 {s('t0')}, {s('nonce')}, {level}")
        E.raw(f"v_mov_b32 v{V_ONE}, {s('t0')}")
        E.vmem(f"buffer_store_dword v{V_ONE}, v{V_PUB if vpub is None else vpub}, {srd(SRD_W)}, {s(spf)} offen sc1", f"PUB{level}")
    return f

def nonce_write(E):
    E.raw(f"s_or_b32 s84, s84, 1")
    E.raw(f"s_cmp_eq_u32 s2, 0")
    E.raw(f"s_cselect_b32 {s('t0')}, 0, {OOB}")
    E.raw(f"v_mov_b32 v{V_ONE}, s84")
    E.vmem(f"buffer_store_dword v{V_ONE}, v{V_PUB}, {srd(SRD_F)}, {s('t0')} offen sc1", "TCH")

def nonce_ops():
    def a(E):
        E.vmem(f"buffer_load_dword v{V_T1}, v{V_Z}, {srd(SRD_F)}, 0 offen sc1", "NONCE")
    def b(E):
        ok = E.label("nok"); slow = E.label("nslow"); chk = E.label("nchk")
        E.wait(vm="NONCE")
        E.raw(f"v_readfirstlane_b32 {s('nonce')}, v{V_T1}")
        E.raw(f"s_cmp_eq_u32 {s('nonce')}, 0")
        E.raw(f"s_cbranch_scc1 {slow}")
        E.raw(f"{ok}:")
        E.slow += [f"{slow}:", f"s_mov_b32 {s('spin')}, 0", f"{chk}:",
                   f"buffer_load_dword v{V_T1}, v{V_Z}, {srd(SRD_F)}, 0 offen sc1", "s_waitcnt vmcnt(0)",
                   f"v_readfirstlane_b32 {s('nonce')}, v{V_T1}",
                   f"s_add_u32 {s('spin')}, {s('spin')}, 1", f"s_cmp_gt_u32 {s('spin')}, {SPIN_MAX}", f"s_cbranch_scc1 {ok}",
                   f"s_cmp_eq_u32 {s('nonce')}, 0", f"s_cbranch_scc1 {chk}", f"s_branch {ok}"]
    nop = lambda E: None
    return a, b, nop, nop

V_DUM = 0
def touch(E, vreg, srdb, so, tag="TCH"):
    E.vmem(f"buffer_load_dword v{V_DUM}, v{vreg}, {srd(srdb)}, {so} offen", tag)

def touch_ops_wd():
    def setup(E):
        E.raw(f"s_and_b32 {s('t0')}, {s('mb')}, 3\ns_lshl_b32 {s('t0')}, {s('t0')}, 3\ns_add_u32 {s('t0')}, {s('t0')}, {s('jj')}")
        E.raw(f"s_lshl_b32 {s('t0')}, {s('t0')}, 2\ns_add_u32 {s('t0')}, {s('t0')}, {s('wave')}\ns_mul_i32 {s('t0')}, {s('t0')}, {81*128}")
        E.raw(f"s_mul_i32 {s('t1')}, {s('sk')}, {1152*XROW}\ns_add_u32 {s('so')}, {s('t0')}, {s('t1')}")
    return [(setup, 's'), (lambda E: touch(E, V_T128, SRD_D, s('so')), 'v'), (lambda E: touch(E, V_T128B, SRD_D, s('so')), 'v')]

def touch_ops_w1(line):
    def setup(E):
        E.raw(f"s_and_b32 {s('t0')}, {s('mb')}, 3\ns_lshl_b32 {s('t0')}, {s('t0')}, 1\ns_add_u32 {s('t0')}, {s('t0')}, {s('kh')}")
        E.raw(f"s_mul_i32 {s('t0')}, {s('t0')}, {72*WROW}\ns_add_u32 {s('so')}, {s('t0')}, {s('w1col')}")
        if line: E.raw(f"s_add_u32 {s('so')}, {s('so')}, {line*128}")
    return [(setup, 's'), (lambda E: touch(E, V_TROW, SRD_Q, s('so')), 'v'), (lambda E: touch(E, V_TROWB, SRD_Q, s('so')), 'v')]

def touch_ops_wq():
    def setup(E):
        E.raw(f"s_and_b32 {s('t0')}, {s('jj')}, 3\ns_lshl_b32 {s('t0')}, {s('t0')}, 2\ns_and_b32 {s('t1')}, {s('mb')}, 3\ns_add_u32 {s('t0')}, {s('t0')}, {s('t1')}")
        E.raw(f"s_lshl_b32 {s('t0')}, {s('t0')}, 1\ns_add_u32 {s('t0')}, {s('t0')}, {s('kh')}\ns_mul_i32 {s('t0')}, {s('t0')}, {18*WROW}")
        E.raw(f"s_mul_i32 {s('t1')}, {s('sk')}, 2304\ns_add_u32 {s('t0')}, {s('t0')}, {s('t1')}\ns_lshl_b32 {s('t1')}, {s('jj')}, 5\ns_add_u32 {s('t0')}, {s('t0')}, {s('t1')}\ns_add_u32 {s('so')}, {s('t0')}, 2048")
    return [(setup, 's'), (lambda E: touch(E, V_TROWQ, SRD_Q, s('so')), 'v')]

def touch_ops_x():
    def setup(E):
        E.raw(f"s_lshl_b32 {s('t0')}, {s('jj')}, 2\ns_add_u32 {s('t0')}, {s('t0')}, {s('wave')}\ns_lshl_b32 {s('t0')}, {s('t0')}, 3")
        E.raw(f"s_lshl_b32 {s('t1')}, {s('mb')}, 8\ns_add_u32 {s('t0')}, {s('t0')}, {s('t1')}\ns_mul_i32 {s('so')}, {s('t0')}, {XROW}")
    return [(setup, 's'), (lambda E: touch(E, V_T128, SRD_X, s('so')), 'v'), (lambda E: touch(E, V_T128B, SRD_X, s('so')), 'v')]

def touch_ops_h(p0, np_):
    def setup(E):
        E.raw(f"s_lshr_b32 {s('t0')}, {s('jj')}, 1\ns_lshl_b32 {s('t0')}, {s('t0')}, 14\ns_add_u32 {s('t0')}, {s('t0')}, {s('hldA')}")
        E.raw(f"s_lshl_b32 {s('t1')}, {s('kh')}, 11\ns_sub_u32 {s('so')}, {s('t0')}, {s('t1')}")
        if p0: E.raw(f"s_add_u32 {s('so')}, {s('so')}, {p0*H_KS}")
    v = V_T128 if np_ == 2 else V_T128H
    return [(setup, 's'), (lambda E: touch(E, v, SRD_W, s('so')), 'v')]

def selftouch_op(p):
    def f(E):
        if OPT.get("noself", 1): return
        E.raw(f"s_add_u32 {s('t4')}, {s('hst')}, {p * H_KS}")
        E.vmem(f"buffer_load_dword v{V_DUM}, v{V_T128H}, {srd(SRD_W)}, {s('t4')} offen sc1", "TCH")
    return f

def touch_code(E):
    R = E.raw
    R(f"s_getpc_b64 s[4:5]")
    R(f"L_pc:")
    R(f"s_sub_u32 s4, s4, L_pc-{KNAME}")
    R(f"s_subb_u32 s5, s5, 0")
    R(f"s_mov_b32 s6, L_codeend-{KNAME}")
    R(f"s_mov_b32 s7, 0x20000")
    R(f"s_lshr_b32 {s('t0')}, s2, 3\ns_lshl_b32 {s('t0')}, {s('t0')}, 2\ns_add_u32 {s('t0')}, {s('t0')}, {s('wave')}\ns_and_b32 {s('t0')}, {s('t0')}, 7\ns_lshl_b32 {s('t0')}, {s('t0')}, 13")
    E.vmem(f"buffer_load_dword v{V_DUM}, v{V_T128}, s[4:7], {s('t0')} offen", "TCH")

def touch_mall_w(E):
    R = E.raw
    R(f"s_lshl_b32 {s('t0')}, s2, 2\ns_add_u32 {s('t0')}, {s('t0')}, {s('wave')}\ns_and_b32 {s('t0')}, {s('t0')}, 511\ns_mul_i32 {s('t0')}, {s('t0')}, {81*128}")
    R(f"s_cmp_lt_u32 s2, 128")
    R(f"s_cselect_b32 s4, s12, s16\ns_cselect_b32 s5, s13, s17\ns_cselect_b32 {s('t1')}, 0, 1024")
    R(f"s_mov_b32 s6, {DM*WROW+1024}\ns_mov_b32 s7, 0x20000\ns_add_u32 {s('t0')}, {s('t0')}, {s('t1')}")
    E.vmem(f"buffer_load_dword v{V_DUM}, v{V_T128}, s[4:7], {s('t0')} offen", "TCH")
    E.vmem(f"buffer_load_dword v{V_DUM}, v{V_T128B}, s[4:7], {s('t0')} offen", "TCH")

def selftouchq_op():
    def f(E):
        E.raw(f"v_lshrrev_b32 v{V_T0}, 2, v{V_LANE}\nv_lshlrev_b32 v{V_T0}, 10, v{V_T0}\nv_and_b32 v{V_T1}, 3, v{V_LANE}\nv_lshl_add_u32 v{V_T0}, v{V_T1}, 7, v{V_T0}")
        E.raw(f"v_mov_b32 v{V_T1}, {OOB}\nv_cmp_gt_u32 vcc, 16, v{V_LANE}\ns_nop 1\nv_cndmask_b32 v{V_T0}, v{V_T1}, v{V_T0}, vcc")
        E.vmem(f"buffer_load_dword v{V_DUM}, v{V_T0}, {srd(SRD_W)}, {s('hstq')} offen sc1", "TCH")
    return f

def tlb_ops():
    def setup(E):
        L = V_LANE
        E.raw(f"s_lshl_b32 {s('t0')}, {s('mb')}, 3\ns_add_u32 {s('t0')}, {s('t0')}, {s('jj')}\ns_lshl_b32 {s('t0')}, {s('t0')}, 2\ns_add_u32 {s('t0')}, {s('t0')}, {s('wave')}")
        E.raw(f"s_mul_i32 {s('t0')}, {s('t0')}, {16*5120}\ns_add_u32 {s('t0')}, {s('t0')}, {WS_P}")
        E.raw(f"v_mov_b32 v{V_T0}, {OOB}\nv_writelane_b32 v{V_T0}, {s('hst')}, 0\nv_writelane_b32 v{V_T0}, {s('pf')}, 1\nv_writelane_b32 v{V_T0}, {s('t0')}, 2")
        E.raw(f"s_lshl_b32 {s('so')}, {s('mb')}, 8\ns_mul_i32 {s('so')}, {s('so')}, {XROW}")
    return [(setup, 's'),
            (lambda E: E.vmem(f"buffer_load_dword v{V_DUM}, v{V_T0}, {srd(SRD_W)}, 0 offen sc1", "TCH"), 'v'),
            (lambda E: E.vmem(f"buffer_load_dword v{V_DUM}, v{V_Z}, {srd(SRD_O)}, {s('so')} offen", "TCH"), 'v'),
            (lambda E: E.vmem(f"buffer_load_dword v{V_DUM}, v{V_Z}, {srd(SRD_D)}, {s('wd0')} offen", "TCH"), 'v')]

def touch_regs(E):
    R = E.raw; L = V_LANE
    R(f"v_lshlrev_b32 v{V_T128}, 7, v{L}")
    R(f"v_mov_b32 v{V_T128H}, {OOB}")
    R(f"v_cmp_gt_u32 vcc, 17, v{L}")
    R(f"v_add_u32 v{V_T128B}, {64*128}, v{V_T128}")
    R(f"v_mul_u32_u24 v{V_TROW}, {WROW}, v{L}")
    R(f"v_cndmask_b32 v{V_T128B}, v{V_T128H}, v{V_T128B}, vcc")
    R(f"v_cmp_gt_u32 vcc, 8, v{L}")
    R(f"v_add_u32 v{V_TROWB}, {64*WROW}, v{V_TROW}")
    R(f"s_nop 0")
    R(f"v_cndmask_b32 v{V_TROWB}, v{V_T128H}, v{V_TROWB}, vcc")
    R(f"v_cmp_gt_u32 vcc, 18, v{L}")
    R(f"s_nop 1")
    R(f"v_cndmask_b32 v{V_TROWQ}, v{V_T128H}, v{V_TROW}, vcc")
    R(f"v_cmp_gt_u32 vcc, 32, v{L}")
    R(f"s_nop 1")
    R(f"v_cndmask_b32 v{V_T128H}, v{V_T128H}, v{V_T128}, vcc")

def emit_ops(E, ops):
    for f, k in ops:
        f(E)

def poll_issue(name):
    def f(E):
        E.vmem(f"buffer_load_dword v{V_FL}, v{V_FH}, {srd(SRD_W)}, 0 offen sc1", f"POLL{name}")
    return f

def poll_check(E, name, level, voff=None, issued=True):
    voff = V_FH if voff is None else voff
    ok = E.label("pok"); slow = E.label("pslow"); chk = E.label("pchk")
    if OPT.get("nopoll"):
        if issued: E.wait(vm=f"POLL{name}")
        return
    test = [f"s_add_u32 {s('t0')}, {s('nonce')}, {level}",
            f"v_subrev_u32 v{V_FL}, {s('t0')}, v{V_FL}",
            f"v_cmp_lt_u32 vcc, {6 - level}, v{V_FL}"]
    if issued:
        E.wait(vm=f"POLL{name}")
        for x in test: E.raw(x)
        if OPT.get("vccnop", 0): E.raw("s_nop 4")
        E.raw(f"s_cbranch_vccnz {slow}")
    else:
        E.raw(f"s_branch {slow}")
    E.raw(f"{ok}:")
    E.slow += [f"{slow}:",
               f"s_mov_b32 {s('spin')}, 0",
               f"{chk}:"] + ([f"s_sleep {OPT.get('slp', 1)}"] if OPT.get("slp", 1) else []) + [
               f"buffer_load_dword v{V_FL}, v{voff}, {srd(SRD_W)}, 0 offen sc1",
               "s_waitcnt vmcnt(0)"] + test + [
               f"s_add_u32 {s('spin')}, {s('spin')}, 1",
               f"s_cmp_gt_u32 {s('spin')}, {SPIN_MAX}",
               f"s_cbranch_scc1 {ok}",
               f"s_cbranch_vccnz {chk}",
               f"s_branch {ok}"]

V_AB = 50
def setupA(E):
    R = E.raw
    L = V_LANE
    T0, T1, T2, T3 = V_T0, V_T1, V_T2, V_T3
    R(f"v_lshrrev_b32 v{T0}, 4, v{L}")
    R(f"v_and_b32 v{T1}, 15, v{L}")
    R(f"v_lshrrev_b32 v{T2}, 1, v{T1}")
    R(f"v_xor_b32 v{T2}, v{T2}, v{T0}")
    R(f"v_lshlrev_b32 v{T3}, 7, v{T1}")
    R(f"v_lshl_add_u32 v{V_XR}, v{T2}, 4, v{T3}")
    R(f"v_add_u32 v{V_XR}, {s('m0x')}, v{V_XR}")
    R(f"v_xor_b32 v{V_XR+1}, 64, v{V_XR}")
    R(f"v_lshrrev_b32 v{T2}, 2, v{T1}")
    R(f"v_lshlrev_b32 v{T3}, 11, v{T0}")
    R(f"v_lshl_add_u32 v{T3}, v{T2}, 7, v{T3}")
    R(f"v_and_b32 v{T2}, 3, v{T1}")
    R(f"v_lshl_add_u32 v{T3}, v{T2}, 3, v{T3}")
    R(f"v_and_b32 v{T2}, 1, v{T0}")
    R(f"v_lshlrev_b32 v{T2}, 6, v{T2}")
    R(f"v_add_u32 v{T3}, v{T3}, v{T2}")
    R(f"v_bfe_u32 v{T2}, v{T1}, 3, 1")
    R(f"v_lshl_add_u32 v{V_A}, v{T2}, 5, v{T3}")
    R(f"v_xor_b32 v{V_A+1}, 32, v{V_A}")
    for r in range(1, 3):
        R(f"v_add_u32 v{V_A+2*r}, {r*49152}, v{V_A}")
        R(f"v_add_u32 v{V_A+2*r+1}, {r*49152}, v{V_A+1}")
    for i in range(6):
        R(f"v_xor_b32 v{V_AB+i}, 64, v{V_A+i}")

def setupB():
    G = []
    R = G.append
    L = V_LANE
    T0, T1, T2, T3 = 44, 45, 46, 47
    u0, u1, u2, u3, u4 = s('pst'), s('pld'), s('outb'), s('phi0'), s('spin')
    R(f"s_add_u32 {u0}, s16, 1024\ns_addc_u32 {u1}, s17, 0\ns_cmp_eq_u32 {s('th')}, 0\ns_cselect_b32 s36, s12, {u0}\ns_cselect_b32 s37, s13, {u1}\ns_mov_b32 s38, {DM*WROW}\ns_mov_b32 s39, 0x20000")
    R(f"s_lshl_b32 {s('cu')}, {s('mb')}, 5\ns_lshl_b32 {u0}, {s('sk')}, 3\ns_add_u32 {s('cu')}, {s('cu')}, {u0}\ns_add_u32 {s('cu')}, {s('cu')}, {s('jj')}")
    R(f"s_mul_i32 {u0}, {s('sk')}, 2304\ns_lshl_b32 {u1}, {s('jj')}, 5\ns_add_u32 {s('wqcol')}, {u0}, {u1}\ns_add_u32 {s('wqcol')}, {s('wqcol')}, 2048")
    R(f"s_mul_i32 {u1}, {s('kh')}, {32*WROW}\ns_add_u32 {s('wqcol')}, {s('wqcol')}, {u1}\ns_lshl_b32 {s('m0q')}, {s('wave')}, 10")
    R(f"v_mov_b32 v{V_T128H}, {OOB}\nv_cmp_gt_u32 vcc, 17, v{L}\nv_add_u32 v{V_T128B}, {64*128}, v{V_T128}\nv_mul_u32_u24 v{V_TROW}, {WROW}, v{L}\nv_cndmask_b32 v{V_T128B}, v{V_T128H}, v{V_T128B}, vcc")
    R(f"v_cmp_gt_u32 vcc, 8, v{L}\nv_add_u32 v{V_TROWB}, {64*WROW}, v{V_TROW}\ns_nop 0\nv_cndmask_b32 v{V_TROWB}, v{V_T128H}, v{V_TROWB}, vcc")
    R(f"v_cmp_gt_u32 vcc, 18, v{L}\ns_nop 1\nv_cndmask_b32 v{V_TROWQ}, v{V_T128H}, v{V_TROW}, vcc")
    R(f"v_cmp_gt_u32 vcc, 32, v{L}\ns_nop 1\nv_cndmask_b32 v{V_T128H}, v{V_T128H}, v{V_T128}, vcc")
    R(f"v_lshrrev_b32 v{T0}, 4, v{L}\nv_and_b32 v{T1}, 15, v{L}")
    R(f"v_lshrrev_b32 v{T2}, 1, v{T0}\nv_lshlrev_b32 v{T3}, 9, v{T2}")
    R(f"v_and_b32 v{T2}, 1, v{T0}\nv_lshl_add_u32 v{T3}, v{T2}, 7, v{T3}")
    R(f"v_lshrrev_b32 v{T2}, 2, v{T1}\nv_lshl_add_u32 v{T3}, v{T2}, 5, v{T3}")
    R(f"v_and_b32 v{T2}, 3, v{T1}\nv_lshl_add_u32 v{V_AQ}, v{T2}, 3, v{T3}")
    R(f"v_lshrrev_b32 v{T2}, 2, v{T1}\nv_lshl_add_u32 v{T2}, v{T0}, 2, v{T2}")
    R(f"v_mul_u32_u24 v{T2}, 288, v{T2}\nv_and_b32 v{T3}, 3, v{T1}")
    if G2X:
        R(f"v_lshl_add_u32 v{V_A2}, v{T3}, 3, v{T2}\ns_lshr_b32 {s('t5')}, {s('jj')}, 2")
    else:
        R(f"v_lshl_add_u32 v{T2}, v{T3}, 3, v{T2}\ns_mul_i32 {u0}, {s('kh')}, 9216\nv_add_u32 v{V_A2}, {u0}, v{T2}")
    R(f"v_add_u32 v{V_A2+1}, {3*WD_SLOT}, v{V_A2}\nv_add_u32 v{V_A2+2}, {6*WD_SLOT}, v{V_A2}")
    R(f"v_lshrrev_b32 v{T0}, 1, v{L}\nv_and_b32 v{T1}, 0x13, v{T0}")
    R(f"v_and_b32 v{T2}, 4, v{T0}\nv_lshl_or_b32 v{T1}, v{T2}, 1, v{T1}")
    R(f"v_and_b32 v{T2}, 8, v{T0}\nv_lshrrev_b32 v{T2}, 1, v{T2}")
    R(f"v_or_b32 v{T1}, v{T1}, v{T2}\nv_mul_u32_u24 v{T1}, {WROW}, v{T1}")
    R(f"v_and_b32 v{T2}, 1, v{L}\nv_lshl_add_u32 v{V_WQ}, v{T2}, 4, v{T1}")
    for ip in (range(3) if G2X else []):
        if ip < 2: R(f"s_lshl_b32 {u0}, {s('wave')}, 6\nv_add_u32 v{T0}, {u0}, v{L}" + (f"\nv_add_u32 v{T0}, 256, v{T0}" if ip else ""))
        else: R(f"s_lshl_b32 {u0}, {s('wave')}, 4\ns_add_u32 {u0}, {u0}, 512\nv_and_b32 v{T0}, 15, v{L}\nv_add_u32 v{T0}, {u0}, v{T0}")
        R(f"v_mul_u32_u24 v{T1}, 3641, v{T0}\nv_lshrrev_b32 v{T1}, 16, v{T1}")
        R(f"v_mul_u32_u24 v{T2}, 18, v{T1}\nv_sub_u32 v{T2}, v{T0}, v{T2}")
        R(f"v_mul_u32_u24 v{T1}, {XROW}, v{T1}\nv_lshl_add_u32 v{V_WD+ip}, v{T2}, 4, v{T1}")
    if G2X: R(f"s_lshl_b32 {s('m0d')}, {s('wave')}, 10\ns_lshl_b32 {u0}, {s('wave')}, 8\ns_add_u32 {s('m0d5')}, {u0}, 8192")
    for ip in ([] if G2X else range(5)):
        if ip < 4:
            R(f"s_lshl_b32 {u0}, {s('th')}, 8\nv_add_u32 v{T0}, {u0}, v{L}" + (f"\nv_add_u32 v{T0}, {64*ip}, v{T0}" if ip else ""))
        else:
            R(f"s_lshl_b32 {u0}, {s('th')}, 5\ns_add_u32 {u0}, {u0}, 512\nv_and_b32 v{T0}, 31, v{L}\nv_add_u32 v{T0}, {u0}, v{T0}")
        R(f"v_mul_u32_u24 v{T1}, 3641, v{T0}\nv_lshrrev_b32 v{T1}, 16, v{T1}")
        R(f"v_mul_u32_u24 v{T2}, 18, v{T1}\nv_sub_u32 v{T2}, v{T0}, v{T2}")
        R(f"v_mul_u32_u24 v{T1}, {XROW}, v{T1}\nv_lshl_add_u32 v{V_WD+ip}, v{T2}, 4, v{T1}" + (f"\nv_subrev_u32 v{V_WD+ip}, {ip*1024}, v{V_WD+ip}" if 0 < ip < 4 else ""))
    if not G2X:
        R(f"s_mul_i32 {u1}, {s('kh')}, 9216\ns_lshl_b32 {u2}, {s('th')}, 9\ns_add_u32 {u2}, {u2}, {u1}\ns_add_u32 {s('m0d5')}, {u2}, 8192\n"
          f"s_lshl_b32 {u2}, {s('th')}, 12\ns_add_u32 {s('m0d')}, {u1}, {u2}")
    KH = s('t5') if G2X else s('kh')
    R(f"v_lshlrev_b32 v{V_L16}, 4, v{L}\nv_lshlrev_b32 v{V_L8}, 3, v{L}")
    R(f"v_mov_b32 v{V_KA}, 0x{f2u(GA):08x}\ns_mov_b32 {s('kb')}, 0x{f2u(GB):08x}\nv_mov_b32 v{V_Z}, 0")
    R(f"s_lshl_b32 {s('pf')}, {s('cu')}, 7\ns_add_u32 {s('pf')}, {s('pf')}, {WS_F}\nv_mov_b32 v{V_PUBD}, v{V_PUB}")
    R(f"s_and_b32 {s('flagh')}, {s('cu')}, 0xf8\ns_lshl_b32 {u0}, {KH}, 2\ns_add_u32 {s('flagh')}, {s('flagh')}, {u0}\n"
      f"s_lshl_b32 {s('flagh')}, {s('flagh')}, 7\ns_add_u32 {s('flagh')}, {s('flagh')}, {WS_F}\nv_min_u32 v{T0}, 3, v{L}")
    R(f"v_lshlrev_b32 v{T0}, 7, v{T0}\nv_add_u32 v{V_FH}, {s('flagh')}, v{T0}")
    R(f"s_lshl_b32 {u0}, {s('mb')}, 2\ns_add_u32 {u0}, {u0}, {s('sk')}\ns_lshl_b32 {u0}, {u0}, 2\n"
      f"s_add_u32 {u1}, {u0}, {s('wave')}\ns_mul_i32 {u1}, {u1}, {36*H_KS}\n"
      f"s_lshl_b32 {u2}, {s('jj')}, 14\ns_add_u32 {s('hst')}, {u1}, {u2}\n"
      f"s_lshr_b32 {u2}, {s('jj')}, 1\ns_add_u32 {u2}, {u2}, 32\ns_lshl_b32 {u2}, {u2}, 12\ns_add_u32 {s('hstq')}, {u1}, {u2}\n"
      f"s_and_b32 {u2}, {s('jj')}, 1\ns_lshl_b32 {u3}, {u2}, 9\ns_add_u32 {s('hstq')}, {s('hstq')}, {u3}\n"
      + (f"s_lshl_b32 {u4}, {KH}, 16\ns_add_u32 {s('hldA')}, {u4}, {u1}\n"
         f"s_lshl_b32 {u4}, {KH}, 13\ns_add_u32 {u4}, {u4}, {32*H_KS}\ns_add_u32 {s('hlqA')}, {u4}, {u1}" if G2X else
      f"s_lshl_b32 {u2}, {u2}, 1\ns_add_u32 {u2}, {u2}, {s('th')}\n"
      f"s_add_u32 {u1}, {u0}, {u2}\ns_mul_i32 {u1}, {u1}, {36*H_KS}\n"
      f"s_lshl_b32 {u2}, {s('kh')}, 11\ns_sub_u32 {u3}, 2048, {u2}\n"
      f"s_lshl_b32 {u4}, {s('kh')}, 16\ns_add_u32 {u4}, {u4}, {u1}\n"
      f"s_add_u32 {s('hldA')}, {u4}, {u2}\ns_add_u32 {s('hldB')}, {u4}, {u3}\n"
      f"s_lshl_b32 {u4}, {s('kh')}, 13\ns_add_u32 {u4}, {u4}, {32*H_KS}\ns_add_u32 {u4}, {u4}, {u1}\n"
      f"s_add_u32 {s('hlqA')}, {u4}, {u2}\ns_add_u32 {s('hlqB')}, {u4}, {u3}"))
    R((f"s_and_b32 {u0}, {s('jj')}, 3\n" if G2X else f"s_lshr_b32 {u0}, {s('jj')}, 1\n") + f"s_mul_i32 {u0}, {u0}, 288\n"
      f"s_mul_i32 {u1}, {s('sk')}, {1152*XROW}\ns_add_u32 {u0}, {u0}, {u1}\n"
      f"s_mul_i32 {u1}, {KH}, {512*XROW}\ns_add_u32 {s('wd0')}, {u0}, {u1}\n"
      f"s_mul_i32 {u1}, {KH}, {64*XROW}\ns_add_u32 {s('wdq')}, {u0}, {u1}\ns_add_u32 {s('wdq')}, {s('wdq')}, {1024*XROW}")
    return G

class Side:
    def __init__(self):
        self.q = []; self.m = 0; self.clock = 0.0; self.hi = []
    def add(self, ops):
        for o in ops: self.q.append((o[0], o[1], o[2] if len(o) > 2 else -1))
    def add_rated(self, ops, cost, earliest=None):
        st = max(self.clock, self.m if earliest is None else earliest)
        nv = sum(1 for o in ops if o[1] == 'v')
        k = 0
        for o in ops:
            nb = int(st + k * cost / nv)
            self.q.append((o[0], o[1], nb))
            if o[1] == 'v': k += 1
        self.clock = st + cost
    def add_hi(self, f): self.hi.append(f)
    def empty(self): return not self.q and not self.hi
    def take_gap(self, E):
        if self.hi:
            self.hi.pop(0)(E); return 2
        if not self.q: return 0
        f, kind, nb = self.q[0]
        if kind == 'v' and nb < self.m:
            self.q.pop(0); f(E); return 2
        return 0
    def take_scalar(self, E):
        if self.q and self.q[0][1] == 's' and self.q[0][2] <= self.m + 2:
            f, _, _ = self.q.pop(0); f(E); return 1
        return 0
    def drain(self, E):
        while self.hi: self.hi.pop(0)(E)
        while self.q:
            f, kind, nb = self.q.pop(0)
            f(E)
            if kind == 's': E.raw("s_nop 0")

def kstep(E, st, side, mf, reads, side_gaps=(), cap_extra=0):
    reads = list(reads)
    n = len(mf)
    for i, m in enumerate(mf):
        E.raw(m)
        st.tick()
        side.m += 1
        cap = 2 + cap_extra
        if reads:
            E.ds(reads.pop(0)); cap -= 1
        elif i in side_gaps:
            u = side.take_gap(E)
            cap -= u
            if u: cap = min(cap, 0)
        if cap > 0:
            if (i + 1) in side_gaps or (i + 1 == n):
                cap -= side.take_scalar(E)
        if cap > 0:
            st.fill(E, cap)

def gemm1_mf(buf, ks, first, par=None):
    mf = []
    if par is None: par = ks & 1
    for f in range(4):
        grp, mat = f >> 1, f & 1
        a = vr(V_AR + 16 * par + 4 * f)
        for tt in range(4):
            mf.append(mfma(buf + (grp * 2 + mat) * 16 + tt * 4, a, xreg(ks, tt), first))
    return mf

XB = [0, 24576, 49152]
def issue_xp(E, c, hf, b):
    E.raw(f"s_add_u32 m0, {s('m0x')}, {XB[b]}")
    E.raw(f"s_add_u32 {s('so2')}, {s('xoff')}, {hf * 32 * XROW + c * 128}")
    for u in range(4):
        E.vmem(f"buffer_load_dwordx4 v{V_X+u}, {srd(SRD_X)}, {s('so2')} offen offset:{u*1024} lds", f"X{hf}_{c}")
def xp_ops(c, hf, b):
    ops = [((lambda E: (E.raw(f"s_add_u32 m0, {s('m0x')}, {XB[b]}"), E.raw(f"s_add_u32 {s('so')}, {s('xoff')}, {hf * 32 * XROW + c * 128}"))), 's')]
    for u in range(4):
        ops.append(((lambda E, u=u: E.vmem(f"buffer_load_dwordx4 v{V_X+u}, {srd(SRD_X)}, {s('so')} offen offset:{u*1024} lds", f"X{hf}_{c}")), 'v'))
    return ops
def read_xp(c, hf, b):
    return [(f"ds_read_b128 {xreg(2*c+h, 2*hf+tp)}, v{V_XR + h} offset:{XB[b] + tp * 2048}", f"xr{hf}_{c}") for h in range(2) for tp in range(2)]

def areads_half(ks, gp, par, tagn):
    out = []
    reg, kk = divmod(ks, 6)
    for f in range(4):
        grp, mat = f >> 1, f & 1
        d = V_AR + 16 * par + 4 * f
        base = (V_AB if gp else V_A) + 2 * reg + grp
        for sec in range(2):
            out.append((f"ds_read_b64_tr_b16 v[{d+2*sec}:{d+2*sec+1}], v{base} offset:{kk*W1_KS + mat*1024 + sec*512}", f"a{tagn}_{f}"))
    return out

def half_step(E, st, side, n, ks, gp, half, first, reads, xq, cap_extra=0, vm_ok=True):
    par = n & 1
    buf = V_BUF[half]
    i = 0
    for f in range(4):
        g_, mat = 2 * gp + (f >> 1), f & 1
        E.wait_dstag(f"a{n}_{f}")
        for tq in range(2):
            d = buf + ((g_ * 2 + mat) * 2 + tq) * 4
            E.raw(mfma(d, vr(V_AR + 16 * par + 4 * f), xreg(ks, 2 * half + tq), first))
            st.tick(); side.m += 1
            cap = 2 + cap_extra
            if reads:
                t_, tg = reads.pop(0); E.ds(t_, tg); cap -= 1
            if xq and i >= 2:
                t_, tg = xq.pop(0); E.ds(t_, tg); cap -= 1
            elif vm_ok and (i & 1) == 1:
                u = side.take_gap(E)
                if u: cap = 0
            if cap > 0: cap -= side.take_scalar(E)
            if cap > 0: st.fill(E, cap)
            i += 1

def l1_ops(c):
    ops = []
    for kk in range(3 * c, 3 * c + 3):
        a, b, d = w1_ops(1, kk)
        ops += [(a, 's'), (b, 'v'), (d, 'v')]
    return ops

def p0ab(E, st, side, G, opt):
    NA, NB, NC, ND = nonce_ops()
    seq = [(ks, gp) for ks in range(18) for gp in range(2)]
    xq = []
    b_issue = {8: 6, 11: 7, 14: 8, 17: 0}
    b_read = {10: 6, 13: 7, 16: 8}
    for n, (ks, gp) in enumerate(seq):
        if gp == 1 and ks % 3 == 2 and ks < 17:
            if ks == 8: E.wait_dstag("xr0_7")
            E.wait(vm=f"W0_{ks//3+1}", barrier=True)
        if gp == 0:
            if ks % 2 == 0: E.wait_dstag(f"xr0_{ks//2}")
            if 1 <= ks <= 5:
                E.wait_dstag(f"xr0_{ks}")
                issue_xp(E, ks + 3, 0, (ks + 3) % 3)
            if ks == 1: issue_w1_slot(E, 0, 2)
            if ks == 3: issue_w1_slot(E, 0, 3)
            if ks in b_issue:
                prev = {8: "xr0_8", 11: "xr1_6", 14: "xr1_7", 17: "xr1_8"}[ks]
                E.wait_dstag(prev)
                side.add(xp_ops(b_issue[ks], 1, 2))
            if ks == 11: st.flush(E)
            if ks == 12 and opt.get("touch", 1): side.add(touch_ops_wq())
            if ks == opt.get("txb", 6):
                E.raw(f"v_mov_b32 v{V_T0}, {OOB}\nv_cmp_gt_u32 vcc, 36, v{V_LANE}\ns_lshl_b32 {s('t0')}, {s('jj')}, 2\ns_add_u32 {s('t0')}, {s('t0')}, 32\ns_mul_i32 {s('t0')}, {s('t0')}, {XROW}")
                E.raw(f"v_cndmask_b32 v{V_T0}, v{V_T0}, v{V_T128}, vcc\ns_add_u32 {s('t0')}, {s('t0')}, {s('xoff')}")
                touch(E, V_T0, SRD_X, s('t0'))
            if ks == opt.get("tl1", 7):
                st.flush(E)
                if ks >= 8: side.add(touch_ops_w1(1))
                else: emit_ops(E, touch_ops_w1(1))
            if ks == 13: NA(E)
            E.stamp(f"P0k{ks}")
        if gp == 1 and ks == 8:
            for sl in (4, 5):
                for kk in range(3 * sl, 3 * sl + 3):
                    a, b, c = w1_ops(0, kk)
                    side.add([(a, 's'), (b, 'v'), (c, 'v')])
        if gp == 1 and ks <= 7:
            E.wait(vm=f"X0_{ks+1}")
            xq += read_xp(ks + 1, 0, (ks + 1) % 3)
        if gp == 1 and ks in b_read:
            E.wait(vm=f"X1_{b_read[ks]}"); xq += read_xp(b_read[ks], 1, 2)
        if n + 1 < len(seq): nks, ngp = seq[n + 1]
        else: nks, ngp = 12, 0
        reads = areads_half(nks, ngp, (n + 1) & 1, n + 1)
        half_step(E, st, side, n, ks, gp, 0, ks == 0, reads, xq, vm_ok=(ks >= 8), cap_extra=(2 if st.pending() else 0))
        assert not xq
    E.stamp("P0end")
    E.raw(f"s_add_u32 {s('t3')}, {s('hst')}, 0")
    E.raw(f"s_add_u32 {s('t2')}, {s('hst')}, {H_KS}")
    def hs_fn(tag):
        def f(E, pp, tt, base):
            E.vmem(f"buffer_store_dwordx4 {vr(base)}, v{V_L16}, {srd(SRD_W)}, {s('t3' if pp == 0 else 't2')} offen offset:{tt*1024} sc1", tag)
        return f
    G.nset = 2
    G.half_pass(V_BUF[0], 0, hs_fn("HS0"))
    G.nset = N_GSET; G.pairno = 0
    order = [(12 + p) % 18 for p in range(18)]
    seq = [(pos, gp) for pos in range(18) for gp in range(2)]
    n0 = 36
    issue = {2: [(2, 2, "xr1_0")], 3: [(1, 0, None)], 5: [(3, 2, "xr1_2")], 6: [(4, 1, None), (5, 0, "xr1_1")]}
    rd = {1: (0, 2), 4: (2, 2), 5: (1, 0), 7: (3, 2), 8: (4, 1), 9: (5, 0)}
    for m, (pos, gp) in enumerate(seq):
        n = n0 + m
        ks = order[pos]
        if gp == 0:
            if pos in (3, 6, 9, 12, 15):
                if pos == 12: E.wait_dstag("xr1_5"); E.wait_dstag("xr1_4")
                E.wait(barrier=True)
            if ks % 2 == 0: E.wait_dstag(f"xr1_{ks//2}")
            for c, b, tg in issue.get(pos, []):
                if tg: E.wait_dstag(tg)
                side.add(xp_ops(c, 1, b))
            if pos == 9: side.add(l1_ops(0))
            if pos == 12: side.add(l1_ops(1)); side.add(l1_ops(4))
            if pos == 15: side.add(l1_ops(2)); side.add(l1_ops(5))
            if pos == 14: NB(E)
        if gp == 1 and pos in rd:
            c, b = rd[pos]
            E.wait(vm=f"X1_{c}"); xq += read_xp(c, 1, b)
        if pos == 17 and gp == 1:
            E.wait(vm="W1_0", barrier=True)
            reads = [(t_, "p2a") for t_ in areads_w1(0, 0, par=(n + 1) & 1)]
        else:
            npos, ngp = seq[m + 1]
            reads = areads_half(order[npos], ngp, (n + 1) & 1, n + 1)
        half_step(E, st, side, n, ks, gp, 1, pos == 0, reads, xq, cap_extra=(1 if st.pending_cost() > 9.0 * (len(seq) - m) else 0))
        assert not xq
    nfl = st.flush(E)
    if nfl: print(f"; note: P0b GELU flush {nfl}", file=sys.stderr)
    E.stamp("P1end")
    G.half_pass(V_BUF[1], 1, hs_fn("HS1"))

def toggle_bases(E):
    for i in range(6):
        E.raw(f"v_xor_b32 v{V_A+i}, 64, v{V_A+i}")

def hstore_fn(p):
    def f(E, tt, base):
        E.vmem(f"buffer_store_dwordx4 {vr(base)}, v{V_L16}, {srd(SRD_W)}, {s('so2')} offen offset:{tt*1024} sc1", f"HS{p}")
    return f
def hstoreq_fn(E, tt, base):
    E.vmem(f"buffer_store_dwordx2 {vr(base, 2)}, v{V_L8}, {srd(SRD_W)}, {s('hstq')} offen offset:{tt*1024} sc1", "HS4")

def wq_ops(lo=0, hi=9):
    ops = []
    for i in range(lo, hi):
        def setup(E, i=i):
            dst = (SCRATCH + i * 4096) if (WQE and i < 4) else ((i - 4) * 4096 if WQE else i * 4096)
            E.raw(f"s_add_u32 m0, {s('m0q')}, {dst}")
            E.raw(f"s_add_u32 {s('so')}, {s('wqcol')}, {i * 64 * WROW}")
        def d(E): E.vmem(f"buffer_load_dwordx4 v{V_WQ}, {srd(SRD_Q)}, {s('so')} offen lds", "WQ")
        ops += [(setup, 's'), (d, 'v')]
    return ops

def build(opt):
    global OPT
    OPT = opt
    E = Emit()
    E.do_stamp = bool(opt.get("stamp"))
    if isinstance(opt.get("stamp"), str): E.stamp_sel = set(opt["stamp"].split("+"))
    global HSC, WQE, G2X
    G2X = bool(opt.get("g2x", 0))
    HSC = "" if opt.get("hplain") else " sc1"
    WQE = bool(opt.get("wqe", 1))
    st = Stream()
    G = Gelu(st)
    side = Side()
    E.stamp("start")
    prologue(E, opt)
    TH2 = opt.get("th2", 0)
    coop = opt.get("coop", 0) if not TH2 else 0
    if coop == 1:
        coop_setup(E); coop_touch(E, 0)
    if TH2: issue_xp(E, 0, 0, 0)
    else:
        issue_x(E, 0); issue_x(E, 1)
    E.stamp("i1")
    if coop >= 2:
        coop_setup(E); E.raw(f"s_add_u32 {s('tA')}, {s('tA')}, {s('tB')}")
    prologue_w(E)
    issue_w1_slot(E, 0, 0)
    nonce_write(E)
    if coop == 1 or coop == 3: coop_touch(E, 1)
    if TH2:
        issue_xp(E, 1, 0, 1); issue_xp(E, 2, 0, 2)
    else:
        issue_x(E, 2); issue_x(E, 3)
    if coop == 3: coop_touch(E, 2)
    setupA(E)
    issue_w1_slot(E, 0, 1)
    if coop == 2: coop_touch(E, 1)
    if coop == 1 or coop == 2: coop_touch(E, 2)
    NCOMB = opt.get("ncomb", 9)
    if TH2:
        E.wait(vm="X0_0")
        E.stamp("x01")
        for t_, tg in read_xp(0, 0, 0): E.ds(t_, tg)
        E.wait(ds=0)
        issue_xp(E, 3, 0, 0)
        E.wait(vm="W0_0", barrier=True)
        for t_, tg in areads_half(0, 0, 0, 0): E.ds(t_, tg)
    else:
        E.wait(vm=["X0", "X1"])
        E.stamp("x01")
        for r in read_x(E, 0): E.ds(r)
        E.wait(ds=0)
        issue_x(E, 4); issue_x(E, 5)
        E.wait(vm="W0_0", barrier=True)
        for r in areads_w1(0, 0, par=0): E.ds(r)
    E.stamp("P0go")
    SG = (9, 11, 13)
    NA, NB, NC, ND = nonce_ops()
    prev = None
    setup_items = []
    for grp in setupB():
        prev = st.add(grp, min(2, grp.count("\n") + 1), [(prev, 0)] if prev else [])
        setup_items.append(prev)
    FULL = False
    l1_queued = 0
    p0_par = 0
    if TH2:
        p0ab(E, st, side, G, opt)
    else:
        steps = []
        for ks in range(18):
            steps.append(("A", ks))
            if ks < NCOMB: steps.append(("B", ks))
        def last_half(ks): return ("B", ks) if ks < NCOMB else ("A", ks)
        FULL = (NCOMB == 18)
        l1_queued = 0
        for n, (kind, ks) in enumerate(steps):
            par = n & 1
            bar = False; tags = []
            for c in range(1, 6):
                if (kind, ks) == last_half(3 * c - 1): bar = True; tags.append(f"W0_{c}")
            if FULL and (kind, ks) == ("B", 17): bar = True; tags.append("W1_0")
            E.wait(vm=(tags if tags else None), ds=0, barrier=bar)
            if bar and ks == 8:
                for sl in (4, 5):
                    for kk in range(3 * sl, 3 * sl + 3):
                        a, b, c = w1_ops(0, kk)
                        side.add([(a, 's'), (b, 'v'), (c, 'v')])
            if bar and ks == 8 and opt.get("l1late", 1) and opt.get("touch", 1):
                st.flush(E)
                side.add(touch_ops_w1(1)); side.add(touch_ops_wq())
            if bar and ks >= 8 and not opt.get("l1late", 1):
                free = (ks + 1) // 3 if ks < NCOMB else min(NCOMB // 3, (ks + 1) // 3)
                free = min(free, 4 if ks < 14 else 6)
                while l1_queued < free:
                    for kk in range(3 * l1_queued, 3 * l1_queued + 3):
                        a, b, c = w1_ops(1, kk)
                        side.add([(a, 's'), (b, 'v'), (c, 'v')])
                    l1_queued += 1
            if kind == "A":
                if 1 <= ks <= 6:
                    issue_x(E, 2 * (ks + 2)); issue_x(E, 2 * (ks + 2) + 1)
                if ks == 1: issue_w1_slot(E, 0, 2)
                if ks == 3: issue_w1_slot(E, 0, 3)
                if ks == 11: st.flush(E)
                if ks == 12 and opt.get("tlb", 0): side.add(tlb_ops())
                if ks == 12 and opt.get("touch", 1) and not opt.get("l1late", 1):
                    side.add(touch_ops_wq())
                    if not FULL and not opt.get("tw1", 0): side.add(touch_ops_w1(1))
                if opt.get("tw13", -1) == ks:
                    r0 = opt.get("tw13r", 96); nn = (384 - r0) // 8
                    E.raw(f"v_mul_u32_u24 v{V_T0}, {WROW}, v{V_LANE}\nv_mov_b32 v{V_T1}, {OOB}\nv_cmp_gt_u32 vcc, {nn}, v{V_LANE}\ns_and_b32 {s('t0')}, {s('mb')}, 3\ns_lshl_b32 {s('t0')}, {s('t0')}, 1\ns_add_u32 {s('t0')}, {s('t0')}, {s('kh')}")
                    E.raw(f"v_cndmask_b32 v{V_T0}, v{V_T1}, v{V_T0}, vcc\ns_mul_i32 {s('t0')}, {s('t0')}, {nn*WROW}\ns_add_u32 {s('t0')}, {s('t0')}, {s('w1col')}\ns_add_u32 {s('t0')}, {s('t0')}, {r0*WROW}")
                    E.raw(f"s_cmp_eq_u32 {s('th')}, 0\ns_cselect_b32 s4, s12, s16\ns_cselect_b32 s5, s13, s17\ns_cselect_b32 {s('t1')}, 0, 1024\ns_mov_b32 s6, {DM*WROW+1024}\ns_mov_b32 s7, 0x20000\ns_add_u32 {s('t0')}, {s('t0')}, {s('t1')}")
                    E.vmem(f"buffer_load_dword v{V_DUM}, v{V_T0}, s[4:7], {s('t0')} offen", "TCH")
                if opt.get("txc", 0) == ks:
                    c0 = opt.get("txc0", 3); nch = 9 - c0
                    L_ = V_LANE
                    E.raw(f"v_mul_u32_u24 v{V_T0}, {65536 // nch + 1}, v{L_}\nv_lshrrev_b32 v{V_T0}, 16, v{V_T0}\nv_mul_u32_u24 v{V_T1}, {nch}, v{V_T0}\nv_sub_u32 v{V_T1}, v{L_}, v{V_T1}")
                    E.raw(f"v_mul_u32_u24 v{V_T0}, {XROW}, v{V_T0}\nv_lshl_add_u32 v{V_T0}, v{V_T1}, 7, v{V_T0}\nv_mov_b32 v{V_T1}, {OOB}\nv_cmp_gt_u32 vcc, {8 * nch}, v{L_}")
                    E.raw(f"s_lshl_b32 {s('t0')}, {s('jj')}, 2\ns_add_u32 {s('t0')}, {s('t0')}, {s('wave')}\ns_lshl_b32 {s('t0')}, {s('t0')}, 3\ns_lshl_b32 {s('t1')}, {s('mb')}, 8\ns_add_u32 {s('t0')}, {s('t0')}, {s('t1')}\ns_mul_i32 {s('t0')}, {s('t0')}, {XROW}\ns_add_u32 {s('t0')}, {s('t0')}, {c0 * 128}")
                    E.raw(f"v_cndmask_b32 v{V_T0}, v{V_T1}, v{V_T0}, vcc")
                    touch(E, V_T0, SRD_X, s('t0'))
                if opt.get("tw1", 0) and ks == opt.get("tw1", 0):
                    assert setup_items[8].placed is not None, "touch registers not ready"
                    emit_ops(E, touch_ops_w1(1))
                if opt.get("tw45", 6) and ks == opt.get("tw45", 6):
                    assert setup_items[8].placed is not None, "touch registers not ready"
                    E.raw(f"v_mov_b32 v{V_T0}, {OOB}\nv_cmp_gt_u32 vcc, 24, v{V_LANE}\ns_and_b32 {s('t0')}, {s('mb')}, 3\ns_lshl_b32 {s('t0')}, {s('t0')}, 1\ns_add_u32 {s('t0')}, {s('t0')}, {s('kh')}")
                    E.raw(f"v_cndmask_b32 v{V_T0}, v{V_T0}, v{V_TROW}, vcc\ns_mul_i32 {s('t0')}, {s('t0')}, {24*WROW}\ns_add_u32 {s('t0')}, {s('t0')}, {s('w1col')}\ns_add_u32 {s('t0')}, {s('t0')}, {384*WROW}")
                    touch(E, V_T0, SRD_Q, s('t0'))
                if ks == 13: NA(E)
                if ks == 17 and not FULL: toggle_bases(E)
                E.stamp(f"P0k{ks}")
            if FULL and (kind, ks) == ("B", 15):
                NB(E)
            if FULL and (kind, ks) == ("A", 17 + 0): pass
            if n + 1 < len(steps):
                nk, nks = steps[n + 1]
                reads = areads_w1(0, nks, par=1 - par, alt=(nk == "B"))
            elif FULL:
                reads = areads_w1(0, 0, par=1 - par)
            else:
                reads = areads_w1(1, NCOMB, par=1 - par)
            if FULL and (kind, ks) == ("B", 17): NC(E)
            mf = gemm1_mf(V_BUF[0 if kind == "A" else 1], ks, ks == 0, par=par)
            if (kind, ks) == last_half(ks) and ks <= 7:
                xr = read_x(E, ks + 1)
                for i, m in enumerate(mf):
                    E.raw(m); st.tick()
                    if i < 8: E.ds(reads[i])
                    else:
                        if i == 8: E.wait(vm=[f"X{2*(ks+1)}", f"X{2*(ks+1)+1}"])
                        E.ds(xr[i - 8])
                    st.fill(E, 1)
            else:
                kstep(E, st, side, mf, reads, side_gaps=(8, 9, 10, 11, 12, 13, 14, 15) if ks >= 8 else ())
        st.flush(E)
        p0_par = len(steps) & 1
        E.stamp("P0end")
    if opt.get("abl") == "p1": E.raw("; MARK_ABL")
    RATE = float(opt.get("rate", 3.4))
    PB, PC, PD = opt.get("PB", 2), opt.get("PC", 9), opt.get("PD", 13)
    PUB4, PUB5 = opt.get("pub4", 5), opt.get("pub5", 9)
    G2BAR = [2, 5, 8, 11, 14, 17] if G2X else ([1, 3, 5, 7, 9, 11, 13, 15, 17] if opt.get("bar2", 1) else list(range(18)))
    def plan_tail():
        G2 = 432
        items = []
        if WQE: items.append(("WQ", wq_ops(4, 9), 20 * RATE, 32, 272 - 30))
        else: items.append(("WQ", wq_ops(), 36 * RATE, 80, 272 - 30))
        de = {0: 128, 1: 128, 2: 176, 3: 224, 4: 272, 5: 272, 6: 424, 7: 424}
        dex = {0: 5, 1: 5, 2: 8, 3: 8, 4: 8, 5: 11, 6: 11, 7: 14, 8: 14, 9: 14, 10: 17, 11: 17, 12: 17}
        for u in range(18):
            if G2X:
                if u <= 12: e = 16 * dex[u]
                elif u <= 15: e = 424
                else: e = G2 + 36 * G2BAR[0] + 24 + 1
                tb = max(k for k in [-1] + G2BAR if k < u)
                dl = 424 if tb < 0 else G2 + 36 * tb + 24
                items.append((f"D{u}", wd_ops(u), 3.3 * RATE, e, dl - 20))
                continue
            e = de[u] if u < 8 else G2 + 36 * (u - 7)
            dl = 424 if u == 0 else G2 + 36 * (u - 1) + 24
            if opt.get("bar2", 1):
                if u >= 8:
                    fb = min(k for k in G2BAR if k >= u - 8)
                    e = G2 + 36 * fb + 24 + 1
                tb = max(k for k in [-1] + G2BAR if k < u)
                dl = 424 if tb < 0 else G2 + 36 * tb + 24
            items.append((f"D{u}", wd_ops(u), 6.15 * RATE, e, dl))
        for u in range(18):
            if u <= 6: e = 288 + 8 * (u + 1) + 2
            else: e = G2 + 36 * (u - 6)
            if 8 <= u <= 11: e = max(e, G2 + 36 * PB)
            if 12 <= u <= 15: e = max(e, G2 + 36 * PC)
            if u >= 16: e = max(e, G2 + 36 * PD)
            dl = G2 + 36 * u
            if u >= 16: dl = G2 + 36 * (u - OPT.get("hlead", 2))
            items.append((f"H{u}", h_ops(u), 4 * RATE, e, dl))
        clock = 32 if WQE else 80
        order = []
        rem = list(items)
        while rem:
            legal = [it for it in rem if it[3] <= clock]
            if not legal:
                clock = min(it[3] for it in rem); continue
            it = min(legal, key=lambda x: x[4])
            rem.remove(it)
            order.append((it, clock))
            if clock + it[2] > it[4] and not it[0].startswith("H1"): print(f"; plan: {it[0]} start {clock:.0f} end {clock+it[2]:.0f} deadline {it[4]} LATE", file=sys.stderr)
            clock += it[2]
        side.clock = 0
        def gate_of(name):
            u = int(name[1:]) if name != "WQ" else None
            if name == "WQ": return ["P3bar2" if WQE else "P3bar5"]
            if name[0] == "D" and G2X:
                if u <= 12: return [f"P3bar{dex[u]}"]
                if u <= 15: return ["PQbar17"]
                return [f"G2bar{G2BAR[0]}"]
            if name[0] == "D":
                if u < 8: return [{0: "P3bar8", 1: "P3bar8", 2: "P3bar11", 3: "P3bar14", 4: "P3bar17", 5: "P3bar17", 6: "PQbar17", 7: "PQbar17"}[u]]
                return [f"G2bar{min(k for k in G2BAR if k >= u - 8)}"]
            g = ["pollA" if u < 8 else "pollB" if u < 12 else "pollC" if u < 16 else "pollD"]
            g.append(f"PQdone{u}" if u <= 6 else f"G2done{u-7}")
            return g
        for it, c in order:
            gates = gate_of(it[0])
            ops = []
            for o in it[1]:
                if o[1] == 'v':
                    def w(E, f=o[0], gates=gates, nm=it[0]):
                        for g_ in gates: assert g_ in E.events, f"{nm} emitted before {g_}"
                        f(E)
                    ops.append((w, 'v'))
                else: ops.append(o)
            side.add_rated(ops, it[2], earliest=c)
    if FULL:
        E.wait(ds=0); ND(E)
        E.raw(f"s_add_u32 {s('so2')}, {s('hst')}, 0")
        G.full_pass(V_BUF[0], hstore_fn(0))
        st.flush(E)
        E.stamp("P1end")
    for p in ((2, 3) if (FULL or TH2) else (1, 2, 3)):
        line, ph = p >> 1, p & 1
        buf = V_BUF[p & 1]
        E.raw(f"s_add_u32 {s('so2')}, {s('hst')}, {(p - 1) * H_KS}")
        if not (TH2 and p == 2): G.full_pass(V_BUF[(p - 1) & 1], hstore_fn(p - 1))
        if p == 3:
            assert side.empty()
            side.m = 0
            plan_tail()
        for ks in range(NCOMB if p == 1 else 0, 18):
            par = (ks & 1) if p > 1 else ((p0_par + ks - NCOMB) & 1)
            bar = (ks % 3 == 2)
            tags = []
            if bar:
                if p == 1 and ks == 17: tags.append("W1_0")
                if p == 2 and ks < 17:
                    if opt.get("p2bar", 0):
                        if ks == 2: tags += ["W1_1", "W1_2"]
                        elif ks == 8: tags += ["W1_3", "W1_4", "W1_5"]
                        else: bar = False
                    else: tags.append(f"W1_{ks//3+1}")
                if p == 3 and ks == 17: tags.append("WQ")
                if p >= 2 and ks == 2: tags.append(f"HS{p-2}")
                if p == 2 and ks == 17: bar = False
            if p == 1 and ks == 14:
                NB(E)
            E.wait(vm=(tags if tags else None), ds=0, barrier=bar)
            if p == 3 and bar: E.events.add(f"P3bar{ks}")
            if p == 1 and ks == 14: NC(E)
            if p == 1 and ks == 15: ND(E)
            if bar:
                c = ks // 3
                if p >= 2 and ks == 2:
                    side.add_hi(publish_op(p - 1))
                    if opt.get("touch", 1):
                        if not TH2: side.add_hi(selftouch_op(p - 2))
                        elif p == 3: side.add_hi(selftouch_op(0)); side.add_hi(selftouch_op(1))
                    if TH2 and p == 2: side.add(l1_ops(3))
                if p == 1 and opt.get("l1late", 1) and ks == NCOMB + ((2 - NCOMB) % 3):
                    for c0 in range(0, c):
                        side.add(l1_ops(c0))
                if p == 1 and c >= l1_queued:
                    for kk in range(3 * c, 3 * c + 3):
                        a, b, d = w1_ops(1, kk)
                        side.add([(a, 's'), (b, 'v'), (d, 'v')])
            if (p, ks) == tuple(divmod(opt.get("twd", 212), 100)) and opt.get("touch", 1): side.add(touch_ops_wd())
            if p == 2 and ks == 9 and WQE: side.add(wq_ops(0, 4))
            if p == 3 and ks == 17 and WQE: E.raw(f"v_add_u32 v{V_AQ}, {SCRATCH}, v{V_AQ}")
            if p == 3 and ks == 15: side.add_hi(poll_issue("a"))
            if ks == 17 and p < 3: toggle_bases(E)
            if ks < 17: reads = areads_w1(ph, ks + 1, par=1 - par)
            elif p < 3: reads = areads_w1(1 - ph, 0, par=1 - par)
            else: reads = areads_q(0, 0)
            sg = SG
            if p == 3 and ks >= 5: sg = (8, 9, 11, 13, 15)
            kstep(E, st, side, gemm1_mf(buf, ks, ks == 0 and not (p == 1 and NCOMB > 0), par=par), reads, side_gaps=sg,
                  cap_extra=(1 if (p == 1 and NCOMB > 0 and st.pending_cost() > 19 * (17 - ks)) else 0))
        n = st.flush(E)
        if n: print(f"; note: pass {p}: GELU flush {n} gaps", file=sys.stderr)
        if p == 2: assert side.empty(), f"side not empty after pass {p}"
        E.stamp(f"P{p}end")
    E.raw(f"s_add_u32 {s('so2')}, {s('hst')}, {3 * H_KS}")
    G.full_pass(V_BUF[1], hstore_fn(3))
    bufq = V_BUF[0]
    for ks in range(18):
        bar = ks in (3, 17)
        tags = []
        if ks == 3: tags.append("HS2")
        if ks == 17: tags += (["D0", "D1", "D2"] if G2X else ["D0", "D1"] if opt.get("bar2", 1) else ["D0"])
        E.wait(vm=(tags if tags else None), ds=0, barrier=bar)
        if bar: E.events.add(f"PQbar{ks}")
        if ks >= 1: E.events.add(f"PQdone{ks-1}")
        if ks == 3:
            side.add_hi(publish_op(3))
            if opt.get("touch", 1): side.add_hi(selftouch_op(2))
        if ks == 1:
            poll_check(E, "a", 2); E.events.add("pollA")
        if ks == 7 and WQE: E.raw(f"v_subrev_u32 v{V_AQ}, {SCRATCH}, v{V_AQ}")
        mf = []
        for mat in range(2):
            a = vr(V_AR + 16 * (ks & 1) + 4 * mat)
            for tt in range(4):
                mf.append(mfma(bufq + mat * 16 + tt * 4, a, xreg(ks, tt), ks == 0))
        reads = areads_q(ks + 1, (ks + 1) & 1) if ks < 17 else areads_g2(0, 0, 0)
        kstep(E, st, side, mf, reads, side_gaps=(4, 5, 6, 7) if ks < 17 else (6, 7), cap_extra=opt.get("capq", 0))
    if opt.get("stop") == "g1":
        st.flush(E)
        G.quarter(bufq, hstoreq_fn)
        st.flush(E)
        side.q = []; side.hi = []
        E.wait_all()
        return finish(E)
    E.stamp("PQend")
    if opt.get("abl", "g2") == "g2": E.raw("; MARK_ABL")
    E.skew_on = True
    qadded = False
    sub_par = 0
    for t in range(18):
        for sub in range(3):
            tags = []
            bar = (sub == 2) and (t in G2BAR or t == PUB4 or t == PUB5)
            if sub == 0: tags.append(f"H{t}")
            if bar and t < 17 and not G2X and t in G2BAR:
                tags.append(f"D{t+1}")
                if opt.get("bar2", 1) and t + 2 < 18: tags.append(f"D{t+2}")
            if bar and G2X and t in G2BAR: tags += [f"D{u}" for u in range(t + 1, min(t + 4, 18))]
            pub = None
            if bar and t == PUB4: tags.append("HS3"); pub = 4
            if bar and t == PUB5: tags.append("HS4"); pub = 5
            E.wait(vm=(tags if tags else None), ds=0, barrier=bar)
            if bar: E.events.add(f"G2bar{t}")
            if sub == 0 and t >= 1: E.events.add(f"G2done{t-1}")
            if OPT.get("hchk") and sub == 0:
                for tt in range(4):
                    b = hreg(t, tt)
                    lab = E.label("hc")
                    E.raw(f"v_accvgpr_read_b32 v{V_T0}, a{b}\nv_accvgpr_read_b32 v{V_T1}, a{b+1}\nv_or_b32 v{V_T0}, v{V_T0}, v{V_T1}")
                    E.raw(f"v_accvgpr_read_b32 v{V_T1}, a{b+2}\nv_or_b32 v{V_T0}, v{V_T0}, v{V_T1}\nv_accvgpr_read_b32 v{V_T1}, a{b+3}\nv_or_b32 v{V_T0}, v{V_T0}, v{V_T1}")
                    E.raw(f"v_and_b32 v{V_T0}, 0x40004000, v{V_T0}\nv_cmp_ne_u32 vcc, 0, v{V_T0}\ns_nop 4\ns_cbranch_vccz {lab}")
                    E.raw(f"s_lshl_b32 {s('t0')}, s2, 2\ns_add_u32 {s('t0')}, {s('t0')}, {s('wave')}\ns_lshl_b32 {s('t0')}, {s('t0')}, 2\ns_add_u32 {s('t0')}, {s('t0')}, {61 << 20}")
                    E.raw(f"v_mov_b32 v{V_T1}, {t * 16 + tt + 1}\nv_mov_b32 v{V_T0}, 0")
                    E.raw(f"buffer_store_dword v{V_T1}, v{V_T0}, {srd(SRD_W)}, {s('t0')} offen\ns_waitcnt vmcnt(0)")
                    E.raw(f"{lab}:")
            if pub:
                side.add_hi(publish_op(pub))
                if pub == 4 and opt.get("touch", 1): side.add_hi(selftouch_op(3))
                if pub == 5 and opt.get("touchq", 0): side.add_hi(selftouchq_op())
            if sub == 0:
                if not qadded and st.pending() == 0:
                    G.quarter(bufq, hstoreq_fn); qadded = True
                if t == PB - 1: side.add_hi(poll_issue("b"))
                if t == PB: poll_check(E, "b", 3); E.events.add("pollB")
                if t == PC - 1: side.add_hi(poll_issue("c"))
                if t == PC: poll_check(E, "c", 4); E.events.add("pollC")
                if t == PD - 1: side.add_hi(poll_issue("d"))
                if t == PD: poll_check(E, "d", 5); E.events.add("pollD")
            mf = []
            for k in range(3):
                dt = 3 * sub + k
                a = vr(V_AR + 12 * sub_par + 4 * k)
                for tt in range(4):
                    mf.append(mfma(acc2(dt, tt), a, ar(hreg(t, tt)), t == 0, "a"))
            if sub < 2: reads = areads_g2(t, sub + 1, 1 - sub_par)
            elif t < 17: reads = areads_g2(t + 1, 0, 1 - sub_par)
            else: reads = []
            if t == 12 and sub == 0:
                prev = None
                for grp in (final8_setup() if G2X else final_setup(E)):
                    prev = st.add(grp, 2, [(prev, 1)] if prev else [])
            if t == 17 and sub >= 1 and G2X:
                final8_pack(st, range(12 * (sub - 1), 12 * sub))
                st.tick(); st.tick()
                E.raw("s_nop 3")
            if t == 17 and sub >= 1 and not G2X:
                for dt in range(3 * (sub - 1), 3 * sub):
                    for j in range(2):
                        st.add((lambda E, dt=dt, j=j: E.ds(f"ds_write_b128 v{V_RED}, {ar(acc2(dt, 2 + j))} offset:{(2*dt+j)*1024}")), 2, [])
                    for x in keep_reads(dt): st.add(x, 1, [])
                st.tick(); st.tick()
                E.raw("s_nop 3")
            kstep(E, st, side, mf, reads, side_gaps=(6, 7, 8, 9, 10, 11), cap_extra=(opt.get("capg", 1) if t < PUB5 else 0))
            if t == 17 and sub == 2: st.flush(E)
            sub_par = 1 - sub_par
        if E.stamp_sel is not None or t in (2, 5, 8, 11, 14, 17): E.stamp(f"G2t{t}")
        if t == PUB4 - 1:
            if E.vm.count("HS3") < 4: print(f"; note: flushing GELU(P3) at t={t}: {st.pending_cost()} slots", file=sys.stderr);
            while E.vm.count("HS3") < 4:
                st.tick(); E.raw("s_nop 0"); st.fill(E, 2)
        if t == PUB5 - 1:
            if not qadded:
                st.flush(E); G.quarter(bufq, hstoreq_fn); qadded = True
            if st.pending(): print(f"; note: flushing GELU(PQ) at t={t}: {st.pending_cost()} slots", file=sys.stderr)
            st.flush(E)
    assert side.empty(), "side ops left"
    E.raw("; MARK_END")
    E.skew_on = False
    if G2X: final8(E, st, opt)
    else: final(E, opt)
    return finish(E)

FIRST = [0, 5, 10, 14]
CNT = [5, 5, 4, 4]
RED = 73728
V_PUB2 = 2
KEEP = 128
RCV = 40

def final_setup(E):
    T0, T1 = V_T0, V_T1
    L = V_LANE
    G = []
    G.append(f"s_mul_i32 {s('t0')}, {s('wave')}, 18432\ns_add_u32 {s('t0')}, {s('t0')}, {RED}\nv_add_u32 v{V_RED}, {s('t0')}, v{V_L16}")
    G.append(f"s_xor_b32 {s('t1')}, {s('wave')}, 2\ns_mul_i32 {s('t1')}, {s('t1')}, 18432\ns_add_u32 {s('t1')}, {s('t1')}, {RED}\nv_add_u32 v{V_RED2}, {s('t1')}, v{V_L16}")
    G.append(f"s_lshl_b32 {s('t0')}, {s('mb')}, 3\ns_add_u32 {s('t0')}, {s('t0')}, {s('jj')}\ns_lshl_b32 {s('t0')}, {s('t0')}, 2\ns_add_u32 {s('t0')}, {s('t0')}, {s('wave')}\n"
             f"s_mul_i32 {s('t0')}, {s('t0')}, {16*5120}\ns_add_u32 {s('t0')}, {s('t0')}, {WS_P}\n"
             f"s_mul_i32 {s('t1')}, {s('sk')}, 5120\ns_add_u32 {s('pst')}, {s('t0')}, {s('t1')}\n"
             f"s_mul_i32 {s('t1')}, {s('sk')}, {4*5120}\ns_add_u32 {s('pld')}, {s('t0')}, {s('t1')}")
    G.append(f"s_lshl_b32 {s('t0')}, {s('mb')}, 8\ns_and_b32 {s('t1')}, {s('jj')}, 1\ns_lshl_b32 {s('t1')}, {s('t1')}, 7\ns_add_u32 {s('t0')}, {s('t0')}, {s('t1')}\n"
             f"s_lshl_b32 {s('t1')}, {s('th')}, 6\ns_add_u32 {s('t0')}, {s('t0')}, {s('t1')}\ns_lshl_b32 {s('t1')}, {s('kh')}, 5\ns_add_u32 {s('t0')}, {s('t0')}, {s('t1')}\n"
             f"s_mul_i32 {s('t0')}, {s('t0')}, {XROW}\ns_lshr_b32 {s('t1')}, {s('jj')}, 1\ns_mul_i32 {s('t1')}, {s('t1')}, 288\ns_add_u32 {s('outb')}, {s('t0')}, {s('t1')}")
    G.append(f"v_and_b32 v{T0}, 15, v{L}\nv_mul_u32_u24 v{T0}, {XROW}, v{T0}")
    G.append(f"v_lshrrev_b32 v{T1}, 4, v{L}\nv_lshl_add_u32 v{V_OUT}, v{T1}, 3, v{T0}")
    G.append(f"s_lshl_b32 {s('t0')}, {s('mb')}, 5\ns_add_u32 {s('t0')}, {s('t0')}, {s('jj')}\ns_lshl_b32 {s('t0')}, {s('t0')}, 2\ns_add_u32 {s('t0')}, {s('t0')}, {s('wave')}\n"
             f"s_lshl_b32 {s('t0')}, {s('t0')}, 7\ns_add_u32 {s('t0')}, {s('t0')}, {WS_F + 32768}\n"
             f"s_lshl_b32 {s('t1')}, {s('sk')}, 12\ns_add_u32 {s('pf2')}, {s('t0')}, {s('t1')}\n"
             f"v_min_u32 v{T0}, 3, v{L}\n"
             f"v_lshlrev_b32 v{T0}, 12, v{T0}\nv_add_u32 v{V_FO}, {s('t0')}, v{T0}")
    G.append(f"v_cmp_eq_u32 vcc, 0, v{L}\nv_mov_b32 v{T0}, {OOB}\nv_mov_b32 v{T1}, 0\ns_nop 0\nv_cndmask_b32 v{V_PUB2}, v{T0}, v{T1}, vcc")
    return G

def red_write(E, dt):
    for j in range(2):
        E.ds(f"ds_write_b128 v{V_RED}, {ar(acc2(dt, 2 + j))} offset:{(2*dt+j)*1024}")
def keep_reads(dt):
    return [f"v_accvgpr_read_b32 v{KEEP + (2*dt+j)*4 + r}, a{acc2(dt, j) + r}" for j in range(2) for r in range(4)]

def final(E, opt):
    R = E.raw
    R("s_nop 7")
    for dt in (6, 7, 8):
        red_write(E, dt)
        for x in keep_reads(dt): R(x)
    E.wait(ds=0, barrier=True)
    for ph in range(18):
        E.ds(f"ds_read_b128 {vr(RCV + 4*ph)}, v{V_RED2} offset:{ph*1024}")
    base_vm = list(E.vm); base_done = E.vm_done; base_ds = E.ds_out
    labs = [E.label(f"fin{k}") for k in range(4)]
    end = E.label("finend")
    R(f"s_cmp_eq_u32 {s('sk')}, 1\ns_cbranch_scc1 {labs[1]}\ns_cmp_eq_u32 {s('sk')}, 2\ns_cbranch_scc1 {labs[2]}\ns_cmp_eq_u32 {s('sk')}, 3\ns_cbranch_scc1 {labs[3]}")
    for sv in range(4):
        E.vm = list(base_vm); E.vm_done = base_done; E.ds_out = base_ds
        R(f"{labs[sv]}:")
        own = list(range(FIRST[sv], FIRST[sv] + CNT[sv]))
        XBF = OPT.get("xbf", 1)
        order = [ph for ph in range(18) if ph not in own] + own
        done_ds = -1
        for n, ph in enumerate(order):
            need = ph
            if need > done_ds:
                left = 17 - need
                E.wait(ds=min(left, E.ds_out))
                done_ds = need
            for r in range(4):
                R(f"v_add_f32 v{KEEP + 4*ph + r}, v{KEEP + 4*ph + r}, v{RCV + 4*ph + r}")
            if ph not in own:
                dest = max(d for d in range(4) if FIRST[d] <= ph)
                sig = ph - FIRST[dest]
                if not XBF:
                    R(f"s_add_u32 {s('so')}, {s('pst')}, {dest*4*5120 + sig*1024}")
                    E.vmem(f"buffer_store_dwordx4 {vr(KEEP + 4*ph)}, v{V_L16}, {srd(SRD_W)}, {s('so')} offen sc1", "PSx")
                else:
                    pb = RCV + 4 * (ph - (sig & 1)) + 2 * (sig & 1)
                    R(f"v_cvt_pk_bf16_f32 v{pb}, v{KEEP+4*ph}, v{KEEP+4*ph+1}")
                    R(f"v_cvt_pk_bf16_f32 v{pb+1}, v{KEEP+4*ph+2}, v{KEEP+4*ph+3}")
                    lastsig = CNT[dest] - 1
                    if (sig & 1) == 1 or sig == lastsig:
                        base = RCV + 4 * (ph - (sig & 1))
                        R(f"s_add_u32 {s('so')}, {s('pst')}, {dest*4*5120 + (sig >> 1)*1024}")
                        E.vmem(f"buffer_store_dwordx4 {vr(base)}, v{V_L16}, {srd(SRD_W)}, {s('so')} offen sc1", "PSx")
        E.stamp("F_red")
        R("s_waitcnt vmcnt(0)")
        E.vm_done = len(E.vm)
        E.stamp("F_ps")
        publish_op(6, V_PUB2, "pf2")(E)
        poll_check(E, "f", 6, voff=V_FO, issued=False)
        E.vm_done = len(E.vm)
        E.stamp("F_poll")
        srcs = [k for k in range(4) if k != sv]
        LD = RCV
        if not XBF:
            for sig in range(CNT[sv]):
                for n, src in enumerate(srcs):
                    R(f"s_add_u32 {s('so')}, {s('pld')}, {src*5120 + sig*1024}")
                    E.vmem(f"buffer_load_dwordx4 {vr(LD + (sig*3+n)*4)}, v{V_L16}, {srd(SRD_W)}, {s('so')} offen sc1", f"PL{sig}" if n == 2 else "PLx")
        else:
            npair = (CNT[sv] + 1) // 2
            for k in range(npair):
                for n, src in enumerate(srcs):
                    R(f"s_add_u32 {s('so')}, {s('pld')}, {src*5120 + k*1024}")
                    E.vmem(f"buffer_load_dwordx4 {vr(LD + (k*3+n)*4)}, v{V_L16}, {srd(SRD_W)}, {s('so')} offen sc1", f"PL{k}" if n == 2 else "PLx")
        for sig in range(CNT[sv]):
            ph = FIRST[sv] + sig
            dt, j = ph >> 1, ph & 1
            R(f"s_add_u32 {s('so')}, {s('outb')}, {dt*32 + j*16*XROW}")
            b = KEEP + 4 * ph
            if not XBF:
                E.wait(vm=f"PL{sig}")
                for r in range(4):
                    a = [LD + (sig*3+n)*4 + r for n in range(3)]
                    R(f"v_add_f32 v{a[0]}, v{a[0]}, v{a[1]}")
                    R(f"v_add_f32 v{b+r}, v{b+r}, v{a[2]}")
                    R(f"v_add_f32 v{b+r}, v{b+r}, v{a[0]}")
            else:
                E.wait(vm=f"PL{sig >> 1}")
                TMP = 100
                for n in range(3):
                    for h in range(2):
                        src_r = LD + ((sig >> 1)*3+n)*4 + 2*(sig & 1) + h
                        R(f"v_lshlrev_b32 v{TMP}, 16, v{src_r}")
                        R(f"v_and_b32 v{TMP+1}, 0xffff0000, v{src_r}")
                        R(f"v_add_f32 v{b+2*h}, v{b+2*h}, v{TMP}")
                        R(f"v_add_f32 v{b+2*h+1}, v{b+2*h+1}, v{TMP+1}")
            R(f"v_cvt_pk_bf16_f32 v{b}, v{b}, v{b+1}")
            R(f"v_cvt_pk_bf16_f32 v{b+1}, v{b+2}, v{b+3}")
            E.vmem(f"buffer_store_dwordx2 {vr(b, 2)}, v{V_OUT}, {srd(SRD_O)}, {s('so')} offen{' sc1' if OPT.get('outsc1', 0) else ''}", "OUT")
        if sv < 3: R(f"s_branch {end}")
    R(f"{end}:")

FIRST8 = [0, 5, 10, 15, 20, 24, 28, 32]
CNT8 = [5, 5, 5, 5, 4, 4, 4, 4]
PK8 = 128
P8_SLOT = 3072
def final8_setup():
    T0, T1 = V_T0, V_T1
    L = V_LANE
    G = []
    G.append(f"s_lshl_b32 {s('phi0')}, {s('sk')}, 1\ns_add_u32 {s('phi0')}, {s('phi0')}, {s('t5')}\n"
             f"s_and_b32 {s('t1')}, {s('jj')}, 3\ns_lshl_b32 {s('t0')}, {s('mb')}, 2\ns_add_u32 {s('t0')}, {s('t0')}, {s('t1')}\n"
             f"s_lshl_b32 {s('pf2')}, {s('t0')}, 3\n"
             f"s_lshl_b32 {s('t0')}, {s('t0')}, 2\ns_add_u32 {s('t0')}, {s('t0')}, {s('wave')}\ns_mul_i32 {s('t0')}, {s('t0')}, {64*P8_SLOT}\ns_add_u32 {s('t0')}, {s('t0')}, {WS_P}\n"
             f"s_mul_i32 {s('t1')}, {s('phi0')}, {P8_SLOT}\ns_add_u32 {s('pst')}, {s('t0')}, {s('t1')}\n"
             f"s_mul_i32 {s('t1')}, {s('phi0')}, {8*P8_SLOT}\ns_add_u32 {s('pld')}, {s('t0')}, {s('t1')}")
    G.append(f"s_lshl_b32 {s('t0')}, {s('pf2')}, 2\ns_add_u32 {s('t0')}, {s('t0')}, {s('wave')}\ns_lshl_b32 {s('t0')}, {s('t0')}, 7\ns_add_u32 {s('t0')}, {s('t0')}, {WS_F + 32768}\n"
             f"s_lshl_b32 {s('t1')}, {s('phi0')}, 9\ns_add_u32 {s('pf2')}, {s('t0')}, {s('t1')}\n"
             f"v_min_u32 v{T0}, 7, v{L}\nv_lshlrev_b32 v{T0}, 9, v{T0}\nv_add_u32 v{V_FO}, {s('t0')}, v{T0}")
    G.append(f"s_lshl_b32 {s('t0')}, {s('mb')}, 2\ns_add_u32 {s('t0')}, {s('t0')}, {s('wave')}\ns_mul_i32 {s('t0')}, {s('t0')}, {64*XROW}\n"
             f"s_and_b32 {s('t1')}, {s('jj')}, 3\ns_mul_i32 {s('t1')}, {s('t1')}, 288\ns_add_u32 {s('outb')}, {s('t0')}, {s('t1')}")
    G.append(f"v_and_b32 v{T0}, 15, v{L}\nv_mul_u32_u24 v{T0}, {XROW}, v{T0}")
    G.append(f"v_lshrrev_b32 v{T1}, 4, v{L}\nv_lshl_add_u32 v{V_OUT}, v{T1}, 3, v{T0}")
    G.append(f"v_cmp_eq_u32 vcc, 0, v{L}\nv_mov_b32 v{T0}, {OOB}\nv_mov_b32 v{T1}, 0\ns_nop 0\nv_cndmask_b32 v{V_PUB2}, v{T0}, v{T1}, vcc")
    G.append(f"s_mul_i32 {s('t0')}, {s('phi0')}, 5\ns_lshl_b32 {s('t1')}, {s('phi0')}, 2\ns_add_u32 {s('t1')}, {s('t1')}, 4\ns_cmp_lt_u32 {s('phi0')}, 4\n"
             f"s_cselect_b32 {s('phi0')}, {s('t0')}, {s('t1')}\ns_cselect_b32 {s('hldB')}, 5, 4")
    return G

def store_index8(ph):
    dest = max(d for d in range(8) if FIRST8[d] <= ph)
    sig = ph - FIRST8[dest]
    idx = sum((CNT8[d] + 1) // 2 for d in range(dest)) + (sig >> 1)
    return dest, sig, idx

_pk8_items = {}
def final8_pack(st, phis):
    for ph in phis:
        dt, tt = ph >> 2, ph & 3
        dest, sig, idx = store_index8(ph)
        a = acc2(dt, tt)
        tmp = 40 + 4 * (ph % 4)
        prev = _pk8_items.get(("tmp", ph % 4))
        rds = [st.add(f"v_accvgpr_read_b32 v{tmp+r}, a{a+r}", 1, [(prev, 0)] if prev else []) for r in range(4)]
        d = PK8 + 4 * idx + 2 * (sig & 1)
        c0 = st.add(f"v_cvt_pk_bf16_f32 v{d}, v{tmp}, v{tmp+1}", 1, [(rds[0], 0), (rds[1], 0)])
        c1 = st.add(f"v_cvt_pk_bf16_f32 v{d+1}, v{tmp+2}, v{tmp+3}", 1, [(rds[2], 0), (rds[3], 0)])
        _pk8_items[("tmp", ph % 4)] = c1
        _pk8_items[("c", ph)] = (c0, c1)
        if (sig & 1) == 1 or sig == CNT8[dest] - 1:
            deps = [(c0, 1), (c1, 1)]
            if sig & 1: deps += [(x, 1) for x in _pk8_items[("c", ph - 1)]]
            def f(E, dest=dest, sig=sig, idx=idx):
                E.raw(f"s_add_u32 {s('so')}, {s('pst')}, {dest*8*P8_SLOT + (sig >> 1)*1024}")
                E.vmem(f"buffer_store_dwordx4 {vr(PK8 + 4*idx)}, v{V_L16}, {srd(SRD_W)}, {s('so')} offen sc1", "PSx")
            st.add(f, 2, deps)

def final8(E, st, opt):
    R = E.raw
    R("s_nop 7")
    final8_pack(st, range(24, 36))
    while st.pending():
        st.tick(); n = st.fill(E, 6)
        if n == 0: R("s_nop 0")
    _pk8_items.clear()
    E.stamp("F_red")
    R("s_waitcnt vmcnt(0)")
    E.vm_done = len(E.vm)
    E.stamp("F_ps")
    publish_op(6, V_PUB2, "pf2")(E)
    poll_check(E, "f", 6, voff=V_FO, issued=False)
    E.vm_done = len(E.vm)
    E.stamp("F_poll")
    LD = 32
    for k in range(3):
        for src in range(8):
            R(f"s_add_u32 {s('so')}, {s('pld')}, {src*P8_SLOT + k*1024}")
            E.vmem(f"buffer_load_dwordx4 {vr(LD + (src*3+k)*4)}, v{V_L16}, {srd(SRD_W)}, {s('so')} offen sc1", f"PL{k}" if src == 7 else "PLx")
    ACC = 128; TMP = 160
    for sig in range(5):
        k, hf = sig >> 1, sig & 1
        R(f"s_add_u32 {s('t0')}, {s('phi0')}, {sig}\ns_lshr_b32 {s('t1')}, {s('t0')}, 2\ns_lshl_b32 {s('t1')}, {s('t1')}, 5\ns_and_b32 {s('t0')}, {s('t0')}, 3\ns_mul_i32 {s('t0')}, {s('t0')}, {16*XROW}")
        R(f"s_add_u32 {s('so')}, {s('outb')}, {s('t1')}\ns_add_u32 {s('so')}, {s('so')}, {s('t0')}")
        if sig == 4: R(f"s_cmp_lt_u32 4, {s('hldB')}\ns_cselect_b32 {s('so')}, {s('so')}, {OOB}")
        E.wait(vm=f"PL{k}")
        b = ACC + 4 * sig
        for src in range(8):
            r0 = LD + (src*3+k)*4 + 2*hf
            for h in range(2):
                if src == 0:
                    R(f"v_lshlrev_b32 v{b+2*h}, 16, v{r0+h}")
                    R(f"v_and_b32 v{b+2*h+1}, 0xffff0000, v{r0+h}")
                else:
                    tm = TMP + 2 * ((src + h) % 4)
                    R(f"v_lshlrev_b32 v{tm}, 16, v{r0+h}")
                    R(f"v_and_b32 v{tm+1}, 0xffff0000, v{r0+h}")
                    R(f"v_add_f32 v{b+2*h}, v{b+2*h}, v{tm}")
                    R(f"v_add_f32 v{b+2*h+1}, v{b+2*h+1}, v{tm+1}")
        R(f"v_cvt_pk_bf16_f32 v{b}, v{b}, v{b+1}")
        R(f"v_cvt_pk_bf16_f32 v{b+1}, v{b+2}, v{b+3}")
        E.vmem(f"buffer_store_dwordx2 {vr(b, 2)}, v{V_OUT}, {srd(SRD_O)}, {s('so')} offen", "OUT")

def ablate(E):
    if not any(OPT.get(k) for k in ("x_nobar", "x_novm", "x_nogelu", "x_nods", "x_nowait", "x_nod", "x_noh", "x_novmw")): return
    out = []; on = False
    for l in E.L:
        if l.startswith("; MARK_ABL"): on = True
        if l.startswith("; MARK_END"): on = False
        if on:
            if OPT.get("x_nobar") and l.startswith("s_barrier"): continue
            if OPT.get("x_novm") and l.startswith("buffer_"): continue
            if OPT.get("x_novm") and l.startswith("s_waitcnt vmcnt"):
                l = re.sub(r"vmcnt\(\d+\) ?", "", l)
                if l.strip() == "s_waitcnt": continue
            if OPT.get("x_nod") and l.startswith("buffer_load_dwordx4 v") and l.endswith("lds"): continue
            if OPT.get("x_noh") and l.startswith("buffer_load_dwordx") and " a[" in l: continue
            if OPT.get("x_novmw") and l.startswith("s_waitcnt vmcnt"):
                l = re.sub(r"vmcnt\(\d+\) ?", "", l)
                if l.strip() == "s_waitcnt": continue
            if OPT.get("x_nogelu") and re.match(r"v_(mul_f32|fma_f32|exp_f32|rcp_f32|add_f32|cvt_pk)", l): continue
            if OPT.get("x_nods") and l.startswith("ds_read"): continue
        out.append(l)
    E.L = out

def finish(E):
    ablate(E)
    if E.do_stamp:
        E.raw("s_waitcnt vmcnt(0)")
        E.stamp("end")
        E.raw(f"s_lshl_b32 {s('t0')}, s2, 2\ns_add_u32 {s('t0')}, {s('t0')}, {s('wave')}\ns_lshl_b32 {s('t0')}, {s('t0')}, 7\ns_add_u32 {s('t0')}, {s('t0')}, {60 << 20}")
        E.raw(f"v_mov_b32 v{V_T1}, 0")
        for i in range(len(E.stamps)):
            E.raw(f"v_mov_b32 v{V_T0}, s{86+i}")
            E.raw(f"buffer_store_dword v{V_T0}, v{V_T1}, {srd(SRD_W)}, {s('t0')} offen offset:{4*i}")
        E.raw("s_waitcnt vmcnt(0)")
        print("STAMPS=" + ",".join(E.stamps), file=sys.stderr)
    E.raw("L_end:")
    E.raw("s_endpgm")
    for x in E.slow: E.raw(x)
    E.raw("s_endpgm")
    E.raw("L_codeend:")
    return E

def emit_file(opt):
    E = build(opt)
    hdr = open("standalone__glu_gated_geglu__prompt.s.ref").read().split("\n") if opt.get("hdr", True) else []
    out = []
    for l in hdr:
        if l.startswith("; @launch") or l.startswith("; Override") or l.startswith("; grid=") : continue
        if l.startswith(";"): out.append(l)
        else: break
    out.append(f"; @launch grid=(256,1,1) block=(256,1,1) lds={LDS_BYTES}")
    out.append('.amdgcn_target "amdgcn-amd-amdhsa--gfx950"')
    out.append(".text")
    out.append(f".globl {KNAME}")
    out.append(".p2align 8")
    out.append(f".type {KNAME},@function")
    out.append(f"{KNAME}:")
    out += E.L
    out.append(".fill 64, 4, 0xbf800000")
    out.append('.section .rodata,"a"')
    out.append(".p2align 6")
    out.append(f".amdhsa_kernel {KNAME}")
    out += ["  .amdhsa_next_free_vgpr 512", "  .amdhsa_next_free_sgpr 102", "  .amdhsa_accum_offset 256",
            "  .amdhsa_group_segment_fixed_size 0", "  .amdhsa_kernarg_size 56", "  .amdhsa_user_sgpr_count 2",
            "  .amdhsa_user_sgpr_kernarg_segment_ptr 1", "  .amdhsa_system_sgpr_workgroup_id_x 1",
            "  .amdhsa_float_denorm_mode_32 3",
            ".end_amdhsa_kernel"]
    return "\n".join(out) + "\n"

if __name__ == "__main__":
    opt = {}
    path = sys.argv[1] if len(sys.argv) > 1 else "k.s"
    for a in sys.argv[2:]:
        k, v = a.split("=")
        opt[k] = int(v) if v.lstrip("-").isdigit() else v
    open(path, "w").write(emit_file(opt))
```

```python
import sys, struct, re

KNAME = "standalone__glu_gated_geglu__prompt_kernel"
HSC = " sc1"
WQE = True
G2X = False
OPT = {}

DM, DF, NTOK = 576, 4608, 2048
XROW = DM * 2
WROW = DF * 2
LDS_BYTES = 163840
W1_KS = 8192
XST = 98304
WD_SLOT = 18432
SCRATCH = 147456
H_KS = 4096
WS_P = 32 << 20
WS_F = 56 << 20
WS_SIZE = 64 << 20
OOB = 0x40000000
GA = -2.0 * 0.7978845608028654 * 1.4426950408889634
GB = GA * 0.044715
SPIN_MAX = 400000

def f2u(x): return struct.unpack('<I', struct.pack('<f', x))[0]

S = {}
SRD_X, SRD_G, SRD_U, SRD_D, SRD_W, SRD_O, SRD_F, SRD_Q = 8, 12, 16, 20, 24, 28, 32, 36
def srd(b): return f"s[{b}:{b+3}]"
_n = 40
for nm in ["wave", "mb", "sk", "jj", "cu", "th", "kh", "xoff", "w1col", "wqcol", "hst", "hstq", "hldA", "hldB", "hlqA", "hlqB",
           "wd0", "wdq", "flagh", "t0", "t1", "t2", "t3", "t4", "t5", "m0w", "m0x", "m0q", "m0d", "m0d5", "kb", "pst", "pld",
           "outb", "spin", "phi0", "so", "so2", "pf", "tA", "tB", "pf2", "nonce"]:
    S[nm] = _n; _n += 1
assert _n <= 100
def s(n): return f"s{S[n]}"

V_LANE = 1
V_W1 = 2
V_WQ = 3
V_A = 4
V_AQ = 10
V_L16 = 11
V_L8 = 12
V_KA = 13
V_PUB = 14
V_ONE = 15
V_FL = 16
V_T0 = 17; V_T1 = 18; V_T2 = 19; V_T3 = 20
V_X = 21
V_XR = 25
V_WD = 27
V_HS = 32
V_GT = 40
N_GSET = 4
V_T128 = 56; V_T128H = 57; V_T128B = 58
V_TROW = 40; V_TROWB = 41; V_TROWQ = 42
V_PUBD = 43; V_NA = 44; V_NB = 45
V_FH = 59
V_A2 = 60
V_Z = 63
V_XO = 64
V_AR = 96
V_BUF = [128, 192]
V_FO = 21; V_OUT = 22; V_RED = 23; V_RED2 = 24

def xreg(ks, tt):
    i = ks * 4 + tt
    if i < 64: return f"a[{4*i}:{4*i+3}]"
    b = V_XO + 4 * (i - 64)
    return f"v[{b}:{b+3}]"
def hreg(t, tt):
    b = 16 * (t % 7) + 4 * tt
    return b
def acc2(dt, tt):
    b = 112 + 16 * dt + 4 * tt
    return b

def expected_count(tag):
    if tag.startswith("POLL") or tag.startswith("PUB"): return 1
    if tag == "WQ": return 9
    if tag == "NONCE": return 1
    if tag == "TCH": return -1
    if tag == "PS": return 18
    if tag in ("PSx", "PLx", "OUT"): return -1
    if tag.startswith("PL"): return 1
    if tag.startswith("HS"): return 4
    if tag[0] == "X": return 4
    if tag[0] == "W": return 6
    if tag[0] == "D": return 3 if G2X else 5
    if tag[0] == "H": return 4 if int(tag[1:]) < 16 else 8
    raise KeyError(tag)

class Emit:
    def __init__(self):
        self.L = []
        self.vm = []
        self.vm_done = 0
        self.dsq = []
        self.ds_done = 0
        self.slow = []
        self.nlab = 0
        self.do_stamp = False
        self.events = set()
        self.skew_on = False
        self.stamps = []
        self.stamp_sel = None
    def raw(self, t):
        for x in t.split("\n"):
            self.L.append(x)
    def vmem(self, text, tag):
        self.L.append(text)
        self.vm.append(tag)
    @property
    def ds_out(self): return len(self.dsq) - self.ds_done
    @ds_out.setter
    def ds_out(self, n):
        if n == 0: self.ds_done = len(self.dsq)
        elif n < self.ds_out: self.ds_done = len(self.dsq) - n
        else:
            self.ds_done = len(self.dsq) - n
    def ds(self, text, tag=None):
        if self.ds_out >= 15:
            self.L.append("s_waitcnt lgkmcnt(10)")
            self.ds_out = 10
        self.L.append(text)
        self.dsq.append(tag)
    def wait_dstag(self, tag):
        idx = max(i for i, t in enumerate(self.dsq) if t == tag)
        if idx < self.ds_done: return
        n = min(len(self.dsq) - 1 - idx, 15)
        self.L.append(f"s_waitcnt lgkmcnt({n})")
        self.ds_done = len(self.dsq) - n
    def _vmN(self, tags):
        idx = -1
        for tg in tags:
            exp = expected_count(tg)
            got = self.vm.count(tg)
            if exp < 0: continue
            assert got == exp, f"wait on {tg}: {got} ops issued, expected {exp}"
        for i, t in enumerate(self.vm):
            if t in tags: idx = i
        assert idx >= 0, f"no vmem op with tags {tags}"
        if idx < self.vm_done: return None
        return min(len(self.vm) - 1 - idx, 63)
    def wait(self, vm=None, ds=None, barrier=False):
        parts = []
        if vm is not None:
            if isinstance(vm, str): vm = [vm]
            n = self._vmN(set(vm))
            if n is not None:
                parts.append(f"vmcnt({n})")
                self.vm_done = max(self.vm_done, len(self.vm) - n)
        if ds is not None and self.ds_out > ds:
            parts.append(f"lgkmcnt({ds})")
            self.ds_out = ds
        if parts:
            self.L.append("s_waitcnt " + " ".join(parts))
        if barrier:
            self.L.append("s_barrier")
            if OPT.get("skew") and self.skew_on:
                for k in range(1, 4):
                    lab = self.label("sk")
                    self.L.append(f"s_cmp_ge_u32 {s('wave')}, {k}")
                    self.L.append(f"s_cbranch_scc0 {lab}")
                    self.L.append(f"s_nop {OPT['skew']}")
                    self.L.append(f"{lab}:")
    def wait_all(self):
        self.L.append("s_waitcnt vmcnt(0) lgkmcnt(0)")
        self.vm_done = len(self.vm); self.ds_out = 0
    def assert_done(self, tag):
        found = False
        for i, t in enumerate(self.vm):
            if t == tag:
                found = True
                assert i < self.vm_done, f"tag {tag} not complete"
        assert found, f"tag {tag} never issued"
    def issued(self, tag):
        return tag in self.vm
    def stamp(self, name):
        if not self.do_stamp: return
        if self.stamp_sel is not None and name not in self.stamp_sel and name not in ("start", "end"): return
        if name in self.stamps: idx = self.stamps.index(name)
        else:
            idx = len(self.stamps)
            assert idx < 16
            self.stamps.append(name)
        self.L.append("s_memtime s[84:85]" if OPT.get("cyc") else "s_memrealtime s[84:85]")
        self.L.append("s_waitcnt lgkmcnt(0)")
        self.ds_out = 0
        self.L.append(f"s_mov_b32 s{86+idx}, s84")
    def label(self, base):
        self.nlab += 1
        return f"L_{base}_{self.nlab}"

class Item:
    def __init__(self, text, cost, deps=()):
        self.text = text; self.cost = cost; self.deps = list(deps); self.placed = None

class Stream:
    def __init__(self):
        self.items = []; self.head = 0; self.gap = 0
    def add(self, text, cost, deps=()):
        it = Item(text, cost, deps); self.items.append(it); return it
    def pending(self):
        return sum(1 for it in self.items[self.head:] if it.placed is None)
    def pending_cost(self):
        return sum(it.cost for it in self.items[self.head:] if it.placed is None)
    def tick(self):
        self.gap += 1
    def fill(self, E, cap, window=48):
        used = 0
        while used < cap:
            while self.head < len(self.items) and self.items[self.head].placed is not None:
                self.head += 1
            pick = None
            for it in self.items[self.head:self.head + window]:
                if it.placed is not None or it.cost > cap - used: continue
                if all(d.placed is not None and self.gap >= d.placed + delta for d, delta in it.deps):
                    pick = it; break
            if pick is None: break
            pick.placed = self.gap
            if callable(pick.text): pick.text(E)
            else: E.raw(pick.text)
            used += pick.cost
        return used
    def flush(self, E):
        n = 0
        while self.pending():
            self.tick()
            E.raw("s_nop 0")
            self.fill(E, 4)
            n += 1
        return n

class Gelu:
    def __init__(self, st):
        self.st = st
        self.pairno = 0
        self.set_last = [None] * N_GSET
        self.nset = N_GSET
        self.stg = 0
        self.stg_last = [None, None]
    def pair(self, g0, u0, g1, u1, dst):
        st = self.st
        k = self.pairno % self.nset; self.pairno += 1
        T0, T1, G0, G1 = [V_GT + 4 * k + i for i in range(4)]
        prev = [(self.set_last[k], 0)] if self.set_last[k] is not None else []
        sprev = dst[1]
        a0 = st.add(f"v_mul_f32 v{T0}, v{g0}, v{g0}", 1, prev)
        a1 = st.add(f"v_mul_f32 v{T1}, v{g1}, v{g1}", 1, prev)
        b0 = st.add(f"v_fma_f32 v{T0}, v{T0}, {s('kb')}, v{V_KA}", 1, [(a0, 0)])
        b1 = st.add(f"v_fma_f32 v{T1}, v{T1}, {s('kb')}, v{V_KA}", 1, [(a1, 0)])
        c0 = st.add(f"v_mul_f32 v{T0}, v{T0}, v{g0}", 1, [(b0, 0)])
        c1 = st.add(f"v_mul_f32 v{T1}, v{T1}, v{g1}", 1, [(b1, 0)])
        e0 = st.add(f"v_exp_f32 v{T0}, v{T0}", 2, [(c0, 0)])
        e1 = st.add(f"v_exp_f32 v{T1}, v{T1}", 2, [(c1, 0)])
        m0 = st.add(f"v_mul_f32 v{G0}, v{g0}, v{u0}", 1, prev)
        m1 = st.add(f"v_mul_f32 v{G1}, v{g1}, v{u1}", 1, prev)
        d0 = st.add(f"v_add_f32 v{T0}, 1.0, v{T0}", 1, [(e0, 1)])
        d1 = st.add(f"v_add_f32 v{T1}, 1.0, v{T1}", 1, [(e1, 1)])
        r0 = st.add(f"v_rcp_f32 v{T0}, v{T0}", 2, [(d0, 0)])
        r1 = st.add(f"v_rcp_f32 v{T1}, v{T1}", 2, [(d1, 0)])
        h0 = st.add(f"v_mul_f32 v{G0}, v{G0}, v{T0}", 1, [(r0, 1), (m0, 0)])
        h1 = st.add(f"v_mul_f32 v{G1}, v{G1}, v{T1}", 1, [(r1, 1), (m1, 0)])
        pk = st.add(f"v_cvt_pk_bf16_f32 v{dst[0]}, v{G0}, v{G1}", 1, [(h0, 0), (h1, 0)] + ([(sprev, 2)] if sprev is not None else []))
        self.set_last[k] = pk
        return pk
    def full_pass(self, buf, store_fn):
        last = None
        for tt in range(4):
            sg = self.stg % 2; self.stg += 1
            base = V_HS + 4 * sg
            pks = []
            for grp in range(2):
                for hp in range(2):
                    g = buf + (grp * 2 + 0) * 16 + tt * 4 + 2 * hp
                    u = buf + (grp * 2 + 1) * 16 + tt * 4 + 2 * hp
                    pks.append(self.pair(g, u, g + 1, u + 1, (base + grp * 2 + hp, self.stg_last[sg])))
            stt = self.st.add((lambda E, tt=tt, base=base: store_fn(E, tt, base)), 2, [(p, 1) for p in pks])
            self.stg_last[sg] = stt
            last = stt
        return last
    def half_pass(self, buf, half, store_fn):
        for pp in range(2):
            for tq in range(2):
                sg = self.stg % 2; self.stg += 1
                base = V_HS + 4 * sg
                pks = []
                for grp in range(2):
                    g_ = 2 * pp + grp
                    for hp in range(2):
                        g = buf + ((g_ * 2 + 0) * 2 + tq) * 4 + 2 * hp
                        u = buf + ((g_ * 2 + 1) * 2 + tq) * 4 + 2 * hp
                        pks.append(self.pair(g, u, g + 1, u + 1, (base + grp * 2 + hp, self.stg_last[sg])))
                stt = self.st.add((lambda E, pp=pp, tt=2 * half + tq, base=base: store_fn(E, pp, tt, base)), 2, [(p, 1) for p in pks])
                self.stg_last[sg] = stt
    def quarter(self, buf, store_fn):
        last = None
        for tt in range(4):
            sg = self.stg % 2; self.stg += 1
            base = V_HS + 4 * sg
            pks = []
            for hp in range(2):
                g = buf + tt * 4 + 2 * hp
                u = buf + 16 + tt * 4 + 2 * hp
                pks.append(self.pair(g, u, g + 1, u + 1, (base + hp, self.stg_last[sg])))
            stt = self.st.add((lambda E, tt=tt, base=base: store_fn(E, tt, base)), 2, [(p, 1) for p in pks])
            self.stg_last[sg] = stt
            last = stt
        return last

def mfma(d, a, b, first, dpre="v"):
    c = "0" if first else f"{dpre}[{d}:{d+3}]"
    return f"v_mfma_f32_16x16x32_bf16 {dpre}[{d}:{d+3}], {a}, {b}, {c}"

def vr(b, n=4): return f"v[{b}:{b+n-1}]"
def ar(b, n=4): return f"a[{b}:{b+n-1}]"

def prologue(E, opt):
    R = E.raw
    L = V_LANE
    T0, T1, T2, T3 = V_T0, V_T1, V_T2, V_T3
    R("s_cmp_ge_u32 s2, 256")
    R("s_cbranch_scc1 L_end")
    R("s_load_dwordx4 s[4:7], s[0:1], 0")
    R("s_load_dwordx4 s[16:19], s[0:1], 16")
    R("s_load_dwordx4 s[28:31], s[0:1], 32")
    R("s_load_dwordx2 s[24:25], s[0:1], 48")
    R("s_memrealtime s[84:85]")
    R(f"v_and_b32 v{L}, 63, v0")
    R(f"v_lshrrev_b32 v{T0}, 6, v0")
    R(f"v_cmp_eq_u32 vcc, 0, v0")
    R(f"v_readfirstlane_b32 {s('wave')}, v{T0}")
    R(f"v_mov_b32 v{T0}, {OOB}")
    R(f"v_mov_b32 v{T1}, 0")
    R(f"v_lshlrev_b32 v{V_T128}, 7, v{L}")
    R(f"v_cndmask_b32 v{V_PUB}, v{T0}, v{T1}, vcc")
    if opt.get("tcode", 1):
        R(f"s_getpc_b64 s[36:37]")
        R(f"L_pc:")
        R(f"s_sub_u32 s36, s36, L_pc-{KNAME}\ns_subb_u32 s37, s37, 0")
        R(f"s_mov_b32 s38, L_codeend-{KNAME}\ns_mov_b32 s39, 0x20000")
        R(f"s_lshr_b32 {s('t0')}, s2, 1\ns_and_b32 {s('t0')}, {s('t0')}, 4\ns_add_u32 {s('t0')}, {s('t0')}, {s('wave')}\ns_lshl_b32 {s('t0')}, {s('t0')}, 13")
        E.vmem(f"buffer_load_dword v{V_DUM}, v{V_T128}, s[36:39], {s('t0')} offen", "TCH")
    R(f"s_and_b32 {s('sk')}, s2, 3")
    R(f"s_lshr_b32 {s('t0')}, s2, 2\ns_and_b32 {s('t0')}, {s('t0')}, 1")
    R(f"s_lshr_b32 {s('t1')}, s2, 3")
    R(f"s_and_b32 {s('jj')}, {s('t1')}, 7")
    R(f"s_lshr_b32 {s('t1')}, {s('t1')}, 3")
    R(f"s_lshl_b32 {s('mb')}, {s('t0')}, 2\ns_add_u32 {s('mb')}, {s('mb')}, {s('t1')}")
    R(f"s_lshl_b32 {s('t0')}, {s('mb')}, 2\ns_add_u32 {s('t0')}, {s('t0')}, {s('wave')}\ns_mul_i32 {s('xoff')}, {s('t0')}, {64*XROW}")
    R(f"s_lshl_b32 {s('m0x')}, {s('wave')}, {12 if opt.get('th2', 0) else 14}\ns_add_u32 {s('m0x')}, {s('m0x')}, {XST}")
    R(f"v_lshrrev_b32 v{T0}, 3, v{L}")
    R(f"v_and_b32 v{T1}, 7, v{L}")
    R(f"v_lshrrev_b32 v{T2}, 1, v{T0}")
    R(f"v_xor_b32 v{T2}, v{T2}, v{T1}")
    R(f"v_mul_u32_u24 v{T3}, {XROW}, v{T0}")
    R(f"v_lshl_add_u32 v{V_X}, v{T2}, 4, v{T3}")
    R(f"v_xor_b32 v{V_X+1}, 64, v{V_X}")
    R(f"v_add_u32 v{V_X+2}, {2*(8*XROW-1024)}, v{V_X}")
    R(f"v_add_u32 v{V_X+3}, {3*(8*XROW-1024)}, v{V_X+1}")
    R(f"v_add_u32 v{V_X+1}, {1*(8*XROW-1024)}, v{V_X+1}")
    R(f"s_and_b32 {s('th')}, {s('wave')}, 1\ns_lshr_b32 {s('kh')}, {s('wave')}, 1")
    R(f"v_and_b32 v{T2}, 2, v{T0}")
    R(f"v_xor_b32 v{T2}, v{T2}, v{T1}")
    R(f"s_lshl_b32 {s('t0')}, {s('th')}, 2")
    R(f"v_xor_b32 v{T2}, {s('t0')}, v{T2}")
    R(f"v_mul_u32_u24 v{T3}, {WROW}, v{T0}")
    R(f"v_lshl_add_u32 v{V_W1}, v{T2}, 4, v{T3}")
    R(f"s_mul_i32 {s('t0')}, {s('wave')}, {8*WROW}")
    R(f"v_add_u32 v{V_W1}, {s('t0')}, v{V_W1}")
    R(f"s_mul_i32 {s('t0')}, {s('sk')}, 2304")
    R(f"s_lshl_b32 {s('t1')}, {s('jj')}, 8\ns_add_u32 {s('w1col')}, {s('t0')}, {s('t1')}")
    R(f"s_lshl_b32 {s('m0w')}, {s('wave')}, 11")
    R("s_waitcnt lgkmcnt(0)")
    E.stamp("karg")
    R(f"s_mov_b32 s8, s4\ns_mov_b32 s9, s5\ns_mov_b32 s10, {NTOK*XROW}\ns_mov_b32 s11, 0x20000")

V_TCH = 48
def coop_setup(E):
    R = E.raw; L = V_LANE
    lx = E.label("cx"); le = E.label("ce")
    R(f"s_lshr_b32 {s('t0')}, s2, 3\ns_lshl_b32 {s('t0')}, {s('t0')}, 2\ns_add_u32 {s('t0')}, {s('t0')}, {s('wave')}")
    R(f"s_mov_b32 s36, s4\ns_mov_b32 s37, s5\ns_mov_b32 s38, {NTOK*XROW}\ns_mov_b32 s39, 0x20000")
    R(f"v_mul_u32_u24 v{V_T0}, {XROW}, v{L}")
    R(f"s_cmp_lt_u32 {s('t0')}, 64")
    R(f"s_cbranch_scc1 {lx}")
    R(f"s_sub_u32 {s('t0')}, {s('t0')}, 64\ns_cmp_lt_u32 {s('t0')}, 32")
    R(f"s_cselect_b32 s36, s6, s16\ns_cselect_b32 s37, s7, s17\ns_mov_b32 s38, {DM*WROW}")
    R(f"s_and_b32 {s('t1')}, {s('t0')}, 3\ns_mul_i32 {s('t1')}, {s('t1')}, {48*WROW}")
    R(f"s_lshr_b32 {s('t2')}, {s('t0')}, 2\ns_and_b32 {s('t2')}, {s('t2')}, 7\ns_lshl_b32 {s('t2')}, {s('t2')}, 8\ns_add_u32 {s('t1')}, {s('t1')}, {s('t2')}")
    R(f"s_mul_i32 {s('t2')}, {s('sk')}, 2304\ns_add_u32 {s('tA')}, {s('t1')}, {s('t2')}\ns_mov_b32 {s('tB')}, {192*WROW}")
    R(f"v_mul_u32_u24 v{V_TCH}, {WROW}, v{L}")
    R(f"s_branch {le}")
    R(f"{lx}:")
    R(f"s_lshr_b32 {s('t1')}, {s('t0')}, 4\ns_and_b32 {s('t2')}, {s('mb')}, 4\ns_add_u32 {s('t1')}, {s('t1')}, {s('t2')}\ns_lshl_b32 {s('t1')}, {s('t1')}, 8")
    R(f"s_and_b32 {s('t2')}, {s('t0')}, 15\ns_lshl_b32 {s('t2')}, {s('t2')}, 4\ns_add_u32 {s('t1')}, {s('t1')}, {s('t2')}\ns_mul_i32 {s('tA')}, {s('t1')}, {XROW}\ns_mov_b32 {s('tB')}, 384")
    R(f"v_mul_u32_u24 v{V_T0}, 21846, v{L}\nv_lshrrev_b32 v{V_T0}, 16, v{V_T0}")
    R(f"v_mul_u32_u24 v{V_T1}, 3, v{V_T0}\nv_sub_u32 v{V_T1}, v{L}, v{V_T1}")
    R(f"v_mul_u32_u24 v{V_T0}, {XROW}, v{V_T0}\nv_lshl_add_u32 v{V_TCH}, v{V_T1}, 7, v{V_T0}")
    R(f"{le}:")
    R(f"v_mov_b32 v{V_T0}, {OOB}\nv_cmp_gt_u32 vcc, 48, v{L}\ns_nop 1\nv_cndmask_b32 v{V_TCH}, v{V_T0}, v{V_TCH}, vcc")

def coop_touch(E, g):
    E.vmem(f"buffer_load_dword v{V_DUM}, v{V_TCH}, s[36:39], {s('tA')} offen", "TCH")
    if g < 2: E.raw(f"s_add_u32 {s('tA')}, {s('tA')}, {s('tB')}")

def prologue_w(E):
    R = E.raw
    R(f"s_mov_b32 s12, s6\ns_mov_b32 s13, s7\ns_mov_b32 s14, {DM*WROW}\ns_mov_b32 s15, 0x20000")
    R(f"s_mov_b32 s20, s18\ns_mov_b32 s21, s19\ns_mov_b32 s22, {DF*XROW}\ns_mov_b32 s23, 0x20000")
    R(f"s_sub_u32 s16, s16, 1024\ns_subb_u32 s17, s17, 0\ns_mov_b32 s18, {DM*WROW+1024}\ns_mov_b32 s19, 0x20000")
    R(f"s_mov_b32 s32, s30\ns_mov_b32 s33, s31\ns_mov_b32 s34, 256\ns_mov_b32 s35, 0x20000")
    R(f"s_mov_b32 s30, {NTOK*XROW}\ns_mov_b32 s31, 0x20000")
    R(f"s_mov_b32 s26, {WS_SIZE}\ns_mov_b32 s27, 0x20000")

def issue_x(E, piece):
    c, hf = piece >> 1, piece & 1
    E.raw(f"s_add_u32 m0, {s('m0x')}, {(piece % 4) * 4096}")
    E.raw(f"s_add_u32 {s('so2')}, {s('xoff')}, {hf * 32 * XROW + c * 128}")
    for u in range(4):
        E.vmem(f"buffer_load_dwordx4 v{V_X+u}, {srd(SRD_X)}, {s('so2')} offen offset:{u*1024} lds", f"X{piece}")

def w1_ops(line, ks):
    def setup(E):
        E.raw(f"s_add_u32 m0, {s('m0w')}, {ks * W1_KS}")
        E.raw(f"s_add_u32 {s('so')}, {s('w1col')}, {ks * 32 * WROW + line * 128}")
    def g(E): E.vmem(f"buffer_load_dwordx4 v{V_W1}, {srd(SRD_G)}, {s('so')} offen lds", f"W{line}_{ks//3}")
    def u(E): E.vmem(f"buffer_load_dwordx4 v{V_W1}, {srd(SRD_U)}, {s('so')} offen offset:1024 lds", f"W{line}_{ks//3}")
    return setup, g, u

def issue_w1_slot(E, line, slot):
    for ks in range(3 * slot, 3 * slot + 3):
        a, b, c = w1_ops(line, ks)
        a(E); b(E); c(E)

def read_x(E, chunk):
    out = []
    for hf in range(2):
        piece = 2 * chunk + hf
        for h in range(2):
            for tp in range(2):
                ks = 2 * chunk + h
                tt = 2 * hf + tp
                out.append(f"ds_read_b128 {xreg(ks, tt)}, v{V_XR + h} offset:{(piece % 4) * 4096 + tp * 2048}")
    return out

def areads_w1(ph, ks, par=None, alt=False):
    out = []
    reg, kk = divmod(ks, 6)
    if par is None: par = ks & 1
    for f in range(4):
        grp, mat = f >> 1, f & 1
        d = V_AR + 16 * par + 4 * f
        base = (V_AB if alt else V_A) + 2 * reg + grp
        for sec in range(2):
            out.append(f"ds_read_b64_tr_b16 v[{d+2*sec}:{d+2*sec+1}], v{base} offset:{kk*W1_KS + mat*1024 + sec*512}")
    return out

def areads_q(ks, par):
    out = []
    kk = (ks if ks < 8 else ks - 8) if WQE else ks
    for mat in range(2):
        d = V_AR + 16 * par + 4 * mat
        for sec in range(2):
            out.append(f"ds_read_b64_tr_b16 v[{d+2*sec}:{d+2*sec+1}], v{V_AQ} offset:{kk*2048 + mat*1024 + sec*256}")
    return out

def areads_g2(t, sub, par):
    if G2X:
        slot = (t + 3) % 16
        reg, sl = divmod(slot, 6)
        out = []
        for k in range(3):
            dt = 3 * sub + k
            d = V_AR + 12 * par + 4 * k
            for sec in range(2):
                out.append(f"ds_read_b64_tr_b16 v[{d+2*sec}:{d+2*sec+1}], v{V_A2+reg} offset:{sl*9216 + dt*32 + sec*4608}")
        return out
    slot = (t + 2) % 8
    reg, sl = divmod(slot, 3)
    out = []
    for k in range(3):
        dt = 3 * sub + k
        d = V_AR + 12 * par + 4 * k
        for sec in range(2):
            out.append(f"ds_read_b64_tr_b16 v[{d+2*sec}:{d+2*sec+1}], v{V_A2+reg} offset:{sl*WD_SLOT + dt*32 + sec*4608}")
    return out

def kap(t):
    return 4 * (t & 3) + (t >> 2)

def wd_ops(t):
    if G2X:
        slot = (t + 3) % 16
        def setup(E):
            E.raw(f"s_add_u32 m0, {s('m0d')}, {slot * 9216}")
            if t < 16: E.raw(f"s_add_u32 {s('so')}, {s('wd0')}, {32 * kap(t) * XROW}")
            else: E.raw(f"s_add_u32 {s('so')}, {s('wdq')}, {32 * (t - 16) * XROW}")
        def d0(E): E.vmem(f"buffer_load_dwordx4 v{V_WD}, {srd(SRD_D)}, {s('so')} offen lds", f"D{t}")
        def s1(E): E.raw(f"s_add_u32 m0, {s('m0d')}, {slot * 9216 + 4096}")
        def d1(E): E.vmem(f"buffer_load_dwordx4 v{V_WD+1}, {srd(SRD_D)}, {s('so')} offen lds", f"D{t}")
        def s2(E): E.raw(f"s_add_u32 m0, {s('m0d5')}, {slot * 9216}")
        def d2(E):
            E.raw("s_mov_b64 exec, 0xffff")
            E.vmem(f"buffer_load_dwordx4 v{V_WD+2}, {srd(SRD_D)}, {s('so')} offen lds", f"D{t}")
            E.raw("s_mov_b64 exec, -1")
        return [(setup, 's'), (d0, 'v'), (s1, 's'), (d1, 'v'), (s2, 's'), (d2, 'v')]
    slot = (t + 2) % 8
    def setup(E):
        E.raw(f"s_add_u32 m0, {s('m0d')}, {slot * WD_SLOT}")
        if OPT.get("nowd"):
            E.raw(f"s_mov_b32 {s('so')}, {OOB}"); return
        if t < 16: E.raw(f"s_add_u32 {s('so')}, {s('wd0')}, {32 * kap(t) * XROW}")
        else: E.raw(f"s_add_u32 {s('so')}, {s('wdq')}, {32 * (t - 16) * XROW}")
    def mk(i):
        def f(E): E.vmem(f"buffer_load_dwordx4 v{V_WD+i}, {srd(SRD_D)}, {s('so')} offen offset:{i*1024} lds", f"D{t}")
        return f
    def setup5(E):
        E.raw(f"s_add_u32 m0, {s('m0d5')}, {slot * WD_SLOT}")
    def d4(E):
        E.raw("s_mov_b32 exec_hi, 0")
        E.vmem(f"buffer_load_dwordx4 v{V_WD+4}, {srd(SRD_D)}, {s('so')} offen lds", f"D{t}")
        E.raw("s_mov_b32 exec_hi, -1")
    return [(setup, 's'), (mk(0), 'v'), (mk(1), 'v'), (mk(2), 'v'), (mk(3), 'v'), (setup5, 's'), (d4, 'v')]

def h_ops(t):
    ops = []
    if G2X:
        if t < 16:
            ops.append(((lambda E: E.raw(f"s_add_u32 {s('tA')}, {s('hldA')}, {kap(t) * H_KS}")), 's'))
            for tt in range(4):
                ops.append(((lambda E, tt=tt: E.vmem(f"buffer_load_dwordx4 {ar(hreg(t, tt))}, v{V_L16}, {srd(SRD_W)}, {s('tA')} offen offset:{tt * 1024}{HSC}", f"H{t}")), 'v'))
        else:
            ops.append(((lambda E: E.raw(f"s_add_u32 {s('tA')}, {s('hlqA')}, {(t - 16) * H_KS}")), 's'))
            for tt in range(4):
                for hf in range(2):
                    ops.append(((lambda E, tt=tt, hf=hf: E.vmem(f"buffer_load_dwordx2 {ar(hreg(t, tt) + 2 * hf, 2)}, v{V_L8}, {srd(SRD_W)}, {s('tA')} offen offset:{tt * 1024 + hf * 512}{HSC}", f"H{t}")), 'v'))
        return ops
    if t < 16:
        def setup(E):
            if OPT.get("noh"):
                E.raw(f"s_mov_b32 {s('tA')}, {OOB}"); E.raw(f"s_mov_b32 {s('tB')}, {OOB}"); return
            E.raw(f"s_add_u32 {s('tA')}, {s('hldA')}, {kap(t) * H_KS}")
            E.raw(f"s_add_u32 {s('tB')}, {s('hldB')}, {kap(t) * H_KS}")
        ops.append((setup, 's'))
        for tt in range(4):
            def f(E, tt=tt):
                so = s('tA') if tt < 2 else s('tB')
                E.vmem(f"buffer_load_dwordx4 {ar(hreg(t, tt))}, v{V_L16}, {srd(SRD_W)}, {so} offen offset:{(tt & 1) * 1024}{HSC}", f"H{t}")
            ops.append((f, 'v'))
    else:
        def setup(E):
            E.raw(f"s_add_u32 {s('tA')}, {s('hlqA')}, {(t - 16) * H_KS}")
            E.raw(f"s_add_u32 {s('tB')}, {s('hlqB')}, {(t - 16) * H_KS}")
        ops.append((setup, 's'))
        for tt in range(4):
            for hf in range(2):
                def f(E, tt=tt, hf=hf):
                    so = s('tA') if tt < 2 else s('tB')
                    b = hreg(t, tt) + 2 * hf
                    E.vmem(f"buffer_load_dwordx2 {ar(b, 2)}, v{V_L8}, {srd(SRD_W)}, {so} offen offset:{(tt & 1) * 1024 + hf * 512}{HSC}", f"H{t}")
                ops.append((f, 'v'))
    return ops

def publish_op(level, vpub=None, spf="pf"):
    def f(E):
        E.raw(f"s_add_u32 {s('t0')}, {s('nonce')}, {level}")
        E.raw(f"v_mov_b32 v{V_ONE}, {s('t0')}")
        E.vmem(f"buffer_store_dword v{V_ONE}, v{V_PUB if vpub is None else vpub}, {srd(SRD_W)}, {s(spf)} offen sc1", f"PUB{level}")
    return f

def nonce_write(E):
    E.raw(f"s_or_b32 s84, s84, 1")
    E.raw(f"s_cmp_eq_u32 s2, 0")
    E.raw(f"s_cselect_b32 {s('t0')}, 0, {OOB}")
    E.raw(f"v_mov_b32 v{V_ONE}, s84")
    E.vmem(f"buffer_store_dword v{V_ONE}, v{V_PUB}, {srd(SRD_F)}, {s('t0')} offen sc1", "TCH")

def nonce_ops():
    def a(E):
        E.vmem(f"buffer_load_dword v{V_T1}, v{V_Z}, {srd(SRD_F)}, 0 offen sc1", "NONCE")
    def b(E):
        ok = E.label("nok"); slow = E.label("nslow"); chk = E.label("nchk")
        E.wait(vm="NONCE")
        E.raw(f"v_readfirstlane_b32 {s('nonce')}, v{V_T1}")
        E.raw(f"s_cmp_eq_u32 {s('nonce')}, 0")
        E.raw(f"s_cbranch_scc1 {slow}")
        E.raw(f"{ok}:")
        E.slow += [f"{slow}:", f"s_mov_b32 {s('spin')}, 0", f"{chk}:",
                   f"buffer_load_dword v{V_T1}, v{V_Z}, {srd(SRD_F)}, 0 offen sc1", "s_waitcnt vmcnt(0)",
                   f"v_readfirstlane_b32 {s('nonce')}, v{V_T1}",
                   f"s_add_u32 {s('spin')}, {s('spin')}, 1", f"s_cmp_gt_u32 {s('spin')}, {SPIN_MAX}", f"s_cbranch_scc1 {ok}",
                   f"s_cmp_eq_u32 {s('nonce')}, 0", f"s_cbranch_scc1 {chk}", f"s_branch {ok}"]
    nop = lambda E: None
    return a, b, nop, nop

V_DUM = 0
def touch(E, vreg, srdb, so, tag="TCH"):
    E.vmem(f"buffer_load_dword v{V_DUM}, v{vreg}, {srd(srdb)}, {so} offen", tag)

def touch_ops_wd():
    def setup(E):
        E.raw(f"s_and_b32 {s('t0')}, {s('mb')}, 3\ns_lshl_b32 {s('t0')}, {s('t0')}, 3\ns_add_u32 {s('t0')}, {s('t0')}, {s('jj')}")
        E.raw(f"s_lshl_b32 {s('t0')}, {s('t0')}, 2\ns_add_u32 {s('t0')}, {s('t0')}, {s('wave')}\ns_mul_i32 {s('t0')}, {s('t0')}, {81*128}")
        E.raw(f"s_mul_i32 {s('t1')}, {s('sk')}, {1152*XROW}\ns_add_u32 {s('so')}, {s('t0')}, {s('t1')}")
    return [(setup, 's'), (lambda E: touch(E, V_T128, SRD_D, s('so')), 'v'), (lambda E: touch(E, V_T128B, SRD_D, s('so')), 'v')]

def touch_ops_wd_spread(m0, step):
    def setup(E):
        E.raw(f"s_and_b32 {s('t0')}, {s('mb')}, 3\ns_lshl_b32 {s('t0')}, {s('t0')}, 3\ns_add_u32 {s('t0')}, {s('t0')}, {s('jj')}")
        E.raw(f"s_lshl_b32 {s('t0')}, {s('t0')}, 2\ns_add_u32 {s('t0')}, {s('t0')}, {s('wave')}\ns_mul_i32 {s('t0')}, {s('t0')}, {81*128}")
        E.raw(f"s_mul_i32 {s('t1')}, {s('sk')}, {1152*XROW}\ns_add_u32 {s('hldB') if G2X else s('t4')}, {s('t0')}, {s('t1')}")
        E.raw(f"v_mov_b32 v{V_T1}, {OOB}\nv_cmp_gt_u32 vcc, 17, v{V_LANE}\ns_nop 1\nv_cndmask_b32 v{V_T0}, v{V_T1}, v{V_T128}, vcc")
    out = [[(setup, 's')]]
    for j in range(5):
        def f(E, j=j):
            E.raw(f"s_add_u32 {s('t0')}, {s('t4')}, {j * 17 * 128}")
            E.vmem(f"buffer_load_dword v{V_DUM}, v{V_T0}, {srd(SRD_D)}, {s('t0')} offen", "TCH")
        out.append(f)
    return out

def touch_ops_w1(line):
    def setup(E):
        E.raw(f"s_and_b32 {s('t0')}, {s('mb')}, 3\ns_lshl_b32 {s('t0')}, {s('t0')}, 1\ns_add_u32 {s('t0')}, {s('t0')}, {s('kh')}")
        E.raw(f"s_mul_i32 {s('t0')}, {s('t0')}, {72*WROW}\ns_add_u32 {s('so')}, {s('t0')}, {s('w1col')}")
        if line: E.raw(f"s_add_u32 {s('so')}, {s('so')}, {line*128}")
    return [(setup, 's'), (lambda E: touch(E, V_TROW, SRD_Q, s('so')), 'v'), (lambda E: touch(E, V_TROWB, SRD_Q, s('so')), 'v')]

def touch_ops_wq():
    def setup(E):
        E.raw(f"s_and_b32 {s('t0')}, {s('jj')}, 3\ns_lshl_b32 {s('t0')}, {s('t0')}, 2\ns_and_b32 {s('t1')}, {s('mb')}, 3\ns_add_u32 {s('t0')}, {s('t0')}, {s('t1')}")
        E.raw(f"s_lshl_b32 {s('t0')}, {s('t0')}, 1\ns_add_u32 {s('t0')}, {s('t0')}, {s('kh')}\ns_mul_i32 {s('t0')}, {s('t0')}, {18*WROW}")
        E.raw(f"s_mul_i32 {s('t1')}, {s('sk')}, 2304\ns_add_u32 {s('t0')}, {s('t0')}, {s('t1')}\ns_lshl_b32 {s('t1')}, {s('jj')}, 5\ns_add_u32 {s('t0')}, {s('t0')}, {s('t1')}\ns_add_u32 {s('so')}, {s('t0')}, 2048")
    return [(setup, 's'), (lambda E: touch(E, V_TROWQ, SRD_Q, s('so')), 'v')]

def touch_ops_x():
    def setup(E):
        E.raw(f"s_lshl_b32 {s('t0')}, {s('jj')}, 2\ns_add_u32 {s('t0')}, {s('t0')}, {s('wave')}\ns_lshl_b32 {s('t0')}, {s('t0')}, 3")
        E.raw(f"s_lshl_b32 {s('t1')}, {s('mb')}, 8\ns_add_u32 {s('t0')}, {s('t0')}, {s('t1')}\ns_mul_i32 {s('so')}, {s('t0')}, {XROW}")
    return [(setup, 's'), (lambda E: touch(E, V_T128, SRD_X, s('so')), 'v'), (lambda E: touch(E, V_T128B, SRD_X, s('so')), 'v')]

def touch_ops_h(p0, np_):
    def setup(E):
        E.raw(f"s_lshr_b32 {s('t0')}, {s('jj')}, 1\ns_lshl_b32 {s('t0')}, {s('t0')}, 14\ns_add_u32 {s('t0')}, {s('t0')}, {s('hldA')}")
        E.raw(f"s_lshl_b32 {s('t1')}, {s('kh')}, 11\ns_sub_u32 {s('so')}, {s('t0')}, {s('t1')}")
        if p0: E.raw(f"s_add_u32 {s('so')}, {s('so')}, {p0*H_KS}")
    v = V_T128 if np_ == 2 else V_T128H
    return [(setup, 's'), (lambda E: touch(E, v, SRD_W, s('so')), 'v')]

def selftouch_op(p):
    def f(E):
        if OPT.get("noself", 1): return
        E.raw(f"s_add_u32 {s('t4')}, {s('hst')}, {p * H_KS}")
        E.vmem(f"buffer_load_dword v{V_DUM}, v{V_T128H}, {srd(SRD_W)}, {s('t4')} offen sc1", "TCH")
    return f

def touch_code(E):
    R = E.raw
    R(f"s_getpc_b64 s[4:5]")
    R(f"L_pc:")
    R(f"s_sub_u32 s4, s4, L_pc-{KNAME}")
    R(f"s_subb_u32 s5, s5, 0")
    R(f"s_mov_b32 s6, L_codeend-{KNAME}")
    R(f"s_mov_b32 s7, 0x20000")
    R(f"s_lshr_b32 {s('t0')}, s2, 3\ns_lshl_b32 {s('t0')}, {s('t0')}, 2\ns_add_u32 {s('t0')}, {s('t0')}, {s('wave')}\ns_and_b32 {s('t0')}, {s('t0')}, 7\ns_lshl_b32 {s('t0')}, {s('t0')}, 13")
    E.vmem(f"buffer_load_dword v{V_DUM}, v{V_T128}, s[4:7], {s('t0')} offen", "TCH")

def touch_mall_w(E):
    R = E.raw
    R(f"s_lshl_b32 {s('t0')}, s2, 2\ns_add_u32 {s('t0')}, {s('t0')}, {s('wave')}\ns_and_b32 {s('t0')}, {s('t0')}, 511\ns_mul_i32 {s('t0')}, {s('t0')}, {81*128}")
    R(f"s_cmp_lt_u32 s2, 128")
    R(f"s_cselect_b32 s4, s12, s16\ns_cselect_b32 s5, s13, s17\ns_cselect_b32 {s('t1')}, 0, 1024")
    R(f"s_mov_b32 s6, {DM*WROW+1024}\ns_mov_b32 s7, 0x20000\ns_add_u32 {s('t0')}, {s('t0')}, {s('t1')}")
    E.vmem(f"buffer_load_dword v{V_DUM}, v{V_T128}, s[4:7], {s('t0')} offen", "TCH")
    E.vmem(f"buffer_load_dword v{V_DUM}, v{V_T128B}, s[4:7], {s('t0')} offen", "TCH")

def selftouchq_op():
    def f(E):
        E.raw(f"v_lshrrev_b32 v{V_T0}, 2, v{V_LANE}\nv_lshlrev_b32 v{V_T0}, 10, v{V_T0}\nv_and_b32 v{V_T1}, 3, v{V_LANE}\nv_lshl_add_u32 v{V_T0}, v{V_T1}, 7, v{V_T0}")
        E.raw(f"v_mov_b32 v{V_T1}, {OOB}\nv_cmp_gt_u32 vcc, 16, v{V_LANE}\ns_nop 1\nv_cndmask_b32 v{V_T0}, v{V_T1}, v{V_T0}, vcc")
        E.vmem(f"buffer_load_dword v{V_DUM}, v{V_T0}, {srd(SRD_W)}, {s('hstq')} offen sc1", "TCH")
    return f

def tlb_ops():
    def setup(E):
        L = V_LANE
        E.raw(f"s_lshl_b32 {s('t0')}, {s('mb')}, 3\ns_add_u32 {s('t0')}, {s('t0')}, {s('jj')}\ns_lshl_b32 {s('t0')}, {s('t0')}, 2\ns_add_u32 {s('t0')}, {s('t0')}, {s('wave')}")
        E.raw(f"s_mul_i32 {s('t0')}, {s('t0')}, {16*5120}\ns_add_u32 {s('t0')}, {s('t0')}, {WS_P}")
        E.raw(f"v_mov_b32 v{V_T0}, {OOB}\nv_writelane_b32 v{V_T0}, {s('hst')}, 0\nv_writelane_b32 v{V_T0}, {s('pf')}, 1\nv_writelane_b32 v{V_T0}, {s('t0')}, 2")
        E.raw(f"s_lshl_b32 {s('so')}, {s('mb')}, 8\ns_mul_i32 {s('so')}, {s('so')}, {XROW}")
    return [(setup, 's'),
            (lambda E: E.vmem(f"buffer_load_dword v{V_DUM}, v{V_T0}, {srd(SRD_W)}, 0 offen sc1", "TCH"), 'v'),
            (lambda E: E.vmem(f"buffer_load_dword v{V_DUM}, v{V_Z}, {srd(SRD_O)}, {s('so')} offen", "TCH"), 'v'),
            (lambda E: E.vmem(f"buffer_load_dword v{V_DUM}, v{V_Z}, {srd(SRD_D)}, {s('wd0')} offen", "TCH"), 'v')]

def touch_regs(E):
    R = E.raw; L = V_LANE
    R(f"v_lshlrev_b32 v{V_T128}, 7, v{L}")
    R(f"v_mov_b32 v{V_T128H}, {OOB}")
    R(f"v_cmp_gt_u32 vcc, 17, v{L}")
    R(f"v_add_u32 v{V_T128B}, {64*128}, v{V_T128}")
    R(f"v_mul_u32_u24 v{V_TROW}, {WROW}, v{L}")
    R(f"v_cndmask_b32 v{V_T128B}, v{V_T128H}, v{V_T128B}, vcc")
    R(f"v_cmp_gt_u32 vcc, 8, v{L}")
    R(f"v_add_u32 v{V_TROWB}, {64*WROW}, v{V_TROW}")
    R(f"s_nop 0")
    R(f"v_cndmask_b32 v{V_TROWB}, v{V_T128H}, v{V_TROWB}, vcc")
    R(f"v_cmp_gt_u32 vcc, 18, v{L}")
    R(f"s_nop 1")
    R(f"v_cndmask_b32 v{V_TROWQ}, v{V_T128H}, v{V_TROW}, vcc")
    R(f"v_cmp_gt_u32 vcc, 32, v{L}")
    R(f"s_nop 1")
    R(f"v_cndmask_b32 v{V_T128H}, v{V_T128H}, v{V_T128}, vcc")

def emit_ops(E, ops):
    for f, k in ops:
        f(E)

def poll_issue(name):
    def f(E):
        E.vmem(f"buffer_load_dword v{V_FL}, v{V_FH}, {srd(SRD_W)}, 0 offen sc1", f"POLL{name}")
    return f

def poll_check(E, name, level, voff=None, issued=True):
    voff = V_FH if voff is None else voff
    ok = E.label("pok"); slow = E.label("pslow"); chk = E.label("pchk")
    if OPT.get("nopoll"):
        if issued: E.wait(vm=f"POLL{name}")
        return
    test = [f"s_add_u32 {s('t0')}, {s('nonce')}, {level}",
            f"v_subrev_u32 v{V_FL}, {s('t0')}, v{V_FL}",
            f"v_cmp_lt_u32 vcc, {6 - level}, v{V_FL}"]
    if issued:
        E.wait(vm=f"POLL{name}")
        for x in test: E.raw(x)
        if OPT.get("vccnop", 0): E.raw("s_nop 4")
        E.raw(f"s_cbranch_vccnz {slow}")
    else:
        E.raw(f"s_branch {slow}")
    E.raw(f"{ok}:")
    E.slow += [f"{slow}:",
               f"s_mov_b32 {s('spin')}, 0",
               f"{chk}:"] + ([f"s_sleep {OPT.get('slp', 1)}"] if OPT.get("slp", 1) else []) + [
               f"buffer_load_dword v{V_FL}, v{voff}, {srd(SRD_W)}, 0 offen sc1",
               "s_waitcnt vmcnt(0)"] + test + [
               f"s_add_u32 {s('spin')}, {s('spin')}, 1",
               f"s_cmp_gt_u32 {s('spin')}, {SPIN_MAX}",
               f"s_cbranch_scc1 {ok}",
               f"s_cbranch_vccnz {chk}",
               f"s_branch {ok}"]

V_AB = 50
def setupA(E):
    R = E.raw
    L = V_LANE
    T0, T1, T2, T3 = V_T0, V_T1, V_T2, V_T3
    R(f"v_lshrrev_b32 v{T0}, 4, v{L}")
    R(f"v_and_b32 v{T1}, 15, v{L}")
    R(f"v_lshrrev_b32 v{T2}, 1, v{T1}")
    R(f"v_xor_b32 v{T2}, v{T2}, v{T0}")
    R(f"v_lshlrev_b32 v{T3}, 7, v{T1}")
    R(f"v_lshl_add_u32 v{V_XR}, v{T2}, 4, v{T3}")
    R(f"v_add_u32 v{V_XR}, {s('m0x')}, v{V_XR}")
    R(f"v_xor_b32 v{V_XR+1}, 64, v{V_XR}")
    R(f"v_lshrrev_b32 v{T2}, 2, v{T1}")
    R(f"v_lshlrev_b32 v{T3}, 11, v{T0}")
    R(f"v_lshl_add_u32 v{T3}, v{T2}, 7, v{T3}")
    R(f"v_and_b32 v{T2}, 3, v{T1}")
    R(f"v_lshl_add_u32 v{T3}, v{T2}, 3, v{T3}")
    R(f"v_and_b32 v{T2}, 1, v{T0}")
    R(f"v_lshlrev_b32 v{T2}, 6, v{T2}")
    R(f"v_add_u32 v{T3}, v{T3}, v{T2}")
    R(f"v_bfe_u32 v{T2}, v{T1}, 3, 1")
    R(f"v_lshl_add_u32 v{V_A}, v{T2}, 5, v{T3}")
    R(f"v_xor_b32 v{V_A+1}, 32, v{V_A}")
    for r in range(1, 3):
        R(f"v_add_u32 v{V_A+2*r}, {r*49152}, v{V_A}")
        R(f"v_add_u32 v{V_A+2*r+1}, {r*49152}, v{V_A+1}")
    for i in range(6):
        R(f"v_xor_b32 v{V_AB+i}, 64, v{V_A+i}")

def setupB():
    G = []
    R = G.append
    L = V_LANE
    T0, T1, T2, T3 = 44, 45, 46, 47
    u0, u1, u2, u3, u4 = s('pst'), s('pld'), s('outb'), s('phi0'), s('spin')
    R(f"s_add_u32 {u0}, s16, 1024\ns_addc_u32 {u1}, s17, 0\ns_cmp_eq_u32 {s('th')}, 0\ns_cselect_b32 s36, s12, {u0}\ns_cselect_b32 s37, s13, {u1}\ns_mov_b32 s38, {DM*WROW}\ns_mov_b32 s39, 0x20000")
    R(f"s_lshl_b32 {s('cu')}, {s('mb')}, 5\ns_lshl_b32 {u0}, {s('sk')}, 3\ns_add_u32 {s('cu')}, {s('cu')}, {u0}\ns_add_u32 {s('cu')}, {s('cu')}, {s('jj')}")
    R(f"s_mul_i32 {u0}, {s('sk')}, 2304\ns_lshl_b32 {u1}, {s('jj')}, 5\ns_add_u32 {s('wqcol')}, {u0}, {u1}\ns_add_u32 {s('wqcol')}, {s('wqcol')}, 2048")
    R(f"s_mul_i32 {u1}, {s('kh')}, {32*WROW}\ns_add_u32 {s('wqcol')}, {s('wqcol')}, {u1}\ns_lshl_b32 {s('m0q')}, {s('wave')}, 10")
    R(f"v_mov_b32 v{V_T128H}, {OOB}\nv_cmp_gt_u32 vcc, 17, v{L}\nv_add_u32 v{V_T128B}, {64*128}, v{V_T128}\nv_mul_u32_u24 v{V_TROW}, {WROW}, v{L}\nv_cndmask_b32 v{V_T128B}, v{V_T128H}, v{V_T128B}, vcc")
    R(f"v_cmp_gt_u32 vcc, 8, v{L}\nv_add_u32 v{V_TROWB}, {64*WROW}, v{V_TROW}\ns_nop 0\nv_cndmask_b32 v{V_TROWB}, v{V_T128H}, v{V_TROWB}, vcc")
    R(f"v_cmp_gt_u32 vcc, 18, v{L}\ns_nop 1\nv_cndmask_b32 v{V_TROWQ}, v{V_T128H}, v{V_TROW}, vcc")
    R(f"v_cmp_gt_u32 vcc, 32, v{L}\ns_nop 1\nv_cndmask_b32 v{V_T128H}, v{V_T128H}, v{V_T128}, vcc")
    R(f"v_lshrrev_b32 v{T0}, 4, v{L}\nv_and_b32 v{T1}, 15, v{L}")
    R(f"v_lshrrev_b32 v{T2}, 1, v{T0}\nv_lshlrev_b32 v{T3}, 9, v{T2}")
    R(f"v_and_b32 v{T2}, 1, v{T0}\nv_lshl_add_u32 v{T3}, v{T2}, 7, v{T3}")
    R(f"v_lshrrev_b32 v{T2}, 2, v{T1}\nv_lshl_add_u32 v{T3}, v{T2}, 5, v{T3}")
    R(f"v_and_b32 v{T2}, 3, v{T1}\nv_lshl_add_u32 v{V_AQ}, v{T2}, 3, v{T3}")
    R(f"v_lshrrev_b32 v{T2}, 2, v{T1}\nv_lshl_add_u32 v{T2}, v{T0}, 2, v{T2}")
    R(f"v_mul_u32_u24 v{T2}, 288, v{T2}\nv_and_b32 v{T3}, 3, v{T1}")
    if G2X:
        R(f"v_lshl_add_u32 v{V_A2}, v{T3}, 3, v{T2}\ns_lshr_b32 {s('t5')}, {s('jj')}, 2")
    else:
        R(f"v_lshl_add_u32 v{T2}, v{T3}, 3, v{T2}\ns_mul_i32 {u0}, {s('kh')}, 9216\nv_add_u32 v{V_A2}, {u0}, v{T2}")
    R(f"v_add_u32 v{V_A2+1}, {3*WD_SLOT}, v{V_A2}\nv_add_u32 v{V_A2+2}, {6*WD_SLOT}, v{V_A2}")
    R(f"v_lshrrev_b32 v{T0}, 1, v{L}\nv_and_b32 v{T1}, 0x13, v{T0}")
    R(f"v_and_b32 v{T2}, 4, v{T0}\nv_lshl_or_b32 v{T1}, v{T2}, 1, v{T1}")
    R(f"v_and_b32 v{T2}, 8, v{T0}\nv_lshrrev_b32 v{T2}, 1, v{T2}")
    R(f"v_or_b32 v{T1}, v{T1}, v{T2}\nv_mul_u32_u24 v{T1}, {WROW}, v{T1}")
    R(f"v_and_b32 v{T2}, 1, v{L}\nv_lshl_add_u32 v{V_WQ}, v{T2}, 4, v{T1}")
    for ip in (range(3) if G2X else []):
        if ip < 2: R(f"s_lshl_b32 {u0}, {s('wave')}, 6\nv_add_u32 v{T0}, {u0}, v{L}" + (f"\nv_add_u32 v{T0}, 256, v{T0}" if ip else ""))
        else: R(f"s_lshl_b32 {u0}, {s('wave')}, 4\ns_add_u32 {u0}, {u0}, 512\nv_and_b32 v{T0}, 15, v{L}\nv_add_u32 v{T0}, {u0}, v{T0}")
        R(f"v_mul_u32_u24 v{T1}, 3641, v{T0}\nv_lshrrev_b32 v{T1}, 16, v{T1}")
        R(f"v_mul_u32_u24 v{T2}, 18, v{T1}\nv_sub_u32 v{T2}, v{T0}, v{T2}")
        R(f"v_mul_u32_u24 v{T1}, {XROW}, v{T1}\nv_lshl_add_u32 v{V_WD+ip}, v{T2}, 4, v{T1}")
    if G2X: R(f"s_lshl_b32 {s('m0d')}, {s('wave')}, 10\ns_lshl_b32 {u0}, {s('wave')}, 8\ns_add_u32 {s('m0d5')}, {u0}, 8192")
    for ip in ([] if G2X else range(5)):
        if ip < 4:
            R(f"s_lshl_b32 {u0}, {s('th')}, 8\nv_add_u32 v{T0}, {u0}, v{L}" + (f"\nv_add_u32 v{T0}, {64*ip}, v{T0}" if ip else ""))
        else:
            R(f"s_lshl_b32 {u0}, {s('th')}, 5\ns_add_u32 {u0}, {u0}, 512\nv_and_b32 v{T0}, 31, v{L}\nv_add_u32 v{T0}, {u0}, v{T0}")
        R(f"v_mul_u32_u24 v{T1}, 3641, v{T0}\nv_lshrrev_b32 v{T1}, 16, v{T1}")
        R(f"v_mul_u32_u24 v{T2}, 18, v{T1}\nv_sub_u32 v{T2}, v{T0}, v{T2}")
        R(f"v_mul_u32_u24 v{T1}, {XROW}, v{T1}\nv_lshl_add_u32 v{V_WD+ip}, v{T2}, 4, v{T1}" + (f"\nv_subrev_u32 v{V_WD+ip}, {ip*1024}, v{V_WD+ip}" if 0 < ip < 4 else ""))
    if not G2X:
        R(f"s_mul_i32 {u1}, {s('kh')}, 9216\ns_lshl_b32 {u2}, {s('th')}, 9\ns_add_u32 {u2}, {u2}, {u1}\ns_add_u32 {s('m0d5')}, {u2}, 8192\n"
          f"s_lshl_b32 {u2}, {s('th')}, 12\ns_add_u32 {s('m0d')}, {u1}, {u2}")
    KH = s('t5') if G2X else s('kh')
    R(f"v_lshlrev_b32 v{V_L16}, 4, v{L}\nv_lshlrev_b32 v{V_L8}, 3, v{L}")
    R(f"v_mov_b32 v{V_KA}, 0x{f2u(GA):08x}\ns_mov_b32 {s('kb')}, 0x{f2u(GB):08x}\nv_mov_b32 v{V_Z}, 0")
    R(f"s_lshl_b32 {s('pf')}, {s('cu')}, 7\ns_add_u32 {s('pf')}, {s('pf')}, {WS_F}\nv_mov_b32 v{V_PUBD}, v{V_PUB}")
    R(f"s_and_b32 {s('flagh')}, {s('cu')}, 0xf8\ns_lshl_b32 {u0}, {KH}, 2\ns_add_u32 {s('flagh')}, {s('flagh')}, {u0}\n"
      f"s_lshl_b32 {s('flagh')}, {s('flagh')}, 7\ns_add_u32 {s('flagh')}, {s('flagh')}, {WS_F}\nv_min_u32 v{T0}, 3, v{L}")
    R(f"v_lshlrev_b32 v{T0}, 7, v{T0}\nv_add_u32 v{V_FH}, {s('flagh')}, v{T0}")
    R(f"s_lshl_b32 {u0}, {s('mb')}, 2\ns_add_u32 {u0}, {u0}, {s('sk')}\ns_lshl_b32 {u0}, {u0}, 2\n"
      f"s_add_u32 {u1}, {u0}, {s('wave')}\ns_mul_i32 {u1}, {u1}, {36*H_KS}\n"
      f"s_lshl_b32 {u2}, {s('jj')}, 14\ns_add_u32 {s('hst')}, {u1}, {u2}\n"
      f"s_lshr_b32 {u2}, {s('jj')}, 1\ns_add_u32 {u2}, {u2}, 32\ns_lshl_b32 {u2}, {u2}, 12\ns_add_u32 {s('hstq')}, {u1}, {u2}\n"
      f"s_and_b32 {u2}, {s('jj')}, 1\ns_lshl_b32 {u3}, {u2}, 9\ns_add_u32 {s('hstq')}, {s('hstq')}, {u3}\n"
      + (f"s_lshl_b32 {u4}, {KH}, 16\ns_add_u32 {s('hldA')}, {u4}, {u1}\n"
         f"s_lshl_b32 {u4}, {KH}, 13\ns_add_u32 {u4}, {u4}, {32*H_KS}\ns_add_u32 {s('hlqA')}, {u4}, {u1}" if G2X else
      f"s_lshl_b32 {u2}, {u2}, 1\ns_add_u32 {u2}, {u2}, {s('th')}\n"
      f"s_add_u32 {u1}, {u0}, {u2}\ns_mul_i32 {u1}, {u1}, {36*H_KS}\n"
      f"s_lshl_b32 {u2}, {s('kh')}, 11\ns_sub_u32 {u3}, 2048, {u2}\n"
      f"s_lshl_b32 {u4}, {s('kh')}, 16\ns_add_u32 {u4}, {u4}, {u1}\n"
      f"s_add_u32 {s('hldA')}, {u4}, {u2}\ns_add_u32 {s('hldB')}, {u4}, {u3}\n"
      f"s_lshl_b32 {u4}, {s('kh')}, 13\ns_add_u32 {u4}, {u4}, {32*H_KS}\ns_add_u32 {u4}, {u4}, {u1}\n"
      f"s_add_u32 {s('hlqA')}, {u4}, {u2}\ns_add_u32 {s('hlqB')}, {u4}, {u3}"))
    R((f"s_and_b32 {u0}, {s('jj')}, 3\n" if G2X else f"s_lshr_b32 {u0}, {s('jj')}, 1\n") + f"s_mul_i32 {u0}, {u0}, 288\n"
      f"s_mul_i32 {u1}, {s('sk')}, {1152*XROW}\ns_add_u32 {u0}, {u0}, {u1}\n"
      f"s_mul_i32 {u1}, {KH}, {512*XROW}\ns_add_u32 {s('wd0')}, {u0}, {u1}\n"
      f"s_mul_i32 {u1}, {KH}, {64*XROW}\ns_add_u32 {s('wdq')}, {u0}, {u1}\ns_add_u32 {s('wdq')}, {s('wdq')}, {1024*XROW}")
    return G

class Side:
    def __init__(self):
        self.q = []; self.m = 0; self.clock = 0.0; self.hi = []
    def add(self, ops):
        for o in ops: self.q.append((o[0], o[1], o[2] if len(o) > 2 else -1))
    def add_rated(self, ops, cost, earliest=None):
        st = max(self.clock, self.m if earliest is None else earliest)
        nv = sum(1 for o in ops if o[1] == 'v')
        k = 0
        for o in ops:
            nb = int(st + k * cost / nv)
            self.q.append((o[0], o[1], nb))
            if o[1] == 'v': k += 1
        self.clock = st + cost
    def add_hi(self, f): self.hi.append(f)
    def empty(self): return not self.q and not self.hi
    def take_gap(self, E):
        if self.hi:
            self.hi.pop(0)(E); return 2
        if not self.q: return 0
        f, kind, nb = self.q[0]
        if kind == 'v' and nb < self.m:
            self.q.pop(0); f(E); return 2
        return 0
    def take_scalar(self, E):
        if self.q and self.q[0][1] == 's' and self.q[0][2] <= self.m + 2:
            f, _, _ = self.q.pop(0); f(E); return 1
        return 0
    def drain(self, E):
        while self.hi: self.hi.pop(0)(E)
        while self.q:
            f, kind, nb = self.q.pop(0)
            f(E)
            if kind == 's': E.raw("s_nop 0")

def kstep(E, st, side, mf, reads, side_gaps=(), cap_extra=0):
    reads = list(reads)
    n = len(mf)
    for i, m in enumerate(mf):
        E.raw(m)
        st.tick()
        side.m += 1
        cap = 2 + cap_extra
        if reads:
            E.ds(reads.pop(0)); cap -= 1
        elif i in side_gaps:
            u = side.take_gap(E)
            cap -= u
            if u: cap = min(cap, 0)
        if cap > 0:
            if (i + 1) in side_gaps or (i + 1 == n):
                cap -= side.take_scalar(E)
        if cap > 0:
            st.fill(E, cap)

def gemm1_mf(buf, ks, first, par=None):
    mf = []
    if par is None: par = ks & 1
    for f in range(4):
        grp, mat = f >> 1, f & 1
        a = vr(V_AR + 16 * par + 4 * f)
        for tt in range(4):
            mf.append(mfma(buf + (grp * 2 + mat) * 16 + tt * 4, a, xreg(ks, tt), first))
    return mf

XB = [0, 24576, 49152]
def issue_xp(E, c, hf, b):
    E.raw(f"s_add_u32 m0, {s('m0x')}, {XB[b]}")
    E.raw(f"s_add_u32 {s('so2')}, {s('xoff')}, {hf * 32 * XROW + c * 128}")
    for u in range(4):
        E.vmem(f"buffer_load_dwordx4 v{V_X+u}, {srd(SRD_X)}, {s('so2')} offen offset:{u*1024} lds", f"X{hf}_{c}")
def xp_ops(c, hf, b):
    ops = [((lambda E: (E.raw(f"s_add_u32 m0, {s('m0x')}, {XB[b]}"), E.raw(f"s_add_u32 {s('so')}, {s('xoff')}, {hf * 32 * XROW + c * 128}"))), 's')]
    for u in range(4):
        ops.append(((lambda E, u=u: E.vmem(f"buffer_load_dwordx4 v{V_X+u}, {srd(SRD_X)}, {s('so')} offen offset:{u*1024} lds", f"X{hf}_{c}")), 'v'))
    return ops
def read_xp(c, hf, b):
    return [(f"ds_read_b128 {xreg(2*c+h, 2*hf+tp)}, v{V_XR + h} offset:{XB[b] + tp * 2048}", f"xr{hf}_{c}") for h in range(2) for tp in range(2)]

def areads_half(ks, gp, par, tagn):
    out = []
    reg, kk = divmod(ks, 6)
    for f in range(4):
        grp, mat = f >> 1, f & 1
        d = V_AR + 16 * par + 4 * f
        base = (V_AB if gp else V_A) + 2 * reg + grp
        for sec in range(2):
            out.append((f"ds_read_b64_tr_b16 v[{d+2*sec}:{d+2*sec+1}], v{base} offset:{kk*W1_KS + mat*1024 + sec*512}", f"a{tagn}_{f}"))
    return out

def half_step(E, st, side, n, ks, gp, half, first, reads, xq, cap_extra=0, vm_ok=True):
    par = n & 1
    buf = V_BUF[half]
    i = 0
    for f in range(4):
        g_, mat = 2 * gp + (f >> 1), f & 1
        E.wait_dstag(f"a{n}_{f}")
        for tq in range(2):
            d = buf + ((g_ * 2 + mat) * 2 + tq) * 4
            E.raw(mfma(d, vr(V_AR + 16 * par + 4 * f), xreg(ks, 2 * half + tq), first))
            st.tick(); side.m += 1
            cap = 2 + cap_extra
            if reads:
                t_, tg = reads.pop(0); E.ds(t_, tg); cap -= 1
            if xq and i >= 2:
                t_, tg = xq.pop(0); E.ds(t_, tg); cap -= 1
            elif vm_ok and (i & 1) == 1:
                u = side.take_gap(E)
                if u: cap = 0
            if cap > 0: cap -= side.take_scalar(E)
            if cap > 0: st.fill(E, cap)
            i += 1

def l1_ops(c):
    ops = []
    for kk in range(3 * c, 3 * c + 3):
        a, b, d = w1_ops(1, kk)
        ops += [(a, 's'), (b, 'v'), (d, 'v')]
    return ops

def p0ab(E, st, side, G, opt):
    NA, NB, NC, ND = nonce_ops()
    seq = [(ks, gp) for ks in range(18) for gp in range(2)]
    xq = []
    b_issue = {8: 6, 11: 7, 14: 8, 17: 0}
    b_read = {10: 6, 13: 7, 16: 8}
    for n, (ks, gp) in enumerate(seq):
        if gp == 1 and ks % 3 == 2 and ks < 17:
            if ks == 8: E.wait_dstag("xr0_7")
            E.wait(vm=f"W0_{ks//3+1}", barrier=True)
        if gp == 0:
            if ks % 2 == 0: E.wait_dstag(f"xr0_{ks//2}")
            if 1 <= ks <= 5:
                E.wait_dstag(f"xr0_{ks}")
                issue_xp(E, ks + 3, 0, (ks + 3) % 3)
            if ks == 1: issue_w1_slot(E, 0, 2)
            if ks == 3: issue_w1_slot(E, 0, 3)
            if ks in b_issue:
                prev = {8: "xr0_8", 11: "xr1_6", 14: "xr1_7", 17: "xr1_8"}[ks]
                E.wait_dstag(prev)
                side.add(xp_ops(b_issue[ks], 1, 2))
            if ks == 11: st.flush(E)
            if ks == 12 and opt.get("touch", 1): side.add(touch_ops_wq())
            if ks == opt.get("txb", 6):
                E.raw(f"v_mov_b32 v{V_T0}, {OOB}\nv_cmp_gt_u32 vcc, 36, v{V_LANE}\ns_lshl_b32 {s('t0')}, {s('jj')}, 2\ns_add_u32 {s('t0')}, {s('t0')}, 32\ns_mul_i32 {s('t0')}, {s('t0')}, {XROW}")
                E.raw(f"v_cndmask_b32 v{V_T0}, v{V_T0}, v{V_T128}, vcc\ns_add_u32 {s('t0')}, {s('t0')}, {s('xoff')}")
                touch(E, V_T0, SRD_X, s('t0'))
            if ks == opt.get("tl1", 7):
                st.flush(E)
                if ks >= 8: side.add(touch_ops_w1(1))
                else: emit_ops(E, touch_ops_w1(1))
            if ks == 13: NA(E)
            E.stamp(f"P0k{ks}")
        if gp == 1 and ks == 8:
            for sl in (4, 5):
                for kk in range(3 * sl, 3 * sl + 3):
                    a, b, c = w1_ops(0, kk)
                    side.add([(a, 's'), (b, 'v'), (c, 'v')])
        if gp == 1 and ks <= 7:
            E.wait(vm=f"X0_{ks+1}")
            xq += read_xp(ks + 1, 0, (ks + 1) % 3)
        if gp == 1 and ks in b_read:
            E.wait(vm=f"X1_{b_read[ks]}"); xq += read_xp(b_read[ks], 1, 2)
        if n + 1 < len(seq): nks, ngp = seq[n + 1]
        else: nks, ngp = 12, 0
        reads = areads_half(nks, ngp, (n + 1) & 1, n + 1)
        half_step(E, st, side, n, ks, gp, 0, ks == 0, reads, xq, vm_ok=(ks >= 8), cap_extra=(2 if st.pending() else 0))
        assert not xq
    E.stamp("P0end")
    E.raw(f"s_add_u32 {s('t3')}, {s('hst')}, 0")
    E.raw(f"s_add_u32 {s('t2')}, {s('hst')}, {H_KS}")
    def hs_fn(tag):
        def f(E, pp, tt, base):
            E.vmem(f"buffer_store_dwordx4 {vr(base)}, v{V_L16}, {srd(SRD_W)}, {s('t3' if pp == 0 else 't2')} offen offset:{tt*1024} sc1", tag)
        return f
    G.nset = 2
    G.half_pass(V_BUF[0], 0, hs_fn("HS0"))
    G.nset = N_GSET; G.pairno = 0
    order = [(12 + p) % 18 for p in range(18)]
    seq = [(pos, gp) for pos in range(18) for gp in range(2)]
    n0 = 36
    issue = {2: [(2, 2, "xr1_0")], 3: [(1, 0, None)], 5: [(3, 2, "xr1_2")], 6: [(4, 1, None), (5, 0, "xr1_1")]}
    rd = {1: (0, 2), 4: (2, 2), 5: (1, 0), 7: (3, 2), 8: (4, 1), 9: (5, 0)}
    for m, (pos, gp) in enumerate(seq):
        n = n0 + m
        ks = order[pos]
        if gp == 0:
            if pos in (3, 6, 9, 12, 15):
                if pos == 12: E.wait_dstag("xr1_5"); E.wait_dstag("xr1_4")
                E.wait(barrier=True)
            if ks % 2 == 0: E.wait_dstag(f"xr1_{ks//2}")
            for c, b, tg in issue.get(pos, []):
                if tg: E.wait_dstag(tg)
                side.add(xp_ops(c, 1, b))
            if pos == 9: side.add(l1_ops(0))
            if pos == 12: side.add(l1_ops(1)); side.add(l1_ops(4))
            if pos == 15: side.add(l1_ops(2)); side.add(l1_ops(5))
            if pos == 14: NB(E)
        if gp == 1 and pos in rd:
            c, b = rd[pos]
            E.wait(vm=f"X1_{c}"); xq += read_xp(c, 1, b)
        if pos == 17 and gp == 1:
            E.wait(vm="W1_0", barrier=True)
            reads = [(t_, "p2a") for t_ in areads_w1(0, 0, par=(n + 1) & 1)]
        else:
            npos, ngp = seq[m + 1]
            reads = areads_half(order[npos], ngp, (n + 1) & 1, n + 1)
        half_step(E, st, side, n, ks, gp, 1, pos == 0, reads, xq, cap_extra=(1 if st.pending_cost() > 9.0 * (len(seq) - m) else 0))
        assert not xq
    nfl = st.flush(E)
    if nfl: print(f"; note: P0b GELU flush {nfl}", file=sys.stderr)
    E.stamp("P1end")
    G.half_pass(V_BUF[1], 1, hs_fn("HS1"))

def toggle_bases(E):
    for i in range(6):
        E.raw(f"v_xor_b32 v{V_A+i}, 64, v{V_A+i}")

def hstore_fn(p):
    def f(E, tt, base):
        E.vmem(f"buffer_store_dwordx4 {vr(base)}, v{V_L16}, {srd(SRD_W)}, {s('so2')} offen offset:{tt*1024} sc1", f"HS{p}")
    return f
def hstoreq_fn(E, tt, base):
    E.vmem(f"buffer_store_dwordx2 {vr(base, 2)}, v{V_L8}, {srd(SRD_W)}, {s('hstq')} offen offset:{tt*1024} sc1", "HS4")

def wq_ops(lo=0, hi=9):
    ops = []
    for i in range(lo, hi):
        def setup(E, i=i):
            dst = (SCRATCH + i * 4096) if (WQE and i < 4) else ((i - 4) * 4096 if WQE else i * 4096)
            E.raw(f"s_add_u32 m0, {s('m0q')}, {dst}")
            E.raw(f"s_add_u32 {s('so')}, {s('wqcol')}, {i * 64 * WROW}")
        def d(E): E.vmem(f"buffer_load_dwordx4 v{V_WQ}, {srd(SRD_Q)}, {s('so')} offen lds", "WQ")
        ops += [(setup, 's'), (d, 'v')]
    return ops

def build(opt):
    global OPT
    OPT = opt
    E = Emit()
    E.do_stamp = bool(opt.get("stamp"))
    if isinstance(opt.get("stamp"), str): E.stamp_sel = set(opt["stamp"].split("+"))
    global HSC, WQE, G2X
    G2X = bool(opt.get("g2x", 0))
    HSC = "" if opt.get("hplain") else " sc1"
    WQE = bool(opt.get("wqe", 1))
    st = Stream()
    G = Gelu(st)
    side = Side()
    E.stamp("start")
    prologue(E, opt)
    TH2 = opt.get("th2", 0)
    coop = opt.get("coop", 0) if not TH2 else 0
    if coop == 1:
        coop_setup(E); coop_touch(E, 0)
    if TH2: issue_xp(E, 0, 0, 0)
    else:
        issue_x(E, 0); issue_x(E, 1)
    E.stamp("i1")
    if coop >= 2:
        coop_setup(E); E.raw(f"s_add_u32 {s('tA')}, {s('tA')}, {s('tB')}")
    prologue_w(E)
    issue_w1_slot(E, 0, 0)
    nonce_write(E)
    if coop == 1 or coop == 3: coop_touch(E, 1)
    if TH2:
        issue_xp(E, 1, 0, 1); issue_xp(E, 2, 0, 2)
    else:
        issue_x(E, 2); issue_x(E, 3)
    if coop == 3: coop_touch(E, 2)
    setupA(E)
    PRO2 = opt.get("pro2", 1) and not TH2
    if not PRO2: issue_w1_slot(E, 0, 1)
    if coop == 2: coop_touch(E, 1)
    if coop == 1 or coop == 2: coop_touch(E, 2)
    NCOMB = opt.get("ncomb", 8)
    if TH2:
        E.wait(vm="X0_0")
        E.stamp("x01")
        for t_, tg in read_xp(0, 0, 0): E.ds(t_, tg)
        E.wait(ds=0)
        issue_xp(E, 3, 0, 0)
        E.wait(vm="W0_0", barrier=True)
        for t_, tg in areads_half(0, 0, 0, 0): E.ds(t_, tg)
    else:
        E.wait(vm=["X0", "X1"])
        E.stamp("x01")
        for r in read_x(E, 0): E.ds(r)
        if not PRO2:
            E.wait(ds=0)
            issue_x(E, 4); issue_x(E, 5)
        E.wait(vm="W0_0", barrier=True)
        for r in areads_w1(0, 0, par=0): E.ds(r)
    E.stamp("P0go")
    SG = (9, 11, 13)
    NA, NB, NC, ND = nonce_ops()
    prev = None
    setup_items = []
    for grp in setupB():
        prev = st.add(grp, min(2, grp.count("\n") + 1), [(prev, 0)] if prev else [])
        setup_items.append(prev)
    FULL = False
    l1_queued = 0
    p0_par = 0
    if TH2:
        p0ab(E, st, side, G, opt)
    else:
        steps = []
        for ks in range(18):
            steps.append(("A", ks))
            if ks < NCOMB: steps.append(("B", ks))
        def last_half(ks): return ("B", ks) if ks < NCOMB else ("A", ks)
        FULL = (NCOMB == 18)
        l1_queued = 0
        for n, (kind, ks) in enumerate(steps):
            par = n & 1
            bar = False; tags = []
            for c in range(1, 6):
                if (kind, ks) == last_half(3 * c - 1): bar = True; tags.append(f"W0_{c}")
            if FULL and (kind, ks) == ("B", 17): bar = True; tags.append("W1_0")
            E.wait(vm=(tags if tags else None), ds=0, barrier=bar)
            if bar and ks == 8:
                for sl in (4, 5):
                    for kk in range(3 * sl, 3 * sl + 3):
                        a, b, c = w1_ops(0, kk)
                        side.add([(a, 's'), (b, 'v'), (c, 'v')])
            if bar and ks == 8 and opt.get("l1late", 1) and opt.get("touch", 1):
                st.flush(E)
                side.add(touch_ops_w1(1)); side.add(touch_ops_wq())
            if bar and ks >= 8 and not opt.get("l1late", 1):
                free = (ks + 1) // 3 if ks < NCOMB else min(NCOMB // 3, (ks + 1) // 3)
                free = min(free, 4 if ks < 14 else 6)
                while l1_queued < free:
                    for kk in range(3 * l1_queued, 3 * l1_queued + 3):
                        a, b, c = w1_ops(1, kk)
                        side.add([(a, 's'), (b, 'v'), (c, 'v')])
                    l1_queued += 1
            if PRO2 and (kind, ks) == ("B", 0):
                issue_x(E, 4); issue_x(E, 5)
                issue_w1_slot(E, 0, 1)
            if kind == "A":
                if 1 <= ks <= 6:
                    issue_x(E, 2 * (ks + 2)); issue_x(E, 2 * (ks + 2) + 1)
                if ks == 1: issue_w1_slot(E, 0, 2)
                if ks == 3: issue_w1_slot(E, 0, 3)
                if ks == 11: st.flush(E)
                if ks == 12 and opt.get("tlb", 0): side.add(tlb_ops())
                if ks == 12 and opt.get("touch", 1) and not opt.get("l1late", 1):
                    side.add(touch_ops_wq())
                    if not FULL and not opt.get("tw1", 0): side.add(touch_ops_w1(1))
                if opt.get("tw13", -1) == ks:
                    r0 = opt.get("tw13r", 96); nn = (384 - r0) // 8
                    E.raw(f"v_mul_u32_u24 v{V_T0}, {WROW}, v{V_LANE}\nv_mov_b32 v{V_T1}, {OOB}\nv_cmp_gt_u32 vcc, {nn}, v{V_LANE}\ns_and_b32 {s('t0')}, {s('mb')}, 3\ns_lshl_b32 {s('t0')}, {s('t0')}, 1\ns_add_u32 {s('t0')}, {s('t0')}, {s('kh')}")
                    E.raw(f"v_cndmask_b32 v{V_T0}, v{V_T1}, v{V_T0}, vcc\ns_mul_i32 {s('t0')}, {s('t0')}, {nn*WROW}\ns_add_u32 {s('t0')}, {s('t0')}, {s('w1col')}\ns_add_u32 {s('t0')}, {s('t0')}, {r0*WROW}")
                    E.raw(f"s_cmp_eq_u32 {s('th')}, 0\ns_cselect_b32 s4, s12, s16\ns_cselect_b32 s5, s13, s17\ns_cselect_b32 {s('t1')}, 0, 1024\ns_mov_b32 s6, {DM*WROW+1024}\ns_mov_b32 s7, 0x20000\ns_add_u32 {s('t0')}, {s('t0')}, {s('t1')}")
                    E.vmem(f"buffer_load_dword v{V_DUM}, v{V_T0}, s[4:7], {s('t0')} offen", "TCH")
                if opt.get("txc", 1) == ks:
                    c0 = opt.get("txc0", 3); nch = 9 - c0
                    L_ = V_LANE
                    E.raw(f"v_mul_u32_u24 v{V_T0}, {65536 // nch + 1}, v{L_}\nv_lshrrev_b32 v{V_T0}, 16, v{V_T0}\nv_mul_u32_u24 v{V_T1}, {nch}, v{V_T0}\nv_sub_u32 v{V_T1}, v{L_}, v{V_T1}")
                    E.raw(f"v_mul_u32_u24 v{V_T0}, {XROW}, v{V_T0}\nv_lshl_add_u32 v{V_T0}, v{V_T1}, 7, v{V_T0}\nv_mov_b32 v{V_T1}, {OOB}\nv_cmp_gt_u32 vcc, {8 * nch}, v{L_}")
                    E.raw(f"s_lshl_b32 {s('t0')}, {s('jj')}, 2\ns_add_u32 {s('t0')}, {s('t0')}, {s('wave')}\ns_lshl_b32 {s('t0')}, {s('t0')}, 3\ns_lshl_b32 {s('t1')}, {s('mb')}, 8\ns_add_u32 {s('t0')}, {s('t0')}, {s('t1')}\ns_mul_i32 {s('t0')}, {s('t0')}, {XROW}\ns_add_u32 {s('t0')}, {s('t0')}, {c0 * 128}")
                    E.raw(f"v_cndmask_b32 v{V_T0}, v{V_T1}, v{V_T0}, vcc")
                    touch(E, V_T0, SRD_X, s('t0'))
                if opt.get("tw1", 0) and ks == opt.get("tw1", 0):
                    assert setup_items[8].placed is not None, "touch registers not ready"
                    emit_ops(E, touch_ops_w1(1))
                if opt.get("tw45", 5) and ks == opt.get("tw45", 5):
                    assert setup_items[8].placed is not None, "touch registers not ready"
                    E.raw(f"v_mov_b32 v{V_T0}, {OOB}\nv_cmp_gt_u32 vcc, 24, v{V_LANE}\ns_and_b32 {s('t0')}, {s('mb')}, 3\ns_lshl_b32 {s('t0')}, {s('t0')}, 1\ns_add_u32 {s('t0')}, {s('t0')}, {s('kh')}")
                    E.raw(f"v_cndmask_b32 v{V_T0}, v{V_T0}, v{V_TROW}, vcc\ns_mul_i32 {s('t0')}, {s('t0')}, {24*WROW}\ns_add_u32 {s('t0')}, {s('t0')}, {s('w1col')}\ns_add_u32 {s('t0')}, {s('t0')}, {384*WROW}")
                    touch(E, V_T0, SRD_Q, s('t0'))
                if ks == 13: NA(E)
                if ks == 17 and not FULL: toggle_bases(E)
                E.stamp(f"P0k{ks}")
            if FULL and (kind, ks) == ("B", 15):
                NB(E)
            if FULL and (kind, ks) == ("A", 17 + 0): pass
            if n + 1 < len(steps):
                nk, nks = steps[n + 1]
                reads = areads_w1(0, nks, par=1 - par, alt=(nk == "B"))
            elif FULL:
                reads = areads_w1(0, 0, par=1 - par)
            else:
                reads = areads_w1(1, NCOMB, par=1 - par)
            if FULL and (kind, ks) == ("B", 17): NC(E)
            mf = gemm1_mf(V_BUF[0 if kind == "A" else 1], ks, ks == 0, par=par)
            if (kind, ks) == last_half(ks) and ks <= 7:
                xr = read_x(E, ks + 1)
                for i, m in enumerate(mf):
                    E.raw(m); st.tick()
                    if i < 8: E.ds(reads[i])
                    else:
                        if i == 8: E.wait(vm=[f"X{2*(ks+1)}", f"X{2*(ks+1)+1}"])
                        E.ds(xr[i - 8])
                    st.fill(E, 1)
            else:
                kstep(E, st, side, mf, reads, side_gaps=(8, 9, 10, 11, 12, 13, 14, 15) if ks >= 8 else ())
        st.flush(E)
        p0_par = len(steps) & 1
        E.stamp("P0end")
    if opt.get("abl") == "p1": E.raw("; MARK_ABL")
    RATE = float(opt.get("rate", 3.8))
    PB, PC, PD = opt.get("PB", 2), opt.get("PC", 9), opt.get("PD", 13)
    PUB4, PUB5 = opt.get("pub4", 5), opt.get("pub5", 9)
    G2BAR = [2, 5, 8, 11, 14, 17] if G2X else ([1, 3, 5, 7, 9, 11, 13, 15, 17] if opt.get("bar2", 1) else list(range(18)))
    def plan_tail():
        G2 = 432
        items = []
        if WQE: items.append(("WQ", wq_ops(4, 9), 20 * RATE, 32, 272 - 30))
        else: items.append(("WQ", wq_ops(), 36 * RATE, 80, 272 - 30))
        de = {0: 128, 1: 128, 2: 176, 3: 224, 4: 272, 5: 272, 6: 424, 7: 424}
        dex = {0: 5, 1: 5, 2: 8, 3: 8, 4: 8, 5: 11, 6: 11, 7: 14, 8: 14, 9: 14, 10: 17, 11: 17, 12: 17}
        for u in range(18):
            if G2X:
                if u <= 12: e = 16 * dex[u]
                elif u <= 15: e = 424
                else: e = G2 + 36 * G2BAR[0] + 24 + 1
                tb = max(k for k in [-1] + G2BAR if k < u)
                dl = 424 if tb < 0 else G2 + 36 * tb + 24
                items.append((f"D{u}", wd_ops(u), 3.3 * RATE, e, dl - 20))
                continue
            e = de[u] if u < 8 else G2 + 36 * (u - 7)
            dl = 424 if u == 0 else G2 + 36 * (u - 1) + 24
            if opt.get("bar2", 1):
                if u >= 8:
                    fb = min(k for k in G2BAR if k >= u - 8)
                    e = G2 + 36 * fb + 24 + 1
                tb = max(k for k in [-1] + G2BAR if k < u)
                dl = 424 if tb < 0 else G2 + 36 * tb + 24
            items.append((f"D{u}", wd_ops(u), 6.15 * RATE, e, dl))
        for u in range(18):
            if u <= 6: e = 288 + 8 * (u + 1) + 2
            else: e = G2 + 36 * (u - 6)
            if 8 <= u <= 11: e = max(e, G2 + 36 * PB)
            if 12 <= u <= 15: e = max(e, G2 + 36 * PC)
            if u >= 16: e = max(e, G2 + 36 * PD)
            dl = G2 + 36 * u
            if u >= 16: dl = G2 + 36 * (u - OPT.get("hlead", 2))
            items.append((f"H{u}", h_ops(u), 4 * RATE, e, dl))
        clock = 32 if WQE else 80
        order = []
        rem = list(items)
        while rem:
            legal = [it for it in rem if it[3] <= clock]
            if not legal:
                clock = min(it[3] for it in rem); continue
            it = min(legal, key=lambda x: x[4])
            rem.remove(it)
            order.append((it, clock))
            if clock + it[2] > it[4] and not it[0].startswith("H1"): print(f"; plan: {it[0]} start {clock:.0f} end {clock+it[2]:.0f} deadline {it[4]} LATE", file=sys.stderr)
            clock += it[2]
        side.clock = 0
        def gate_of(name):
            u = int(name[1:]) if name != "WQ" else None
            if name == "WQ": return ["P3bar2" if WQE else "P3bar5"]
            if name[0] == "D" and G2X:
                if u <= 12: return [f"P3bar{dex[u]}"]
                if u <= 15: return ["PQbar17"]
                return [f"G2bar{G2BAR[0]}"]
            if name[0] == "D":
                if u < 8: return [{0: "P3bar8", 1: "P3bar8", 2: "P3bar11", 3: "P3bar14", 4: "P3bar17", 5: "P3bar17", 6: "PQbar17", 7: "PQbar17"}[u]]
                return [f"G2bar{min(k for k in G2BAR if k >= u - 8)}"]
            g = ["pollA" if u < 8 else "pollB" if u < 12 else "pollC" if u < 16 else "pollD"]
            g.append(f"PQdone{u}" if u <= 6 else f"G2done{u-7}")
            return g
        for it, c in order:
            gates = gate_of(it[0])
            ops = []
            for o in it[1]:
                if o[1] == 'v':
                    def w(E, f=o[0], gates=gates, nm=it[0]):
                        for g_ in gates: assert g_ in E.events, f"{nm} emitted before {g_}"
                        f(E)
                    ops.append((w, 'v'))
                else: ops.append(o)
            side.add_rated(ops, it[2], earliest=c)
    if FULL:
        E.wait(ds=0); ND(E)
        E.raw(f"s_add_u32 {s('so2')}, {s('hst')}, 0")
        G.full_pass(V_BUF[0], hstore_fn(0))
        st.flush(E)
        E.stamp("P1end")
    for p in ((2, 3) if (FULL or TH2) else (1, 2, 3)):
        line, ph = p >> 1, p & 1
        buf = V_BUF[p & 1]
        E.raw(f"s_add_u32 {s('so2')}, {s('hst')}, {(p - 1) * H_KS}")
        if not (TH2 and p == 2): G.full_pass(V_BUF[(p - 1) & 1], hstore_fn(p - 1))
        if p == 3:
            assert side.empty()
            side.m = 0
            plan_tail()
        for ks in range(NCOMB if p == 1 else 0, 18):
            par = (ks & 1) if p > 1 else ((p0_par + ks - NCOMB) & 1)
            bar = (ks % 3 == 2)
            tags = []
            if bar:
                if p == 1 and ks == 17: tags.append("W1_0")
                if p == 2 and ks < 17:
                    if opt.get("p2bar", 0):
                        if ks == 2: tags += ["W1_1", "W1_2"]
                        elif ks == 8: tags += ["W1_3", "W1_4", "W1_5"]
                        else: bar = False
                    else: tags.append(f"W1_{ks//3+1}")
                if p == 3 and ks == 17: tags.append("WQ")
                if p >= 2 and ks == 2: tags.append(f"HS{p-2}")
                if p == 2 and ks == 17: bar = False
            if p == 1 and ks == 14:
                NB(E)
            E.wait(vm=(tags if tags else None), ds=0, barrier=bar)
            if p == 3 and bar: E.events.add(f"P3bar{ks}")
            if p == 1 and ks == 14: NC(E)
            if p == 1 and ks == 15: ND(E)
            if bar:
                c = ks // 3
                if p >= 2 and ks == 2:
                    side.add_hi(publish_op(p - 1))
                    if opt.get("touch", 1):
                        if not TH2: side.add_hi(selftouch_op(p - 2))
                        elif p == 3: side.add_hi(selftouch_op(0)); side.add_hi(selftouch_op(1))
                    if TH2 and p == 2: side.add(l1_ops(3))
                if p == 1 and opt.get("l1late", 1) and ks == NCOMB + ((2 - NCOMB) % 3):
                    for c0 in range(0, c):
                        side.add(l1_ops(c0))
                if p == 1 and c >= l1_queued:
                    for kk in range(3 * c, 3 * c + 3):
                        a, b, d = w1_ops(1, kk)
                        side.add([(a, 's'), (b, 'v'), (d, 'v')])
            if opt.get("twds", 0):
                if p == 2 and ks == 1:
                    WDS = touch_ops_wd_spread(0, 0)
                    WDS[0][0][0](E)
                if p == 2 and ks in (1, 4, 7, 10, 13): side.add_hi(WDS[1 + (ks - 1) // 3])
            elif (p, ks) == tuple(divmod(opt.get("twd", 203), 100)) and opt.get("touch", 1): side.add(touch_ops_wd())
            if p == 2 and ks == 9 and WQE: side.add(wq_ops(0, 4))
            if p == 3 and ks == 17 and WQE: E.raw(f"v_add_u32 v{V_AQ}, {SCRATCH}, v{V_AQ}")
            if p == 3 and ks == 15: side.add_hi(poll_issue("a"))
            if ks == 17 and p < 3: toggle_bases(E)
            if ks < 17: reads = areads_w1(ph, ks + 1, par=1 - par)
            elif p < 3: reads = areads_w1(1 - ph, 0, par=1 - par)
            else: reads = areads_q(0, 0)
            sg = SG
            if p == 3 and ks >= 5: sg = (8, 9, 11, 13, 15)
            kstep(E, st, side, gemm1_mf(buf, ks, ks == 0 and not (p == 1 and NCOMB > 0), par=par), reads, side_gaps=sg,
                  cap_extra=(1 if (p == 1 and NCOMB > 0 and st.pending_cost() > 19 * (17 - ks)) else 0))
        n = st.flush(E)
        if n: print(f"; note: pass {p}: GELU flush {n} gaps", file=sys.stderr)
        if p == 2: assert side.empty(), f"side not empty after pass {p}"
        E.stamp(f"P{p}end")
    E.raw(f"s_add_u32 {s('so2')}, {s('hst')}, {3 * H_KS}")
    G.full_pass(V_BUF[1], hstore_fn(3))
    bufq = V_BUF[0]
    for ks in range(18):
        bar = ks in (3, 17)
        tags = []
        if ks == 3: tags.append("HS2")
        if ks == 17: tags += (["D0", "D1", "D2"] if G2X else ["D0", "D1"] if opt.get("bar2", 1) else ["D0"])
        E.wait(vm=(tags if tags else None), ds=0, barrier=bar)
        if bar: E.events.add(f"PQbar{ks}")
        if ks >= 1: E.events.add(f"PQdone{ks-1}")
        if ks == 3:
            side.add_hi(publish_op(3))
            if opt.get("touch", 1): side.add_hi(selftouch_op(2))
        if ks == 1:
            poll_check(E, "a", 2); E.events.add("pollA")
        if ks == 7 and WQE: E.raw(f"v_subrev_u32 v{V_AQ}, {SCRATCH}, v{V_AQ}")
        mf = []
        for mat in range(2):
            a = vr(V_AR + 16 * (ks & 1) + 4 * mat)
            for tt in range(4):
                mf.append(mfma(bufq + mat * 16 + tt * 4, a, xreg(ks, tt), ks == 0))
        reads = areads_q(ks + 1, (ks + 1) & 1) if ks < 17 else areads_g2(0, 0, 0)
        kstep(E, st, side, mf, reads, side_gaps=(4, 5, 6, 7) if ks < 17 else (6, 7), cap_extra=opt.get("capq", 0))
    if opt.get("stop") == "g1":
        st.flush(E)
        G.quarter(bufq, hstoreq_fn)
        st.flush(E)
        side.q = []; side.hi = []
        E.wait_all()
        return finish(E)
    E.stamp("PQend")
    if opt.get("abl", "g2") == "g2": E.raw("; MARK_ABL")
    E.skew_on = True
    qadded = False
    sub_par = 0
    for t in range(18):
        for sub in range(3):
            tags = []
            bar = (sub == 2) and (t in G2BAR or t == PUB4 or t == PUB5)
            if sub == 0: tags.append(f"H{t}")
            if bar and t < 17 and not G2X and t in G2BAR:
                tags.append(f"D{t+1}")
                if opt.get("bar2", 1) and t + 2 < 18: tags.append(f"D{t+2}")
            if bar and G2X and t in G2BAR: tags += [f"D{u}" for u in range(t + 1, min(t + 4, 18))]
            pub = None
            if bar and t == PUB4: tags.append("HS3"); pub = 4
            if bar and t == PUB5: tags.append("HS4"); pub = 5
            E.wait(vm=(tags if tags else None), ds=0, barrier=bar)
            if bar: E.events.add(f"G2bar{t}")
            if sub == 0 and t >= 1: E.events.add(f"G2done{t-1}")
            if OPT.get("hchk") and sub == 0:
                for tt in range(4):
                    b = hreg(t, tt)
                    lab = E.label("hc")
                    E.raw(f"v_accvgpr_read_b32 v{V_T0}, a{b}\nv_accvgpr_read_b32 v{V_T1}, a{b+1}\nv_or_b32 v{V_T0}, v{V_T0}, v{V_T1}")
                    E.raw(f"v_accvgpr_read_b32 v{V_T1}, a{b+2}\nv_or_b32 v{V_T0}, v{V_T0}, v{V_T1}\nv_accvgpr_read_b32 v{V_T1}, a{b+3}\nv_or_b32 v{V_T0}, v{V_T0}, v{V_T1}")
                    E.raw(f"v_and_b32 v{V_T0}, 0x40004000, v{V_T0}\nv_cmp_ne_u32 vcc, 0, v{V_T0}\ns_nop 4\ns_cbranch_vccz {lab}")
                    E.raw(f"s_lshl_b32 {s('t0')}, s2, 2\ns_add_u32 {s('t0')}, {s('t0')}, {s('wave')}\ns_lshl_b32 {s('t0')}, {s('t0')}, 2\ns_add_u32 {s('t0')}, {s('t0')}, {61 << 20}")
                    E.raw(f"v_mov_b32 v{V_T1}, {t * 16 + tt + 1}\nv_mov_b32 v{V_T0}, 0")
                    E.raw(f"buffer_store_dword v{V_T1}, v{V_T0}, {srd(SRD_W)}, {s('t0')} offen\ns_waitcnt vmcnt(0)")
                    E.raw(f"{lab}:")
            if pub:
                side.add_hi(publish_op(pub))
                if pub == 4 and opt.get("touch", 1): side.add_hi(selftouch_op(3))
                if pub == 5 and opt.get("touchq", 0): side.add_hi(selftouchq_op())
            if sub == 0:
                if not qadded and st.pending() == 0:
                    G.quarter(bufq, hstoreq_fn); qadded = True
                if t == PB - 1: side.add_hi(poll_issue("b"))
                if t == PB: poll_check(E, "b", 3); E.events.add("pollB")
                if t == PC - 1: side.add_hi(poll_issue("c"))
                if t == PC: poll_check(E, "c", 4); E.events.add("pollC")
                if t == PD - 1: side.add_hi(poll_issue("d"))
                if t == PD: poll_check(E, "d", 5); E.events.add("pollD")
            mf = []
            for k in range(3):
                dt = 3 * sub + k
                a = vr(V_AR + 12 * sub_par + 4 * k)
                for tt in range(4):
                    mf.append(mfma(acc2(dt, tt), a, ar(hreg(t, tt)), t == 0, "a"))
            if sub < 2: reads = areads_g2(t, sub + 1, 1 - sub_par)
            elif t < 17: reads = areads_g2(t + 1, 0, 1 - sub_par)
            else: reads = []
            if t == 12 and sub == 0:
                prev = None
                for grp in (final8_setup() if G2X else final_setup(E)):
                    prev = st.add(grp, 2, [(prev, 1)] if prev else [])
            if t == 17 and sub >= 1 and G2X:
                final8_pack(st, range(12 * (sub - 1), 12 * sub))
                st.tick(); st.tick()
                E.raw("s_nop 3")
            if t == 17 and sub >= 1 and not G2X:
                for dt in range(3 * (sub - 1), 3 * sub):
                    for j in range(2):
                        st.add((lambda E, dt=dt, j=j: E.ds(f"ds_write_b128 v{V_RED}, {ar(acc2(dt, 2 + j))} offset:{(2*dt+j)*1024}")), 2, [])
                    for x in keep_reads(dt): st.add(x, 1, [])
                st.tick(); st.tick()
                E.raw("s_nop 3")
            kstep(E, st, side, mf, reads, side_gaps=(6, 7, 8, 9, 10, 11), cap_extra=(opt.get("capg", 1) if t < PUB5 else 0))
            if t == 17 and sub == 2: st.flush(E)
            sub_par = 1 - sub_par
        if E.stamp_sel is not None or t in (2, 5, 8, 11, 14, 17): E.stamp(f"G2t{t}")
        if t == PUB4 - 1:
            if E.vm.count("HS3") < 4: print(f"; note: flushing GELU(P3) at t={t}: {st.pending_cost()} slots", file=sys.stderr);
            while E.vm.count("HS3") < 4:
                st.tick(); E.raw("s_nop 0"); st.fill(E, 2)
        if t == PUB5 - 1:
            if not qadded:
                st.flush(E); G.quarter(bufq, hstoreq_fn); qadded = True
            if st.pending(): print(f"; note: flushing GELU(PQ) at t={t}: {st.pending_cost()} slots", file=sys.stderr)
            st.flush(E)
    assert side.empty(), "side ops left"
    E.raw("; MARK_END")
    E.skew_on = False
    if G2X: final8(E, st, opt)
    else: final(E, opt)
    return finish(E)

FIRST = [0, 5, 10, 14]
CNT = [5, 5, 4, 4]
RED = 73728
V_PUB2 = 2
KEEP = 128
RCV = 40

def final_setup(E):
    T0, T1 = V_T0, V_T1
    L = V_LANE
    G = []
    G.append(f"s_mul_i32 {s('t0')}, {s('wave')}, 18432\ns_add_u32 {s('t0')}, {s('t0')}, {RED}\nv_add_u32 v{V_RED}, {s('t0')}, v{V_L16}")
    G.append(f"s_xor_b32 {s('t1')}, {s('wave')}, 2\ns_mul_i32 {s('t1')}, {s('t1')}, 18432\ns_add_u32 {s('t1')}, {s('t1')}, {RED}\nv_add_u32 v{V_RED2}, {s('t1')}, v{V_L16}")
    G.append(f"s_lshl_b32 {s('t0')}, {s('mb')}, 3\ns_add_u32 {s('t0')}, {s('t0')}, {s('jj')}\ns_lshl_b32 {s('t0')}, {s('t0')}, 2\ns_add_u32 {s('t0')}, {s('t0')}, {s('wave')}\n"
             f"s_mul_i32 {s('t0')}, {s('t0')}, {16*5120}\ns_add_u32 {s('t0')}, {s('t0')}, {WS_P}\n"
             f"s_mul_i32 {s('t1')}, {s('sk')}, 5120\ns_add_u32 {s('pst')}, {s('t0')}, {s('t1')}\n"
             f"s_mul_i32 {s('t1')}, {s('sk')}, {4*5120}\ns_add_u32 {s('pld')}, {s('t0')}, {s('t1')}")
    G.append(f"s_lshl_b32 {s('t0')}, {s('mb')}, 8\ns_and_b32 {s('t1')}, {s('jj')}, 1\ns_lshl_b32 {s('t1')}, {s('t1')}, 7\ns_add_u32 {s('t0')}, {s('t0')}, {s('t1')}\n"
             f"s_lshl_b32 {s('t1')}, {s('th')}, 6\ns_add_u32 {s('t0')}, {s('t0')}, {s('t1')}\ns_lshl_b32 {s('t1')}, {s('kh')}, 5\ns_add_u32 {s('t0')}, {s('t0')}, {s('t1')}\n"
             f"s_mul_i32 {s('t0')}, {s('t0')}, {XROW}\ns_lshr_b32 {s('t1')}, {s('jj')}, 1\ns_mul_i32 {s('t1')}, {s('t1')}, 288\ns_add_u32 {s('outb')}, {s('t0')}, {s('t1')}")
    G.append(f"v_and_b32 v{T0}, 15, v{L}\nv_mul_u32_u24 v{T0}, {XROW}, v{T0}")
    G.append(f"v_lshrrev_b32 v{T1}, 4, v{L}\nv_lshl_add_u32 v{V_OUT}, v{T1}, 3, v{T0}")
    G.append(f"s_lshl_b32 {s('t0')}, {s('mb')}, 5\ns_add_u32 {s('t0')}, {s('t0')}, {s('jj')}\ns_lshl_b32 {s('t0')}, {s('t0')}, 2\ns_add_u32 {s('t0')}, {s('t0')}, {s('wave')}\n"
             f"s_lshl_b32 {s('t0')}, {s('t0')}, 7\ns_add_u32 {s('t0')}, {s('t0')}, {WS_F + 32768}\n"
             f"s_lshl_b32 {s('t1')}, {s('sk')}, 12\ns_add_u32 {s('pf2')}, {s('t0')}, {s('t1')}\n"
             f"v_min_u32 v{T0}, 3, v{L}\n"
             f"v_lshlrev_b32 v{T0}, 12, v{T0}\nv_add_u32 v{V_FO}, {s('t0')}, v{T0}")
    G.append(f"v_cmp_eq_u32 vcc, 0, v{L}\nv_mov_b32 v{T0}, {OOB}\nv_mov_b32 v{T1}, 0\ns_nop 0\nv_cndmask_b32 v{V_PUB2}, v{T0}, v{T1}, vcc")
    return G

def red_write(E, dt):
    for j in range(2):
        E.ds(f"ds_write_b128 v{V_RED}, {ar(acc2(dt, 2 + j))} offset:{(2*dt+j)*1024}")
def keep_reads(dt):
    return [f"v_accvgpr_read_b32 v{KEEP + (2*dt+j)*4 + r}, a{acc2(dt, j) + r}" for j in range(2) for r in range(4)]

def final(E, opt):
    R = E.raw
    R("s_nop 7")
    for dt in (6, 7, 8):
        red_write(E, dt)
        for x in keep_reads(dt): R(x)
    E.wait(ds=0, barrier=True)
    for ph in range(18):
        E.ds(f"ds_read_b128 {vr(RCV + 4*ph)}, v{V_RED2} offset:{ph*1024}")
    base_vm = list(E.vm); base_done = E.vm_done; base_ds = E.ds_out
    labs = [E.label(f"fin{k}") for k in range(4)]
    end = E.label("finend")
    R(f"s_cmp_eq_u32 {s('sk')}, 1\ns_cbranch_scc1 {labs[1]}\ns_cmp_eq_u32 {s('sk')}, 2\ns_cbranch_scc1 {labs[2]}\ns_cmp_eq_u32 {s('sk')}, 3\ns_cbranch_scc1 {labs[3]}")
    for sv in range(4):
        E.vm = list(base_vm); E.vm_done = base_done; E.ds_out = base_ds
        R(f"{labs[sv]}:")
        own = list(range(FIRST[sv], FIRST[sv] + CNT[sv]))
        XBF = OPT.get("xbf", 1)
        order = [ph for ph in range(18) if ph not in own] + own
        done_ds = -1
        for n, ph in enumerate(order):
            need = ph
            if need > done_ds:
                left = 17 - need
                E.wait(ds=min(left, E.ds_out))
                done_ds = need
            for r in range(4):
                R(f"v_add_f32 v{KEEP + 4*ph + r}, v{KEEP + 4*ph + r}, v{RCV + 4*ph + r}")
            if ph not in own:
                dest = max(d for d in range(4) if FIRST[d] <= ph)
                sig = ph - FIRST[dest]
                if not XBF:
                    R(f"s_add_u32 {s('so')}, {s('pst')}, {dest*4*5120 + sig*1024}")
                    E.vmem(f"buffer_store_dwordx4 {vr(KEEP + 4*ph)}, v{V_L16}, {srd(SRD_W)}, {s('so')} offen sc1", "PSx")
                else:
                    pb = RCV + 4 * (ph - (sig & 1)) + 2 * (sig & 1)
                    R(f"v_cvt_pk_bf16_f32 v{pb}, v{KEEP+4*ph}, v{KEEP+4*ph+1}")
                    R(f"v_cvt_pk_bf16_f32 v{pb+1}, v{KEEP+4*ph+2}, v{KEEP+4*ph+3}")
                    lastsig = CNT[dest] - 1
                    if (sig & 1) == 1 or sig == lastsig:
                        base = RCV + 4 * (ph - (sig & 1))
                        R(f"s_add_u32 {s('so')}, {s('pst')}, {dest*4*5120 + (sig >> 1)*1024}")
                        E.vmem(f"buffer_store_dwordx4 {vr(base)}, v{V_L16}, {srd(SRD_W)}, {s('so')} offen sc1", "PSx")
        E.stamp("F_red")
        R("s_waitcnt vmcnt(0)")
        E.vm_done = len(E.vm)
        E.stamp("F_ps")
        publish_op(6, V_PUB2, "pf2")(E)
        poll_check(E, "f", 6, voff=V_FO, issued=False)
        E.vm_done = len(E.vm)
        E.stamp("F_poll")
        srcs = [k for k in range(4) if k != sv]
        LD = RCV
        if not XBF:
            for sig in range(CNT[sv]):
                for n, src in enumerate(srcs):
                    R(f"s_add_u32 {s('so')}, {s('pld')}, {src*5120 + sig*1024}")
                    E.vmem(f"buffer_load_dwordx4 {vr(LD + (sig*3+n)*4)}, v{V_L16}, {srd(SRD_W)}, {s('so')} offen sc1", f"PL{sig}" if n == 2 else "PLx")
        else:
            npair = (CNT[sv] + 1) // 2
            for k in range(npair):
                for n, src in enumerate(srcs):
                    R(f"s_add_u32 {s('so')}, {s('pld')}, {src*5120 + k*1024}")
                    E.vmem(f"buffer_load_dwordx4 {vr(LD + (k*3+n)*4)}, v{V_L16}, {srd(SRD_W)}, {s('so')} offen sc1", f"PL{k}" if n == 2 else "PLx")
        for sig in range(CNT[sv]):
            ph = FIRST[sv] + sig
            dt, j = ph >> 1, ph & 1
            R(f"s_add_u32 {s('so')}, {s('outb')}, {dt*32 + j*16*XROW}")
            b = KEEP + 4 * ph
            if not XBF:
                E.wait(vm=f"PL{sig}")
                for r in range(4):
                    a = [LD + (sig*3+n)*4 + r for n in range(3)]
                    R(f"v_add_f32 v{a[0]}, v{a[0]}, v{a[1]}")
                    R(f"v_add_f32 v{b+r}, v{b+r}, v{a[2]}")
                    R(f"v_add_f32 v{b+r}, v{b+r}, v{a[0]}")
            else:
                E.wait(vm=f"PL{sig >> 1}")
                TMP = 100
                for n in range(3):
                    for h in range(2):
                        src_r = LD + ((sig >> 1)*3+n)*4 + 2*(sig & 1) + h
                        R(f"v_lshlrev_b32 v{TMP}, 16, v{src_r}")
                        R(f"v_and_b32 v{TMP+1}, 0xffff0000, v{src_r}")
                        R(f"v_add_f32 v{b+2*h}, v{b+2*h}, v{TMP}")
                        R(f"v_add_f32 v{b+2*h+1}, v{b+2*h+1}, v{TMP+1}")
            R(f"v_cvt_pk_bf16_f32 v{b}, v{b}, v{b+1}")
            R(f"v_cvt_pk_bf16_f32 v{b+1}, v{b+2}, v{b+3}")
            E.vmem(f"buffer_store_dwordx2 {vr(b, 2)}, v{V_OUT}, {srd(SRD_O)}, {s('so')} offen{' sc1' if OPT.get('outsc1', 0) else ''}", "OUT")
        if sv < 3: R(f"s_branch {end}")
    R(f"{end}:")

FIRST8 = [0, 5, 10, 15, 20, 24, 28, 32]
CNT8 = [5, 5, 5, 5, 4, 4, 4, 4]
PK8 = 128
P8_SLOT = 3072
def final8_setup():
    T0, T1 = V_T0, V_T1
    L = V_LANE
    G = []
    G.append(f"s_lshl_b32 {s('phi0')}, {s('sk')}, 1\ns_add_u32 {s('phi0')}, {s('phi0')}, {s('t5')}\n"
             f"s_and_b32 {s('t1')}, {s('jj')}, 3\ns_lshl_b32 {s('t0')}, {s('mb')}, 2\ns_add_u32 {s('t0')}, {s('t0')}, {s('t1')}\n"
             f"s_lshl_b32 {s('pf2')}, {s('t0')}, 3\n"
             f"s_lshl_b32 {s('t0')}, {s('t0')}, 2\ns_add_u32 {s('t0')}, {s('t0')}, {s('wave')}\ns_mul_i32 {s('t0')}, {s('t0')}, {64*P8_SLOT}\ns_add_u32 {s('t0')}, {s('t0')}, {WS_P}\n"
             f"s_mul_i32 {s('t1')}, {s('phi0')}, {P8_SLOT}\ns_add_u32 {s('pst')}, {s('t0')}, {s('t1')}\n"
             f"s_mul_i32 {s('t1')}, {s('phi0')}, {8*P8_SLOT}\ns_add_u32 {s('pld')}, {s('t0')}, {s('t1')}")
    G.append(f"s_lshl_b32 {s('t0')}, {s('pf2')}, 2\ns_add_u32 {s('t0')}, {s('t0')}, {s('wave')}\ns_lshl_b32 {s('t0')}, {s('t0')}, 7\ns_add_u32 {s('t0')}, {s('t0')}, {WS_F + 32768}\n"
             f"s_lshl_b32 {s('t1')}, {s('phi0')}, 9\ns_add_u32 {s('pf2')}, {s('t0')}, {s('t1')}\n"
             f"v_min_u32 v{T0}, 7, v{L}\nv_lshlrev_b32 v{T0}, 9, v{T0}\nv_add_u32 v{V_FO}, {s('t0')}, v{T0}")
    G.append(f"s_lshl_b32 {s('t0')}, {s('mb')}, 2\ns_add_u32 {s('t0')}, {s('t0')}, {s('wave')}\ns_mul_i32 {s('t0')}, {s('t0')}, {64*XROW}\n"
             f"s_and_b32 {s('t1')}, {s('jj')}, 3\ns_mul_i32 {s('t1')}, {s('t1')}, 288\ns_add_u32 {s('outb')}, {s('t0')}, {s('t1')}")
    G.append(f"v_and_b32 v{T0}, 15, v{L}\nv_mul_u32_u24 v{T0}, {XROW}, v{T0}")
    G.append(f"v_lshrrev_b32 v{T1}, 4, v{L}\nv_lshl_add_u32 v{V_OUT}, v{T1}, 3, v{T0}")
    G.append(f"v_cmp_eq_u32 vcc, 0, v{L}\nv_mov_b32 v{T0}, {OOB}\nv_mov_b32 v{T1}, 0\ns_nop 0\nv_cndmask_b32 v{V_PUB2}, v{T0}, v{T1}, vcc")
    G.append(f"s_mul_i32 {s('t0')}, {s('phi0')}, 5\ns_lshl_b32 {s('t1')}, {s('phi0')}, 2\ns_add_u32 {s('t1')}, {s('t1')}, 4\ns_cmp_lt_u32 {s('phi0')}, 4\n"
             f"s_cselect_b32 {s('phi0')}, {s('t0')}, {s('t1')}\ns_cselect_b32 {s('hldB')}, 5, 4")
    return G

def store_index8(ph):
    dest = max(d for d in range(8) if FIRST8[d] <= ph)
    sig = ph - FIRST8[dest]
    idx = sum((CNT8[d] + 1) // 2 for d in range(dest)) + (sig >> 1)
    return dest, sig, idx

_pk8_items = {}
def final8_pack(st, phis):
    for ph in phis:
        dt, tt = ph >> 2, ph & 3
        dest, sig, idx = store_index8(ph)
        a = acc2(dt, tt)
        tmp = 40 + 4 * (ph % 4)
        prev = _pk8_items.get(("tmp", ph % 4))
        rds = [st.add(f"v_accvgpr_read_b32 v{tmp+r}, a{a+r}", 1, [(prev, 0)] if prev else []) for r in range(4)]
        d = PK8 + 4 * idx + 2 * (sig & 1)
        c0 = st.add(f"v_cvt_pk_bf16_f32 v{d}, v{tmp}, v{tmp+1}", 1, [(rds[0], 0), (rds[1], 0)])
        c1 = st.add(f"v_cvt_pk_bf16_f32 v{d+1}, v{tmp+2}, v{tmp+3}", 1, [(rds[2], 0), (rds[3], 0)])
        _pk8_items[("tmp", ph % 4)] = c1
        _pk8_items[("c", ph)] = (c0, c1)
        if (sig & 1) == 1 or sig == CNT8[dest] - 1:
            deps = [(c0, 1), (c1, 1)]
            if sig & 1: deps += [(x, 1) for x in _pk8_items[("c", ph - 1)]]
            def f(E, dest=dest, sig=sig, idx=idx):
                E.raw(f"s_add_u32 {s('so')}, {s('pst')}, {dest*8*P8_SLOT + (sig >> 1)*1024}")
                E.vmem(f"buffer_store_dwordx4 {vr(PK8 + 4*idx)}, v{V_L16}, {srd(SRD_W)}, {s('so')} offen sc1", "PSx")
            st.add(f, 2, deps)

def final8(E, st, opt):
    R = E.raw
    R("s_nop 7")
    final8_pack(st, range(24, 36))
    while st.pending():
        st.tick(); n = st.fill(E, 6)
        if n == 0: R("s_nop 0")
    _pk8_items.clear()
    E.stamp("F_red")
    R("s_waitcnt vmcnt(0)")
    E.vm_done = len(E.vm)
    E.stamp("F_ps")
    publish_op(6, V_PUB2, "pf2")(E)
    poll_check(E, "f", 6, voff=V_FO, issued=False)
    E.vm_done = len(E.vm)
    E.stamp("F_poll")
    LD = 32
    for k in range(3):
        for src in range(8):
            R(f"s_add_u32 {s('so')}, {s('pld')}, {src*P8_SLOT + k*1024}")
            E.vmem(f"buffer_load_dwordx4 {vr(LD + (src*3+k)*4)}, v{V_L16}, {srd(SRD_W)}, {s('so')} offen sc1", f"PL{k}" if src == 7 else "PLx")
    ACC = 128; TMP = 160
    for sig in range(5):
        k, hf = sig >> 1, sig & 1
        R(f"s_add_u32 {s('t0')}, {s('phi0')}, {sig}\ns_lshr_b32 {s('t1')}, {s('t0')}, 2\ns_lshl_b32 {s('t1')}, {s('t1')}, 5\ns_and_b32 {s('t0')}, {s('t0')}, 3\ns_mul_i32 {s('t0')}, {s('t0')}, {16*XROW}")
        R(f"s_add_u32 {s('so')}, {s('outb')}, {s('t1')}\ns_add_u32 {s('so')}, {s('so')}, {s('t0')}")
        if sig == 4: R(f"s_cmp_lt_u32 4, {s('hldB')}\ns_cselect_b32 {s('so')}, {s('so')}, {OOB}")
        E.wait(vm=f"PL{k}")
        b = ACC + 4 * sig
        for src in range(8):
            r0 = LD + (src*3+k)*4 + 2*hf
            for h in range(2):
                if src == 0:
                    R(f"v_lshlrev_b32 v{b+2*h}, 16, v{r0+h}")
                    R(f"v_and_b32 v{b+2*h+1}, 0xffff0000, v{r0+h}")
                else:
                    tm = TMP + 2 * ((src + h) % 4)
                    R(f"v_lshlrev_b32 v{tm}, 16, v{r0+h}")
                    R(f"v_and_b32 v{tm+1}, 0xffff0000, v{r0+h}")
                    R(f"v_add_f32 v{b+2*h}, v{b+2*h}, v{tm}")
                    R(f"v_add_f32 v{b+2*h+1}, v{b+2*h+1}, v{tm+1}")
        R(f"v_cvt_pk_bf16_f32 v{b}, v{b}, v{b+1}")
        R(f"v_cvt_pk_bf16_f32 v{b+1}, v{b+2}, v{b+3}")
        E.vmem(f"buffer_store_dwordx2 {vr(b, 2)}, v{V_OUT}, {srd(SRD_O)}, {s('so')} offen", "OUT")

def ablate(E):
    if not any(OPT.get(k) for k in ("x_nobar", "x_novm", "x_nogelu", "x_nods", "x_nowait", "x_nod", "x_noh", "x_novmw")): return
    out = []; on = False
    for l in E.L:
        if l.startswith("; MARK_ABL"): on = True
        if l.startswith("; MARK_END"): on = False
        if on:
            if OPT.get("x_nobar") and l.startswith("s_barrier"): continue
            if OPT.get("x_novm") and l.startswith("buffer_"): continue
            if OPT.get("x_novm") and l.startswith("s_waitcnt vmcnt"):
                l = re.sub(r"vmcnt\(\d+\) ?", "", l)
                if l.strip() == "s_waitcnt": continue
            if OPT.get("x_nod") and l.startswith("buffer_load_dwordx4 v") and l.endswith("lds"): continue
            if OPT.get("x_noh") and l.startswith("buffer_load_dwordx") and " a[" in l: continue
            if OPT.get("x_novmw") and l.startswith("s_waitcnt vmcnt"):
                l = re.sub(r"vmcnt\(\d+\) ?", "", l)
                if l.strip() == "s_waitcnt": continue
            if OPT.get("x_nogelu") and re.match(r"v_(mul_f32|fma_f32|exp_f32|rcp_f32|add_f32|cvt_pk)", l): continue
            if OPT.get("x_nods") and l.startswith("ds_read"): continue
        out.append(l)
    E.L = out

def finish(E):
    ablate(E)
    if E.do_stamp:
        E.raw("s_waitcnt vmcnt(0)")
        E.stamp("end")
        E.raw(f"s_lshl_b32 {s('t0')}, s2, 2\ns_add_u32 {s('t0')}, {s('t0')}, {s('wave')}\ns_lshl_b32 {s('t0')}, {s('t0')}, 7\ns_add_u32 {s('t0')}, {s('t0')}, {60 << 20}")
        E.raw(f"v_mov_b32 v{V_T1}, 0")
        for i in range(len(E.stamps)):
            E.raw(f"v_mov_b32 v{V_T0}, s{86+i}")
            E.raw(f"buffer_store_dword v{V_T0}, v{V_T1}, {srd(SRD_W)}, {s('t0')} offen offset:{4*i}")
        E.raw("s_waitcnt vmcnt(0)")
        print("STAMPS=" + ",".join(E.stamps), file=sys.stderr)
    E.raw("L_end:")
    E.raw("s_endpgm")
    for x in E.slow: E.raw(x)
    E.raw("s_endpgm")
    E.raw("L_codeend:")
    return E

def emit_file(opt):
    E = build(opt)
    hdr = open("standalone__glu_gated_geglu__prompt.s.ref").read().split("\n") if opt.get("hdr", True) else []
    out = []
    for l in hdr:
        if l.startswith("; @launch") or l.startswith("; Override") or l.startswith("; grid=") : continue
        if l.startswith(";"): out.append(l)
        else: break
    out.append(f"; @launch grid=(256,1,1) block=(256,1,1) lds={LDS_BYTES}")
    out.append('.amdgcn_target "amdgcn-amd-amdhsa--gfx950"')
    out.append(".text")
    out.append(f".globl {KNAME}")
    out.append(".p2align 8")
    out.append(f".type {KNAME},@function")
    out.append(f"{KNAME}:")
    out += E.L
    out.append(".fill 64, 4, 0xbf800000")
    out.append('.section .rodata,"a"')
    out.append(".p2align 6")
    out.append(f".amdhsa_kernel {KNAME}")
    out += ["  .amdhsa_next_free_vgpr 512", "  .amdhsa_next_free_sgpr 102", "  .amdhsa_accum_offset 256",
            "  .amdhsa_group_segment_fixed_size 0", "  .amdhsa_kernarg_size 56", "  .amdhsa_user_sgpr_count 2",
            "  .amdhsa_user_sgpr_kernarg_segment_ptr 1", "  .amdhsa_system_sgpr_workgroup_id_x 1",
            "  .amdhsa_float_denorm_mode_32 3",
            ".end_amdhsa_kernel"]
    return "\n".join(out) + "\n"

if __name__ == "__main__":
    opt = {}
    path = sys.argv[1] if len(sys.argv) > 1 else "k.s"
    for a in sys.argv[2:]:
        k, v = a.split("=")
        opt[k] = int(v) if v.lstrip("-").isdigit() else v
    open(path, "w").write(emit_file(opt))
```

```python
import sys, struct, re

KNAME = "standalone__glu_gated_geglu__prompt_kernel"
HSC = " sc1"
WQE = True
G2X = False
OPT = {}

DM, DF, NTOK = 576, 4608, 2048
XROW = DM * 2
WROW = DF * 2
LDS_BYTES = 163840
W1_KS = 8192
XST = 98304
WD_SLOT = 18432
SCRATCH = 147456
H_KS = 4096
WS_P = 32 << 20
WS_F = 56 << 20
WS_SIZE = 64 << 20
OOB = 0x40000000
GA = -2.0 * 0.7978845608028654 * 1.4426950408889634
GB = GA * 0.044715
SPIN_MAX = 400000

def f2u(x): return struct.unpack('<I', struct.pack('<f', x))[0]

S = {}
SRD_X, SRD_G, SRD_U, SRD_D, SRD_W, SRD_O, SRD_F, SRD_Q = 8, 12, 16, 20, 24, 28, 32, 36
def srd(b): return f"s[{b}:{b+3}]"
_n = 40
for nm in ["wave", "mb", "sk", "jj", "cu", "th", "kh", "xoff", "w1col", "wqcol", "hst", "hstq", "hldA", "hldB", "hlqA", "hlqB",
           "wd0", "wdq", "flagh", "t0", "t1", "t2", "t3", "t4", "t5", "m0w", "m0x", "m0q", "m0d", "m0d5", "kb", "pst", "pld",
           "outb", "spin", "phi0", "so", "so2", "pf", "tA", "tB", "pf2", "nonce"]:
    S[nm] = _n; _n += 1
assert _n <= 100
def s(n): return f"s{S[n]}"

V_LANE = 1
V_W1 = 2
V_WQ = 3
V_A = 4
V_AQ = 10
V_L16 = 11
V_L8 = 12
V_KA = 13
V_PUB = 14
V_ONE = 15
V_FL = 16
V_T0 = 17; V_T1 = 18; V_T2 = 19; V_T3 = 20
V_X = 21
V_XR = 25
V_WD = 27
V_HS = 32
V_GT = 40
N_GSET = 4
V_T128 = 56; V_T128H = 57; V_T128B = 58
V_TROW = 40; V_TROWB = 41; V_TROWQ = 42
V_PUBD = 43; V_NA = 44; V_NB = 45
V_FH = 59
V_A2 = 60
V_Z = 63
V_XO = 64
V_AR = 96
V_BUF = [128, 192]
V_FO = 21; V_OUT = 22; V_RED = 23; V_RED2 = 24

def xreg(ks, tt):
    i = ks * 4 + tt
    if i < 64: return f"a[{4*i}:{4*i+3}]"
    b = V_XO + 4 * (i - 64)
    return f"v[{b}:{b+3}]"
def hreg(t, tt):
    b = 16 * (t % 7) + 4 * tt
    return b
def acc2(dt, tt):
    b = 112 + 16 * dt + 4 * tt
    return b

def expected_count(tag):
    if tag.startswith("POLL") or tag.startswith("PUB"): return 1
    if tag == "WQ": return 9
    if tag == "NONCE": return 1
    if tag == "TCH": return -1
    if tag == "PS": return 18
    if tag in ("PSx", "PLx", "OUT"): return -1
    if tag.startswith("PL"): return 1
    if tag.startswith("HS"): return 4
    if tag[0] == "X": return 4
    if tag[0] == "W": return 6
    if tag[0] == "D": return 3 if G2X else 5
    if tag[0] == "H": return 4 if int(tag[1:]) < 16 else 8
    raise KeyError(tag)

class Emit:
    def __init__(self):
        self.L = []
        self.vm = []
        self.vm_done = 0
        self.dsq = []
        self.ds_done = 0
        self.slow = []
        self.nlab = 0
        self.do_stamp = False
        self.events = set()
        self.skew_on = False
        self.stamps = []
        self.stamp_sel = None
    def raw(self, t):
        for x in t.split("\n"):
            self.L.append(x)
    def vmem(self, text, tag):
        self.L.append(text)
        self.vm.append(tag)
    @property
    def ds_out(self): return len(self.dsq) - self.ds_done
    @ds_out.setter
    def ds_out(self, n):
        if n == 0: self.ds_done = len(self.dsq)
        elif n < self.ds_out: self.ds_done = len(self.dsq) - n
        else:
            self.ds_done = len(self.dsq) - n
    def ds(self, text, tag=None):
        if self.ds_out >= 15:
            self.L.append("s_waitcnt lgkmcnt(10)")
            self.ds_out = 10
        self.L.append(text)
        self.dsq.append(tag)
    def wait_dstag(self, tag):
        idx = max(i for i, t in enumerate(self.dsq) if t == tag)
        if idx < self.ds_done: return
        n = min(len(self.dsq) - 1 - idx, 15)
        self.L.append(f"s_waitcnt lgkmcnt({n})")
        self.ds_done = len(self.dsq) - n
    def _vmN(self, tags):
        idx = -1
        for tg in tags:
            exp = expected_count(tg)
            got = self.vm.count(tg)
            if exp < 0: continue
            assert got == exp, f"wait on {tg}: {got} ops issued, expected {exp}"
        for i, t in enumerate(self.vm):
            if t in tags: idx = i
        assert idx >= 0, f"no vmem op with tags {tags}"
        if idx < self.vm_done: return None
        return min(len(self.vm) - 1 - idx, 63)
    def wait(self, vm=None, ds=None, barrier=False):
        parts = []
        if vm is not None:
            if isinstance(vm, str): vm = [vm]
            n = self._vmN(set(vm))
            if n is not None:
                parts.append(f"vmcnt({n})")
                self.vm_done = max(self.vm_done, len(self.vm) - n)
        if ds is not None and self.ds_out > ds:
            parts.append(f"lgkmcnt({ds})")
            self.ds_out = ds
        if parts:
            self.L.append("s_waitcnt " + " ".join(parts))
        if barrier:
            self.L.append("s_barrier")
            if OPT.get("skew") and self.skew_on:
                for k in range(1, 4):
                    lab = self.label("sk")
                    self.L.append(f"s_cmp_ge_u32 {s('wave')}, {k}")
                    self.L.append(f"s_cbranch_scc0 {lab}")
                    self.L.append(f"s_nop {OPT['skew']}")
                    self.L.append(f"{lab}:")
    def wait_all(self):
        self.L.append("s_waitcnt vmcnt(0) lgkmcnt(0)")
        self.vm_done = len(self.vm); self.ds_out = 0
    def assert_done(self, tag):
        found = False
        for i, t in enumerate(self.vm):
            if t == tag:
                found = True
                assert i < self.vm_done, f"tag {tag} not complete"
        assert found, f"tag {tag} never issued"
    def issued(self, tag):
        return tag in self.vm
    def stamp(self, name):
        if not self.do_stamp: return
        if self.stamp_sel is not None and name not in self.stamp_sel and name not in ("start", "end"): return
        if name in self.stamps: idx = self.stamps.index(name)
        else:
            idx = len(self.stamps)
            assert idx < 16
            self.stamps.append(name)
        self.L.append("s_memtime s[84:85]" if OPT.get("cyc") else "s_memrealtime s[84:85]")
        self.L.append("s_waitcnt lgkmcnt(0)")
        self.ds_out = 0
        self.L.append(f"s_mov_b32 s{86+idx}, s84")
    def label(self, base):
        self.nlab += 1
        return f"L_{base}_{self.nlab}"

class Item:
    def __init__(self, text, cost, deps=()):
        self.text = text; self.cost = cost; self.deps = list(deps); self.placed = None

class Stream:
    def __init__(self):
        self.items = []; self.head = 0; self.gap = 0
    def add(self, text, cost, deps=()):
        it = Item(text, cost, deps); self.items.append(it); return it
    def pending(self):
        return sum(1 for it in self.items[self.head:] if it.placed is None)
    def pending_cost(self):
        return sum(it.cost for it in self.items[self.head:] if it.placed is None)
    def tick(self):
        self.gap += 1
    def fill(self, E, cap, window=48):
        used = 0
        while used < cap:
            while self.head < len(self.items) and self.items[self.head].placed is not None:
                self.head += 1
            pick = None
            for it in self.items[self.head:self.head + window]:
                if it.placed is not None or it.cost > cap - used: continue
                if all(d.placed is not None and self.gap >= d.placed + delta for d, delta in it.deps):
                    pick = it; break
            if pick is None: break
            pick.placed = self.gap
            if callable(pick.text): pick.text(E)
            else: E.raw(pick.text)
            used += pick.cost
        return used
    def flush(self, E):
        n = 0
        while self.pending():
            self.tick()
            E.raw("s_nop 0")
            self.fill(E, 4)
            n += 1
        return n

class Gelu:
    def __init__(self, st):
        self.st = st
        self.pairno = 0
        self.set_last = [None] * N_GSET
        self.nset = N_GSET
        self.stg = 0
        self.stg_last = [None, None]
    def pair(self, g0, u0, g1, u1, dst):
        st = self.st
        k = self.pairno % self.nset; self.pairno += 1
        T0, T1, G0, G1 = [V_GT + 4 * k + i for i in range(4)]
        prev = [(self.set_last[k], 0)] if self.set_last[k] is not None else []
        sprev = dst[1]
        a0 = st.add(f"v_mul_f32 v{T0}, v{g0}, v{g0}", 1, prev)
        a1 = st.add(f"v_mul_f32 v{T1}, v{g1}, v{g1}", 1, prev)
        b0 = st.add(f"v_fma_f32 v{T0}, v{T0}, {s('kb')}, v{V_KA}", 1, [(a0, 0)])
        b1 = st.add(f"v_fma_f32 v{T1}, v{T1}, {s('kb')}, v{V_KA}", 1, [(a1, 0)])
        c0 = st.add(f"v_mul_f32 v{T0}, v{T0}, v{g0}", 1, [(b0, 0)])
        c1 = st.add(f"v_mul_f32 v{T1}, v{T1}, v{g1}", 1, [(b1, 0)])
        e0 = st.add(f"v_exp_f32 v{T0}, v{T0}", 2, [(c0, 0)])
        e1 = st.add(f"v_exp_f32 v{T1}, v{T1}", 2, [(c1, 0)])
        m0 = st.add(f"v_mul_f32 v{G0}, v{g0}, v{u0}", 1, prev)
        m1 = st.add(f"v_mul_f32 v{G1}, v{g1}, v{u1}", 1, prev)
        d0 = st.add(f"v_add_f32 v{T0}, 1.0, v{T0}", 1, [(e0, 1)])
        d1 = st.add(f"v_add_f32 v{T1}, 1.0, v{T1}", 1, [(e1, 1)])
        r0 = st.add(f"v_rcp_f32 v{T0}, v{T0}", 2, [(d0, 0)])
        r1 = st.add(f"v_rcp_f32 v{T1}, v{T1}", 2, [(d1, 0)])
        h0 = st.add(f"v_mul_f32 v{G0}, v{G0}, v{T0}", 1, [(r0, 1), (m0, 0)])
        h1 = st.add(f"v_mul_f32 v{G1}, v{G1}, v{T1}", 1, [(r1, 1), (m1, 0)])
        pk = st.add(f"v_cvt_pk_bf16_f32 v{dst[0]}, v{G0}, v{G1}", 1, [(h0, 0), (h1, 0)] + ([(sprev, 2)] if sprev is not None else []))
        self.set_last[k] = pk
        return pk
    def full_pass(self, buf, store_fn):
        last = None
        for tt in range(4):
            sg = self.stg % 2; self.stg += 1
            base = V_HS + 4 * sg
            pks = []
            for grp in range(2):
                for hp in range(2):
                    g = buf + (grp * 2 + 0) * 16 + tt * 4 + 2 * hp
                    u = buf + (grp * 2 + 1) * 16 + tt * 4 + 2 * hp
                    pks.append(self.pair(g, u, g + 1, u + 1, (base + grp * 2 + hp, self.stg_last[sg])))
            stt = self.st.add((lambda E, tt=tt, base=base: store_fn(E, tt, base)), 2, [(p, 1) for p in pks])
            self.stg_last[sg] = stt
            last = stt
        return last
    def half_pass(self, buf, half, store_fn):
        for pp in range(2):
            for tq in range(2):
                sg = self.stg % 2; self.stg += 1
                base = V_HS + 4 * sg
                pks = []
                for grp in range(2):
                    g_ = 2 * pp + grp
                    for hp in range(2):
                        g = buf + ((g_ * 2 + 0) * 2 + tq) * 4 + 2 * hp
                        u = buf + ((g_ * 2 + 1) * 2 + tq) * 4 + 2 * hp
                        pks.append(self.pair(g, u, g + 1, u + 1, (base + grp * 2 + hp, self.stg_last[sg])))
                stt = self.st.add((lambda E, pp=pp, tt=2 * half + tq, base=base: store_fn(E, pp, tt, base)), 2, [(p, 1) for p in pks])
                self.stg_last[sg] = stt
    def quarter(self, buf, store_fn):
        last = None
        for tt in range(4):
            sg = self.stg % 2; self.stg += 1
            base = V_HS + 4 * sg
            pks = []
            for hp in range(2):
                g = buf + tt * 4 + 2 * hp
                u = buf + 16 + tt * 4 + 2 * hp
                pks.append(self.pair(g, u, g + 1, u + 1, (base + hp, self.stg_last[sg])))
            stt = self.st.add((lambda E, tt=tt, base=base: store_fn(E, tt, base)), 2, [(p, 1) for p in pks])
            self.stg_last[sg] = stt
            last = stt
        return last

def mfma(d, a, b, first, dpre="v"):
    c = "0" if first else f"{dpre}[{d}:{d+3}]"
    return f"v_mfma_f32_16x16x32_bf16 {dpre}[{d}:{d+3}], {a}, {b}, {c}"

def vr(b, n=4): return f"v[{b}:{b+n-1}]"
def ar(b, n=4): return f"a[{b}:{b+n-1}]"

def prologue(E, opt):
    R = E.raw
    L = V_LANE
    T0, T1, T2, T3 = V_T0, V_T1, V_T2, V_T3
    R("s_cmp_ge_u32 s2, 256")
    R("s_cbranch_scc1 L_end")
    R("s_load_dwordx4 s[4:7], s[0:1], 0")
    R("s_load_dwordx4 s[16:19], s[0:1], 16")
    R("s_load_dwordx4 s[28:31], s[0:1], 32")
    R("s_load_dwordx2 s[24:25], s[0:1], 48")
    R("s_memrealtime s[84:85]")
    R(f"v_and_b32 v{L}, 63, v0")
    R(f"v_lshrrev_b32 v{T0}, 6, v0")
    R(f"v_cmp_eq_u32 vcc, 0, v0")
    R(f"v_readfirstlane_b32 {s('wave')}, v{T0}")
    R(f"v_mov_b32 v{T0}, {OOB}")
    R(f"v_mov_b32 v{T1}, 0")
    R(f"v_lshlrev_b32 v{V_T128}, 7, v{L}")
    R(f"v_cndmask_b32 v{V_PUB}, v{T0}, v{T1}, vcc")
    if opt.get("tcode", 1):
        R(f"s_getpc_b64 s[36:37]")
        R(f"L_pc:")
        R(f"s_sub_u32 s36, s36, L_pc-{KNAME}\ns_subb_u32 s37, s37, 0")
        R(f"s_mov_b32 s38, L_codeend-{KNAME}\ns_mov_b32 s39, 0x20000")
        R(f"s_lshr_b32 {s('t0')}, s2, 1\ns_and_b32 {s('t0')}, {s('t0')}, 4\ns_add_u32 {s('t0')}, {s('t0')}, {s('wave')}\ns_lshl_b32 {s('t0')}, {s('t0')}, 13")
        E.vmem(f"buffer_load_dword v{V_DUM}, v{V_T128}, s[36:39], {s('t0')} offen", "TCH")
    R(f"s_and_b32 {s('sk')}, s2, 3")
    R(f"s_lshr_b32 {s('t0')}, s2, 2\ns_and_b32 {s('t0')}, {s('t0')}, 1")
    R(f"s_lshr_b32 {s('t1')}, s2, 3")
    R(f"s_and_b32 {s('jj')}, {s('t1')}, 7")
    R(f"s_lshr_b32 {s('t1')}, {s('t1')}, 3")
    R(f"s_lshl_b32 {s('mb')}, {s('t0')}, 2\ns_add_u32 {s('mb')}, {s('mb')}, {s('t1')}")
    R(f"s_lshl_b32 {s('t0')}, {s('mb')}, 2\ns_add_u32 {s('t0')}, {s('t0')}, {s('wave')}\ns_mul_i32 {s('xoff')}, {s('t0')}, {64*XROW}")
    R(f"s_lshl_b32 {s('m0x')}, {s('wave')}, {12 if opt.get('th2', 0) else 14}\ns_add_u32 {s('m0x')}, {s('m0x')}, {XST}")
    R(f"v_lshrrev_b32 v{T0}, 3, v{L}")
    R(f"v_and_b32 v{T1}, 7, v{L}")
    R(f"v_lshrrev_b32 v{T2}, 1, v{T0}")
    R(f"v_xor_b32 v{T2}, v{T2}, v{T1}")
    R(f"v_mul_u32_u24 v{T3}, {XROW}, v{T0}")
    R(f"v_lshl_add_u32 v{V_X}, v{T2}, 4, v{T3}")
    R(f"v_xor_b32 v{V_X+1}, 64, v{V_X}")
    R(f"v_add_u32 v{V_X+2}, {2*(8*XROW-1024)}, v{V_X}")
    R(f"v_add_u32 v{V_X+3}, {3*(8*XROW-1024)}, v{V_X+1}")
    R(f"v_add_u32 v{V_X+1}, {1*(8*XROW-1024)}, v{V_X+1}")
    R(f"s_and_b32 {s('th')}, {s('wave')}, 1\ns_lshr_b32 {s('kh')}, {s('wave')}, 1")
    R(f"v_and_b32 v{T2}, 2, v{T0}")
    R(f"v_xor_b32 v{T2}, v{T2}, v{T1}")
    R(f"s_lshl_b32 {s('t0')}, {s('th')}, 2")
    R(f"v_xor_b32 v{T2}, {s('t0')}, v{T2}")
    R(f"v_mul_u32_u24 v{T3}, {WROW}, v{T0}")
    R(f"v_lshl_add_u32 v{V_W1}, v{T2}, 4, v{T3}")
    R(f"s_mul_i32 {s('t0')}, {s('wave')}, {8*WROW}")
    R(f"v_add_u32 v{V_W1}, {s('t0')}, v{V_W1}")
    R(f"s_mul_i32 {s('t0')}, {s('sk')}, 2304")
    R(f"s_lshl_b32 {s('t1')}, {s('jj')}, 8\ns_add_u32 {s('w1col')}, {s('t0')}, {s('t1')}")
    R(f"s_lshl_b32 {s('m0w')}, {s('wave')}, 11")
    R("s_waitcnt lgkmcnt(0)")
    E.stamp("karg")
    R(f"s_mov_b32 s8, s4\ns_mov_b32 s9, s5\ns_mov_b32 s10, {NTOK*XROW}\ns_mov_b32 s11, 0x20000")

V_TCH = 48
def coop_setup(E):
    R = E.raw; L = V_LANE
    lx = E.label("cx"); le = E.label("ce")
    R(f"s_lshr_b32 {s('t0')}, s2, 3\ns_lshl_b32 {s('t0')}, {s('t0')}, 2\ns_add_u32 {s('t0')}, {s('t0')}, {s('wave')}")
    R(f"s_mov_b32 s36, s4\ns_mov_b32 s37, s5\ns_mov_b32 s38, {NTOK*XROW}\ns_mov_b32 s39, 0x20000")
    R(f"v_mul_u32_u24 v{V_T0}, {XROW}, v{L}")
    R(f"s_cmp_lt_u32 {s('t0')}, 64")
    R(f"s_cbranch_scc1 {lx}")
    R(f"s_sub_u32 {s('t0')}, {s('t0')}, 64\ns_cmp_lt_u32 {s('t0')}, 32")
    R(f"s_cselect_b32 s36, s6, s16\ns_cselect_b32 s37, s7, s17\ns_mov_b32 s38, {DM*WROW}")
    R(f"s_and_b32 {s('t1')}, {s('t0')}, 3\ns_mul_i32 {s('t1')}, {s('t1')}, {48*WROW}")
    R(f"s_lshr_b32 {s('t2')}, {s('t0')}, 2\ns_and_b32 {s('t2')}, {s('t2')}, 7\ns_lshl_b32 {s('t2')}, {s('t2')}, 8\ns_add_u32 {s('t1')}, {s('t1')}, {s('t2')}")
    R(f"s_mul_i32 {s('t2')}, {s('sk')}, 2304\ns_add_u32 {s('tA')}, {s('t1')}, {s('t2')}\ns_mov_b32 {s('tB')}, {192*WROW}")
    R(f"v_mul_u32_u24 v{V_TCH}, {WROW}, v{L}")
    R(f"s_branch {le}")
    R(f"{lx}:")
    R(f"s_lshr_b32 {s('t1')}, {s('t0')}, 4\ns_and_b32 {s('t2')}, {s('mb')}, 4\ns_add_u32 {s('t1')}, {s('t1')}, {s('t2')}\ns_lshl_b32 {s('t1')}, {s('t1')}, 8")
    R(f"s_and_b32 {s('t2')}, {s('t0')}, 15\ns_lshl_b32 {s('t2')}, {s('t2')}, 4\ns_add_u32 {s('t1')}, {s('t1')}, {s('t2')}\ns_mul_i32 {s('tA')}, {s('t1')}, {XROW}\ns_mov_b32 {s('tB')}, 384")
    R(f"v_mul_u32_u24 v{V_T0}, 21846, v{L}\nv_lshrrev_b32 v{V_T0}, 16, v{V_T0}")
    R(f"v_mul_u32_u24 v{V_T1}, 3, v{V_T0}\nv_sub_u32 v{V_T1}, v{L}, v{V_T1}")
    R(f"v_mul_u32_u24 v{V_T0}, {XROW}, v{V_T0}\nv_lshl_add_u32 v{V_TCH}, v{V_T1}, 7, v{V_T0}")
    R(f"{le}:")
    R(f"v_mov_b32 v{V_T0}, {OOB}\nv_cmp_gt_u32 vcc, 48, v{L}\ns_nop 1\nv_cndmask_b32 v{V_TCH}, v{V_T0}, v{V_TCH}, vcc")

def coop_touch(E, g):
    E.vmem(f"buffer_load_dword v{V_DUM}, v{V_TCH}, s[36:39], {s('tA')} offen", "TCH")
    if g < 2: E.raw(f"s_add_u32 {s('tA')}, {s('tA')}, {s('tB')}")

def prologue_w(E):
    R = E.raw
    R(f"s_mov_b32 s12, s6\ns_mov_b32 s13, s7\ns_mov_b32 s14, {DM*WROW}\ns_mov_b32 s15, 0x20000")
    R(f"s_mov_b32 s20, s18\ns_mov_b32 s21, s19\ns_mov_b32 s22, {DF*XROW}\ns_mov_b32 s23, 0x20000")
    R(f"s_sub_u32 s16, s16, 1024\ns_subb_u32 s17, s17, 0\ns_mov_b32 s18, {DM*WROW+1024}\ns_mov_b32 s19, 0x20000")
    R(f"s_mov_b32 s32, s30\ns_mov_b32 s33, s31\ns_mov_b32 s34, 256\ns_mov_b32 s35, 0x20000")
    R(f"s_mov_b32 s30, {NTOK*XROW}\ns_mov_b32 s31, 0x20000")
    R(f"s_mov_b32 s26, {WS_SIZE}\ns_mov_b32 s27, 0x20000")

def issue_x(E, piece):
    c, hf = piece >> 1, piece & 1
    E.raw(f"s_add_u32 m0, {s('m0x')}, {(piece % 4) * 4096}")
    E.raw(f"s_add_u32 {s('so2')}, {s('xoff')}, {hf * 32 * XROW + c * 128}")
    for u in range(4):
        E.vmem(f"buffer_load_dwordx4 v{V_X+u}, {srd(SRD_X)}, {s('so2')} offen offset:{u*1024} lds", f"X{piece}")

def w1_ops(line, ks):
    def setup(E):
        E.raw(f"s_add_u32 m0, {s('m0w')}, {ks * W1_KS}")
        E.raw(f"s_add_u32 {s('so')}, {s('w1col')}, {ks * 32 * WROW + line * 128}")
    def g(E): E.vmem(f"buffer_load_dwordx4 v{V_W1}, {srd(SRD_G)}, {s('so')} offen lds", f"W{line}_{ks//3}")
    def u(E): E.vmem(f"buffer_load_dwordx4 v{V_W1}, {srd(SRD_U)}, {s('so')} offen offset:1024 lds", f"W{line}_{ks//3}")
    return setup, g, u

def issue_w1_slot(E, line, slot):
    for ks in range(3 * slot, 3 * slot + 3):
        a, b, c = w1_ops(line, ks)
        a(E); b(E); c(E)

def read_x(E, chunk):
    out = []
    for hf in range(2):
        piece = 2 * chunk + hf
        for h in range(2):
            for tp in range(2):
                ks = 2 * chunk + h
                tt = 2 * hf + tp
                out.append(f"ds_read_b128 {xreg(ks, tt)}, v{V_XR + h} offset:{(piece % 4) * 4096 + tp * 2048}")
    return out

def areads_w1(ph, ks, par=None, alt=False):
    out = []
    reg, kk = divmod(ks, 6)
    if par is None: par = ks & 1
    for f in range(4):
        grp, mat = f >> 1, f & 1
        d = V_AR + 16 * par + 4 * f
        base = (V_AB if alt else V_A) + 2 * reg + grp
        for sec in range(2):
            out.append(f"ds_read_b64_tr_b16 v[{d+2*sec}:{d+2*sec+1}], v{base} offset:{kk*W1_KS + mat*1024 + sec*512}")
    return out

def areads_q(ks, par):
    out = []
    kk = (ks if ks < 8 else ks - 8) if WQE else ks
    for mat in range(2):
        d = V_AR + 16 * par + 4 * mat
        for sec in range(2):
            out.append(f"ds_read_b64_tr_b16 v[{d+2*sec}:{d+2*sec+1}], v{V_AQ} offset:{kk*2048 + mat*1024 + sec*256}")
    return out

def areads_g2(t, sub, par):
    if G2X:
        slot = (t + 3) % 16
        reg, sl = divmod(slot, 6)
        out = []
        for k in range(3):
            dt = 3 * sub + k
            d = V_AR + 12 * par + 4 * k
            for sec in range(2):
                out.append(f"ds_read_b64_tr_b16 v[{d+2*sec}:{d+2*sec+1}], v{V_A2+reg} offset:{sl*9216 + dt*32 + sec*4608}")
        return out
    slot = (t + 2) % 8
    reg, sl = divmod(slot, 3)
    out = []
    for k in range(3):
        dt = 3 * sub + k
        d = V_AR + 12 * par + 4 * k
        for sec in range(2):
            out.append(f"ds_read_b64_tr_b16 v[{d+2*sec}:{d+2*sec+1}], v{V_A2+reg} offset:{sl*WD_SLOT + dt*32 + sec*4608}")
    return out

def kap(t):
    return 4 * (t & 3) + (t >> 2)

def wd_ops(t):
    if G2X:
        slot = (t + 3) % 16
        def setup(E):
            E.raw(f"s_add_u32 m0, {s('m0d')}, {slot * 9216}")
            if t < 16: E.raw(f"s_add_u32 {s('so')}, {s('wd0')}, {32 * kap(t) * XROW}")
            else: E.raw(f"s_add_u32 {s('so')}, {s('wdq')}, {32 * (t - 16) * XROW}")
        def d0(E): E.vmem(f"buffer_load_dwordx4 v{V_WD}, {srd(SRD_D)}, {s('so')} offen lds", f"D{t}")
        def s1(E): E.raw(f"s_add_u32 m0, {s('m0d')}, {slot * 9216 + 4096}")
        def d1(E): E.vmem(f"buffer_load_dwordx4 v{V_WD+1}, {srd(SRD_D)}, {s('so')} offen lds", f"D{t}")
        def s2(E): E.raw(f"s_add_u32 m0, {s('m0d5')}, {slot * 9216}")
        def d2(E):
            E.raw("s_mov_b64 exec, 0xffff")
            E.vmem(f"buffer_load_dwordx4 v{V_WD+2}, {srd(SRD_D)}, {s('so')} offen lds", f"D{t}")
            E.raw("s_mov_b64 exec, -1")
        return [(setup, 's'), (d0, 'v'), (s1, 's'), (d1, 'v'), (s2, 's'), (d2, 'v')]
    slot = (t + 2) % 8
    def setup(E):
        E.raw(f"s_add_u32 m0, {s('m0d')}, {slot * WD_SLOT}")
        if OPT.get("nowd"):
            E.raw(f"s_mov_b32 {s('so')}, {OOB}"); return
        if OPT.get("dhot"): E.raw(f"s_add_u32 {s('so')}, {s('wd0')}, 0")
        elif t < 16: E.raw(f"s_add_u32 {s('so')}, {s('wd0')}, {32 * kap(t) * XROW}")
        else: E.raw(f"s_add_u32 {s('so')}, {s('wdq')}, {32 * (t - 16) * XROW}")
    def mk(i):
        def f(E): E.vmem(f"buffer_load_dwordx4 v{V_WD+i}, {srd(SRD_D)}, {s('so')} offen offset:{i*1024} lds", f"D{t}")
        return f
    def setup5(E):
        E.raw(f"s_add_u32 m0, {s('m0d5')}, {slot * WD_SLOT}")
    def d4(E):
        E.raw("s_mov_b32 exec_hi, 0")
        E.vmem(f"buffer_load_dwordx4 v{V_WD+4}, {srd(SRD_D)}, {s('so')} offen lds", f"D{t}")
        E.raw("s_mov_b32 exec_hi, -1")
    return [(setup, 's'), (mk(0), 'v'), (mk(1), 'v'), (mk(2), 'v'), (mk(3), 'v'), (setup5, 's'), (d4, 'v')]

def h_ops(t):
    ops = []
    if G2X:
        if t < 16:
            ops.append(((lambda E: E.raw(f"s_add_u32 {s('tA')}, {s('hldA')}, {kap(t) * H_KS}")), 's'))
            for tt in range(4):
                ops.append(((lambda E, tt=tt: E.vmem(f"buffer_load_dwordx4 {ar(hreg(t, tt))}, v{V_L16}, {srd(SRD_W)}, {s('tA')} offen offset:{tt * 1024}{HSC}", f"H{t}")), 'v'))
        else:
            ops.append(((lambda E: E.raw(f"s_add_u32 {s('tA')}, {s('hlqA')}, {(t - 16) * H_KS}")), 's'))
            for tt in range(4):
                for hf in range(2):
                    ops.append(((lambda E, tt=tt, hf=hf: E.vmem(f"buffer_load_dwordx2 {ar(hreg(t, tt) + 2 * hf, 2)}, v{V_L8}, {srd(SRD_W)}, {s('tA')} offen offset:{tt * 1024 + hf * 512}{HSC}", f"H{t}")), 'v'))
        return ops
    if t < 16:
        def setup(E):
            if OPT.get("noh"):
                E.raw(f"s_mov_b32 {s('tA')}, {OOB}"); E.raw(f"s_mov_b32 {s('tB')}, {OOB}"); return
            kk_ = 0 if OPT.get("hhot") else kap(t)
            E.raw(f"s_add_u32 {s('tA')}, {s('hldA')}, {kk_ * H_KS}")
            E.raw(f"s_add_u32 {s('tB')}, {s('hldB')}, {kk_ * H_KS}")
        ops.append((setup, 's'))
        for tt in range(4):
            def f(E, tt=tt):
                so = s('tA') if tt < 2 else s('tB')
                E.vmem(f"buffer_load_dwordx4 {ar(hreg(t, tt))}, v{V_L16}, {srd(SRD_W)}, {so} offen offset:{(tt & 1) * 1024}{HSC}", f"H{t}")
            ops.append((f, 'v'))
    else:
        def setup(E):
            E.raw(f"s_add_u32 {s('tA')}, {s('hlqA')}, {(t - 16) * H_KS}")
            E.raw(f"s_add_u32 {s('tB')}, {s('hlqB')}, {(t - 16) * H_KS}")
        ops.append((setup, 's'))
        for tt in range(4):
            for hf in range(2):
                def f(E, tt=tt, hf=hf):
                    so = s('tA') if tt < 2 else s('tB')
                    b = hreg(t, tt) + 2 * hf
                    E.vmem(f"buffer_load_dwordx2 {ar(b, 2)}, v{V_L8}, {srd(SRD_W)}, {so} offen offset:{(tt & 1) * 1024 + hf * 512}{HSC}", f"H{t}")
                ops.append((f, 'v'))
    return ops

def publish_op(level, vpub=None, spf="pf"):
    def f(E):
        E.raw(f"s_add_u32 {s('t0')}, {s('nonce')}, {level}")
        E.raw(f"v_mov_b32 v{V_ONE}, {s('t0')}")
        E.vmem(f"buffer_store_dword v{V_ONE}, v{V_PUB if vpub is None else vpub}, {srd(SRD_W)}, {s(spf)} offen sc1", f"PUB{level}")
    return f

def nonce_write(E):
    E.raw(f"s_or_b32 s84, s84, 1")
    E.raw(f"s_cmp_eq_u32 s2, 0")
    E.raw(f"s_cselect_b32 {s('t0')}, 0, {OOB}")
    E.raw(f"v_mov_b32 v{V_ONE}, s84")
    E.vmem(f"buffer_store_dword v{V_ONE}, v{V_PUB}, {srd(SRD_F)}, {s('t0')} offen sc1", "TCH")

def nonce_ops():
    def a(E):
        E.vmem(f"buffer_load_dword v{V_T1}, v{V_Z}, {srd(SRD_F)}, 0 offen sc1", "NONCE")
    def b(E):
        ok = E.label("nok"); slow = E.label("nslow"); chk = E.label("nchk")
        E.wait(vm="NONCE")
        E.raw(f"v_readfirstlane_b32 {s('nonce')}, v{V_T1}")
        E.raw(f"s_cmp_eq_u32 {s('nonce')}, 0")
        E.raw(f"s_cbranch_scc1 {slow}")
        E.raw(f"{ok}:")
        E.slow += [f"{slow}:", f"s_mov_b32 {s('spin')}, 0", f"{chk}:",
                   f"buffer_load_dword v{V_T1}, v{V_Z}, {srd(SRD_F)}, 0 offen sc1", "s_waitcnt vmcnt(0)",
                   f"v_readfirstlane_b32 {s('nonce')}, v{V_T1}",
                   f"s_add_u32 {s('spin')}, {s('spin')}, 1", f"s_cmp_gt_u32 {s('spin')}, {SPIN_MAX}", f"s_cbranch_scc1 {ok}",
                   f"s_cmp_eq_u32 {s('nonce')}, 0", f"s_cbranch_scc1 {chk}", f"s_branch {ok}"]
    nop = lambda E: None
    return a, b, nop, nop

V_DUM = 0
def touch(E, vreg, srdb, so, tag="TCH"):
    E.vmem(f"buffer_load_dword v{V_DUM}, v{vreg}, {srd(srdb)}, {so} offen", tag)

def touch_ops_wd():
    def setup(E):
        E.raw(f"s_and_b32 {s('t0')}, {s('mb')}, 3\ns_lshl_b32 {s('t0')}, {s('t0')}, 3\ns_add_u32 {s('t0')}, {s('t0')}, {s('jj')}")
        E.raw(f"s_lshl_b32 {s('t0')}, {s('t0')}, 2\ns_add_u32 {s('t0')}, {s('t0')}, {s('wave')}\ns_mul_i32 {s('t0')}, {s('t0')}, {81*128}")
        E.raw(f"s_mul_i32 {s('t1')}, {s('sk')}, {1152*XROW}\ns_add_u32 {s('so')}, {s('t0')}, {s('t1')}")
    return [(setup, 's'), (lambda E: touch(E, V_T128, SRD_D, s('so')), 'v'), (lambda E: touch(E, V_T128B, SRD_D, s('so')), 'v')]

def touch_ops_wd_spread(m0, step):
    def setup(E):
        E.raw(f"s_and_b32 {s('t0')}, {s('mb')}, 3\ns_lshl_b32 {s('t0')}, {s('t0')}, 3\ns_add_u32 {s('t0')}, {s('t0')}, {s('jj')}")
        E.raw(f"s_lshl_b32 {s('t0')}, {s('t0')}, 2\ns_add_u32 {s('t0')}, {s('t0')}, {s('wave')}\ns_mul_i32 {s('t0')}, {s('t0')}, {81*128}")
        E.raw(f"s_mul_i32 {s('t1')}, {s('sk')}, {1152*XROW}\ns_add_u32 {s('hldB') if G2X else s('t4')}, {s('t0')}, {s('t1')}")
        E.raw(f"v_mov_b32 v{V_T1}, {OOB}\nv_cmp_gt_u32 vcc, 17, v{V_LANE}\ns_nop 1\nv_cndmask_b32 v{V_T0}, v{V_T1}, v{V_T128}, vcc")
    out = [[(setup, 's')]]
    for j in range(5):
        def f(E, j=j):
            E.raw(f"s_add_u32 {s('t0')}, {s('t4')}, {j * 17 * 128}")
            E.vmem(f"buffer_load_dword v{V_DUM}, v{V_T0}, {srd(SRD_D)}, {s('t0')} offen", "TCH")
        out.append(f)
    return out

def touch_ops_w1(line):
    def setup(E):
        E.raw(f"s_and_b32 {s('t0')}, {s('mb')}, 3\ns_lshl_b32 {s('t0')}, {s('t0')}, 1\ns_add_u32 {s('t0')}, {s('t0')}, {s('kh')}")
        E.raw(f"s_mul_i32 {s('t0')}, {s('t0')}, {72*WROW}\ns_add_u32 {s('so')}, {s('t0')}, {s('w1col')}")
        if line: E.raw(f"s_add_u32 {s('so')}, {s('so')}, {line*128}")
    return [(setup, 's'), (lambda E: touch(E, V_TROW, SRD_Q, s('so')), 'v'), (lambda E: touch(E, V_TROWB, SRD_Q, s('so')), 'v')]

def touch_ops_wq():
    def setup(E):
        E.raw(f"s_and_b32 {s('t0')}, {s('jj')}, 3\ns_lshl_b32 {s('t0')}, {s('t0')}, 2\ns_and_b32 {s('t1')}, {s('mb')}, 3\ns_add_u32 {s('t0')}, {s('t0')}, {s('t1')}")
        E.raw(f"s_lshl_b32 {s('t0')}, {s('t0')}, 1\ns_add_u32 {s('t0')}, {s('t0')}, {s('kh')}\ns_mul_i32 {s('t0')}, {s('t0')}, {18*WROW}")
        E.raw(f"s_mul_i32 {s('t1')}, {s('sk')}, 2304\ns_add_u32 {s('t0')}, {s('t0')}, {s('t1')}\ns_lshl_b32 {s('t1')}, {s('jj')}, 5\ns_add_u32 {s('t0')}, {s('t0')}, {s('t1')}\ns_add_u32 {s('so')}, {s('t0')}, 2048")
    return [(setup, 's'), (lambda E: touch(E, V_TROWQ, SRD_Q, s('so')), 'v')]

def touch_ops_x():
    def setup(E):
        E.raw(f"s_lshl_b32 {s('t0')}, {s('jj')}, 2\ns_add_u32 {s('t0')}, {s('t0')}, {s('wave')}\ns_lshl_b32 {s('t0')}, {s('t0')}, 3")
        E.raw(f"s_lshl_b32 {s('t1')}, {s('mb')}, 8\ns_add_u32 {s('t0')}, {s('t0')}, {s('t1')}\ns_mul_i32 {s('so')}, {s('t0')}, {XROW}")
    return [(setup, 's'), (lambda E: touch(E, V_T128, SRD_X, s('so')), 'v'), (lambda E: touch(E, V_T128B, SRD_X, s('so')), 'v')]

def touch_ops_h(p0, np_):
    def setup(E):
        E.raw(f"s_lshr_b32 {s('t0')}, {s('jj')}, 1\ns_lshl_b32 {s('t0')}, {s('t0')}, 14\ns_add_u32 {s('t0')}, {s('t0')}, {s('hldA')}")
        E.raw(f"s_lshl_b32 {s('t1')}, {s('kh')}, 11\ns_sub_u32 {s('so')}, {s('t0')}, {s('t1')}")
        if p0: E.raw(f"s_add_u32 {s('so')}, {s('so')}, {p0*H_KS}")
    v = V_T128 if np_ == 2 else V_T128H
    return [(setup, 's'), (lambda E: touch(E, v, SRD_W, s('so')), 'v')]

def selftouch_op(p):
    def f(E):
        if OPT.get("noself", 1): return
        E.raw(f"s_add_u32 {s('t4')}, {s('hst')}, {p * H_KS}")
        E.vmem(f"buffer_load_dword v{V_DUM}, v{V_T128H}, {srd(SRD_W)}, {s('t4')} offen sc1", "TCH")
    return f

def touch_code(E):
    R = E.raw
    R(f"s_getpc_b64 s[4:5]")
    R(f"L_pc:")
    R(f"s_sub_u32 s4, s4, L_pc-{KNAME}")
    R(f"s_subb_u32 s5, s5, 0")
    R(f"s_mov_b32 s6, L_codeend-{KNAME}")
    R(f"s_mov_b32 s7, 0x20000")
    R(f"s_lshr_b32 {s('t0')}, s2, 3\ns_lshl_b32 {s('t0')}, {s('t0')}, 2\ns_add_u32 {s('t0')}, {s('t0')}, {s('wave')}\ns_and_b32 {s('t0')}, {s('t0')}, 7\ns_lshl_b32 {s('t0')}, {s('t0')}, 13")
    E.vmem(f"buffer_load_dword v{V_DUM}, v{V_T128}, s[4:7], {s('t0')} offen", "TCH")

def touch_mall_w(E):
    R = E.raw
    R(f"s_lshl_b32 {s('t0')}, s2, 2\ns_add_u32 {s('t0')}, {s('t0')}, {s('wave')}\ns_and_b32 {s('t0')}, {s('t0')}, 511\ns_mul_i32 {s('t0')}, {s('t0')}, {81*128}")
    R(f"s_cmp_lt_u32 s2, 128")
    R(f"s_cselect_b32 s4, s12, s16\ns_cselect_b32 s5, s13, s17\ns_cselect_b32 {s('t1')}, 0, 1024")
    R(f"s_mov_b32 s6, {DM*WROW+1024}\ns_mov_b32 s7, 0x20000\ns_add_u32 {s('t0')}, {s('t0')}, {s('t1')}")
    E.vmem(f"buffer_load_dword v{V_DUM}, v{V_T128}, s[4:7], {s('t0')} offen", "TCH")
    E.vmem(f"buffer_load_dword v{V_DUM}, v{V_T128B}, s[4:7], {s('t0')} offen", "TCH")

def selftouchq_op():
    def f(E):
        E.raw(f"v_lshrrev_b32 v{V_T0}, 2, v{V_LANE}\nv_lshlrev_b32 v{V_T0}, 10, v{V_T0}\nv_and_b32 v{V_T1}, 3, v{V_LANE}\nv_lshl_add_u32 v{V_T0}, v{V_T1}, 7, v{V_T0}")
        E.raw(f"v_mov_b32 v{V_T1}, {OOB}\nv_cmp_gt_u32 vcc, 16, v{V_LANE}\ns_nop 1\nv_cndmask_b32 v{V_T0}, v{V_T1}, v{V_T0}, vcc")
        E.vmem(f"buffer_load_dword v{V_DUM}, v{V_T0}, {srd(SRD_W)}, {s('hstq')} offen sc1", "TCH")
    return f

def tlb_ops():
    def setup(E):
        L = V_LANE
        E.raw(f"s_lshl_b32 {s('t0')}, {s('mb')}, 3\ns_add_u32 {s('t0')}, {s('t0')}, {s('jj')}\ns_lshl_b32 {s('t0')}, {s('t0')}, 2\ns_add_u32 {s('t0')}, {s('t0')}, {s('wave')}")
        E.raw(f"s_mul_i32 {s('t0')}, {s('t0')}, {16*5120}\ns_add_u32 {s('t0')}, {s('t0')}, {WS_P}")
        E.raw(f"v_mov_b32 v{V_T0}, {OOB}\nv_writelane_b32 v{V_T0}, {s('hst')}, 0\nv_writelane_b32 v{V_T0}, {s('pf')}, 1\nv_writelane_b32 v{V_T0}, {s('t0')}, 2")
        E.raw(f"s_lshl_b32 {s('so')}, {s('mb')}, 8\ns_mul_i32 {s('so')}, {s('so')}, {XROW}")
    return [(setup, 's'),
            (lambda E: E.vmem(f"buffer_load_dword v{V_DUM}, v{V_T0}, {srd(SRD_W)}, 0 offen sc1", "TCH"), 'v'),
            (lambda E: E.vmem(f"buffer_load_dword v{V_DUM}, v{V_Z}, {srd(SRD_O)}, {s('so')} offen", "TCH"), 'v'),
            (lambda E: E.vmem(f"buffer_load_dword v{V_DUM}, v{V_Z}, {srd(SRD_D)}, {s('wd0')} offen", "TCH"), 'v')]

def touch_regs(E):
    R = E.raw; L = V_LANE
    R(f"v_lshlrev_b32 v{V_T128}, 7, v{L}")
    R(f"v_mov_b32 v{V_T128H}, {OOB}")
    R(f"v_cmp_gt_u32 vcc, 17, v{L}")
    R(f"v_add_u32 v{V_T128B}, {64*128}, v{V_T128}")
    R(f"v_mul_u32_u24 v{V_TROW}, {WROW}, v{L}")
    R(f"v_cndmask_b32 v{V_T128B}, v{V_T128H}, v{V_T128B}, vcc")
    R(f"v_cmp_gt_u32 vcc, 8, v{L}")
    R(f"v_add_u32 v{V_TROWB}, {64*WROW}, v{V_TROW}")
    R(f"s_nop 0")
    R(f"v_cndmask_b32 v{V_TROWB}, v{V_T128H}, v{V_TROWB}, vcc")
    R(f"v_cmp_gt_u32 vcc, 18, v{L}")
    R(f"s_nop 1")
    R(f"v_cndmask_b32 v{V_TROWQ}, v{V_T128H}, v{V_TROW}, vcc")
    R(f"v_cmp_gt_u32 vcc, 32, v{L}")
    R(f"s_nop 1")
    R(f"v_cndmask_b32 v{V_T128H}, v{V_T128H}, v{V_T128}, vcc")

def emit_ops(E, ops):
    for f, k in ops:
        f(E)

def poll_issue(name):
    def f(E):
        E.vmem(f"buffer_load_dword v{V_FL}, v{V_FH}, {srd(SRD_W)}, 0 offen sc1", f"POLL{name}")
    return f

def poll_check(E, name, level, voff=None, issued=True):
    voff = V_FH if voff is None else voff
    ok = E.label("pok"); slow = E.label("pslow"); chk = E.label("pchk")
    if OPT.get("nopoll"):
        if issued: E.wait(vm=f"POLL{name}")
        return
    test = [f"s_add_u32 {s('t0')}, {s('nonce')}, {level}",
            f"v_subrev_u32 v{V_FL}, {s('t0')}, v{V_FL}",
            f"v_cmp_lt_u32 vcc, {6 - level}, v{V_FL}"]
    if issued:
        E.wait(vm=f"POLL{name}")
        for x in test: E.raw(x)
        if OPT.get("vccnop", 0): E.raw("s_nop 4")
        E.raw(f"s_cbranch_vccnz {slow}")
    else:
        E.raw(f"s_branch {slow}")
    E.raw(f"{ok}:")
    E.slow += [f"{slow}:",
               f"s_mov_b32 {s('spin')}, 0",
               f"{chk}:"] + ([f"s_sleep {OPT.get('slp', 1)}"] if OPT.get("slp", 1) else []) + [
               f"buffer_load_dword v{V_FL}, v{voff}, {srd(SRD_W)}, 0 offen sc1",
               "s_waitcnt vmcnt(0)"] + test + [
               f"s_add_u32 {s('spin')}, {s('spin')}, 1",
               f"s_cmp_gt_u32 {s('spin')}, {SPIN_MAX}",
               f"s_cbranch_scc1 {ok}",
               f"s_cbranch_vccnz {chk}",
               f"s_branch {ok}"]

V_AB = 50
def setupA(E):
    R = E.raw
    L = V_LANE
    T0, T1, T2, T3 = V_T0, V_T1, V_T2, V_T3
    R(f"v_lshrrev_b32 v{T0}, 4, v{L}")
    R(f"v_and_b32 v{T1}, 15, v{L}")
    R(f"v_lshrrev_b32 v{T2}, 1, v{T1}")
    R(f"v_xor_b32 v{T2}, v{T2}, v{T0}")
    R(f"v_lshlrev_b32 v{T3}, 7, v{T1}")
    R(f"v_lshl_add_u32 v{V_XR}, v{T2}, 4, v{T3}")
    R(f"v_add_u32 v{V_XR}, {s('m0x')}, v{V_XR}")
    R(f"v_xor_b32 v{V_XR+1}, 64, v{V_XR}")
    R(f"v_lshrrev_b32 v{T2}, 2, v{T1}")
    R(f"v_lshlrev_b32 v{T3}, 11, v{T0}")
    R(f"v_lshl_add_u32 v{T3}, v{T2}, 7, v{T3}")
    R(f"v_and_b32 v{T2}, 3, v{T1}")
    R(f"v_lshl_add_u32 v{T3}, v{T2}, 3, v{T3}")
    R(f"v_and_b32 v{T2}, 1, v{T0}")
    R(f"v_lshlrev_b32 v{T2}, 6, v{T2}")
    R(f"v_add_u32 v{T3}, v{T3}, v{T2}")
    R(f"v_bfe_u32 v{T2}, v{T1}, 3, 1")
    R(f"v_lshl_add_u32 v{V_A}, v{T2}, 5, v{T3}")
    R(f"v_xor_b32 v{V_A+1}, 32, v{V_A}")
    for r in range(1, 3):
        R(f"v_add_u32 v{V_A+2*r}, {r*49152}, v{V_A}")
        R(f"v_add_u32 v{V_A+2*r+1}, {r*49152}, v{V_A+1}")
    for i in range(6):
        R(f"v_xor_b32 v{V_AB+i}, 64, v{V_A+i}")

def setupB():
    G = []
    R = G.append
    L = V_LANE
    T0, T1, T2, T3 = 44, 45, 46, 47
    u0, u1, u2, u3, u4 = s('pst'), s('pld'), s('outb'), s('phi0'), s('spin')
    R(f"s_add_u32 {u0}, s16, 1024\ns_addc_u32 {u1}, s17, 0\ns_cmp_eq_u32 {s('th')}, 0\ns_cselect_b32 s36, s12, {u0}\ns_cselect_b32 s37, s13, {u1}\ns_mov_b32 s38, {DM*WROW}\ns_mov_b32 s39, 0x20000")
    R(f"s_lshl_b32 {s('cu')}, {s('mb')}, 5\ns_lshl_b32 {u0}, {s('sk')}, 3\ns_add_u32 {s('cu')}, {s('cu')}, {u0}\ns_add_u32 {s('cu')}, {s('cu')}, {s('jj')}")
    R(f"s_mul_i32 {u0}, {s('sk')}, 2304\ns_lshl_b32 {u1}, {s('jj')}, 5\ns_add_u32 {s('wqcol')}, {u0}, {u1}\ns_add_u32 {s('wqcol')}, {s('wqcol')}, 2048")
    R(f"s_mul_i32 {u1}, {s('kh')}, {32*WROW}\ns_add_u32 {s('wqcol')}, {s('wqcol')}, {u1}\ns_lshl_b32 {s('m0q')}, {s('wave')}, 10")
    R(f"v_mov_b32 v{V_T128H}, {OOB}\nv_cmp_gt_u32 vcc, 17, v{L}\nv_add_u32 v{V_T128B}, {64*128}, v{V_T128}\nv_mul_u32_u24 v{V_TROW}, {WROW}, v{L}\nv_cndmask_b32 v{V_T128B}, v{V_T128H}, v{V_T128B}, vcc")
    R(f"v_cmp_gt_u32 vcc, 8, v{L}\nv_add_u32 v{V_TROWB}, {64*WROW}, v{V_TROW}\ns_nop 0\nv_cndmask_b32 v{V_TROWB}, v{V_T128H}, v{V_TROWB}, vcc")
    R(f"v_cmp_gt_u32 vcc, 18, v{L}\ns_nop 1\nv_cndmask_b32 v{V_TROWQ}, v{V_T128H}, v{V_TROW}, vcc")
    R(f"v_cmp_gt_u32 vcc, 32, v{L}\ns_nop 1\nv_cndmask_b32 v{V_T128H}, v{V_T128H}, v{V_T128}, vcc")
    R(f"v_lshrrev_b32 v{T0}, 4, v{L}\nv_and_b32 v{T1}, 15, v{L}")
    R(f"v_lshrrev_b32 v{T2}, 1, v{T0}\nv_lshlrev_b32 v{T3}, 9, v{T2}")
    R(f"v_and_b32 v{T2}, 1, v{T0}\nv_lshl_add_u32 v{T3}, v{T2}, 7, v{T3}")
    R(f"v_lshrrev_b32 v{T2}, 2, v{T1}\nv_lshl_add_u32 v{T3}, v{T2}, 5, v{T3}")
    R(f"v_and_b32 v{T2}, 3, v{T1}\nv_lshl_add_u32 v{V_AQ}, v{T2}, 3, v{T3}")
    R(f"v_lshrrev_b32 v{T2}, 2, v{T1}\nv_lshl_add_u32 v{T2}, v{T0}, 2, v{T2}")
    R(f"v_mul_u32_u24 v{T2}, 288, v{T2}\nv_and_b32 v{T3}, 3, v{T1}")
    if G2X:
        R(f"v_lshl_add_u32 v{V_A2}, v{T3}, 3, v{T2}\ns_lshr_b32 {s('t5')}, {s('jj')}, 2")
    else:
        R(f"v_lshl_add_u32 v{T2}, v{T3}, 3, v{T2}\ns_mul_i32 {u0}, {s('kh')}, 9216\nv_add_u32 v{V_A2}, {u0}, v{T2}")
    R(f"v_add_u32 v{V_A2+1}, {3*WD_SLOT}, v{V_A2}\nv_add_u32 v{V_A2+2}, {6*WD_SLOT}, v{V_A2}")
    R(f"v_lshrrev_b32 v{T0}, 1, v{L}\nv_and_b32 v{T1}, 0x13, v{T0}")
    R(f"v_and_b32 v{T2}, 4, v{T0}\nv_lshl_or_b32 v{T1}, v{T2}, 1, v{T1}")
    R(f"v_and_b32 v{T2}, 8, v{T0}\nv_lshrrev_b32 v{T2}, 1, v{T2}")
    R(f"v_or_b32 v{T1}, v{T1}, v{T2}\nv_mul_u32_u24 v{T1}, {WROW}, v{T1}")
    R(f"v_and_b32 v{T2}, 1, v{L}\nv_lshl_add_u32 v{V_WQ}, v{T2}, 4, v{T1}")
    for ip in (range(3) if G2X else []):
        if ip < 2: R(f"s_lshl_b32 {u0}, {s('wave')}, 6\nv_add_u32 v{T0}, {u0}, v{L}" + (f"\nv_add_u32 v{T0}, 256, v{T0}" if ip else ""))
        else: R(f"s_lshl_b32 {u0}, {s('wave')}, 4\ns_add_u32 {u0}, {u0}, 512\nv_and_b32 v{T0}, 15, v{L}\nv_add_u32 v{T0}, {u0}, v{T0}")
        R(f"v_mul_u32_u24 v{T1}, 3641, v{T0}\nv_lshrrev_b32 v{T1}, 16, v{T1}")
        R(f"v_mul_u32_u24 v{T2}, 18, v{T1}\nv_sub_u32 v{T2}, v{T0}, v{T2}")
        R(f"v_mul_u32_u24 v{T1}, {XROW}, v{T1}\nv_lshl_add_u32 v{V_WD+ip}, v{T2}, 4, v{T1}")
    if G2X: R(f"s_lshl_b32 {s('m0d')}, {s('wave')}, 10\ns_lshl_b32 {u0}, {s('wave')}, 8\ns_add_u32 {s('m0d5')}, {u0}, 8192")
    for ip in ([] if G2X else range(5)):
        if ip < 4:
            R(f"s_lshl_b32 {u0}, {s('th')}, 8\nv_add_u32 v{T0}, {u0}, v{L}" + (f"\nv_add_u32 v{T0}, {64*ip}, v{T0}" if ip else ""))
        else:
            R(f"s_lshl_b32 {u0}, {s('th')}, 5\ns_add_u32 {u0}, {u0}, 512\nv_and_b32 v{T0}, 31, v{L}\nv_add_u32 v{T0}, {u0}, v{T0}")
        R(f"v_mul_u32_u24 v{T1}, 3641, v{T0}\nv_lshrrev_b32 v{T1}, 16, v{T1}")
        R(f"v_mul_u32_u24 v{T2}, 18, v{T1}\nv_sub_u32 v{T2}, v{T0}, v{T2}")
        R(f"v_mul_u32_u24 v{T1}, {XROW}, v{T1}\nv_lshl_add_u32 v{V_WD+ip}, v{T2}, 4, v{T1}" + (f"\nv_subrev_u32 v{V_WD+ip}, {ip*1024}, v{V_WD+ip}" if 0 < ip < 4 else ""))
    if not G2X:
        R(f"s_mul_i32 {u1}, {s('kh')}, 9216\ns_lshl_b32 {u2}, {s('th')}, 9\ns_add_u32 {u2}, {u2}, {u1}\ns_add_u32 {s('m0d5')}, {u2}, 8192\n"
          f"s_lshl_b32 {u2}, {s('th')}, 12\ns_add_u32 {s('m0d')}, {u1}, {u2}")
    KH = s('t5') if G2X else s('kh')
    R(f"v_lshlrev_b32 v{V_L16}, 4, v{L}\nv_lshlrev_b32 v{V_L8}, 3, v{L}")
    R(f"v_mov_b32 v{V_KA}, 0x{f2u(GA):08x}\ns_mov_b32 {s('kb')}, 0x{f2u(GB):08x}\nv_mov_b32 v{V_Z}, 0")
    R(f"s_lshl_b32 {s('pf')}, {s('cu')}, 7\ns_add_u32 {s('pf')}, {s('pf')}, {WS_F}\nv_mov_b32 v{V_PUBD}, v{V_PUB}")
    R(f"s_and_b32 {s('flagh')}, {s('cu')}, 0xf8\ns_lshl_b32 {u0}, {KH}, 2\ns_add_u32 {s('flagh')}, {s('flagh')}, {u0}\n"
      f"s_lshl_b32 {s('flagh')}, {s('flagh')}, 7\ns_add_u32 {s('flagh')}, {s('flagh')}, {WS_F}\nv_min_u32 v{T0}, 3, v{L}")
    R(f"v_lshlrev_b32 v{T0}, 7, v{T0}\nv_add_u32 v{V_FH}, {s('flagh')}, v{T0}")
    R(f"s_lshl_b32 {u0}, {s('mb')}, 2\ns_add_u32 {u0}, {u0}, {s('sk')}\ns_lshl_b32 {u0}, {u0}, 2\n"
      f"s_add_u32 {u1}, {u0}, {s('wave')}\ns_mul_i32 {u1}, {u1}, {36*H_KS}\n"
      f"s_lshl_b32 {u2}, {s('jj')}, 14\ns_add_u32 {s('hst')}, {u1}, {u2}\n"
      f"s_lshr_b32 {u2}, {s('jj')}, 1\ns_add_u32 {u2}, {u2}, 32\ns_lshl_b32 {u2}, {u2}, 12\ns_add_u32 {s('hstq')}, {u1}, {u2}\n"
      f"s_and_b32 {u2}, {s('jj')}, 1\ns_lshl_b32 {u3}, {u2}, 9\ns_add_u32 {s('hstq')}, {s('hstq')}, {u3}\n"
      + (f"s_lshl_b32 {u4}, {KH}, 16\ns_add_u32 {s('hldA')}, {u4}, {u1}\n"
         f"s_lshl_b32 {u4}, {KH}, 13\ns_add_u32 {u4}, {u4}, {32*H_KS}\ns_add_u32 {s('hlqA')}, {u4}, {u1}" if G2X else
      f"s_lshl_b32 {u2}, {u2}, 1\ns_add_u32 {u2}, {u2}, {s('th')}\n"
      f"s_add_u32 {u1}, {u0}, {u2}\ns_mul_i32 {u1}, {u1}, {36*H_KS}\n"
      f"s_lshl_b32 {u2}, {s('kh')}, 11\ns_sub_u32 {u3}, 2048, {u2}\n"
      f"s_lshl_b32 {u4}, {s('kh')}, 16\ns_add_u32 {u4}, {u4}, {u1}\n"
      f"s_add_u32 {s('hldA')}, {u4}, {u2}\ns_add_u32 {s('hldB')}, {u4}, {u3}\n"
      f"s_lshl_b32 {u4}, {s('kh')}, 13\ns_add_u32 {u4}, {u4}, {32*H_KS}\ns_add_u32 {u4}, {u4}, {u1}\n"
      f"s_add_u32 {s('hlqA')}, {u4}, {u2}\ns_add_u32 {s('hlqB')}, {u4}, {u3}"))
    R((f"s_and_b32 {u0}, {s('jj')}, 3\n" if G2X else f"s_lshr_b32 {u0}, {s('jj')}, 1\n") + f"s_mul_i32 {u0}, {u0}, 288\n"
      f"s_mul_i32 {u1}, {s('sk')}, {1152*XROW}\ns_add_u32 {u0}, {u0}, {u1}\n"
      f"s_mul_i32 {u1}, {KH}, {512*XROW}\ns_add_u32 {s('wd0')}, {u0}, {u1}\n"
      f"s_mul_i32 {u1}, {KH}, {64*XROW}\ns_add_u32 {s('wdq')}, {u0}, {u1}\ns_add_u32 {s('wdq')}, {s('wdq')}, {1024*XROW}")
    return G

class Side:
    def __init__(self):
        self.q = []; self.m = 0; self.clock = 0.0; self.hi = []
    def add(self, ops):
        for o in ops: self.q.append((o[0], o[1], o[2] if len(o) > 2 else -1))
    def add_rated(self, ops, cost, earliest=None):
        st = max(self.clock, self.m if earliest is None else earliest)
        nv = sum(1 for o in ops if o[1] == 'v')
        k = 0
        for o in ops:
            nb = int(st + k * cost / nv)
            self.q.append((o[0], o[1], nb))
            if o[1] == 'v': k += 1
        self.clock = st + cost
    def add_hi(self, f): self.hi.append(f)
    def empty(self): return not self.q and not self.hi
    def take_gap(self, E):
        if self.hi:
            self.hi.pop(0)(E); return 2
        if not self.q: return 0
        f, kind, nb = self.q[0]
        if kind == 'v' and nb < self.m:
            self.q.pop(0); f(E); return 2
        return 0
    def take_scalar(self, E):
        if self.q and self.q[0][1] == 's' and self.q[0][2] <= self.m + 2:
            f, _, _ = self.q.pop(0); f(E); return 1
        return 0
    def drain(self, E):
        while self.hi: self.hi.pop(0)(E)
        while self.q:
            f, kind, nb = self.q.pop(0)
            f(E)
            if kind == 's': E.raw("s_nop 0")

def kstep(E, st, side, mf, reads, side_gaps=(), cap_extra=0):
    reads = list(reads)
    n = len(mf)
    for i, m in enumerate(mf):
        E.raw(m)
        st.tick()
        side.m += 1
        cap = 2 + cap_extra
        if reads:
            E.ds(reads.pop(0)); cap -= 1
        elif i in side_gaps:
            u = side.take_gap(E)
            cap -= u
            if u: cap = min(cap, 0)
        if cap > 0:
            if (i + 1) in side_gaps or (i + 1 == n):
                cap -= side.take_scalar(E)
        if cap > 0:
            st.fill(E, cap)

def gemm1_mf(buf, ks, first, par=None):
    mf = []
    if par is None: par = ks & 1
    for f in range(4):
        grp, mat = f >> 1, f & 1
        a = vr(V_AR + 16 * par + 4 * f)
        for tt in range(4):
            mf.append(mfma(buf + (grp * 2 + mat) * 16 + tt * 4, a, xreg(ks, tt), first))
    return mf

XB = [0, 24576, 49152]
def issue_xp(E, c, hf, b):
    E.raw(f"s_add_u32 m0, {s('m0x')}, {XB[b]}")
    E.raw(f"s_add_u32 {s('so2')}, {s('xoff')}, {hf * 32 * XROW + c * 128}")
    for u in range(4):
        E.vmem(f"buffer_load_dwordx4 v{V_X+u}, {srd(SRD_X)}, {s('so2')} offen offset:{u*1024} lds", f"X{hf}_{c}")
def xp_ops(c, hf, b):
    ops = [((lambda E: (E.raw(f"s_add_u32 m0, {s('m0x')}, {XB[b]}"), E.raw(f"s_add_u32 {s('so')}, {s('xoff')}, {hf * 32 * XROW + c * 128}"))), 's')]
    for u in range(4):
        ops.append(((lambda E, u=u: E.vmem(f"buffer_load_dwordx4 v{V_X+u}, {srd(SRD_X)}, {s('so')} offen offset:{u*1024} lds", f"X{hf}_{c}")), 'v'))
    return ops
def read_xp(c, hf, b):
    return [(f"ds_read_b128 {xreg(2*c+h, 2*hf+tp)}, v{V_XR + h} offset:{XB[b] + tp * 2048}", f"xr{hf}_{c}") for h in range(2) for tp in range(2)]

def areads_half(ks, gp, par, tagn):
    out = []
    reg, kk = divmod(ks, 6)
    for f in range(4):
        grp, mat = f >> 1, f & 1
        d = V_AR + 16 * par + 4 * f
        base = (V_AB if gp else V_A) + 2 * reg + grp
        for sec in range(2):
            out.append((f"ds_read_b64_tr_b16 v[{d+2*sec}:{d+2*sec+1}], v{base} offset:{kk*W1_KS + mat*1024 + sec*512}", f"a{tagn}_{f}"))
    return out

def half_step(E, st, side, n, ks, gp, half, first, reads, xq, cap_extra=0, vm_ok=True):
    par = n & 1
    buf = V_BUF[half]
    i = 0
    for f in range(4):
        g_, mat = 2 * gp + (f >> 1), f & 1
        E.wait_dstag(f"a{n}_{f}")
        for tq in range(2):
            d = buf + ((g_ * 2 + mat) * 2 + tq) * 4
            E.raw(mfma(d, vr(V_AR + 16 * par + 4 * f), xreg(ks, 2 * half + tq), first))
            st.tick(); side.m += 1
            cap = 2 + cap_extra
            if reads:
                t_, tg = reads.pop(0); E.ds(t_, tg); cap -= 1
            if xq and i >= 2:
                t_, tg = xq.pop(0); E.ds(t_, tg); cap -= 1
            elif vm_ok and (i & 1) == 1:
                u = side.take_gap(E)
                if u: cap = 0
            if cap > 0: cap -= side.take_scalar(E)
            if cap > 0: st.fill(E, cap)
            i += 1

def l1_ops(c):
    ops = []
    for kk in range(3 * c, 3 * c + 3):
        a, b, d = w1_ops(1, kk)
        ops += [(a, 's'), (b, 'v'), (d, 'v')]
    return ops

def p0ab(E, st, side, G, opt):
    NA, NB, NC, ND = nonce_ops()
    seq = [(ks, gp) for ks in range(18) for gp in range(2)]
    xq = []
    b_issue = {8: 6, 11: 7, 14: 8, 17: 0}
    b_read = {10: 6, 13: 7, 16: 8}
    for n, (ks, gp) in enumerate(seq):
        if gp == 1 and ks % 3 == 2 and ks < 17:
            if ks == 8: E.wait_dstag("xr0_7")
            E.wait(vm=f"W0_{ks//3+1}", barrier=True)
        if gp == 0:
            if ks % 2 == 0: E.wait_dstag(f"xr0_{ks//2}")
            if 1 <= ks <= 5:
                E.wait_dstag(f"xr0_{ks}")
                issue_xp(E, ks + 3, 0, (ks + 3) % 3)
            if ks == 1: issue_w1_slot(E, 0, 2)
            if ks == 3: issue_w1_slot(E, 0, 3)
            if ks in b_issue:
                prev = {8: "xr0_8", 11: "xr1_6", 14: "xr1_7", 17: "xr1_8"}[ks]
                E.wait_dstag(prev)
                side.add(xp_ops(b_issue[ks], 1, 2))
            if ks == 11: st.flush(E)
            if ks == 12 and opt.get("touch", 1): side.add(touch_ops_wq())
            if ks == opt.get("txb", 6):
                E.raw(f"v_mov_b32 v{V_T0}, {OOB}\nv_cmp_gt_u32 vcc, 36, v{V_LANE}\ns_lshl_b32 {s('t0')}, {s('jj')}, 2\ns_add_u32 {s('t0')}, {s('t0')}, 32\ns_mul_i32 {s('t0')}, {s('t0')}, {XROW}")
                E.raw(f"v_cndmask_b32 v{V_T0}, v{V_T0}, v{V_T128}, vcc\ns_add_u32 {s('t0')}, {s('t0')}, {s('xoff')}")
                touch(E, V_T0, SRD_X, s('t0'))
            if ks == opt.get("tl1", 7):
                st.flush(E)
                if ks >= 8: side.add(touch_ops_w1(1))
                else: emit_ops(E, touch_ops_w1(1))
            if ks == 13: NA(E)
            E.stamp(f"P0k{ks}")
        if gp == 1 and ks == 8:
            for sl in (4, 5):
                for kk in range(3 * sl, 3 * sl + 3):
                    a, b, c = w1_ops(0, kk)
                    side.add([(a, 's'), (b, 'v'), (c, 'v')])
        if gp == 1 and ks <= 7:
            E.wait(vm=f"X0_{ks+1}")
            xq += read_xp(ks + 1, 0, (ks + 1) % 3)
        if gp == 1 and ks in b_read:
            E.wait(vm=f"X1_{b_read[ks]}"); xq += read_xp(b_read[ks], 1, 2)
        if n + 1 < len(seq): nks, ngp = seq[n + 1]
        else: nks, ngp = 12, 0
        reads = areads_half(nks, ngp, (n + 1) & 1, n + 1)
        half_step(E, st, side, n, ks, gp, 0, ks == 0, reads, xq, vm_ok=(ks >= 8), cap_extra=(2 if st.pending() else 0))
        assert not xq
    E.stamp("P0end")
    E.raw(f"s_add_u32 {s('t3')}, {s('hst')}, 0")
    E.raw(f"s_add_u32 {s('t2')}, {s('hst')}, {H_KS}")
    def hs_fn(tag):
        def f(E, pp, tt, base):
            E.vmem(f"buffer_store_dwordx4 {vr(base)}, v{V_L16}, {srd(SRD_W)}, {s('t3' if pp == 0 else 't2')} offen offset:{tt*1024} sc1", tag)
        return f
    G.nset = 2
    G.half_pass(V_BUF[0], 0, hs_fn("HS0"))
    G.nset = N_GSET; G.pairno = 0
    order = [(12 + p) % 18 for p in range(18)]
    seq = [(pos, gp) for pos in range(18) for gp in range(2)]
    n0 = 36
    issue = {2: [(2, 2, "xr1_0")], 3: [(1, 0, None)], 5: [(3, 2, "xr1_2")], 6: [(4, 1, None), (5, 0, "xr1_1")]}
    rd = {1: (0, 2), 4: (2, 2), 5: (1, 0), 7: (3, 2), 8: (4, 1), 9: (5, 0)}
    for m, (pos, gp) in enumerate(seq):
        n = n0 + m
        ks = order[pos]
        if gp == 0:
            if pos in (3, 6, 9, 12, 15):
                if pos == 12: E.wait_dstag("xr1_5"); E.wait_dstag("xr1_4")
                E.wait(barrier=True)
            if ks % 2 == 0: E.wait_dstag(f"xr1_{ks//2}")
            for c, b, tg in issue.get(pos, []):
                if tg: E.wait_dstag(tg)
                side.add(xp_ops(c, 1, b))
            if pos == 9: side.add(l1_ops(0))
            if pos == 12: side.add(l1_ops(1)); side.add(l1_ops(4))
            if pos == 15: side.add(l1_ops(2)); side.add(l1_ops(5))
            if pos == 14: NB(E)
        if gp == 1 and pos in rd:
            c, b = rd[pos]
            E.wait(vm=f"X1_{c}"); xq += read_xp(c, 1, b)
        if pos == 17 and gp == 1:
            E.wait(vm="W1_0", barrier=True)
            reads = [(t_, "p2a") for t_ in areads_w1(0, 0, par=(n + 1) & 1)]
        else:
            npos, ngp = seq[m + 1]
            reads = areads_half(order[npos], ngp, (n + 1) & 1, n + 1)
        half_step(E, st, side, n, ks, gp, 1, pos == 0, reads, xq, cap_extra=(1 if st.pending_cost() > 9.0 * (len(seq) - m) else 0))
        assert not xq
    nfl = st.flush(E)
    if nfl: print(f"; note: P0b GELU flush {nfl}", file=sys.stderr)
    E.stamp("P1end")
    G.half_pass(V_BUF[1], 1, hs_fn("HS1"))

def toggle_bases(E):
    for i in range(6):
        E.raw(f"v_xor_b32 v{V_A+i}, 64, v{V_A+i}")

def hstore_fn(p):
    def f(E, tt, base):
        E.vmem(f"buffer_store_dwordx4 {vr(base)}, v{V_L16}, {srd(SRD_W)}, {s('so2')} offen offset:{tt*1024} sc1", f"HS{p}")
    return f
def hstoreq_fn(E, tt, base):
    E.vmem(f"buffer_store_dwordx2 {vr(base, 2)}, v{V_L8}, {srd(SRD_W)}, {s('hstq')} offen offset:{tt*1024} sc1", "HS4")

def wq_ops(lo=0, hi=9):
    ops = []
    for i in range(lo, hi):
        def setup(E, i=i):
            dst = (SCRATCH + i * 4096) if (WQE and i < 4) else ((i - 4) * 4096 if WQE else i * 4096)
            E.raw(f"s_add_u32 m0, {s('m0q')}, {dst}")
            E.raw(f"s_add_u32 {s('so')}, {s('wqcol')}, {i * 64 * WROW}")
        def d(E): E.vmem(f"buffer_load_dwordx4 v{V_WQ}, {srd(SRD_Q)}, {s('so')} offen lds", "WQ")
        ops += [(setup, 's'), (d, 'v')]
    return ops

def build(opt):
    global OPT
    OPT = opt
    E = Emit()
    E.do_stamp = bool(opt.get("stamp"))
    if isinstance(opt.get("stamp"), str): E.stamp_sel = set(opt["stamp"].split("+"))
    global HSC, WQE, G2X
    G2X = bool(opt.get("g2x", 0))
    HSC = "" if opt.get("hplain") else " sc1"
    WQE = bool(opt.get("wqe", 1))
    st = Stream()
    G = Gelu(st)
    side = Side()
    E.stamp("start")
    prologue(E, opt)
    TH2 = opt.get("th2", 0)
    coop = opt.get("coop", 0) if not TH2 else 0
    if coop == 1:
        coop_setup(E); coop_touch(E, 0)
    if TH2: issue_xp(E, 0, 0, 0)
    else:
        issue_x(E, 0); issue_x(E, 1)
    E.stamp("i1")
    if coop >= 2:
        coop_setup(E); E.raw(f"s_add_u32 {s('tA')}, {s('tA')}, {s('tB')}")
    prologue_w(E)
    issue_w1_slot(E, 0, 0)
    nonce_write(E)
    if coop == 1 or coop == 3: coop_touch(E, 1)
    if TH2:
        issue_xp(E, 1, 0, 1); issue_xp(E, 2, 0, 2)
    else:
        issue_x(E, 2); issue_x(E, 3)
    if coop == 3: coop_touch(E, 2)
    setupA(E)
    PRO2 = opt.get("pro2", 1) and not TH2
    if not PRO2: issue_w1_slot(E, 0, 1)
    if coop == 2: coop_touch(E, 1)
    if coop == 1 or coop == 2: coop_touch(E, 2)
    NCOMB = opt.get("ncomb", 8)
    if TH2:
        E.wait(vm="X0_0")
        E.stamp("x01")
        for t_, tg in read_xp(0, 0, 0): E.ds(t_, tg)
        E.wait(ds=0)
        issue_xp(E, 3, 0, 0)
        E.wait(vm="W0_0", barrier=True)
        for t_, tg in areads_half(0, 0, 0, 0): E.ds(t_, tg)
    else:
        E.wait(vm=["X0", "X1"])
        E.stamp("x01")
        for r in read_x(E, 0): E.ds(r)
        if not PRO2:
            E.wait(ds=0)
            issue_x(E, 4); issue_x(E, 5)
        E.wait(vm="W0_0", barrier=True)
        for r in areads_w1(0, 0, par=0): E.ds(r)
    E.stamp("P0go")
    SG = (9, 11, 13)
    NA, NB, NC, ND = nonce_ops()
    prev = None
    setup_items = []
    for grp in setupB():
        prev = st.add(grp, min(2, grp.count("\n") + 1), [(prev, 0)] if prev else [])
        setup_items.append(prev)
    FULL = False
    l1_queued = 0
    p0_par = 0
    if TH2:
        p0ab(E, st, side, G, opt)
    else:
        steps = []
        BDEF = opt.get("bdef", 2)
        for ks in range(18):
            if ks == 12:
                for kb in range(NCOMB - BDEF, NCOMB): steps.append(("B", kb))
            steps.append(("A", ks))
            if ks < NCOMB - BDEF: steps.append(("B", ks))
        def last_half(ks): return ("B", ks) if ks < NCOMB - BDEF else ("A", ks)
        landed = {0}
        n_a8 = steps.index(("A", 8))
        FULL = (NCOMB == 18)
        l1_queued = 0
        for n, (kind, ks) in enumerate(steps):
            par = n & 1
            bar = False; tags = []
            if BDEF:
                if n + 1 < len(steps):
                    c = steps[n + 1][1] // 3
                    if c not in landed: landed.add(c); bar = True; tags.append(f"W0_{c}")
            else:
                for c in range(1, 6):
                    if (kind, ks) == last_half(3 * c - 1): bar = True; tags.append(f"W0_{c}")
            if FULL and (kind, ks) == ("B", 17): bar = True; tags.append("W1_0")
            E.wait(vm=(tags if tags else None), ds=0, barrier=bar)
            if bar and (kind, ks) == (("A", 8) if NCOMB <= 8 else last_half(8)):
                for sl in (4, 5):
                    for kk in range(3 * sl, 3 * sl + 3):
                        a, b, c = w1_ops(0, kk)
                        side.add([(a, 's'), (b, 'v'), (c, 'v')])
            if bar and (kind, ks) == (("A", 8) if NCOMB <= 8 else last_half(8)) and opt.get("l1late", 1) and opt.get("touch", 1):
                st.flush(E)
                side.add(touch_ops_w1(1)); side.add(touch_ops_wq())
            if FULL and bar and opt.get("l1late", 1) and ks >= 11:
                free = {11: 3, 14: 5, 17: 6}[ks]
                while l1_queued < free:
                    side.add(l1_ops(l1_queued)); l1_queued += 1
            if bar and ks >= 8 and not opt.get("l1late", 1):
                free = (ks + 1) // 3 if ks < NCOMB else min(NCOMB // 3, (ks + 1) // 3)
                free = min(free, 4 if ks < 14 else 6)
                while l1_queued < free:
                    for kk in range(3 * l1_queued, 3 * l1_queued + 3):
                        a, b, c = w1_ops(1, kk)
                        side.add([(a, 's'), (b, 'v'), (c, 'v')])
                    l1_queued += 1
            if PRO2 and (kind, ks) == ("B", 0):
                issue_x(E, 4); issue_x(E, 5)
                issue_w1_slot(E, 0, 1)
            if kind == "A":
                if 1 <= ks <= 6:
                    issue_x(E, 2 * (ks + 2)); issue_x(E, 2 * (ks + 2) + 1)
                if ks == 1: issue_w1_slot(E, 0, 2)
                if ks == 3: issue_w1_slot(E, 0, 3)
                if ks == 11: st.flush(E)
                if ks == 12 and opt.get("tlb", 0): side.add(tlb_ops())
                if ks == 12 and opt.get("touch", 1) and not opt.get("l1late", 1):
                    side.add(touch_ops_wq())
                    if not FULL and not opt.get("tw1", 0): side.add(touch_ops_w1(1))
                if opt.get("tw13", -1) == ks:
                    r0 = opt.get("tw13r", 96); nn = (384 - r0) // 8
                    E.raw(f"v_mul_u32_u24 v{V_T0}, {WROW}, v{V_LANE}\nv_mov_b32 v{V_T1}, {OOB}\nv_cmp_gt_u32 vcc, {nn}, v{V_LANE}\ns_and_b32 {s('t0')}, {s('mb')}, 3\ns_lshl_b32 {s('t0')}, {s('t0')}, 1\ns_add_u32 {s('t0')}, {s('t0')}, {s('kh')}")
                    E.raw(f"v_cndmask_b32 v{V_T0}, v{V_T1}, v{V_T0}, vcc\ns_mul_i32 {s('t0')}, {s('t0')}, {nn*WROW}\ns_add_u32 {s('t0')}, {s('t0')}, {s('w1col')}\ns_add_u32 {s('t0')}, {s('t0')}, {r0*WROW}")
                    E.raw(f"s_cmp_eq_u32 {s('th')}, 0\ns_cselect_b32 s4, s12, s16\ns_cselect_b32 s5, s13, s17\ns_cselect_b32 {s('t1')}, 0, 1024\ns_mov_b32 s6, {DM*WROW+1024}\ns_mov_b32 s7, 0x20000\ns_add_u32 {s('t0')}, {s('t0')}, {s('t1')}")
                    E.vmem(f"buffer_load_dword v{V_DUM}, v{V_T0}, s[4:7], {s('t0')} offen", "TCH")
                if opt.get("txc", 1) == ks:
                    c0 = opt.get("txc0", 3); nch = 9 - c0
                    L_ = V_LANE
                    E.raw(f"v_mul_u32_u24 v{V_T0}, {65536 // nch + 1}, v{L_}\nv_lshrrev_b32 v{V_T0}, 16, v{V_T0}\nv_mul_u32_u24 v{V_T1}, {nch}, v{V_T0}\nv_sub_u32 v{V_T1}, v{L_}, v{V_T1}")
                    E.raw(f"v_mul_u32_u24 v{V_T0}, {XROW}, v{V_T0}\nv_lshl_add_u32 v{V_T0}, v{V_T1}, 7, v{V_T0}\nv_mov_b32 v{V_T1}, {OOB}\nv_cmp_gt_u32 vcc, {8 * nch}, v{L_}")
                    E.raw(f"s_lshl_b32 {s('t0')}, {s('jj')}, 2\ns_add_u32 {s('t0')}, {s('t0')}, {s('wave')}\ns_lshl_b32 {s('t0')}, {s('t0')}, 3\ns_lshl_b32 {s('t1')}, {s('mb')}, 8\ns_add_u32 {s('t0')}, {s('t0')}, {s('t1')}\ns_mul_i32 {s('t0')}, {s('t0')}, {XROW}\ns_add_u32 {s('t0')}, {s('t0')}, {c0 * 128}")
                    E.raw(f"v_cndmask_b32 v{V_T0}, v{V_T1}, v{V_T0}, vcc")
                    touch(E, V_T0, SRD_X, s('t0'))
                if opt.get("tw1", 0) and ks == opt.get("tw1", 0):
                    assert setup_items[8].placed is not None, "touch registers not ready"
                    emit_ops(E, touch_ops_w1(1))
                if opt.get("tw45", 5) and ks == opt.get("tw45", 5):
                    assert setup_items[8].placed is not None, "touch registers not ready"
                    E.raw(f"v_mov_b32 v{V_T0}, {OOB}\nv_cmp_gt_u32 vcc, 24, v{V_LANE}\ns_and_b32 {s('t0')}, {s('mb')}, 3\ns_lshl_b32 {s('t0')}, {s('t0')}, 1\ns_add_u32 {s('t0')}, {s('t0')}, {s('kh')}")
                    E.raw(f"v_cndmask_b32 v{V_T0}, v{V_T0}, v{V_TROW}, vcc\ns_mul_i32 {s('t0')}, {s('t0')}, {24*WROW}\ns_add_u32 {s('t0')}, {s('t0')}, {s('w1col')}\ns_add_u32 {s('t0')}, {s('t0')}, {384*WROW}")
                    touch(E, V_T0, SRD_Q, s('t0'))
                if ks == 13: NA(E)
                if ks == 17 and not FULL: toggle_bases(E)
                E.stamp(f"P0k{ks}")
            if FULL and (kind, ks) == ("B", 15):
                NB(E)
            if FULL and (kind, ks) == ("A", 17 + 0): pass
            if n + 1 < len(steps):
                nk, nks = steps[n + 1]
                reads = areads_w1(0, nks, par=1 - par, alt=(nk == "B"))
            elif FULL:
                reads = areads_w1(0, 0, par=1 - par)
            else:
                reads = areads_w1(1, NCOMB, par=1 - par)
            if FULL and (kind, ks) == ("B", 17): NC(E)
            mf = gemm1_mf(V_BUF[0 if kind == "A" else 1], ks, ks == 0, par=par)
            if (kind, ks) == last_half(ks) and ks <= 7:
                xr = read_x(E, ks + 1)
                for i, m in enumerate(mf):
                    E.raw(m); st.tick()
                    if i < 8: E.ds(reads[i])
                    else:
                        if i == 8: E.wait(vm=[f"X{2*(ks+1)}", f"X{2*(ks+1)+1}"])
                        E.ds(xr[i - 8])
                    st.fill(E, 1)
            else:
                kstep(E, st, side, mf, reads, side_gaps=(8, 9, 10, 11, 12, 13, 14, 15) if n >= n_a8 else ())
        st.flush(E)
        p0_par = len(steps) & 1
        E.stamp("P0end")
    if opt.get("abl") == "p1": E.raw("; MARK_ABL")
    RATE = float(opt.get("rate", 3.8))
    PB, PC, PD = opt.get("PB", 2), opt.get("PC", 9), opt.get("PD", 13)
    PUB4, PUB5 = opt.get("pub4", 5), opt.get("pub5", 9)
    G2BAR = [2, 5, 8, 11, 14, 17] if G2X else ([1, 3, 5, 7, 9, 11, 13, 15, 17] if opt.get("bar2", 1) else list(range(18)))
    def plan_tail():
        G2 = 432
        items = []
        if WQE: items.append(("WQ", wq_ops(4, 9), 20 * RATE, 32, 272 - 30))
        else: items.append(("WQ", wq_ops(), 36 * RATE, 80, 272 - 30))
        de = {0: 128, 1: 128, 2: 176, 3: 224, 4: 272, 5: 272, 6: 424, 7: 424}
        dex = {0: 5, 1: 5, 2: 8, 3: 8, 4: 8, 5: 11, 6: 11, 7: 14, 8: 14, 9: 14, 10: 17, 11: 17, 12: 17}
        for u in range(18):
            if G2X:
                if u <= 12: e = 16 * dex[u]
                elif u <= 15: e = 424
                else: e = G2 + 36 * G2BAR[0] + 24 + 1
                tb = max(k for k in [-1] + G2BAR if k < u)
                dl = 424 if tb < 0 else G2 + 36 * tb + 24
                items.append((f"D{u}", wd_ops(u), 3.3 * RATE, e, dl - 20))
                continue
            e = de[u] if u < 8 else G2 + 36 * (u - 7)
            dl = 424 if u == 0 else G2 + 36 * (u - 1) + 24
            if opt.get("bar2", 1):
                if u >= 8:
                    fb = min(k for k in G2BAR if k >= u - 8)
                    e = G2 + 36 * fb + 24 + 1
                tb = max(k for k in [-1] + G2BAR if k < u)
                dl = 424 if tb < 0 else G2 + 36 * tb + 24
            items.append((f"D{u}", wd_ops(u), 6.15 * RATE, e, dl))
        for u in range(18):
            if u <= 6: e = 288 + 8 * (u + 1) + 2
            else: e = G2 + 36 * (u - 6)
            if 8 <= u <= 11: e = max(e, G2 + 36 * PB)
            if 12 <= u <= 15: e = max(e, G2 + 36 * PC)
            if u >= 16: e = max(e, G2 + 36 * PD)
            dl = G2 + 36 * u
            if u >= 16: dl = G2 + 36 * (u - OPT.get("hlead", 2))
            items.append((f"H{u}", h_ops(u), 4 * RATE, e, dl))
        clock = 32 if WQE else 80
        order = []
        rem = list(items)
        while rem:
            legal = [it for it in rem if it[3] <= clock]
            if not legal:
                clock = min(it[3] for it in rem); continue
            it = min(legal, key=lambda x: x[4])
            rem.remove(it)
            order.append((it, clock))
            if clock + it[2] > it[4] and not it[0].startswith("H1"): print(f"; plan: {it[0]} start {clock:.0f} end {clock+it[2]:.0f} deadline {it[4]} LATE", file=sys.stderr)
            clock += it[2]
        side.clock = 0
        def gate_of(name):
            u = int(name[1:]) if name != "WQ" else None
            if name == "WQ": return ["P3bar2" if WQE else "P3bar5"]
            if name[0] == "D" and G2X:
                if u <= 12: return [f"P3bar{dex[u]}"]
                if u <= 15: return ["PQbar17"]
                return [f"G2bar{G2BAR[0]}"]
            if name[0] == "D":
                if u < 8: return [{0: "P3bar8", 1: "P3bar8", 2: "P3bar11", 3: "P3bar14", 4: "P3bar17", 5: "P3bar17", 6: "PQbar17", 7: "PQbar17"}[u]]
                return [f"G2bar{min(k for k in G2BAR if k >= u - 8)}"]
            g = ["pollA" if u < 8 else "pollB" if u < 12 else "pollC" if u < 16 else "pollD"]
            g.append(f"PQdone{u}" if u <= 6 else f"G2done{u-7}")
            return g
        for it, c in order:
            gates = gate_of(it[0])
            ops = []
            for o in it[1]:
                if o[1] == 'v':
                    def w(E, f=o[0], gates=gates, nm=it[0]):
                        for g_ in gates: assert g_ in E.events, f"{nm} emitted before {g_}"
                        f(E)
                    ops.append((w, 'v'))
                else: ops.append(o)
            side.add_rated(ops, it[2], earliest=c)
    if FULL:
        E.wait(ds=0); ND(E)
        E.raw(f"s_add_u32 {s('so2')}, {s('hst')}, 0")
        G.full_pass(V_BUF[0], hstore_fn(0))
        st.flush(E)
        E.stamp("P1end")
    for p in ((2, 3) if (FULL or TH2) else (1, 2, 3)):
        line, ph = p >> 1, p & 1
        buf = V_BUF[p & 1]
        E.raw(f"s_add_u32 {s('so2')}, {s('hst')}, {(p - 1) * H_KS}")
        if not (TH2 and p == 2): G.full_pass(V_BUF[(p - 1) & 1], hstore_fn(p - 1))
        if p == 3:
            assert side.empty()
            side.m = 0
            plan_tail()
        for ks in range(NCOMB if p == 1 else 0, 18):
            par = (ks & 1) if p > 1 else ((p0_par + ks - NCOMB) & 1)
            bar = (ks % 3 == 2)
            tags = []
            if bar:
                if p == 1 and ks == 17: tags.append("W1_0")
                if p == 2 and ks < 17:
                    if opt.get("p2bar", 0):
                        if ks == 2: tags += ["W1_1", "W1_2"]
                        elif ks == 8: tags += ["W1_3", "W1_4", "W1_5"]
                        else: bar = False
                    else: tags.append(f"W1_{ks//3+1}")
                if p == 3 and ks == 17: tags.append("WQ")
                if p >= 2 and ks == 2: tags.append(f"HS{p-2}")
                if p == 2 and ks == 17: bar = False
            if p == 1 and ks == 14:
                NB(E)
            E.wait(vm=(tags if tags else None), ds=0, barrier=bar)
            if p == 3 and bar: E.events.add(f"P3bar{ks}")
            if p == 1 and ks == 14: NC(E)
            if p == 1 and ks == 15: ND(E)
            if bar:
                c = ks // 3
                if p >= 2 and ks == 2:
                    side.add_hi(publish_op(p - 1))
                    if opt.get("touch", 1):
                        if not TH2: side.add_hi(selftouch_op(p - 2))
                        elif p == 3: side.add_hi(selftouch_op(0)); side.add_hi(selftouch_op(1))
                    if TH2 and p == 2: side.add(l1_ops(3))
                if p == 1 and opt.get("l1late", 1) and ks == NCOMB + ((2 - NCOMB) % 3):
                    for c0 in range(0, c):
                        side.add(l1_ops(c0))
                if p == 1 and c >= l1_queued:
                    for kk in range(3 * c, 3 * c + 3):
                        a, b, d = w1_ops(1, kk)
                        side.add([(a, 's'), (b, 'v'), (d, 'v')])
            if opt.get("twds", 0):
                if p == 2 and ks == 1:
                    WDS = touch_ops_wd_spread(0, 0)
                    WDS[0][0][0](E)
                if p == 2 and ks in (1, 4, 7, 10, 13): side.add_hi(WDS[1 + (ks - 1) // 3])
            elif (p, ks) == tuple(divmod(opt.get("twd", 203), 100)) and opt.get("touch", 1): side.add(touch_ops_wd())
            if p == 2 and ks == 9 and WQE: side.add(wq_ops(0, 4))
            if p == 3 and ks == 17 and WQE: E.raw(f"v_add_u32 v{V_AQ}, {SCRATCH}, v{V_AQ}")
            if p == 3 and ks == 15: side.add_hi(poll_issue("a"))
            if ks == 17 and p < 3: toggle_bases(E)
            if ks < 17: reads = areads_w1(ph, ks + 1, par=1 - par)
            elif p < 3: reads = areads_w1(1 - ph, 0, par=1 - par)
            else: reads = areads_q(0, 0)
            sg = SG
            if p == 3 and ks >= 5: sg = (8, 9, 11, 13, 15)
            kstep(E, st, side, gemm1_mf(buf, ks, ks == 0 and not (p == 1 and NCOMB > 0), par=par), reads, side_gaps=sg,
                  cap_extra=(1 if (p == 1 and NCOMB > 0 and st.pending_cost() > 19 * (17 - ks)) else 0))
        n = st.flush(E)
        if n: print(f"; note: pass {p}: GELU flush {n} gaps", file=sys.stderr)
        if p == 2: assert side.empty(), f"side not empty after pass {p}"
        E.stamp(f"P{p}end")
    E.raw(f"s_add_u32 {s('so2')}, {s('hst')}, {3 * H_KS}")
    G.full_pass(V_BUF[1], hstore_fn(3))
    bufq = V_BUF[0]
    for ks in range(18):
        bar = ks in (3, 17)
        tags = []
        if ks == 3: tags.append("HS2")
        if ks == 17: tags += (["D0", "D1", "D2"] if G2X else ["D0", "D1"] if opt.get("bar2", 1) else ["D0"])
        E.wait(vm=(tags if tags else None), ds=0, barrier=bar)
        if bar: E.events.add(f"PQbar{ks}")
        if ks >= 1: E.events.add(f"PQdone{ks-1}")
        if ks == 3:
            side.add_hi(publish_op(3))
            if opt.get("touch", 1): side.add_hi(selftouch_op(2))
        if ks == 1:
            poll_check(E, "a", 2); E.events.add("pollA")
        if ks == 7 and WQE: E.raw(f"v_subrev_u32 v{V_AQ}, {SCRATCH}, v{V_AQ}")
        mf = []
        for mat in range(2):
            a = vr(V_AR + 16 * (ks & 1) + 4 * mat)
            for tt in range(4):
                mf.append(mfma(bufq + mat * 16 + tt * 4, a, xreg(ks, tt), ks == 0))
        reads = areads_q(ks + 1, (ks + 1) & 1) if ks < 17 else areads_g2(0, 0, 0)
        kstep(E, st, side, mf, reads, side_gaps=(4, 5, 6, 7) if ks < 17 else (6, 7), cap_extra=opt.get("capq", 0))
    if opt.get("stop") == "g1":
        st.flush(E)
        G.quarter(bufq, hstoreq_fn)
        st.flush(E)
        side.q = []; side.hi = []
        E.wait_all()
        return finish(E)
    E.stamp("PQend")
    if opt.get("abl", "g2") == "g2": E.raw("; MARK_ABL")
    E.skew_on = True
    qadded = False
    sub_par = 0
    for t in range(18):
        for sub in range(3):
            tags = []
            bar = (sub == 2) and (t in G2BAR or t == PUB4 or t == PUB5)
            if sub == 0: tags.append(f"H{t}")
            if bar and t < 17 and not G2X and t in G2BAR:
                tags.append(f"D{t+1}")
                if opt.get("bar2", 1) and t + 2 < 18: tags.append(f"D{t+2}")
            if bar and G2X and t in G2BAR: tags += [f"D{u}" for u in range(t + 1, min(t + 4, 18))]
            pub = None
            if bar and t == PUB4: tags.append("HS3"); pub = 4
            if bar and t == PUB5: tags.append("HS4"); pub = 5
            E.wait(vm=(tags if tags else None), ds=0, barrier=bar)
            if bar: E.events.add(f"G2bar{t}")
            if sub == 0 and t >= 1: E.events.add(f"G2done{t-1}")
            if OPT.get("hchk") and sub == 0:
                for tt in range(4):
                    b = hreg(t, tt)
                    lab = E.label("hc")
                    E.raw(f"v_accvgpr_read_b32 v{V_T0}, a{b}\nv_accvgpr_read_b32 v{V_T1}, a{b+1}\nv_or_b32 v{V_T0}, v{V_T0}, v{V_T1}")
                    E.raw(f"v_accvgpr_read_b32 v{V_T1}, a{b+2}\nv_or_b32 v{V_T0}, v{V_T0}, v{V_T1}\nv_accvgpr_read_b32 v{V_T1}, a{b+3}\nv_or_b32 v{V_T0}, v{V_T0}, v{V_T1}")
                    E.raw(f"v_and_b32 v{V_T0}, 0x40004000, v{V_T0}\nv_cmp_ne_u32 vcc, 0, v{V_T0}\ns_nop 4\ns_cbranch_vccz {lab}")
                    E.raw(f"s_lshl_b32 {s('t0')}, s2, 2\ns_add_u32 {s('t0')}, {s('t0')}, {s('wave')}\ns_lshl_b32 {s('t0')}, {s('t0')}, 2\ns_add_u32 {s('t0')}, {s('t0')}, {61 << 20}")
                    E.raw(f"v_mov_b32 v{V_T1}, {t * 16 + tt + 1}\nv_mov_b32 v{V_T0}, 0")
                    E.raw(f"buffer_store_dword v{V_T1}, v{V_T0}, {srd(SRD_W)}, {s('t0')} offen\ns_waitcnt vmcnt(0)")
                    E.raw(f"{lab}:")
            if pub:
                side.add_hi(publish_op(pub))
                if pub == 4 and opt.get("touch", 1): side.add_hi(selftouch_op(3))
                if pub == 5 and opt.get("touchq", 0): side.add_hi(selftouchq_op())
            if sub == 0:
                if not qadded and st.pending() == 0:
                    G.quarter(bufq, hstoreq_fn); qadded = True
                if t == PB - 1: side.add_hi(poll_issue("b"))
                if t == PB: poll_check(E, "b", 3); E.events.add("pollB")
                if t == PC - 1: side.add_hi(poll_issue("c"))
                if t == PC: poll_check(E, "c", 4); E.events.add("pollC")
                if t == PD - 1: side.add_hi(poll_issue("d"))
                if t == PD: poll_check(E, "d", 5); E.events.add("pollD")
            mf = []
            for k in range(3):
                dt = 3 * sub + k
                a = vr(V_AR + 12 * sub_par + 4 * k)
                for tt in range(4):
                    mf.append(mfma(acc2(dt, tt), a, ar(hreg(t, tt)), t == 0, "a"))
            if sub < 2: reads = areads_g2(t, sub + 1, 1 - sub_par)
            elif t < 17: reads = areads_g2(t + 1, 0, 1 - sub_par)
            else: reads = []
            if t == 12 and sub == 0:
                prev = None
                for grp in (final8_setup() if G2X else final_setup(E)):
                    prev = st.add(grp, 2, [(prev, 1)] if prev else [])
            if t == 17 and sub >= 1 and G2X:
                final8_pack(st, range(12 * (sub - 1), 12 * sub))
                st.tick(); st.tick()
                E.raw("s_nop 3")
            if t == 17 and sub >= 1 and not G2X:
                for dt in range(3 * (sub - 1), 3 * sub):
                    for j in range(2):
                        st.add((lambda E, dt=dt, j=j: E.ds(f"ds_write_b128 v{V_RED}, {ar(acc2(dt, 2 + j))} offset:{(2*dt+j)*1024}")), 2, [])
                    for x in keep_reads(dt): st.add(x, 1, [])
                st.tick(); st.tick()
                E.raw("s_nop 3")
            kstep(E, st, side, mf, reads, side_gaps=(6, 7, 8, 9, 10, 11), cap_extra=(opt.get("capg", 1) if t < PUB5 else 0))
            if t == 17 and sub == 2: st.flush(E)
            sub_par = 1 - sub_par
        if E.stamp_sel is not None or t in (2, 5, 8, 11, 14, 17): E.stamp(f"G2t{t}")
        if t == PUB4 - 1:
            if E.vm.count("HS3") < 4: print(f"; note: flushing GELU(P3) at t={t}: {st.pending_cost()} slots", file=sys.stderr);
            while E.vm.count("HS3") < 4:
                st.tick(); E.raw("s_nop 0"); st.fill(E, 2)
        if t == PUB5 - 1:
            if not qadded:
                st.flush(E); G.quarter(bufq, hstoreq_fn); qadded = True
            if st.pending(): print(f"; note: flushing GELU(PQ) at t={t}: {st.pending_cost()} slots", file=sys.stderr)
            st.flush(E)
    assert side.empty(), "side ops left"
    E.raw("; MARK_END")
    E.skew_on = False
    if G2X: final8(E, st, opt)
    else: final(E, opt)
    return finish(E)

FIRST = [0, 5, 10, 14]
CNT = [5, 5, 4, 4]
RED = 73728
V_PUB2 = 2
KEEP = 128
RCV = 40

def final_setup(E):
    T0, T1 = V_T0, V_T1
    L = V_LANE
    G = []
    G.append(f"s_mul_i32 {s('t0')}, {s('wave')}, 18432\ns_add_u32 {s('t0')}, {s('t0')}, {RED}\nv_add_u32 v{V_RED}, {s('t0')}, v{V_L16}")
    G.append(f"s_xor_b32 {s('t1')}, {s('wave')}, 2\ns_mul_i32 {s('t1')}, {s('t1')}, 18432\ns_add_u32 {s('t1')}, {s('t1')}, {RED}\nv_add_u32 v{V_RED2}, {s('t1')}, v{V_L16}")
    G.append(f"s_lshl_b32 {s('t0')}, {s('mb')}, 3\ns_add_u32 {s('t0')}, {s('t0')}, {s('jj')}\ns_lshl_b32 {s('t0')}, {s('t0')}, 2\ns_add_u32 {s('t0')}, {s('t0')}, {s('wave')}\n"
             f"s_mul_i32 {s('t0')}, {s('t0')}, {16*5120}\ns_add_u32 {s('t0')}, {s('t0')}, {WS_P}\n"
             f"s_mul_i32 {s('t1')}, {s('sk')}, 5120\ns_add_u32 {s('pst')}, {s('t0')}, {s('t1')}\n"
             f"s_mul_i32 {s('t1')}, {s('sk')}, {4*5120}\ns_add_u32 {s('pld')}, {s('t0')}, {s('t1')}")
    G.append(f"s_lshl_b32 {s('t0')}, {s('mb')}, 8\ns_and_b32 {s('t1')}, {s('jj')}, 1\ns_lshl_b32 {s('t1')}, {s('t1')}, 7\ns_add_u32 {s('t0')}, {s('t0')}, {s('t1')}\n"
             f"s_lshl_b32 {s('t1')}, {s('th')}, 6\ns_add_u32 {s('t0')}, {s('t0')}, {s('t1')}\ns_lshl_b32 {s('t1')}, {s('kh')}, 5\ns_add_u32 {s('t0')}, {s('t0')}, {s('t1')}\n"
             f"s_mul_i32 {s('t0')}, {s('t0')}, {XROW}\ns_lshr_b32 {s('t1')}, {s('jj')}, 1\ns_mul_i32 {s('t1')}, {s('t1')}, 288\ns_add_u32 {s('outb')}, {s('t0')}, {s('t1')}")
    G.append(f"v_and_b32 v{T0}, 15, v{L}\nv_mul_u32_u24 v{T0}, {XROW}, v{T0}")
    G.append(f"v_lshrrev_b32 v{T1}, 4, v{L}\nv_lshl_add_u32 v{V_OUT}, v{T1}, 3, v{T0}")
    G.append(f"s_lshl_b32 {s('t0')}, {s('mb')}, 5\ns_add_u32 {s('t0')}, {s('t0')}, {s('jj')}\ns_lshl_b32 {s('t0')}, {s('t0')}, 2\ns_add_u32 {s('t0')}, {s('t0')}, {s('wave')}\n"
             f"s_lshl_b32 {s('t0')}, {s('t0')}, 7\ns_add_u32 {s('t0')}, {s('t0')}, {WS_F + 32768}\n"
             f"s_lshl_b32 {s('t1')}, {s('sk')}, 12\ns_add_u32 {s('pf2')}, {s('t0')}, {s('t1')}\n"
             f"v_min_u32 v{T0}, 3, v{L}\n"
             f"v_lshlrev_b32 v{T0}, 12, v{T0}\nv_add_u32 v{V_FO}, {s('t0')}, v{T0}")
    G.append(f"v_cmp_eq_u32 vcc, 0, v{L}\nv_mov_b32 v{T0}, {OOB}\nv_mov_b32 v{T1}, 0\ns_nop 0\nv_cndmask_b32 v{V_PUB2}, v{T0}, v{T1}, vcc")
    return G

def red_write(E, dt):
    for j in range(2):
        E.ds(f"ds_write_b128 v{V_RED}, {ar(acc2(dt, 2 + j))} offset:{(2*dt+j)*1024}")
def keep_reads(dt):
    return [f"v_accvgpr_read_b32 v{KEEP + (2*dt+j)*4 + r}, a{acc2(dt, j) + r}" for j in range(2) for r in range(4)]

def final(E, opt):
    R = E.raw
    R("s_nop 7")
    for dt in (6, 7, 8):
        red_write(E, dt)
        for x in keep_reads(dt): R(x)
    E.wait(ds=0, barrier=True)
    for ph in range(18):
        E.ds(f"ds_read_b128 {vr(RCV + 4*ph)}, v{V_RED2} offset:{ph*1024}")
    base_vm = list(E.vm); base_done = E.vm_done; base_ds = E.ds_out
    labs = [E.label(f"fin{k}") for k in range(4)]
    end = E.label("finend")
    R(f"s_cmp_eq_u32 {s('sk')}, 1\ns_cbranch_scc1 {labs[1]}\ns_cmp_eq_u32 {s('sk')}, 2\ns_cbranch_scc1 {labs[2]}\ns_cmp_eq_u32 {s('sk')}, 3\ns_cbranch_scc1 {labs[3]}")
    for sv in range(4):
        E.vm = list(base_vm); E.vm_done = base_done; E.ds_out = base_ds
        R(f"{labs[sv]}:")
        own = list(range(FIRST[sv], FIRST[sv] + CNT[sv]))
        XBF = OPT.get("xbf", 1)
        if OPT.get("xtag", 0):
            final_tagged(E, sv, own)
            if sv < 3: R(f"s_branch {end}")
            continue
        order = [ph for ph in range(18) if ph not in own] + own
        done_ds = -1
        for n, ph in enumerate(order):
            need = ph
            if need > done_ds:
                left = 17 - need
                E.wait(ds=min(left, E.ds_out))
                done_ds = need
            for r in range(4):
                R(f"v_add_f32 v{KEEP + 4*ph + r}, v{KEEP + 4*ph + r}, v{RCV + 4*ph + r}")
            if ph not in own:
                dest = max(d for d in range(4) if FIRST[d] <= ph)
                sig = ph - FIRST[dest]
                if not XBF:
                    R(f"s_add_u32 {s('so')}, {s('pst')}, {dest*4*5120 + sig*1024}")
                    E.vmem(f"buffer_store_dwordx4 {vr(KEEP + 4*ph)}, v{V_L16}, {srd(SRD_W)}, {s('so')} offen sc1", "PSx")
                else:
                    pb = RCV + 4 * (ph - (sig & 1)) + 2 * (sig & 1)
                    R(f"v_cvt_pk_bf16_f32 v{pb}, v{KEEP+4*ph}, v{KEEP+4*ph+1}")
                    R(f"v_cvt_pk_bf16_f32 v{pb+1}, v{KEEP+4*ph+2}, v{KEEP+4*ph+3}")
                    lastsig = CNT[dest] - 1
                    if (sig & 1) == 1 or sig == lastsig:
                        base = RCV + 4 * (ph - (sig & 1))
                        R(f"s_add_u32 {s('so')}, {s('pst')}, {dest*4*5120 + (sig >> 1)*1024}")
                        E.vmem(f"buffer_store_dwordx4 {vr(base)}, v{V_L16}, {srd(SRD_W)}, {s('so')} offen sc1", "PSx")
        E.stamp("F_red")
        R("s_waitcnt vmcnt(0)")
        E.vm_done = len(E.vm)
        E.stamp("F_ps")
        publish_op(6, V_PUB2, "pf2")(E)
        poll_check(E, "f", 6, voff=V_FO, issued=False)
        E.vm_done = len(E.vm)
        E.stamp("F_poll")
        srcs = [k for k in range(4) if k != sv]
        LD = RCV
        if not XBF:
            for sig in range(CNT[sv]):
                for n, src in enumerate(srcs):
                    R(f"s_add_u32 {s('so')}, {s('pld')}, {src*5120 + sig*1024}")
                    E.vmem(f"buffer_load_dwordx4 {vr(LD + (sig*3+n)*4)}, v{V_L16}, {srd(SRD_W)}, {s('so')} offen sc1", f"PL{sig}" if n == 2 else "PLx")
        else:
            npair = (CNT[sv] + 1) // 2
            for k in range(npair):
                for n, src in enumerate(srcs):
                    R(f"s_add_u32 {s('so')}, {s('pld')}, {src*5120 + k*1024}")
                    E.vmem(f"buffer_load_dwordx4 {vr(LD + (k*3+n)*4)}, v{V_L16}, {srd(SRD_W)}, {s('so')} offen sc1", f"PL{k}" if n == 2 else "PLx")
        for sig in range(CNT[sv]):
            ph = FIRST[sv] + sig
            dt, j = ph >> 1, ph & 1
            R(f"s_add_u32 {s('so')}, {s('outb')}, {dt*32 + j*16*XROW}")
            b = KEEP + 4 * ph
            if not XBF:
                E.wait(vm=f"PL{sig}")
                for r in range(4):
                    a = [LD + (sig*3+n)*4 + r for n in range(3)]
                    R(f"v_add_f32 v{a[0]}, v{a[0]}, v{a[1]}")
                    R(f"v_add_f32 v{b+r}, v{b+r}, v{a[2]}")
                    R(f"v_add_f32 v{b+r}, v{b+r}, v{a[0]}")
            else:
                E.wait(vm=f"PL{sig >> 1}")
                TMP = 100
                for n in range(3):
                    for h in range(2):
                        src_r = LD + ((sig >> 1)*3+n)*4 + 2*(sig & 1) + h
                        R(f"v_lshlrev_b32 v{TMP}, 16, v{src_r}")
                        R(f"v_and_b32 v{TMP+1}, 0xffff0000, v{src_r}")
                        R(f"v_add_f32 v{b+2*h}, v{b+2*h}, v{TMP}")
                        R(f"v_add_f32 v{b+2*h+1}, v{b+2*h+1}, v{TMP+1}")
            R(f"v_cvt_pk_bf16_f32 v{b}, v{b}, v{b+1}")
            R(f"v_cvt_pk_bf16_f32 v{b+1}, v{b+2}, v{b+3}")
            E.vmem(f"buffer_store_dwordx2 {vr(b, 2)}, v{V_OUT}, {srd(SRD_O)}, {s('so')} offen{' sc1' if OPT.get('outsc1', 0) else ''}", "OUT")
        if sv < 3: R(f"s_branch {end}")
    R(f"{end}:")

def final_tagged(E, sv, own):
    R = E.raw
    GR = 200
    ng = lambda d: (2 * CNT[d] + 2) // 3
    gbase = {}; nb_ = GR
    for d in range(4):
        if d == sv: continue
        for g in range(ng(d)): gbase[(d, g)] = nb_; nb_ += 4
    assert nb_ <= 256
    R(f"s_add_u32 {s('t2')}, {s('nonce')}, 7")
    for b in gbase.values(): R(f"v_mov_b32 v{b+3}, {s('t2')}")
    order = [ph for ph in range(18) if ph not in own] + own
    done_ds = -1
    for ph in order:
        if ph > done_ds:
            E.wait(ds=min(17 - ph, E.ds_out)); done_ds = ph
        for r in range(4):
            R(f"v_add_f32 v{KEEP + 4*ph + r}, v{KEEP + 4*ph + r}, v{RCV + 4*ph + r}")
        if ph in own: continue
        dest = max(d for d in range(4) if FIRST[d] <= ph)
        sig = ph - FIRST[dest]
        for h in range(2):
            jx = 2 * sig + h
            g, pos = divmod(jx, 3)
            R(f"v_cvt_pk_bf16_f32 v{gbase[(dest, g)] + pos}, v{KEEP+4*ph+2*h}, v{KEEP+4*ph+2*h+1}")
            if pos == 2 or jx == 2 * CNT[dest] - 1:
                R(f"s_add_u32 {s('so')}, {s('pst')}, {dest*4*5120 + g*1024}")
                E.vmem(f"buffer_store_dwordx4 {vr(gbase[(dest, g)])}, v{V_L16}, {srd(SRD_W)}, {s('so')} offen sc1", "PSx")
    E.stamp("F_red")
    srcs = [k for k in range(4) if k != sv]
    G_ = ng(sv)
    LD = RCV
    again = E.label("tagain"); got = E.label("tgot")
    R(f"s_mov_b32 {s('spin')}, 0")
    R(f"{again}:")
    for g in range(G_):
        for n, src in enumerate(srcs):
            R(f"s_add_u32 {s('so')}, {s('pld')}, {src*5120 + g*1024}")
            R(f"buffer_load_dwordx4 {vr(LD + (g*3+n)*4)}, v{V_L16}, {srd(SRD_W)}, {s('so')} offen sc1")
    R("s_waitcnt vmcnt(0)")
    tags = [LD + k * 4 + 3 for k in range(3 * G_)]
    R(f"v_xor_b32 v{V_FL}, {s('t2')}, v{tags[0]}")
    for k in range(1, len(tags)):
        R(f"v_xor_b32 v{V_T0}, {s('t2')}, v{tags[k]}")
        R(f"v_or_b32 v{V_FL}, v{V_FL}, v{V_T0}")
    R(f"v_cmp_ne_u32 vcc, 0, v{V_FL}")
    R(f"s_add_u32 {s('spin')}, {s('spin')}, 1")
    R(f"s_cmp_gt_u32 {s('spin')}, {SPIN_MAX}")
    R(f"s_cbranch_scc1 {got}")
    if not OPT.get("nopoll"): R(f"s_cbranch_vccnz {again}")
    R(f"{got}:")
    E.vm_done = len(E.vm)
    E.stamp("F_poll")
    TMP = 100
    for sig in range(CNT[sv]):
        ph = FIRST[sv] + sig
        dt, j = ph >> 1, ph & 1
        R(f"s_add_u32 {s('so')}, {s('outb')}, {dt*32 + j*16*XROW}")
        b = KEEP + 4 * ph
        for n in range(3):
            for h in range(2):
                g, pos = divmod(2 * sig + h, 3)
                src_r = LD + (g*3+n)*4 + pos
                R(f"v_lshlrev_b32 v{TMP}, 16, v{src_r}")
                R(f"v_and_b32 v{TMP+1}, 0xffff0000, v{src_r}")
                R(f"v_add_f32 v{b+2*h}, v{b+2*h}, v{TMP}")
                R(f"v_add_f32 v{b+2*h+1}, v{b+2*h+1}, v{TMP+1}")
        R(f"v_cvt_pk_bf16_f32 v{b}, v{b}, v{b+1}")
        R(f"v_cvt_pk_bf16_f32 v{b+1}, v{b+2}, v{b+3}")
        E.vmem(f"buffer_store_dwordx2 {vr(b, 2)}, v{V_OUT}, {srd(SRD_O)}, {s('so')} offen", "OUT")

FIRST8 = [0, 5, 10, 15, 20, 24, 28, 32]
CNT8 = [5, 5, 5, 5, 4, 4, 4, 4]
PK8 = 128
P8_SLOT = 3072
def final8_setup():
    T0, T1 = V_T0, V_T1
    L = V_LANE
    G = []
    G.append(f"s_lshl_b32 {s('phi0')}, {s('sk')}, 1\ns_add_u32 {s('phi0')}, {s('phi0')}, {s('t5')}\n"
             f"s_and_b32 {s('t1')}, {s('jj')}, 3\ns_lshl_b32 {s('t0')}, {s('mb')}, 2\ns_add_u32 {s('t0')}, {s('t0')}, {s('t1')}\n"
             f"s_lshl_b32 {s('pf2')}, {s('t0')}, 3\n"
             f"s_lshl_b32 {s('t0')}, {s('t0')}, 2\ns_add_u32 {s('t0')}, {s('t0')}, {s('wave')}\ns_mul_i32 {s('t0')}, {s('t0')}, {64*P8_SLOT}\ns_add_u32 {s('t0')}, {s('t0')}, {WS_P}\n"
             f"s_mul_i32 {s('t1')}, {s('phi0')}, {P8_SLOT}\ns_add_u32 {s('pst')}, {s('t0')}, {s('t1')}\n"
             f"s_mul_i32 {s('t1')}, {s('phi0')}, {8*P8_SLOT}\ns_add_u32 {s('pld')}, {s('t0')}, {s('t1')}")
    G.append(f"s_lshl_b32 {s('t0')}, {s('pf2')}, 2\ns_add_u32 {s('t0')}, {s('t0')}, {s('wave')}\ns_lshl_b32 {s('t0')}, {s('t0')}, 7\ns_add_u32 {s('t0')}, {s('t0')}, {WS_F + 32768}\n"
             f"s_lshl_b32 {s('t1')}, {s('phi0')}, 9\ns_add_u32 {s('pf2')}, {s('t0')}, {s('t1')}\n"
             f"v_min_u32 v{T0}, 7, v{L}\nv_lshlrev_b32 v{T0}, 9, v{T0}\nv_add_u32 v{V_FO}, {s('t0')}, v{T0}")
    G.append(f"s_lshl_b32 {s('t0')}, {s('mb')}, 2\ns_add_u32 {s('t0')}, {s('t0')}, {s('wave')}\ns_mul_i32 {s('t0')}, {s('t0')}, {64*XROW}\n"
             f"s_and_b32 {s('t1')}, {s('jj')}, 3\ns_mul_i32 {s('t1')}, {s('t1')}, 288\ns_add_u32 {s('outb')}, {s('t0')}, {s('t1')}")
    G.append(f"v_and_b32 v{T0}, 15, v{L}\nv_mul_u32_u24 v{T0}, {XROW}, v{T0}")
    G.append(f"v_lshrrev_b32 v{T1}, 4, v{L}\nv_lshl_add_u32 v{V_OUT}, v{T1}, 3, v{T0}")
    G.append(f"v_cmp_eq_u32 vcc, 0, v{L}\nv_mov_b32 v{T0}, {OOB}\nv_mov_b32 v{T1}, 0\ns_nop 0\nv_cndmask_b32 v{V_PUB2}, v{T0}, v{T1}, vcc")
    G.append(f"s_mul_i32 {s('t0')}, {s('phi0')}, 5\ns_lshl_b32 {s('t1')}, {s('phi0')}, 2\ns_add_u32 {s('t1')}, {s('t1')}, 4\ns_cmp_lt_u32 {s('phi0')}, 4\n"
             f"s_cselect_b32 {s('phi0')}, {s('t0')}, {s('t1')}\ns_cselect_b32 {s('hldB')}, 5, 4")
    return G

def store_index8(ph):
    dest = max(d for d in range(8) if FIRST8[d] <= ph)
    sig = ph - FIRST8[dest]
    idx = sum((CNT8[d] + 1) // 2 for d in range(dest)) + (sig >> 1)
    return dest, sig, idx

_pk8_items = {}
def final8_pack(st, phis):
    for ph in phis:
        dt, tt = ph >> 2, ph & 3
        dest, sig, idx = store_index8(ph)
        a = acc2(dt, tt)
        tmp = 40 + 4 * (ph % 4)
        prev = _pk8_items.get(("tmp", ph % 4))
        rds = [st.add(f"v_accvgpr_read_b32 v{tmp+r}, a{a+r}", 1, [(prev, 0)] if prev else []) for r in range(4)]
        d = PK8 + 4 * idx + 2 * (sig & 1)
        c0 = st.add(f"v_cvt_pk_bf16_f32 v{d}, v{tmp}, v{tmp+1}", 1, [(rds[0], 0), (rds[1], 0)])
        c1 = st.add(f"v_cvt_pk_bf16_f32 v{d+1}, v{tmp+2}, v{tmp+3}", 1, [(rds[2], 0), (rds[3], 0)])
        _pk8_items[("tmp", ph % 4)] = c1
        _pk8_items[("c", ph)] = (c0, c1)
        if (sig & 1) == 1 or sig == CNT8[dest] - 1:
            deps = [(c0, 1), (c1, 1)]
            if sig & 1: deps += [(x, 1) for x in _pk8_items[("c", ph - 1)]]
            def f(E, dest=dest, sig=sig, idx=idx):
                E.raw(f"s_add_u32 {s('so')}, {s('pst')}, {dest*8*P8_SLOT + (sig >> 1)*1024}")
                E.vmem(f"buffer_store_dwordx4 {vr(PK8 + 4*idx)}, v{V_L16}, {srd(SRD_W)}, {s('so')} offen sc1", "PSx")
            st.add(f, 2, deps)

def final8(E, st, opt):
    R = E.raw
    R("s_nop 7")
    final8_pack(st, range(24, 36))
    while st.pending():
        st.tick(); n = st.fill(E, 6)
        if n == 0: R("s_nop 0")
    _pk8_items.clear()
    E.stamp("F_red")
    R("s_waitcnt vmcnt(0)")
    E.vm_done = len(E.vm)
    E.stamp("F_ps")
    publish_op(6, V_PUB2, "pf2")(E)
    poll_check(E, "f", 6, voff=V_FO, issued=False)
    E.vm_done = len(E.vm)
    E.stamp("F_poll")
    LD = 32
    for k in range(3):
        for src in range(8):
            R(f"s_add_u32 {s('so')}, {s('pld')}, {src*P8_SLOT + k*1024}")
            E.vmem(f"buffer_load_dwordx4 {vr(LD + (src*3+k)*4)}, v{V_L16}, {srd(SRD_W)}, {s('so')} offen sc1", f"PL{k}" if src == 7 else "PLx")
    ACC = 128; TMP = 160
    for sig in range(5):
        k, hf = sig >> 1, sig & 1
        R(f"s_add_u32 {s('t0')}, {s('phi0')}, {sig}\ns_lshr_b32 {s('t1')}, {s('t0')}, 2\ns_lshl_b32 {s('t1')}, {s('t1')}, 5\ns_and_b32 {s('t0')}, {s('t0')}, 3\ns_mul_i32 {s('t0')}, {s('t0')}, {16*XROW}")
        R(f"s_add_u32 {s('so')}, {s('outb')}, {s('t1')}\ns_add_u32 {s('so')}, {s('so')}, {s('t0')}")
        if sig == 4: R(f"s_cmp_lt_u32 4, {s('hldB')}\ns_cselect_b32 {s('so')}, {s('so')}, {OOB}")
        E.wait(vm=f"PL{k}")
        b = ACC + 4 * sig
        for src in range(8):
            r0 = LD + (src*3+k)*4 + 2*hf
            for h in range(2):
                if src == 0:
                    R(f"v_lshlrev_b32 v{b+2*h}, 16, v{r0+h}")
                    R(f"v_and_b32 v{b+2*h+1}, 0xffff0000, v{r0+h}")
                else:
                    tm = TMP + 2 * ((src + h) % 4)
                    R(f"v_lshlrev_b32 v{tm}, 16, v{r0+h}")
                    R(f"v_and_b32 v{tm+1}, 0xffff0000, v{r0+h}")
                    R(f"v_add_f32 v{b+2*h}, v{b+2*h}, v{tm}")
                    R(f"v_add_f32 v{b+2*h+1}, v{b+2*h+1}, v{tm+1}")
        R(f"v_cvt_pk_bf16_f32 v{b}, v{b}, v{b+1}")
        R(f"v_cvt_pk_bf16_f32 v{b+1}, v{b+2}, v{b+3}")
        E.vmem(f"buffer_store_dwordx2 {vr(b, 2)}, v{V_OUT}, {srd(SRD_O)}, {s('so')} offen", "OUT")

def ablate(E):
    if not any(OPT.get(k) for k in ("x_nobar", "x_novm", "x_nogelu", "x_nods", "x_nowait", "x_nod", "x_noh", "x_novmw")): return
    out = []; on = False
    for l in E.L:
        if l.startswith("; MARK_ABL"): on = True
        if l.startswith("; MARK_END"): on = False
        if on:
            if OPT.get("x_nobar") and l.startswith("s_barrier"): continue
            if OPT.get("x_novm") and l.startswith("buffer_"): continue
            if OPT.get("x_novm") and l.startswith("s_waitcnt vmcnt"):
                l = re.sub(r"vmcnt\(\d+\) ?", "", l)
                if l.strip() == "s_waitcnt": continue
            if OPT.get("x_nod") and l.startswith("buffer_load_dwordx4 v") and l.endswith("lds"): continue
            if OPT.get("x_noh") and l.startswith("buffer_load_dwordx") and " a[" in l: continue
            if OPT.get("x_novmw") and l.startswith("s_waitcnt vmcnt"):
                l = re.sub(r"vmcnt\(\d+\) ?", "", l)
                if l.strip() == "s_waitcnt": continue
            if OPT.get("x_nogelu") and re.match(r"v_(mul_f32|fma_f32|exp_f32|rcp_f32|add_f32|cvt_pk)", l): continue
            if OPT.get("x_nods") and l.startswith("ds_read"): continue
        out.append(l)
    E.L = out

def finish(E):
    ablate(E)
    if E.do_stamp:
        E.raw("s_waitcnt vmcnt(0)")
        E.stamp("end")
        E.raw(f"s_lshl_b32 {s('t0')}, s2, 2\ns_add_u32 {s('t0')}, {s('t0')}, {s('wave')}\ns_lshl_b32 {s('t0')}, {s('t0')}, 7\ns_add_u32 {s('t0')}, {s('t0')}, {60 << 20}")
        E.raw(f"v_mov_b32 v{V_T1}, 0")
        for i in range(len(E.stamps)):
            E.raw(f"v_mov_b32 v{V_T0}, s{86+i}")
            E.raw(f"buffer_store_dword v{V_T0}, v{V_T1}, {srd(SRD_W)}, {s('t0')} offen offset:{4*i}")
        E.raw("s_waitcnt vmcnt(0)")
        print("STAMPS=" + ",".join(E.stamps), file=sys.stderr)
    E.raw("L_end:")
    E.raw("s_endpgm")
    for x in E.slow: E.raw(x)
    E.raw("s_endpgm")
    E.raw("L_codeend:")
    return E

def emit_file(opt):
    E = build(opt)
    hdr = open("standalone__glu_gated_geglu__prompt.s.ref").read().split("\n") if opt.get("hdr", True) else []
    out = []
    for l in hdr:
        if l.startswith("; @launch") or l.startswith("; Override") or l.startswith("; grid=") : continue
        if l.startswith(";"): out.append(l)
        else: break
    out.append(f"; @launch grid=(256,1,1) block=(256,1,1) lds={LDS_BYTES}")
    out.append('.amdgcn_target "amdgcn-amd-amdhsa--gfx950"')
    out.append(".text")
    out.append(f".globl {KNAME}")
    out.append(".p2align 8")
    out.append(f".type {KNAME},@function")
    out.append(f"{KNAME}:")
    out += E.L
    out.append(".fill 64, 4, 0xbf800000")
    out.append('.section .rodata,"a"')
    out.append(".p2align 6")
    out.append(f".amdhsa_kernel {KNAME}")
    out += ["  .amdhsa_next_free_vgpr 512", "  .amdhsa_next_free_sgpr 102", "  .amdhsa_accum_offset 256",
            "  .amdhsa_group_segment_fixed_size 0", "  .amdhsa_kernarg_size 56", "  .amdhsa_user_sgpr_count 2",
            "  .amdhsa_user_sgpr_kernarg_segment_ptr 1", "  .amdhsa_system_sgpr_workgroup_id_x 1",
            "  .amdhsa_float_denorm_mode_32 3",
            ".end_amdhsa_kernel"]
    return "\n".join(out) + "\n"

if __name__ == "__main__":
    opt = {}
    path = sys.argv[1] if len(sys.argv) > 1 else "k.s"
    for a in sys.argv[2:]:
        k, v = a.split("=")
        opt[k] = int(v) if v.lstrip("-").isdigit() else v
    open(path, "w").write(emit_file(opt))
```
